```python
import torch

def _softmax(x, axis=-1):
    return torch.softmax(x, dim=axis)

def _gelu(x):
    return torch.nn.functional.gelu(x, approximate='tanh')

def _silu(x):
    return torch.nn.functional.silu(x)

def _sigmoid(x):
    return torch.sigmoid(x)

def _layernorm(x, axis=-1, eps=1e-05):
    m = x.mean(dim=axis, keepdim=True)
    v = x.var(dim=axis, keepdim=True, unbiased=False)
    return (x - m) / torch.sqrt(v + eps)

def _scatter_add(tgt, idx, src, axis=0):
    return tgt.clone().index_add_(axis, idx, src)

def _segment_sum(src, seg, n):
    out = torch.zeros((n,) + src.shape[1:], dtype=src.dtype)
    return out.index_add_(0, seg, src)

def _pad(x, pw):
    flat = tuple((v for pair in reversed(pw) for v in pair))
    return torch.nn.functional.pad(x, flat)
kernel_name = 'adaLN_cond__mha_block_cached__glu_gated_bilinear__prompt'

def setup_inputs():

    _w = lambda a: (lambda t: t.to(torch.bfloat16) if t.is_floating_point() else t)(torch.as_tensor(a))

    def _A_setup():
        B, Sq, D = (1, 2048, 512)
        H, Sk, Dh = (32, 2048, 128)
        return {'x': _w((lambda *s: torch.randn(*s, dtype=torch.bfloat16) * 0.1)(B, Sq, D)), 'k_cache': _w((lambda *s: torch.randn(*s, dtype=torch.bfloat16) * 0.8)(B, H, Sk, Dh)), 'v_cache': _w((lambda *s: torch.randn(*s, dtype=torch.bfloat16) * 3.2)(B, H, Sk, Dh)), 'wq': _w((lambda *s: torch.randn(*s, dtype=torch.bfloat16) * 0.8)(D, H * Dh) * D ** (-0.5)), 'wo': _w((lambda *s: torch.randn(*s, dtype=torch.bfloat16) * 3.2)(H * Dh, D) * (H * Dh) ** (-0.5))}
    _A_in = _A_setup()

    def _B_setup():
        B, S, D, F = (1, 2048, 512, 1792)
        return {'x': _w((lambda *s: torch.randn(*s, dtype=torch.bfloat16) * 0.1)(B, S, D)), 'w_gate': _w((lambda *s: torch.randn(*s, dtype=torch.bfloat16) * 3.2)(D, F) * D ** (-0.5)), 'w_up': _w((lambda *s: torch.randn(*s, dtype=torch.bfloat16) * 3.2)(D, F) * D ** (-0.5)), 'w_down': _w((lambda *s: torch.randn(*s, dtype=torch.bfloat16) * 3.2)(F, D) * F ** (-0.5))}
    _B_in = _B_setup()
    return {'A_x': _A_in['x'], 'A_k_cache': _A_in['k_cache'], 'A_v_cache': _A_in['v_cache'], 'A_wq': _A_in['wq'], 'A_wo': _A_in['wo'], 'B_x': _B_in['x'], 'B_w_gate': _B_in['w_gate'], 'B_w_up': _B_in['w_up'], 'B_w_down': _B_in['w_down'], 'c': _w((lambda *s: torch.randn(*s, dtype=torch.bfloat16) * 0.8)(1, 512) * 8.0), 'w_mod': _w((lambda *s: torch.randn(*s, dtype=torch.bfloat16) * 0.8)(512, 6 * 512) * 512 ** (-0.5) * 8.0)}

def reference(A_x, A_k_cache, A_v_cache, A_wq, A_wo, B_x, B_w_gate, B_w_up, B_w_down, c, w_mod):

    def _A_ref(x, k_cache, v_cache, wq, wo):
        B, Sq, D = x.shape
        H, Dh = (32, 128)
        q = (lambda x, *d: x.permute(*d))((x @ wq).reshape(B, Sq, H, Dh), 0, 2, 1, 3)
        scores = torch.einsum('bhqd,bhkd->bhqk', q, k_cache) * Dh ** (-0.5)
        p = _softmax(scores, axis=-1)
        o = torch.einsum('bhqk,bhkd->bhqd', p, v_cache)
        return (lambda x, *d: x.permute(*d))(o, 0, 2, 1, 3).reshape(B, Sq, H * Dh) @ wo

    def _B_ref(x, w_gate, w_up, w_down):
        g = torch.einsum('bsd,df->bsf', x, w_gate)
        u = torch.einsum('bsd,df->bsf', x, w_up)
        h = g * u
        return torch.einsum('bsf,fd->bsd', h, w_down)
    x = A_x
    mod = (_silu(c) @ w_mod).reshape(c.shape[0], 6, 1, -1)
    sa, ca, ga, sb, cb, gb = (mod[:, 0].clone(), mod[:, 1].clone(), mod[:, 2].clone(), mod[:, 3].clone(), mod[:, 4].clone(), mod[:, 5].clone())
    h = _layernorm(x, axis=-1) * (1 + ca) + sa
    x = x + ga * _A_ref(h, A_k_cache, A_v_cache, A_wq, A_wo)
    h = _layernorm(x, axis=-1) * (1 + cb) + sb
    x = x + gb * _B_ref(h, B_w_gate, B_w_up, B_w_down)
    return x
```

```python
NAME = 'adaLN_cond__mha_block_cached__glu_gated_bilinear__prompt'

class Asm:
    def __init__(self):
        self.o = []
    def e(self, *lines):
        for l in lines:
            if isinstance(l, (list, tuple)): self.e(*l)
            else: self.o.append(l)
    def text(self): return '\n'.join(self.o) + '\n'

def kernel_head(a, label):
    a.e('.text', f'.globl {label}', '.p2align 8', f'.type {label},@function', f'{label}:')

def kernel_desc(a, label, vgpr, accum, sgpr=102):
    a.e('.section .rodata,"a"', '.p2align 6', f'.amdhsa_kernel {label}',
        f'  .amdhsa_next_free_vgpr {vgpr}', f'  .amdhsa_next_free_sgpr {sgpr}', f'  .amdhsa_accum_offset {accum}',
        '  .amdhsa_group_segment_fixed_size 0', '  .amdhsa_kernarg_size 112', '  .amdhsa_user_sgpr_count 2',
        '  .amdhsa_user_sgpr_kernarg_segment_ptr 1', '  .amdhsa_system_sgpr_workgroup_id_x 1', '.end_amdhsa_kernel')

def srd(a, d, lo, hi, size, add=None):
    if add is None:
        a.e(f's_mov_b32 s{d}, s{lo}', f's_mov_b32 s{d+1}, s{hi}')
    else:
        a.e(f's_add_u32 s{d}, s{lo}, {add}', f's_addc_u32 s{d+1}, s{hi}, 0')
    a.e(f's_mov_b32 s{d+2}, {size}', f's_mov_b32 s{d+3}, 0x20000')

def V(b, n=1): return f'v{b}' if n == 1 else f'v[{b}:{b+n-1}]'
def A(b, n=1): return f'a{b}' if n == 1 else f'a[{b}:{b+n-1}]'
def S(b, n=1): return f's{b}' if n == 1 else f's[{b}:{b+n-1}]'
```

```python
from asmlib import *
from gen_pre import *
import re

S_ = [16, 48]; P_ = [80, 96]; CI = 112; VT = 128
KA = 144; VA = 148; DK = 156; DV = 160; LV = 162; ONES = 172; LM = 176; Q = 192
WA = 176; DW = 180; HV = 181
AO = 0; AK = 192; AV = 224
DELTA = 100.0
MF = 'v_mfma_f32_16x16x32_bf16'

class Sched:
    def __init__(self, a, age=8):
        self.a = a
        self.pend = []
        self.t = 0; self.age = age
    @staticmethod
    def regs(tok):
        m = re.match(r'([av])\[(\d+):(\d+)\]', tok)
        if m: return {(m.group(1), i) for i in range(int(m.group(2)), int(m.group(3))+1)}
        m = re.match(r'([av])(\d+)$', tok)
        if m: return {(m.group(1), int(m.group(2)))}
        return set()
    def need(self, ins):
        ops = [t.strip() for t in ins.split(None, 1)[1].split(',')]
        rs = set()
        for t in ops[1:3]: rs |= self.regs(t.split()[0])
        last = -1
        for i, p in enumerate(self.pend):
            if p[0] & rs: last = i
        if last < 0: return None
        while last + 1 < len(self.pend) and self.pend[last+1][1] <= self.t - self.age: last += 1
        return len(self.pend) - 1 - last
    def wait(self, n):
        n = min(n, 15)
        self.a.e(f's_waitcnt lgkmcnt({n})')
        self.pend = self.pend[len(self.pend)-n:] if n else []
    def emit_filler(self, ins):
        self.a.e(ins)
        if ins.startswith('ds_read') or ins.startswith('ds_bpermute'):
            self.pend.append((self.regs(ins.split(None, 1)[1].split(',')[0].strip()), self.t))
        elif ins.startswith('ds_'):
            self.pend.append((set(), self.t))
        elif ins.startswith('s_waitcnt') and 'lgkmcnt(0)' in ins:
            self.pend = []
    def run(self, mf, gaps, nextmf=None):
        n0 = self.need(mf[0]) if mf else None
        if n0 is not None: self.wait(n0)
        for g, m in enumerate(mf):
            self.a.e(m); self.t += 1
            nxt = mf[g+1] if g+1 < len(mf) else nextmf
            if nxt is not None:
                n = self.need(nxt)
                if n is not None: self.wait(n)
            for f in gaps[g]: self.emit_filler(f)
            if nxt is not None:
                n = self.need(nxt)
                if n is not None: self.wait(n)

def qk_mfmas(Sw, czero=False, order='kqt'):
    it = [(kb, qb, t) for kb in range(2) for qb in range(4) for t in range(4)] if order == 'kqt' else \
         [(kb, qb, t) for qb in range(4) for kb in range(2) for t in range(4)]
    r = []
    for kb, qb, t in it:
        d = Sw + 8*qb + 4*kb
        c = (('0' if czero else V(CI+4*qb, 4)) if t == 0 else V(d, 4))
        r.append(f'{MF} {V(d,4)}, {A(AK+16*kb+4*t,4)}, {V(Q+16*qb+4*t,4)}, {c}')
    return r

def pv_mfmas(Pr, XQ, first=False):
    r = []
    for db in range(8):
        for qb in range(4):
            o = AO + 16*db + 4*qb
            r.append(f'{MF} {A(o,4)}, {V(Pr+4*qb,4)}, {A(AV+4*db,4)}, {"0" if first else A(o,4)}')
    for qb in XQ:
        r.append(f'{MF} {V(LM+4*qb,4)}, {V(Pr+4*qb,4)}, {V(ONES,4)}, {"0" if first else V(LM+4*qb,4)}')
    return r

def vreads(base_reg, off):
    return [f'ds_read_b64_tr_b16 {A(AV+4*db+2*u,2)}, {V(base_reg+db)} offset:{off+4096*u}' for db in range(8) for u in range(2)]
def kreads(off):
    return [f'ds_read_b128 {A(AK+4*f,4)}, {V(KA+(f&3))} offset:{off+4096*(f>>2)}' for f in range(8)]

def sm_items(Sr, Pw, XQ):
    exps = [f'v_exp_f32 {V(Sr+e)}, {V(Sr+e)}' for e in range(32)]
    items = []
    for e in range(32):
        qb = e >> 3
        if qb not in XQ:
            l = LV + 2*qb + (e & 1)
            items.append((e, f'v_add_f32 {V(l)}, {V(l)}, {V(Sr+e)}'))
        if e & 1: items.append((e, f'v_cvt_pk_bf16_f32 {V(Pw+e//2)}, {V(Sr+e-1)}, {V(Sr+e)}'))
    return exps, items

def dma_group(isV, grp, m0s, soff):
    srd_ = 's[12:15]' if isV else 's[8:11]'
    st = f's_mov_b32 m0, {m0s}' if grp == 0 else f's_add_u32 m0, {m0s}, 4096'
    r = []
    for j in range(4):
        vo = DV + (j & 1) if isV else DK + j
        r.append(f'buffer_load_dwordx4 {V(vo)}, {srd_}, {soff} offen offset:{j*1024} lds')
    return st, r

def normal_slot(sc, opt, s, dmas, kread=True, first_pv=False, late_v=None):
    XQ = opt['XQ']
    par = s & 1
    mf = qk_mfmas(S_[par ^ 1]) + pv_mfmas(P_[par ^ 1], XQ, first_pv)
    N = len(mf)
    gaps = [[] for _ in range(N)]; cap = [0 if (g < 64 and g % 2 == 0) else 2 for g in range(N)]
    pre = [[] for _ in range(N)]
    exps, items = sm_items(S_[par], P_[par], XQ)
    for e in range(32): gaps[2*e].append(exps[e])
    vr = vreads(VA, ((s-1) % 8)*8192)
    for i, r in enumerate(vr): gaps[2*i+1].append(r); cap[2*i+1] -= 1
    if kread:
        for f, r in enumerate(kreads(((s+2) % 8)*8192)):
            g = opt['kpos'][f]; gaps[g].append(r); cap[g] -= 1
    if late_v is not None:
        for i, r in enumerate(late_v):
            db = i >> 1
            g = min(37 + 4*db + 2*(i & 1), N-1)
            gaps[g].append(r); cap[g] -= 1
    for n, (sal, ins) in enumerate(dmas):
        g = opt['dpos'][n]
        for k, x in enumerate(sal): pre[g-1-k].append(x)
        gaps[g].append(ins); cap[g] -= opt['dcost']
    q = list(items)
    for g in range(N):
        while q and cap[g] > 0 and 2*q[0][0] < g:
            gaps[g].append(q.pop(0)[1]); cap[g] -= 1
    gaps[N-1] += [x[1] for x in q]
    sc.run(mf, [pre[g] + gaps[g] for g in range(N)], nextmf=(qk_mfmas(S_[par])[0] if kread else None))

def packed(sc, mf, ds_at, exps, items, extra=None):
    N = len(mf)
    gaps = [[] for _ in range(N)]
    for g, r in ds_at: gaps[g].append(r)
    q = list(items); ne = len(exps)
    e = 0
    for g in range(N):
        k = 0
        while q and q[0][0] < e and k < 2:
            gaps[g].append(q.pop(0)[1]); k += 1
        if e < ne: gaps[g].append(exps[e]); e += 1
    assert e == ne
    if q: gaps[N-1] += ['s_nop 0'] + [x[1] for x in q]
    if extra:
        for g, x in extra: gaps[g].append(x)
    sc.run(mf, gaps)

def epoch_dmas(E, opt, mode='full'):
    p = E & 1
    r = []
    for isV in (0, 1):
        for grp in (0, 1):
            st, ins = dma_group(isV, grp, f's{30+2*isV+p}', f's{34+2*isV+grp}')
            for j, x in enumerate(ins):
                sal = [st] if j == 0 else []
                r.append([sal, x])
    return r

def stamp(a, opt, idx):
    if opt.get('stamps'):
        a.e(f's_memtime s[{64+2*idx}:{65+2*idx}]')

def gen_attn(a, opt=None):
    opt = dict(opt or {})
    opt.setdefault('XQ', [1, 3]); opt.setdefault('kpos', [33, 35, 37, 39, 41, 43, 45, 47])
    opt.setdefault('dpos', [49, 51, 53, 55, 57, 59, 61, 63]); opt.setdefault('dcost', 2); opt.setdefault('dsplit', [6, 5, 5, 0])
    XQ = opt['XQ']
    L = 'attn_kernel'
    kernel_head(a, L)
    a.e('s_cmp_ge_u32 s2, 256', f's_cbranch_scc1 {L}_end')
    stamp(a, opt, 0)
    if opt.get('stamps'): a.e('s_memrealtime s[90:91]')
    a.e('s_load_dwordx4 s[4:7], s[0:1], 8', 's_load_dwordx2 s[40:41], s[0:1], 24', 's_load_dwordx2 s[42:43], s[0:1], 104')
    a.e('v_lshrrev_b32 v1, 6, v0', 'v_and_b32 v2, 63, v0', 'v_readfirstlane_b32 s28, v1')
    a.e('s_and_b32 s44, s2, 7', 's_lshl_b32 s44, s44, 2', 's_lshr_b32 s45, s2, 3', 's_and_b32 s46, s45, 3', 's_add_u32 s44, s44, s46')
    a.e('s_lshr_b32 s45, s45, 2')
    a.e('s_lshl_b32 s45, s45, 2', 's_add_u32 s45, s45, s28')
    a.e('v_and_b32 v3, 15, v2', 'v_lshrrev_b32 v4, 4, v2')
    a.e('v_lshlrev_b32 v5, 2, v4', 'v_xor_b32 v5, v5, v3', 'v_lshlrev_b32 v5, 4, v5', f'v_lshl_add_u32 {V(DW)}, v4, 13, v5')
    a.e(f'v_lshlrev_b32 {V(HV)}, 4, v2')
    for j in range(4):
        a.e(f'v_add_u32 v6, {4*j}, v4', 'v_xor_b32 v6, v6, v3', 'v_lshlrev_b32 v6, 4, v6', f'v_lshl_add_u32 {V(DK+j)}, v4, 8, v6')
    a.e('s_waitcnt lgkmcnt(0)')
    a.e('s_lshl_b32 s46, s44, 19'); srd(a, 8, 4, 5, 524288, add='s46'); srd(a, 12, 6, 7, 524288, add='s46')
    a.e('s_lshl_b32 s46, s44, 8'); srd(a, 16, 40, 41, 0, add='s46'); a.e('s_sub_u32 s18, 4194304, s46')
    a.e('s_lshl_b32 s46, s45, 16', f's_add_u32 s46, s46, {WS_H}'); srd(a, 20, 42, 43, 65536, add='s46')
    a.e('s_lshl_b32 s46, s45, 19', 's_lshl_b32 s47, s44, 14', 's_add_u32 s46, s46, s47', f's_add_u32 s46, s46, {WS_O}'); srd(a, 24, 42, 43, 16384, add='s46')
    a.e('s_lshl_b32 s48, s28, 13')
    a.e('s_lshl_b32 s49, s28, 18')
    def wq_chunk(c):
        r = []
        for i in range(8):
            sal = []
            if i % 4 == 0: sal.append(f's_add_u32 m0, s48, {16384 + 32768*c + 4096*(i//4)}')
            sal.append(f's_add_u32 s50, s49, {c*128*8192 + 32768*i - 1024*(i & 3)}')
            r.append([sal, f'buffer_load_dwordx4 {V(DW)}, s[16:19], s50 offen offset:{1024*(i&3)} lds'])
        return r
    HB = [0, 64, 128, 0]
    def h_loads(ss):
        r = []
        for qb in range(4):
            for tt in range(4):
                sal = [f's_mov_b32 s51, {qb*16384 + ss*4096}'] if tt == 0 else []
                r.append([sal, f'buffer_load_dwordx4 {A(HB[ss]+16*qb+4*tt,4)}, {V(HV)}, s[20:23], s51 offen offset:{1024*tt}'])
        return r
    def emit_list(lst):
        for sal, ins in lst:
            a.e(sal)
            if sal and 'm0' in sal[-1]: a.e('s_nop 0')
            a.e(ins)
    emit_list(wq_chunk(0)); emit_list(h_loads(0))
    a.e('s_lshl_b32 s52, s28, 12', 's_mov_b32 m0, s52', 's_nop 0')
    for j in range(4): a.e(f'buffer_load_dwordx4 {V(DK+j)}, s[8:11], s52 offen offset:{1024*j} lds')
    emit_list(wq_chunk(1)); emit_list(h_loads(1))
    for j in range(2):
        a.e(f'v_add_u32 v6, {4*j}, v4', 'v_lshlrev_b32 v6, 1, v6', 'v_xor_b32 v6, v6, v3', 'v_lshlrev_b32 v6, 4, v6', f'v_lshl_add_u32 {V(DV+j)}, v4, 8, v6')
    a.e('v_xor_b32 v5, v3, v4', 'v_lshlrev_b32 v5, 4, v5', f'v_lshl_add_u32 {V(KA)}, v3, 8, v5')
    for t in range(1, 4): a.e(f'v_xor_b32 {V(KA+t)}, {t*64}, {V(KA)}')
    a.e('v_lshrrev_b32 v6, 2, v2', 'v_lshlrev_b32 v7, 8, v6', 'v_and_b32 v6, 7, v6', 'v_and_b32 v9, 3, v2', 'v_lshl_add_u32 v7, v9, 3, v7')
    for db in range(8):
        a.e(f'v_xor_b32 v10, {db}, v6', f'v_lshl_add_u32 v10, v10, 5, v7', f'v_add_u32 {V(VA+db)}, 0x10000, v10')
    a.e('v_bfe_u32 v6, v2, 2, 2', 'v_lshl_add_u32 v7, v4, 3, v6', 'v_lshlrev_b32 v7, 8, v7', 'v_add_u32 v7, 0x4000, v7', 'v_lshlrev_b32 v6, 2, v6')
    for tp in range(4):
        a.e(f'v_add_u32 v10, {4*tp}, v9', 'v_xor_b32 v10, v10, v6', f'v_lshl_add_u32 {V(WA+tp)}, v10, 4, v7')
    for i in range(4): a.e(f'v_mov_b32 {V(ONES+i)}, 0x3f803f80')
    for i in range(8): a.e(f'v_mov_b32 {V(LV+i)}, 0')
    for p in range(2):
        a.e(f's_add_u32 s53, s28, {6+4*p}', 's_and_b32 s53, s53, 7', f's_lshl_b32 s{30+p}, s53, 13')
        a.e(f's_add_u32 s53, s28, {3+4*p}', 's_and_b32 s53, s53, 7', 's_lshl_b32 s53, s53, 13', f's_add_u32 s{32+p}, s53, 65536')
    a.e(f's_add_u32 s34, s48, {6*8192}', 's_add_u32 s35, s34, 4096', f's_add_u32 s36, s48, {3*8192}', 's_add_u32 s37, s36, 4096')
    a.e('s_mov_b32 s39, 0')
    sc = Sched(a)
    QA = lambda qb, j: 16 + 32*qb + 4*j
    AR = lambda j: AK + 16*(j & 3)
    def a_reads(j):
        return [f'ds_read_b64_tr_b16 {A(AR(j)+4*tt+2*v,2)}, {V(WA+(j>>1))} offset:{tt*8192+v*1024+(j&1)*8}' for tt in range(4) for v in range(2)]
    a.e('s_waitcnt vmcnt(28)', 's_barrier')
    stamp(a, opt, 1)
    for j in range(2):
        for r in a_reads(j): sc.emit_filler(r)
    k25 = []
    st, ins = dma_group(0, 0, 's54', 's54'); k25 += [[[f's_add_u32 s54, s48, {2*8192}', st], ins[0]]] + [[[], x] for x in ins[1:]]
    st, ins = dma_group(0, 0, 's55', 's55'); k25 += [[[f's_add_u32 s55, s54, 4096', st], ins[0]]] + [[[], x] for x in ins[1:]]
    later = {0: wq_chunk(2) + h_loads(2) + wq_chunk(3), 1: h_loads(3), 2: [], 3: []}
    after_bar = {0: [], 1: k25, 2: [], 3: []}
    vm_at_bar = {0: 32, 1: 24, 2: 8, 3: None}
    for ss in range(4):
        mf = []; gaps = []
        lst = list(later[ss])
        for j in range(8):
            for qb in range(4):
                for tt in range(4):
                    c = '0' if (ss == 0 and tt == 0) else V(QA(qb, j), 4)
                    mf.append(f'{MF} {V(QA(qb,j),4)}, {A(AR(j)+4*tt,4)}, {A(HB[ss]+16*qb+4*tt,4)}, {c}')
                    gaps.append([])
            g0 = 16*j
            if j == 6:
                b = []
                if ss < 3: b = [f's_waitcnt vmcnt({vm_at_bar[ss]}) lgkmcnt(0)', 's_barrier'] + [f'v_add_u32 {V(WA+tp)}, 0x8000, {V(WA+tp)}' for tp in range(4)]
                else: b = ['s_waitcnt lgkmcnt(0)', 's_barrier']
                gaps[g0-1] += b
                lst = list(after_bar[ss])
            if j < 6: rd = a_reads(j+2)
            elif ss < 3: rd = a_reads(j-6)
            else: rd = kreads(0)[4*(j-6):4*(j-6)+4]
            for i, r in enumerate(rd): gaps[g0 + 2*i].append(r)
            for g in range(g0+1, g0+16, 2):
                if lst:
                    sal, ins = lst.pop(0)
                    gaps[g-1] = sal + gaps[g-1]
                    gaps[g].append(ins)
        assert not lst
        if ss == 3:
            pass
        sc.run(mf, gaps)
    stamp(a, opt, 2)
    a.e('s_cmp_eq_u32 s28, 0', f's_cbranch_scc1 {L}_nov')
    a.e('s_sub_u32 s54, s48, 8192', 's_add_u32 s55, s54, 4096', 's_add_u32 s56, s54, 65536')
    for grp in range(2):
        st, ins = dma_group(1, grp, 's56', f's{54+grp}'); a.e(st, 's_nop 0', ins)
    a.e(f'{L}_nov:')
    def cvtq(qb): return [f'v_cvt_pk_bf16_f32 {V(Q+16*qb+2*j+h)}, {V(QA(qb,j)+2*h)}, {V(QA(qb,j)+2*h+1)}' for j in range(8) for h in range(2)]
    a.e('s_nop 7')
    a.e(cvtq(0), 's_nop 1')
    mf = qk_mfmas(S_[0], czero=True, order='qkt')
    gaps = [[] for _ in mf]
    for qb in range(1, 4):
        cv = cvtq(qb)
        for i, x in enumerate(cv): gaps[8*(qb-1) + min(i//2, 6) if i < 14 else 8*(qb-1)+6].append(x)
        gaps[8*(qb-1)+7].append('s_nop 0')
    sc.run(mf, gaps)
    a.e('s_nop 3')
    for r in kreads(8192): sc.emit_filler(r)
    S0 = S_[0]
    for qb in range(4):
        b = S0 + 8*qb
        a.e(f'v_max3_f32 {V(8+qb)}, {V(b)}, {V(b+1)}, {V(b+2)}', f'v_max3_f32 {V(12+qb)}, {V(b+3)}, {V(b+4)}, {V(b+5)}')
    for qb in range(4):
        b = S0 + 8*qb
        a.e(f'v_max3_f32 {V(8+qb)}, {V(8+qb)}, {V(b+6)}, {V(b+7)}')
    for qb in range(4): a.e(f'v_max_f32 {V(8+qb)}, {V(8+qb)}, {V(12+qb)}')
    for perm in ('32', '16'):
        for qb in range(4): a.e(f'v_mov_b32 {V(12+qb)}, {V(8+qb)}')
        a.e('s_nop 0')
        for qb in range(4): a.e(f'v_permlane{perm}_swap_b32 {V(8+qb)}, {V(12+qb)}')
        a.e('s_nop 0')
        for qb in range(4): a.e(f'v_max_f32 {V(8+qb)}, {V(8+qb)}, {V(12+qb)}')
    for qb in range(4): a.e(f'v_sub_f32 {V(CI+4*qb)}, {f32hex(-opt.get("delta", DELTA))}, {V(8+qb)}')
    for qb in range(4):
        for i in range(1, 4): a.e(f'v_mov_b32 {V(CI+4*qb+i)}, {V(CI+4*qb)}')
    for e in range(32): a.e(f'v_add_f32 {V(S0+e)}, {V(S0+e)}, {V(CI+4*(e>>3))}')
    for db in range(8): a.e(f'v_subrev_u32 {V(VT+db)}, 0x10000, {V(VA+db)}')
    a.e('s_waitcnt vmcnt(0) lgkmcnt(0)', 's_barrier'); sc.pend = []
    stamp(a, opt, 3)
    def adv():
        return ['s_add_u32 s34, s34, 32768', 's_add_u32 s35, s35, 32768', 's_add_u32 s36, s36, 32768', 's_add_u32 s37, s37, 32768']
    def epoch(E, kind):
        d = epoch_dmas(E, opt)
        if kind == 'e14':
            d = d[8:]
        if kind == 'e15': d = []
        split = opt['dsplit']
        for sl in range(4):
            s = 4*E + sl
            n = split[sl]
            dm = d[:n]; d = d[n:]
            if kind == 'e14' and sl == 0:
                a.e('s_cmp_eq_u32 s28, 3', f's_cbranch_scc1 {L}_e14d', 's_cmp_eq_u32 s28, 2', f's_cbranch_scc1 {L}_e14v')
                for sal, ins in epoch_dmas(E, opt)[:8]: a.e(sal, 's_nop 0' if sal else [], ins)
                a.e(f's_branch {L}_e14d', f'{L}_e14v:', f's_mov_b32 s54, {63*8192}', f's_mov_b32 s55, {63*8192+4096}', 's_mov_b32 s56, 0')
                for grp in range(2):
                    st, ins = dma_group(1, grp, 's56', f's{54+grp}'); a.e(st, 's_nop 0', ins)
                a.e(f'{L}_e14d:')
            if s == 0:
                exps, items = sm_items(S_[0], P_[0], XQ)
                mf = qk_mfmas(S_[1])
                kr = kreads(2*8192)
                ds_at = [(17+2*i, kr[i]) for i in range(4)]
                extra = []
                for n_, (sal, ins) in enumerate(dm):
                    extra += [(2+2*n_, x) for x in sal] + [(3+2*n_, ins)]
                packed(sc, mf, ds_at, exps, items, extra)
                for r in kr[4:]: sc.emit_filler(r)
            elif s == 62:
                normal_slot(sc, opt, s, dm, kread=False, late_v=vreads(VA, (62 % 8)*8192))
            elif s == 63:
                exps, items = sm_items(S_[1], P_[1], XQ)
                mf = pv_mfmas(P_[0], XQ)
                vr = vreads(VT, 0)
                ds_at = [(min(4*(i >> 1) + 4 + (i & 1), len(mf)-1), vr[i]) for i in range(16)]
                packed(sc, mf, ds_at, exps, items)
            else:
                normal_slot(sc, opt, s, dm, first_pv=(s == 1))
        assert not d
        if kind != 'e15':
            a.e(adv())
            a.e('s_waitcnt vmcnt(0) lgkmcnt(0)', 's_barrier'); sc.pend = []
    epoch(0, 'n'); epoch(1, 'n')
    a.e('s_mov_b32 s38, 0', '.p2align 6', f'{L}_loop:')
    epoch(2, 'n'); epoch(3, 'n')
    a.e('s_add_u32 s38, s38, 1', 's_cmp_lt_u32 s38, 6', f's_cbranch_scc1 {L}_loop')
    epoch(14, 'e14'); epoch(15, 'e15')
    a.e('s_nop 1')
    mf = pv_mfmas(P_[1], XQ)
    gaps = [[] for _ in mf]
    sc.run(mf, gaps)
    stamp(a, opt, 4)
    a.e('v_lshlrev_b32 v5, 4, v4')
    for qb in range(4):
        if qb in XQ: continue
        l = LV + 2*qb
        a.e(f'v_add_f32 {V(l)}, {V(l)}, {V(l+1)}'); xlane_sum(a, V(l), 'v6')
        for i in range(4): a.e(f'ds_bpermute_b32 {V(LM+4*qb+i)}, v5, {V(l)} offset:{4*i}')
    a.e('s_nop 7', 's_waitcnt lgkmcnt(0)')
    a.e(f'{L}_norm:')
    a.e(f'v_add_f32 v8, {V(LM)}, {V(LM+1)}')
    for i in range(2, 16): a.e(f'v_add_f32 v8, v8, {V(LM+i)}')
    for i in range(16): a.e(f'v_rcp_f32 {V(LM+i)}, {V(LM+i)}')
    a.e('v_lshlrev_b32 v6, 2, v4', 'v_xor_b32 v6, v6, v2', 'v_lshlrev_b32 v6, 4, v6')
    W = 96
    T = 16
    cnt = 0
    for j in range(4):
        for qb in range(4):
            b = T + 8*(cnt % 8); pk = 80 + 4*(cnt % 4); cnt += 1
            for u in range(2):
                for i in range(4): a.e(f'v_accvgpr_read_b32 {V(b+4*u+i)}, {A(AO+16*(2*j+u)+4*qb+i)}')
            for i in range(4):
                w = W + 4*qb + i
                a.e(f'v_maximum3_f32 {V(w)}, abs({V(b+i)}), abs({V(b+4+i)}), {"0" if j == 0 else V(w)}')
            for u in range(2):
                for i in range(4): a.e(f'v_mul_f32 {V(b+4*u+i)}, {V(b+4*u+i)}, {V(LM+4*qb+i)}')
            for h in range(4): a.e(f'v_cvt_pk_bf16_f32 {V(pk+h)}, {V(b+2*h)}, {V(b+2*h+1)}')
            off = (j*4+qb)*1024
            a.e(f's_mov_b32 s54, {off & ~4095}', f'buffer_store_dwordx4 {V(pk,4)}, v6, s[24:27], s54 offen offset:{off & 4095}')
    a.e(f'v_minimum3_f32 v9, {V(W)}, {V(W+1)}, {V(W+15)}', f'v_maximum3_f32 v10, {V(W)}, {V(W+1)}, {V(W+15)}')
    for i in range(2, 15, 2): a.e(f'v_minimum3_f32 v9, v9, {V(W+i)}, {V(W+i+1)}', f'v_maximum3_f32 v10, v10, {V(W+i)}, {V(W+i+1)}')
    a.e(f's_mov_b32 s54, {f32hex(2.0**100)}', f's_mov_b32 s55, {f32hex(2.0**-120)}', f's_mov_b32 s60, 0x7f000000')
    a.e('v_cmp_nle_f32 s[56:57], v8, s54', 'v_cmp_nge_f32 s[58:59], v9, s55', 'v_cmp_nle_f32 s[62:63], v10, s60', 's_nop 1',
        's_or_b64 s[56:57], s[56:57], s[58:59]', 's_or_b64 s[56:57], s[56:57], s[62:63]', 's_cmp_eq_u64 s[56:57], 0')
    if opt.get('force_fb'): a.e('s_cmp_eq_u32 s2, 1000')
    a.e(f's_cbranch_scc1 {L}_fin', 's_cmp_eq_u32 s39, 1', f's_cbranch_scc1 {L}_fin')
    a.e('s_mov_b32 s39, 1', 's_add_u32 s48, s48, 8192', 's_waitcnt vmcnt(0)')
    MR = CI; LR = CI + 4; AL = CI + 8; AR_ = 96
    for i in range(128): a.e(f'v_accvgpr_write_b32 {A(i)}, 0')
    for qb in range(4): a.e(f'v_mov_b32 {V(MR+qb)}, 0xff7fffff', f'v_mov_b32 {V(LR+qb)}, 0')
    for db in range(8): a.e(f'v_add_u32 {V(VT+db)}, s48, {V(VT+db)}')
    a.e('v_lshlrev_b32 v7, 8, v3', 'v_lshl_add_u32 v7, v4, 4, v7')
    a.e('s_mov_b32 s54, 0', f'{L}_fb:', 's_add_u32 s55, s54, 4096')
    for f in range(8): a.e(f'buffer_load_dwordx4 {A(AK+4*f,4)}, v7, s[8:11], s{54+(f>>2)} offen offset:{64*(f&3)}')
    for grp in range(2):
        st, ins = dma_group(1, grp, 's48', f's{54+grp}'); a.e(st, 's_nop 0', ins)
    a.e('s_waitcnt vmcnt(0)')
    a.e(vreads(VT, 0))
    a.e(qk_mfmas(S0, czero=True), 's_nop 7', 's_nop 3')
    for qb in range(4):
        b = S0 + 8*qb; m = V(MR+qb); al = V(AL+qb)
        a.e(f'v_max3_f32 v8, {V(b)}, {V(b+1)}, {V(b+2)}', f'v_max3_f32 v8, v8, {V(b+3)}, {V(b+4)}', f'v_max3_f32 v8, v8, {V(b+5)}, {V(b+6)}', f'v_max3_f32 v8, v8, {V(b+7)}, {m}')
        for perm in ('32', '16'):
            a.e('v_mov_b32 v9, v8', 's_nop 1', f'v_permlane{perm}_swap_b32 v8, v9', 's_nop 1', 'v_max_f32 v8, v8, v9')
        a.e(f'v_sub_f32 {al}, {m}, v8', f'v_exp_f32 {al}, {al}', f'v_mov_b32 {m}, v8')
        for e in range(8): a.e(f'v_sub_f32 {V(b+e)}, {V(b+e)}, v8')
        for e in range(8): a.e(f'v_exp_f32 {V(b+e)}, {V(b+e)}')
        a.e(f'v_mul_f32 {V(LR+qb)}, {V(LR+qb)}, {al}')
        for e in range(8): a.e(f'v_add_f32 {V(LR+qb)}, {V(LR+qb)}, {V(b+e)}')
        for h in range(4): a.e(f'v_cvt_pk_bf16_f32 {V(P_[0]+4*qb+h)}, {V(b+2*h)}, {V(b+2*h+1)}')
        for i in range(4): a.e(f'ds_bpermute_b32 {V(AR_+4*qb+i)}, v5, {al} offset:{4*i}')
    a.e('s_waitcnt lgkmcnt(0)')
    for db in range(8):
        for qb in range(4):
            for i in range(4):
                o = AO + 16*db + 4*qb + i
                a.e(f'v_accvgpr_read_b32 v8, {A(o)}', f'v_mul_f32 v8, v8, {V(AR_+4*qb+i)}', f'v_accvgpr_write_b32 {A(o)}, v8')
    a.e('s_nop 1')
    a.e(pv_mfmas(P_[0], []), 's_nop 7', 's_nop 3')
    a.e('s_add_u32 s54, s54, 8192', 's_cmp_lt_u32 s54, 524288', f's_cbranch_scc1 {L}_fb')
    for qb in range(4):
        xlane_sum(a, V(LR+qb), 'v6')
        for i in range(4): a.e(f'ds_bpermute_b32 {V(LM+4*qb+i)}, v5, {V(LR+qb)} offset:{4*i}')
    a.e('s_waitcnt lgkmcnt(0)', f's_branch {L}_norm')
    a.e(f'{L}_fin:')
    if opt.get('stamps'):
        a.e('s_waitcnt vmcnt(0)')
        stamp(a, opt, 5); a.e('s_memrealtime s[92:93]', 's_waitcnt lgkmcnt(0)')
        srd(a, 20, 42, 43, 1 << 20, add=(48 << 20))
        a.e('s_lshl_b32 s54, s2, 2', 's_add_u32 s54, s54, s28', 's_lshl_b32 s54, s54, 5', 'v_mov_b32 v7, s54')
        for i in range(1, 6): a.e(f's_sub_u32 s55, s{64+2*i}, s64', f'v_mov_b32 v{8+i}, s55')
        a.e('v_mov_b32 v8, s90', 's_sub_u32 s55, s92, s90', 'v_mov_b32 v14, s55', 'v_mov_b32 v15, s39')
        a.e('v_cmp_eq_u32 vcc, 0, v2', 's_and_saveexec_b64 s[56:57], vcc')
        a.e('buffer_store_dwordx4 v[8:11], v7, s[20:23], 0 offen', 'buffer_store_dwordx4 v[12:15], v7, s[20:23], 0 offen offset:16')
    a.e('s_waitcnt vmcnt(0)', f'{L}_end:', 's_endpgm')
    return dict(label=L, grid=256, block=256, lds=147456, vgpr=512, accum=256)
```

```python
from asmlib import *
from gen_pre import *
from gen_attn import Sched, MF

def gen_ksplit(a, L, kind, opt):
    isO = kind == 'o'
    NS = 32 if isO else 14
    R = 4
    SLOT = 8192 if isO else 4096
    WREG = R * SLOT
    ACC = 0
    FA = [64, 80]; FB = [96, 112]
    BD = 32
    DA = 8; DB = 12; RA = 16; RB = 20
    kernel_head(a, L)
    a.e('s_cmp_ge_u32 s2, 256', f's_cbranch_scc1 {L}_end')
    a.e(f's_load_dwordx2 s[4:5], s[0:1], {32 if isO else 64}', 's_load_dwordx2 s[6:7], s[0:1], 104',
        f's_load_dwordx2 s[40:41], s[0:1], {0 if isO else 88}')
    a.e('v_lshrrev_b32 v1, 6, v0', 'v_and_b32 v2, 63, v0', 'v_readfirstlane_b32 s28, v1')
    a.e('s_and_b32 s44, s2, 7', 's_lshr_b32 s45, s2, 3', 's_lshr_b32 s46, s44, 1', 's_lshl_b32 s46, s46, 3', 's_lshr_b32 s47, s45, 2', 's_add_u32 s46, s46, s47')
    a.e('s_and_b32 s44, s44, 1', 's_lshl_b32 s44, s44, 2', 's_and_b32 s45, s45, 3', 's_add_u32 s44, s44, s45')
    a.e('v_and_b32 v3, 15, v2', 'v_lshrrev_b32 v4, 4, v2')
    a.e('v_lshrrev_b32 v5, 3, v2', 'v_bfe_u32 v6, v2, 4, 2', 'v_lshlrev_b32 v6, 1, v6', 'v_and_b32 v7, 7, v2', 'v_xor_b32 v6, v6, v7', 'v_lshlrev_b32 v6, 4, v6')
    if isO:
        a.e('v_lshrrev_b32 v7, 5, v2', 'v_lshlrev_b32 v7, 4, v7', 'v_and_b32 v5, 3, v5', 'v_add_u32 v5, v5, v7')
        rowoff = [0, 8, 4, 12]
    else:
        rowoff = [0, 8, 16, 24]
    a.e('v_lshl_add_u32 v5, v5, 10, v6')
    for i in range(4): a.e(f'v_add_u32 {V(DA+i)}, {rowoff[i]*1024 - i*1024}, v5')
    a.e(f'v_lshlrev_b32 {V(DB)}, 4, v2')
    a.e('s_waitcnt lgkmcnt(0)')
    a.e('s_lshl_b32 s47, s44, 7'); srd(a, 8, 4, 5, 0, add='s47'); a.e(f's_sub_u32 s10, {4096*1024 if isO else 1792*1024}, s47')
    if isO:
        a.e('s_lshl_b32 s47, s46, 19', 's_lshl_b32 s48, s28, 17', 's_add_u32 s47, s47, s48', f's_add_u32 s47, s47, {WS_O}'); srd(a, 12, 6, 7, 131072, add='s47')
        a.e('s_lshl_b32 s34, s28, 20')
    else:
        a.e(f's_mul_i32 s47, s46, {4*56*1024}', f's_add_u32 s47, s47, {WS_HH}'); srd(a, 12, 6, 7, 4*56*1024, add='s47')
        a.e(f's_mul_i32 s34, s28, {14*32*1024}')
    a.e(f's_mul_i32 s30, s28, {WREG}')
    a.e('s_mov_b32 s35, 0')
    def dma(s):
        r = []
        base = (s % R) * SLOT
        r.append([[f's_add_u32 m0, s30, {base}'], f'buffer_load_dwordx4 {V(DA)}, s[8:11], s34 offen lds'])
        for i in range(1, 4): r.append([[], f'buffer_load_dwordx4 {V(DA+i)}, s[8:11], s34 offen offset:{1024*i} lds'])
        if isO:
            r.append([['s_add_u32 s34, s34, 32768', f's_add_u32 m0, s30, {base+4096}'], f'buffer_load_dwordx4 {V(DB)}, s[12:15], s35 offen lds'])
            for i in range(1, 4): r.append([[], f'buffer_load_dwordx4 {V(DB)}, s[12:15], s35 offen offset:{1024*i} lds'])
            r.append([['s_add_u32 s35, s35, 4096'], None])
        else:
            r.append([['s_add_u32 s34, s34, 32768'], None])
        return r
    def bload(s):
        r = []
        for qb in range(4):
            r.append([[f's_add_u32 s36, s37, {qb*56*1024 + s*1024}'], f'buffer_load_dwordx4 {V(BD+16*s+4*qb,4)}, {V(DB)}, s[12:15], s36 offen'])
        return r
    def emit(lst):
        for sal, ins in lst:
            a.e(sal)
            if ins:
                if sal and 'm0' in sal[-1]: a.e('s_nop 0')
                a.e(ins)
    vm = []
    def track(lst, tag):
        for sal, ins in lst:
            if ins: vm.append(tag)
    if not isO: a.e(f's_mul_i32 s37, s28, {14*1024}')
    PRE = 6 if not isO else 0
    for s in range(R):
        if not isO: emit(bload(s)); track(bload(s), ('b', s))
        emit(dma(s)); track(dma(s), ('a', s))
    for s in range(R, PRE): emit(bload(s)); track(bload(s), ('b', s))
    a.e('v_bfe_u32 v5, v2, 2, 2', 'v_lshl_add_u32 v5, v4, 2, v5', 'v_and_b32 v6, 3, v2')
    a.e('v_lshlrev_b32 v7, 7, v5', 'v_lshl_add_u32 v7, v6, 3, v7', 'v_add_u32 v7, s30, v7', 'v_bfe_u32 v5, v5, 1, 2')
    for nb in range(4): a.e(f'v_xor_b32 v24, {nb}, v5', f'v_lshl_add_u32 {V(RA+nb)}, v24, 5, v7')
    if isO:
        a.e('v_bfe_u32 v5, v2, 2, 2', 'v_lshrrev_b32 v7, 5, v2', 'v_lshl_add_u32 v5, v7, 3, v5', 'v_lshlrev_b32 v7, 2, v6', 'v_xor_b32 v5, v5, v7', 'v_lshl_add_u32 v5, v6, 4, v5')
        a.e('v_and_b32 v7, 1, v4', 'v_lshlrev_b32 v7, 3, v7', 'v_lshl_add_u32 v5, v5, 4, v7', 'v_add_u32 v5, 4096, v5', f'v_add_u32 {V(RB)}, s30, v5')
        a.e(f'v_xor_b32 v5, 64, v5', f'v_add_u32 {V(RB+1)}, s30, v5')
    def reads(s):
        base = (s % R) * SLOT; p = s & 1
        r = []
        for x in range(4):
            for v in range(2):
                r.append(f'ds_read_b64_tr_b16 {A(FA[p]+4*x+2*v,2)}, {V(RA+x)} offset:{base+2048*v}')
            if isO:
                for u in range(2):
                    r.append(f'ds_read_b64_tr_b16 {A(FB[p]+4*x+2*u,2)}, {V(RB+u)} offset:{base+1024*x}')
        return r
    def vmwait(tags):
        last = max([i for i, t in enumerate(vm) if t in tags], default=-1)
        if last < 0: return []
        n = len(vm) - 1 - last
        del vm[:last+1]
        return [f's_waitcnt vmcnt({n})']
    sc = Sched(a, age=6)
    a.e(vmwait({('a', 0), ('b', 0)}))
    for r in reads(0): sc.emit_filler(r)
    for s in range(NS):
        p = s & 1
        mf = []
        for nb in range(4):
            for qb in range(4):
                acc = A(ACC+16*nb+4*qb, 4)
                b = A(FB[p]+4*qb, 4) if isO else V(BD+16*s+4*qb, 4)
                mf.append(f'{MF} {acc}, {A(FA[p]+4*nb,4)}, {b}, {"0" if s == 0 else acc}')
        gaps = [[] for _ in mf]
        a.e('s_waitcnt lgkmcnt(0)'); sc.pend = []
        iss = []
        if s + R < NS: iss += [(x, ('a', s+R)) for x in dma(s+R)]
        if not isO and s + PRE < NS: iss += [(x, ('b', s+PRE)) for x in bload(s+PRE)]
        g = 0
        for (sal, ins), tag in iss:
            gaps[g] += sal
            if ins:
                if sal and 'm0' in sal[-1]: gaps[g].append('s_nop 0')
                gaps[g].append(ins); vm.append(tag); g += 1
        if s + 1 < NS:
            rd = reads(s+1)
            g0 = 8 if isO else 8
            w = vmwait({('a', s+1), ('b', s+1)})
            gaps[g0-1] += w
            per = len(rd) // 8
            for i, r in enumerate(rd): gaps[g0 - 1 + i // per if False else min(g0 - 1 + i // per, 15)].append(r)
        sc.run(mf, gaps)
    a.e('s_nop 7', 's_barrier')
    a.e('v_mul_u32_u24 v5, 272, v3', 'v_lshl_add_u32 v6, v4, 4, v5', f's_mul_i32 s47, s28, 17408', 'v_add_u32 v6, s47, v6')
    for nb in range(4):
        for qb in range(4):
            a.e(f'ds_write_b128 v6, {A(ACC+16*nb+4*qb,4)} offset:{qb*16*272 + nb*64}')
    XR = 32; GV = 40; PT = 64
    a.e('s_lshl_b32 s47, s46, 2', 's_add_u32 s47, s47, s28')
    srd(a, 16, 6, 7, 12288)
    a.e('v_lshlrev_b32 v7, 5, v4', 's_lshl_b32 s48, s44, 8', f's_add_u32 s48, s48, {(2 if isO else 5)*2048}')
    for t in range(2):
        for h in range(2): a.e(f'buffer_load_dwordx4 {V(GV+8*t+4*h,4)}, v7, s[16:19], s48 offen offset:{128*t+16*h}')
    a.e('s_lshl_b32 s49, s47, 14', 's_lshl_b32 s50, s44, 7', 's_add_u32 s50, s50, s49', 'v_lshlrev_b32 v8, 10, v3', 'v_lshl_add_u32 v8, v4, 4, v8')
    a.e('s_lshl_b32 s51, s44, 11', 's_add_u32 s51, s51, s49', 'v_lshlrev_b32 v9, 4, v2')
    srd(a, 20, 40, 41, 2097152); srd(a, 24, 6, 7, 2097152, add=WS_X1)
    for t in range(2):
        if isO: a.e(f'buffer_load_dwordx4 {V(XR+4*t,4)}, v8, s[20:23], s50 offen offset:{64*t}')
        else: a.e(f'buffer_load_dwordx4 {V(XR+4*t,4)}, v9, s[24:27], s51 offen offset:{1024*t}')
    a.e('s_waitcnt lgkmcnt(0)', 's_barrier')
    a.e('s_mul_i32 s47, s28, 4352', 'v_lshl_add_u32 v6, v4, 5, v5', 'v_add_u32 v6, s47, v6')
    for pw in range(4):
        for t in range(2):
            for h in range(2): a.e(f'ds_read_b128 {V(PT+16*pw+8*t+4*h,4)}, v6 offset:{pw*17408 + t*128 + h*16}')
    a.e('s_waitcnt lgkmcnt(8)')
    for i in range(16): a.e(f'v_add_f32 {V(PT+i)}, {V(PT+i)}, {V(PT+16+i)}')
    a.e('s_waitcnt lgkmcnt(0)')
    for i in range(16): a.e(f'v_add_f32 {V(PT+32+i)}, {V(PT+32+i)}, {V(PT+48+i)}')
    for i in range(16): a.e(f'v_add_f32 {V(PT+i)}, {V(PT+i)}, {V(PT+32+i)}')
    a.e('s_waitcnt vmcnt(0)')
    for i in range(8): a.e(f'v_lshlrev_b32 {V(PT+16+2*i)}, 16, {V(XR+i)}', f'v_and_b32 {V(PT+17+2*i)}, 0xffff0000, {V(XR+i)}')
    for i in range(16): a.e(f'v_fmac_f32 {V(PT+16+i)}, {V(PT+i)}, {V(GV+i)}')
    for i in range(8): a.e(f'v_cvt_pk_bf16_f32 {V(XR+i)}, {V(PT+16+2*i)}, {V(PT+17+2*i)}')
    for t in range(2):
        if isO: a.e(f'buffer_store_dwordx4 {V(XR+4*t,4)}, v9, s[24:27], s51 offen offset:{1024*t}')
        else: a.e(f'buffer_store_dwordx4 {V(XR+4*t,4)}, v8, s[20:23], s50 offen offset:{64*t}')
    a.e('s_waitcnt vmcnt(0)', f'{L}_end:', 's_endpgm')
    return dict(label=L, grid=256, block=256, lds=max(4*WREG, 69632), vgpr=384, accum=256)

def gen_gateup(a, opt):
    L = 'gateup_kernel'
    R = 5; STG = 28672
    BD = 16
    DA = 144
    RA = 152
    ACC = 0
    FA = 112
    kernel_head(a, L)
    a.e('s_cmp_ge_u32 s2, 256', f's_cbranch_scc1 {L}_end')
    a.e('s_load_dwordx4 s[4:7], s[0:1], 48', 's_load_dwordx2 s[40:41], s[0:1], 104')
    a.e('v_lshrrev_b32 v1, 6, v0', 'v_and_b32 v2, 63, v0', 'v_readfirstlane_b32 s28, v1')
    a.e('s_and_b32 s44, s2, 7', 's_lshr_b32 s45, s2, 3', 's_and_b32 s46, s44, 1', 's_lshl_b32 s46, s46, 3', 's_lshr_b32 s47, s45, 2', 's_add_u32 s46, s46, s47')
    a.e('s_lshr_b32 s44, s44, 1', 's_lshl_b32 s44, s44, 2', 's_and_b32 s45, s45, 3', 's_add_u32 s44, s44, s45')
    a.e('v_and_b32 v3, 15, v2', 'v_lshrrev_b32 v4, 4, v2')
    a.e('s_and_b32 s47, s28, 1', 's_mul_i32 s47, s47, 448', 'v_add_u32 v5, s47, v2', 's_mov_b32 s48, 4682', 's_mov_b32 s49, 3584')
    for i in range(7):
        a.e(f'v_add_u32 v6, {64*i}, v5', 'v_mul_lo_u32 v7, v6, s48', 'v_lshrrev_b32 v7, 16, v7', 'v_mul_u32_u24 v8, 14, v7', 'v_sub_u32 v8, v6, v8')
        a.e('v_and_b32 v9, 35, v7', 'v_bfe_u32 v10, v7, 2, 2', 'v_lshl_add_u32 v9, v10, 3, v9', 'v_bfe_u32 v10, v7, 4, 1', 'v_lshl_add_u32 v9, v10, 2, v9')
        a.e('v_mul_lo_u32 v9, v9, s49', 'v_lshl_add_u32 v9, v8, 4, v9', f'v_subrev_u32 {V(DA+i)}, {1024*(i & 3)}, v9')
    a.e('v_lshlrev_b32 v11, 4, v2')
    a.e('s_waitcnt lgkmcnt(0)')
    a.e('s_cmp_lt_u32 s28, 2', 's_cselect_b32 s50, s4, s6', 's_cselect_b32 s51, s5, s7', 's_mul_i32 s47, s44, 224')
    srd(a, 8, 50, 51, 0, add='s47'); a.e(f's_sub_u32 s10, {512*3584}, s47')
    a.e('s_lshl_b32 s47, s46, 3', 's_lshl_b32 s48, s28, 1', 's_add_u32 s47, s47, s48')
    a.e('s_lshl_b32 s48, s47, 14', f's_add_u32 s48, s48, {WS_H2}'); srd(a, 12, 40, 41, 32768, add='s48')
    a.e(f's_mul_i32 s48, s47, {56*1024}', f's_add_u32 s48, s48, {WS_HH}'); srd(a, 16, 40, 41, 2*56*1024, add='s48')
    a.e('s_lshr_b32 s48, s28, 1', 's_mul_i32 s48, s48, 14336', 's_and_b32 s49, s28, 1', 's_mul_i32 s49, s49, 7168', 's_add_u32 s30, s48, s49')
    a.e('s_mov_b32 s34, 0')
    vm = []
    def dma(st):
        r = []
        base = (st % R) * STG
        for i in range(7):
            sal = [f's_add_u32 m0, s30, {base + 4096*(i//4)}'] if i % 4 == 0 else []
            r.append([sal, f'buffer_load_dwordx4 {V(DA+i)}, s[8:11], s34 offen offset:{1024*(i&3)} lds'])
        r.append([[f's_add_u32 s34, s34, {64*3584}'], None])
        return r
    def bload(st):
        r = []
        for t in (2*st, 2*st+1):
            for qb in range(2):
                off = qb*16384 + t*1024
                r.append([[f's_mov_b32 s36, {off}'], f'buffer_load_dwordx4 {V(BD+8*t+4*qb,4)}, v11, s[12:15], s36 offen'])
        return r
    def emit(lst, tag):
        for sal, ins in lst:
            a.e(sal)
            if ins:
                if sal and 'm0' in sal[-1]: a.e('s_nop 0')
                a.e(ins); vm.append(tag)
    def vmwait(tags):
        last = max([i for i, t in enumerate(vm) if t in tags], default=-1)
        if last < 0: return []
        n = len(vm) - 1 - last
        del vm[:last+1]
        return [f's_waitcnt vmcnt({n})']
    for st in range(R-1):
        emit(dma(st), ('a', st)); emit(bload(st), ('b', st))
    a.e('v_lshrrev_b32 v5, 2, v2', 'v_mul_u32_u24 v5, 224, v5', 'v_and_b32 v6, 3, v2', f'v_lshl_add_u32 {V(RA)}, v6, 3, v5')
    for i in range(1, R): a.e(f'v_add_u32 {V(RA+i)}, {i*STG}, {V(RA)}')
    def rd(n):
        ks, b = divmod(n, 14); st, tt = divmod(ks, 2)
        off = (b // 7)*14336 + tt*7168 + (b % 7)*32
        return [f'ds_read_b64_tr_b16 {A(FA+4*(n % 8)+2*v,2)}, {V(RA + st % R)} offset:{off+3584*v}' for v in range(2)]
    D = 5
    sc = Sched(a, age=6)
    a.e(vmwait({('a', 0), ('b', 0)}), 's_barrier')
    for n in range(D):
        for r in rd(n): sc.emit_filler(r)
    NF = 16*14
    mf = []; gaps = []
    for n in range(NF):
        ks, b = divmod(n, 14); st, tt = divmod(ks, 2)
        for qb in range(2):
            acc = A(ACC+8*b+4*qb, 4)
            mf.append(f'{MF} {acc}, {A(FA+4*(n % 8),4)}, {V(BD+8*ks+4*qb,4)}, {"0" if ks == 0 else acc}')
            gaps.append([])
        nn = n + D
        if nn < NF:
            if nn % 28 == 0:
                s2 = nn // 28
                gaps[2*n-1] += vmwait({('a', s2), ('b', s2)}) + ['s_barrier']
                pendq = []
                if s2 + R - 2 < 8:
                    pendq = [(x, ('a', s2+R-2)) for x in dma(s2+R-2)] + [(x, ('b', s2+R-2)) for x in bload(s2+R-2)]
                gq = 2*n
                late = []
                for (sal, ins), tag in pendq:
                    late.append((gq, sal, ins, tag))
                    if ins: gq += 2
                pend_late = late
            r = rd(nn)
            gaps[2*n].append(r[0]); gaps[2*n+1].append(r[1])
        if 'pend_late' in locals():
            keep = []
            for gq, sal, ins, tag in pend_late:
                if gq // 2 == n:
                    gaps[gq] = sal + gaps[gq]
                    if ins:
                        gaps[gq+1].append(ins); vm.append(tag)
                else: keep.append((gq, sal, ins, tag))
            pend_late = keep
    sc.run(mf, gaps)
    a.e('s_nop 7')
    a.e('s_mul_i32 s47, s44, 7')
    for b in range(7):
        a.e(f's_add_u32 s48, s47, {b}', 's_lshr_b32 s49, s48, 1', 's_lshl_b32 s49, s49, 10', 's_and_b32 s48, s48, 1', 's_lshl_b32 s48, s48, 3', f's_add_u32 s{52+b}, s48, s49', f's_add_u32 s{62+b}, s{52+b}, {56*1024}')
    for b in range(7):
        for qb in range(2):
            t = 16 + 10*((2*b+qb) % 8)
            for i in range(4): a.e(f'v_accvgpr_read_b32 {V(t+i)}, {A(ACC+8*b+4*qb+i)}', f'v_accvgpr_read_b32 {V(t+4+i)}, {A(ACC+8*(b+7)+4*qb+i)}')
            for i in range(4): a.e(f'v_mul_f32 {V(t+i)}, {V(t+i)}, {V(t+4+i)}')
            a.e(f'v_cvt_pk_bf16_f32 {V(t+8)}, {V(t)}, {V(t+1)}', f'v_cvt_pk_bf16_f32 {V(t+9)}, {V(t+2)}, {V(t+3)}')
            a.e(f'buffer_store_dwordx2 {V(t+8,2)}, v11, s[16:19], s{(52 if qb == 0 else 62)+b} offen')
    a.e('s_waitcnt vmcnt(0)', f'{L}_end:', 's_endpgm')
    return dict(label=L, grid=256, block=256, lds=R*STG, vgpr=160+144, accum=160)

def gen_post(a, opt):
    ks = [gen_ksplit(a, 'oproj_kernel', 'o', opt)]
    ks.append(gen_ln(a, 'ln2_kernel', WS_X1, 3, 4, WS_H2, 1.0))
    ks.append(gen_gateup(a, opt))
    ks.append(gen_ksplit(a, 'down_kernel', 'd', opt))
    return ks
```

```python
from asmlib import *
import struct, math
def f32hex(x): return hex(struct.unpack('<I', struct.pack('<f', x))[0])

WS_MOD = 0
WS_H   = 1 << 20
WS_O   = 4 << 20
WS_X1  = 24 << 20
WS_H2  = 28 << 20
WS_HH  = 32 << 20
WS_ST  = 40 << 20
QSCALE = math.log2(math.e) / math.sqrt(128.0)

def round_bf16(a, dst, src):
    a.e(f'v_cvt_pk_bf16_f32 {dst}, {src}, {src}', f'v_and_b32 {dst}, 0xffff0000, {dst}')

def gen_mod(a):
    L = 'mod_kernel'
    kernel_head(a, L)
    a.e('s_cmp_ge_u32 s2, 96', f's_cbranch_scc1 {L}_end')
    a.e('s_load_dwordx4 s[4:7], s[0:1], 72')
    a.e('s_load_dwordx2 s[20:21], s[0:1], 104')
    a.e('v_lshrrev_b32 v1, 2, v0')
    a.e('v_and_b32 v2, 3, v0')
    a.e('v_lshlrev_b32 v3, 1, v1')
    a.e('s_mov_b32 s22, 6144', 'v_mul_lo_u32 v4, v1, s22', 'v_lshl_add_u32 v4, v2, 4, v4')
    a.e('s_lshl_b32 s23, s2, 6')
    a.e('v_add_u32 v4, s23, v4')
    a.e('s_waitcnt lgkmcnt(0)')
    srd(a, 8, 4, 5, 1024); srd(a, 12, 6, 7, 512*6144); srd(a, 16, 20, 21, 12288)
    for i in range(8): a.e(f'buffer_load_ushort v{8+i}, v3, s[8:11], 0 offen offset:{i*128}')
    a.e('s_mov_b32 s24, 0')
    for i in range(8):
        a.e(f'buffer_load_dwordx4 v[{16+4*i}:{19+4*i}], v4, s[12:15], s24 offen')
        if i < 7: a.e(f's_add_u32 s24, s24, {64*6144}')
    for j in range(8): a.e(f'v_mov_b32 v{48+j}, 0')
    a.e('s_waitcnt vmcnt(8)')
    a.e(f's_mov_b32 s25, {f32hex(-math.log2(math.e))}')
    for i in range(8): a.e(f'v_lshlrev_b32 v{8+i}, 16, v{8+i}')
    for i in range(8): a.e(f'v_mul_f32 v{56+i}, s25, v{8+i}')
    for i in range(8): a.e(f'v_exp_f32 v{56+i}, v{56+i}')
    a.e('s_nop 0')
    for i in range(8): a.e(f'v_add_f32 v{56+i}, 1.0, v{56+i}')
    for i in range(8): a.e(f'v_rcp_f32 v{56+i}, v{56+i}')
    a.e('s_nop 0')
    for i in range(8): a.e(f'v_mul_f32 v{8+i}, v{8+i}, v{56+i}')
    for i in range(8): round_bf16(a, f'v{8+i}', f'v{8+i}')
    for i in range(8):
        a.e(f's_waitcnt vmcnt({7-i})')
        for d in range(4):
            w = 16+4*i+d
            a.e(f'v_lshlrev_b32 v5, 16, v{w}', f'v_and_b32 v6, 0xffff0000, v{w}',
                f'v_fmac_f32 v{48+2*d}, v5, v{8+i}', f'v_fmac_f32 v{49+2*d}, v6, v{8+i}')
    a.e('v_mul_u32_u24 v5, 144, v1', 'v_lshl_add_u32 v5, v2, 5, v5')
    a.e('ds_write_b128 v5, v[48:51]', 'ds_write_b128 v5, v[52:55] offset:16', 's_waitcnt lgkmcnt(0)', 's_barrier')
    a.e('v_and_b32 v6, 31, v0', 'v_lshrrev_b32 v7, 5, v0', 'v_mul_u32_u24 v5, 1152, v7', 'v_lshl_add_u32 v5, v6, 2, v5')
    for i in range(8): a.e(f'ds_read_b32 v{16+i}, v5 offset:{144*i}')
    a.e('s_waitcnt lgkmcnt(0)')
    for i in range(1, 8): a.e(f'v_add_f32 v16, v16, v{16+i}')
    a.e('v_lshlrev_b32 v5, 2, v0', 'ds_write_b32 v5, v16 offset:9216', 's_waitcnt lgkmcnt(0)', 's_barrier')
    a.e('v_cmp_gt_u32 vcc, 32, v0', 's_and_saveexec_b64 s[26:27], vcc', f's_cbranch_execz {L}_end')
    for i in range(8): a.e(f'ds_read_b32 v{16+i}, v5 offset:{9216+128*i}')
    a.e('s_waitcnt lgkmcnt(0)')
    for i in range(1, 8): a.e(f'v_add_f32 v16, v16, v{16+i}')
    round_bf16(a, 'v16', 'v16')
    a.e('s_lshr_b32 s28, s2, 4', 's_cmp_eq_u32 s28, 1', 's_cselect_b32 s29, 1, 0', 's_cmp_eq_u32 s28, 4', 's_cselect_b32 s29, 1, s29', 's_cmp_eq_u32 s29, 0', f's_cbranch_scc1 {L}_st')
    a.e('v_add_f32 v16, 1.0, v16'); round_bf16(a, 'v16', 'v16')
    a.e(f'{L}_st:', 's_lshl_b32 s23, s2, 7', 'v_add_u32 v5, s23, v5', 'buffer_store_dword v16, v5, s[16:19], 0 offen', 's_waitcnt vmcnt(0)')
    a.e(f'{L}_end:', 's_endpgm')
    return dict(label=L, grid=96, block=256, lds=10240, vgpr=64, accum=64)

def xlane_sum(a, v, t):
    a.e(f'v_mov_b32 {t}, {v}', 's_nop 1', f'v_permlane32_swap_b32 {v}, {t}', 's_nop 1', f'v_add_f32 {v}, {v}, {t}',
        f'v_mov_b32 {t}, {v}', 's_nop 1', f'v_permlane16_swap_b32 {v}, {t}', 's_nop 1', f'v_add_f32 {v}, {v}, {t}')

def gen_ln(a, L, src, shift_part, scale_part, dst_off, outscale):
    kernel_head(a, L)
    a.e('s_cmp_ge_u32 s2, 128', f's_cbranch_scc1 {L}_end')
    a.e('s_load_dwordx2 s[4:5], s[0:1], 0', 's_load_dwordx2 s[20:21], s[0:1], 104')
    a.e('v_and_b32 v1, 63, v0', 'v_lshrrev_b32 v2, 6, v0', 'v_and_b32 v3, 15, v0', 'v_bfe_u32 v4, v0, 4, 2')
    a.e('s_lshl_b32 s22, s2, 14', 'v_lshlrev_b32 v5, 12, v2', 'v_lshl_add_u32 v5, v1, 4, v5', 'v_add_u32 v5, s22, v5')
    if src == 'x':
        a.e('v_lshlrev_b32 v6, 10, v3', 'v_lshl_add_u32 v6, v2, 8, v6', 'v_lshl_add_u32 v6, v4, 4, v6', 'v_add_u32 v6, s22, v6')
    a.e('v_lshlrev_b32 v7, 9, v2', 'v_lshl_add_u32 v7, v4, 5, v7')
    a.e('s_waitcnt lgkmcnt(0)')
    if src == 'x': srd(a, 8, 4, 5, 2097152)
    else: srd(a, 8, 20, 21, 2097152, add=src)
    srd(a, 12, 20, 21, 12288); srd(a, 16, 20, 21, 2097152, add=dst_off)
    for j in range(4):
        if src == 'x': a.e(f'buffer_load_dwordx4 v[{16+4*j}:{19+4*j}], v6, s[8:11], 0 offen offset:{64*j}')
        else: a.e(f'buffer_load_dwordx4 v[{16+4*j}:{19+4*j}], v5, s[8:11], 0 offen offset:{1024*j}')
    a.e(f's_mov_b32 s23, {scale_part*2048}', f's_mov_b32 s24, {shift_part*2048}')
    for j in range(4):
        for hh in range(2):
            a.e(f'buffer_load_dwordx4 v[{64+8*j+4*hh}:{67+8*j+4*hh}], v7, s[12:15], s23 offen offset:{128*j+16*hh}')
            a.e(f'buffer_load_dwordx4 v[{96+8*j+4*hh}:{99+8*j+4*hh}], v7, s[12:15], s24 offen offset:{128*j+16*hh}')
    a.e('s_waitcnt vmcnt(16)')
    for i in range(16):
        a.e(f'v_lshlrev_b32 v{32+2*i}, 16, v{16+i}', f'v_and_b32 v{33+2*i}, 0xffff0000, v{16+i}')
    a.e('v_add_f32 v8, v32, v33')
    for i in range(2, 32): a.e(f'v_add_f32 v8, v8, v{32+i}')
    xlane_sum(a, 'v8', 'v9')
    a.e('v_lshlrev_b32 v10, 2, v3', 'v_lshl_add_u32 v11, v2, 6, v10', 'ds_write_b32 v11, v8', 's_waitcnt lgkmcnt(0)', 's_barrier')
    for i in range(4): a.e(f'ds_read_b32 v{12+i}, v10 offset:{64*i}')
    a.e('s_waitcnt lgkmcnt(0)', 'v_add_f32 v12, v12, v13', 'v_add_f32 v14, v14, v15', 'v_add_f32 v12, v12, v14')
    a.e(f'v_mul_f32 v12, {f32hex(1/512)}, v12')
    for i in range(32): a.e(f'v_sub_f32 v{32+i}, v{32+i}, v12')
    a.e('v_mul_f32 v8, v32, v32')
    for i in range(1, 32): a.e(f'v_fmac_f32 v8, v{32+i}, v{32+i}')
    xlane_sum(a, 'v8', 'v9')
    a.e('ds_write_b32 v11, v8 offset:256', 's_waitcnt lgkmcnt(0)', 's_barrier')
    for i in range(4): a.e(f'ds_read_b32 v{12+i}, v10 offset:{256+64*i}')
    a.e('s_waitcnt lgkmcnt(0)', 'v_add_f32 v12, v12, v13', 'v_add_f32 v14, v14, v15', 'v_add_f32 v12, v12, v14')
    a.e(f'v_mov_b32 v13, {f32hex(1e-5)}', f'v_fmac_f32 v13, {f32hex(1/512)}, v12', 'v_rsq_f32 v13, v13', 's_nop 0')
    a.e('s_waitcnt vmcnt(0)')
    for i in range(32): a.e(f'v_mul_f32 v{32+i}, v{32+i}, v13')
    for i in range(32): a.e(f'v_fma_f32 v{32+i}, v{32+i}, v{64+i}, v{96+i}')
    if outscale != 1.0:
        a.e(f's_mov_b32 s25, {f32hex(outscale)}')
        for i in range(32): a.e(f'v_mul_f32 v{32+i}, s25, v{32+i}')
    for i in range(16): a.e(f'v_cvt_pk_bf16_f32 v{16+i}, v{32+2*i}, v{33+2*i}')
    for j in range(4): a.e(f'buffer_store_dwordx4 v[{16+4*j}:{19+4*j}], v5, s[16:19], 0 offen offset:{1024*j}')
    a.e('s_waitcnt vmcnt(0)', f'{L}_end:', 's_endpgm')
    return dict(label=L, grid=128, block=256, lds=512, vgpr=128, accum=128)
```

```python
import sys, json
from asmlib import *
from gen_pre import *
from gen_attn import gen_attn
HEAD = open('cdna_kernels/' + NAME + '.s.ref').read().split('; Override launch')[0] if False else ''
def build_text(opt=None, upto=None):
    opt = opt or {}
    body = Asm(); ks = []
    TL['on'] = bool(opt.get('tl')); TL['idx'] = 0
    ks.append(gen_mod(body, opt))
    ks.append(gen_ln(body, 'ln1_kernel', 'x', 0, 1, WS_H, QSCALE))
    ks.append(gen_attn(body, opt.get('attn')))
    try:
        from gen_post import gen_post
        ks += gen_post(body, opt)
    except ImportError:
        pass
    if upto: ks = ks[:upto]
    a = Asm()
    for k in ks: a.e(f'; @launch kernel={k["label"]} grid=({k["grid"]},1,1) block=({k["block"]},1,1) lds={k["lds"]}')
    a.e('.amdgcn_target "amdgcn-amd-amdhsa--gfx950"')
    a.o += body.o
    a.e('code_end:')
    return a, ks, body
def full_text(opt=None):
    a, ks, body = build_text(opt)
    for k in ks: kernel_desc(a, k['label'], k['vgpr'], k['accum'])
    return a.text()
if __name__ == '__main__':
    opt = json.loads(sys.argv[2]) if len(sys.argv) > 2 else {}
    open(sys.argv[1], 'w').write(full_text(opt))
```

```python
NAME = 'adaLN_cond__mha_block_cached__glu_gated_bilinear__prompt'

class Asm:
    def __init__(self):
        self.o = []
    def e(self, *lines):
        for l in lines:
            if isinstance(l, (list, tuple)): self.e(*l)
            else: self.o.append(l)
    def text(self): return '\n'.join(self.o) + '\n'

def kernel_head(a, label):
    a.e('.text', f'.globl {label}', '.p2align 8', f'.type {label},@function', f'{label}:')

def kernel_desc(a, label, vgpr, accum, sgpr=102):
    a.e('.section .rodata,"a"', '.p2align 6', f'.amdhsa_kernel {label}',
        f'  .amdhsa_next_free_vgpr {vgpr}', f'  .amdhsa_next_free_sgpr {sgpr}', f'  .amdhsa_accum_offset {accum}',
        '  .amdhsa_group_segment_fixed_size 0', '  .amdhsa_kernarg_size 112', '  .amdhsa_user_sgpr_count 2',
        '  .amdhsa_user_sgpr_kernarg_segment_ptr 1', '  .amdhsa_system_sgpr_workgroup_id_x 1', '.end_amdhsa_kernel')

def srd(a, d, lo, hi, size, add=None):
    if add is None:
        a.e(f's_mov_b32 s{d}, s{lo}', f's_mov_b32 s{d+1}, s{hi}')
    else:
        a.e(f's_add_u32 s{d}, s{lo}, {add}', f's_addc_u32 s{d+1}, s{hi}, 0')
    a.e(f's_mov_b32 s{d+2}, {size}', f's_mov_b32 s{d+3}, 0x20000')

def V(b, n=1): return f'v{b}' if n == 1 else f'v[{b}:{b+n-1}]'
def A(b, n=1): return f'a{b}' if n == 1 else f'a[{b}:{b+n-1}]'
def S(b, n=1): return f's{b}' if n == 1 else f's[{b}:{b+n-1}]'

WS_TL = 52 << 20
TL = {'on': False, 'idx': 0}
def tl_start(a):
    if TL['on']: a.e('s_memrealtime s[94:95]', 's_memtime s[96:97]')
def tl_end(a):
    if not TL['on']: return
    i = TL['idx']; TL['idx'] += 1
    a.e('s_waitcnt vmcnt(0) lgkmcnt(0)', 's_memrealtime s[98:99]', 's_memtime s[100:101]', 's_load_dwordx2 s[80:81], s[0:1], 104', 's_waitcnt lgkmcnt(0)')
    a.e(f's_add_u32 s84, s80, {WS_TL + i*65536}', 's_addc_u32 s85, s81, 0', 's_mov_b32 s86, 65536', 's_mov_b32 s87, 0x20000')
    a.e('s_sub_u32 s100, s100, s96', 's_mov_b64 exec, 1', 'v_mov_b32 v0, s94', 'v_mov_b32 v1, s98', 'v_mov_b32 v2, s100', 's_getreg_b32 s82, hwreg(HW_REG_XCC_ID)', 'v_mov_b32 v3, s82',
        's_lshl_b32 s83, s2, 4', 'v_mov_b32 v4, s83', 'buffer_store_dwordx4 v[0:3], v4, s[84:87], 0 offen', 's_waitcnt vmcnt(0)')
```

```python
from asmlib import *
from gen_pre import *
import re

S_ = [16, 48]; P_ = [80, 96]; CI = 112; VT = 128
KA = 144; VA = 148; DK = 156; DV = 160; LV = 162; ONES = 172; LM = 176; Q = 192
WA = 176; DW = 180; HV = 181
AO = 0; AK = 192; AV = 224
DELTA = 100.0
MF = 'v_mfma_f32_16x16x32_bf16'
NT = {'kv': '', 'wq': ''}
PF = 136

class Sched:
    def __init__(self, a, age=8):
        self.a = a
        self.pend = []
        self.t = 0; self.age = age
    @staticmethod
    def regs(tok):
        m = re.match(r'([av])\[(\d+):(\d+)\]', tok)
        if m: return {(m.group(1), i) for i in range(int(m.group(2)), int(m.group(3))+1)}
        m = re.match(r'([av])(\d+)$', tok)
        if m: return {(m.group(1), int(m.group(2)))}
        return set()
    def need(self, ins):
        ops = [t.strip() for t in ins.split(None, 1)[1].split(',')]
        rs = set()
        for t in ops[1:3]: rs |= self.regs(t.split()[0])
        last = -1
        for i, p in enumerate(self.pend):
            if p[0] & rs: last = i
        if last < 0: return None
        while last + 1 < len(self.pend) and self.pend[last+1][1] <= self.t - self.age: last += 1
        return len(self.pend) - 1 - last
    def wait(self, n):
        n = min(n, 15)
        self.a.e(f's_waitcnt lgkmcnt({n})')
        self.pend = self.pend[len(self.pend)-n:] if n else []
    def emit_filler(self, ins):
        self.a.e(ins)
        if ins.startswith('ds_read') or ins.startswith('ds_bpermute'):
            self.pend.append((self.regs(ins.split(None, 1)[1].split(',')[0].strip()), self.t))
        elif ins.startswith('ds_'):
            self.pend.append((set(), self.t))
        elif ins.startswith('s_waitcnt') and 'lgkmcnt(0)' in ins:
            self.pend = []
    def run(self, mf, gaps, nextmf=None):
        n0 = self.need(mf[0]) if mf else None
        if n0 is not None: self.wait(n0)
        for g, m in enumerate(mf):
            self.a.e(m); self.t += 1
            nxt = mf[g+1] if g+1 < len(mf) else nextmf
            if nxt is not None:
                n = self.need(nxt)
                if n is not None: self.wait(n)
            for f in gaps[g]: self.emit_filler(f)
            if nxt is not None:
                n = self.need(nxt)
                if n is not None: self.wait(n)

def qk_mfmas(Sw, czero=False, order='kqt'):
    it = [(kb, qb, t) for kb in range(2) for qb in range(4) for t in range(4)] if order == 'kqt' else \
         [(kb, qb, t) for qb in range(4) for kb in range(2) for t in range(4)]
    r = []
    for kb, qb, t in it:
        d = Sw + 8*qb + 4*kb
        c = (('0' if czero else V(CI+4*qb, 4)) if t == 0 else V(d, 4))
        r.append(f'{MF} {V(d,4)}, {A(AK+16*kb+4*t,4)}, {V(Q+16*qb+4*t,4)}, {c}')
    return r

def pv_mfmas(Pr, XQ, first=False):
    r = []
    for db in range(8):
        for qb in range(4):
            o = AO + 16*db + 4*qb
            r.append(f'{MF} {A(o,4)}, {V(Pr+4*qb,4)}, {A(AV+4*db,4)}, {"0" if first else A(o,4)}')
    for qb in XQ:
        r.append(f'{MF} {V(LM+4*qb,4)}, {V(Pr+4*qb,4)}, {V(ONES,4)}, {"0" if first else V(LM+4*qb,4)}')
    return r

def vreads(base_reg, off):
    return [f'ds_read_b64_tr_b16 {A(AV+4*db+2*u,2)}, {V(base_reg+db)} offset:{off+4096*u}' for db in range(8) for u in range(2)]
def kreads(off):
    return [f'ds_read_b128 {A(AK+4*f,4)}, {V(KA+(f&3))} offset:{off+4096*(f>>2)}' for f in range(8)]

def sm_items(Sr, Pw, XQ):
    exps = [f'v_exp_f32 {V(Sr+e)}, {V(Sr+e)}' for e in range(32)]
    items = []
    for e in range(32):
        qb = e >> 3
        if qb not in XQ:
            l = LV + 2*qb + (e & 1)
            items.append((e, f'v_add_f32 {V(l)}, {V(l)}, {V(Sr+e)}'))
        if e & 1: items.append((e, f'v_cvt_pk_bf16_f32 {V(Pw+e//2)}, {V(Sr+e-1)}, {V(Sr+e)}'))
    return exps, items

def dma_group(isV, grp, m0s, soff):
    srd_ = 's[12:15]' if isV else 's[8:11]'
    st = f's_mov_b32 m0, {m0s}' if grp == 0 else f's_add_u32 m0, {m0s}, 4096'
    r = []
    for j in range(4):
        vo = DV + (j & 1) if isV else DK + j
        r.append(f'buffer_load_dwordx4 {V(vo)}, {srd_}, {soff} offen offset:{j*1024}{NT["kv"]} lds')
    return st, r

def normal_slot(sc, opt, s, dmas, kread=True, first_pv=False, late_v=None):
    XQ = opt['XQ']
    par = s & 1
    mf = qk_mfmas(S_[par ^ 1]) + pv_mfmas(P_[par ^ 1], XQ, first_pv)
    N = len(mf)
    gaps = [[] for _ in range(N)]; cap = [0 if (g < 64 and g % 2 == 0) else 2 for g in range(N)]
    pre = [[] for _ in range(N)]
    exps, items = sm_items(S_[par], P_[par], XQ)
    for e in range(32): gaps[2*e].append(exps[e])
    vr = vreads(VA, ((s-1) % 8)*8192)
    for i, r in enumerate(vr): gaps[2*i+1].append(r); cap[2*i+1] -= 1
    if kread:
        for f, r in enumerate(kreads(((s+2) % 8)*8192)):
            g = opt['kpos'][f]; gaps[g].append(r); cap[g] -= 1
    if late_v is not None:
        for i, r in enumerate(late_v):
            db = i >> 1
            g = min(37 + 4*db + 2*(i & 1), N-1)
            gaps[g].append(r); cap[g] -= 1
    for n, (sal, ins) in enumerate(dmas):
        g = opt['dpos'][n]
        for k, x in enumerate(sal): pre[g-1-k].append(x)
        gaps[g].append(ins); cap[g] -= opt['dcost']
    q = list(items)
    for g in range(N):
        while q and cap[g] > 0 and 2*q[0][0] < g:
            gaps[g].append(q.pop(0)[1]); cap[g] -= 1
    gaps[N-1] += [x[1] for x in q]
    sc.run(mf, [pre[g] + gaps[g] for g in range(N)], nextmf=(qk_mfmas(S_[par])[0] if kread else None))

def packed(sc, mf, ds_at, exps, items, extra=None):
    N = len(mf)
    gaps = [[] for _ in range(N)]
    for g, r in ds_at: gaps[g].append(r)
    q = list(items); ne = len(exps)
    e = 0
    for g in range(N):
        k = 0
        while q and q[0][0] < e and k < 2:
            gaps[g].append(q.pop(0)[1]); k += 1
        if e < ne: gaps[g].append(exps[e]); e += 1
    assert e == ne
    if q: gaps[N-1] += ['s_nop 0'] + [x[1] for x in q]
    if extra:
        for g, x in extra: gaps[g].append(x)
    sc.run(mf, gaps)

def epoch_dmas(E, opt, mode='full'):
    p = E & 1
    r = []
    for isV in (0, 1):
        for grp in (0, 1):
            st, ins = dma_group(isV, grp, f's{30+2*isV+p}', f's{34+2*isV+grp}')
            for j, x in enumerate(ins):
                sal = [st] if j == 0 else []
                r.append([sal, x])
    return r

def stamp(a, opt, idx):
    if opt.get('stamps'):
        a.e(f's_memtime s[{80+2*idx}:{81+2*idx}]')

def gen_attn(a, opt=None):
    opt = dict(opt or {})
    opt.setdefault('XQ', [1, 3]); opt.setdefault('kpos', [33, 35, 37, 39, 41, 43, 45, 47])
    opt.setdefault('dpos', [49, 51, 53, 55, 57, 59, 61, 63]); opt.setdefault('dcost', 2); opt.setdefault('dsplit', [6, 5, 5, 0])
    XQ = opt['XQ']
    NT['kv'] = ' nt' if opt.get('ntkv', 1) else ''; NT['wq'] = ' nt' if opt.get('ntwq', 1) else ''
    L = 'attn_kernel'
    kernel_head(a, L)
    a.e('s_cmp_ge_u32 s2, 256', f's_cbranch_scc1 {L}_end')
    tl_start(a)
    stamp(a, opt, 0)
    if opt.get('stamps'): a.e('s_memrealtime s[92:93]')
    a.e('s_load_dwordx4 s[4:7], s[0:1], 8', 's_load_dwordx2 s[40:41], s[0:1], 24', 's_load_dwordx2 s[42:43], s[0:1], 104')
    a.e('s_load_dwordx2 s[64:65], s[0:1], 32', 's_load_dwordx2 s[68:69], s[0:1], 48', 's_load_dwordx2 s[72:73], s[0:1], 56', 's_load_dwordx2 s[76:77], s[0:1], 64')
    a.e('v_lshrrev_b32 v1, 6, v0', 'v_and_b32 v2, 63, v0', 'v_readfirstlane_b32 s28, v1')
    if opt.get('map', 8) == 4:
        a.e('s_and_b32 s44, s2, 7', 's_lshl_b32 s44, s44, 2', 's_lshr_b32 s45, s2, 3', 's_and_b32 s46, s45, 3', 's_add_u32 s44, s44, s46')
        a.e('s_lshr_b32 s45, s45, 2')
    else:
        a.e('s_bfe_u32 s44, s2, 0x20001', 's_lshl_b32 s44, s44, 3', 's_bfe_u32 s46, s2, 0x30003', 's_add_u32 s44, s44, s46')
        a.e('s_and_b32 s45, s2, 1', 's_lshl_b32 s45, s45, 2', 's_lshr_b32 s46, s2, 6', 's_add_u32 s45, s45, s46')
    a.e('s_lshl_b32 s45, s45, 2', 's_add_u32 s45, s45, s28')
    a.e('v_and_b32 v3, 15, v2', 'v_lshrrev_b32 v4, 4, v2')
    a.e('v_lshlrev_b32 v5, 2, v4', 'v_xor_b32 v5, v5, v3', 'v_lshlrev_b32 v5, 4, v5', f'v_lshl_add_u32 {V(DW)}, v4, 13, v5')
    a.e(f'v_lshlrev_b32 {V(HV)}, 4, v2')
    for j in range(4):
        a.e(f'v_add_u32 v6, {4*j}, v4', 'v_xor_b32 v6, v6, v3', 'v_lshlrev_b32 v6, 4, v6', f'v_lshl_add_u32 {V(DK+j)}, v4, 8, v6')
    a.e('s_waitcnt lgkmcnt(0)')
    a.e('s_lshl_b32 s46, s44, 19'); srd(a, 8, 4, 5, 524288, add='s46'); srd(a, 12, 6, 7, 524288, add='s46')
    a.e('s_lshl_b32 s46, s44, 8'); srd(a, 16, 40, 41, 0, add='s46'); a.e('s_sub_u32 s18, 4194304, s46')
    a.e('s_lshl_b32 s46, s45, 16', f's_add_u32 s46, s46, {WS_H}'); srd(a, 20, 42, 43, 65536, add='s46')
    a.e('s_lshl_b32 s46, s45, 19', 's_lshl_b32 s47, s44, 14', 's_add_u32 s46, s46, s47', f's_add_u32 s46, s46, {WS_O}'); srd(a, 24, 42, 43, 16384, add='s46')
    a.e('s_lshl_b32 s48, s28, 13')
    a.e('s_lshl_b32 s49, s28, 18')
    def wq_chunk(c):
        r = []
        for i in range(8):
            sal = []
            if i % 4 == 0: sal.append(f's_add_u32 m0, s48, {16384 + 32768*c + 4096*(i//4)}')
            sal.append(f's_add_u32 s50, s49, {c*128*8192 + 32768*i - 1024*(i & 3)}')
            r.append([sal, f'buffer_load_dwordx4 {V(DW)}, s[16:19], s50 offen offset:{1024*(i&3)}{NT["wq"]} lds'])
        return r
    HB = [0, 64, 128, 0]
    def h_loads(ss):
        r = []
        for qb in range(4):
            for tt in range(4):
                sal = [f's_mov_b32 s51, {qb*16384 + ss*4096}'] if tt == 0 else []
                r.append([sal, f'buffer_load_dwordx4 {A(HB[ss]+16*qb+4*tt,4)}, {V(HV)}, s[20:23], s51 offen offset:{1024*tt}'])
        return r
    def emit_list(lst):
        for sal, ins in lst:
            a.e(sal)
            if sal and 'm0' in sal[-1]: a.e('s_nop 0')
            a.e(ins)
    emit_list(wq_chunk(0)); emit_list(h_loads(0))
    a.e('s_lshl_b32 s52, s28, 12', 's_mov_b32 m0, s52', 's_nop 0')
    for j in range(4): a.e(f'buffer_load_dwordx4 {V(DK+j)}, s[8:11], s52 offen offset:{1024*j}{NT["kv"]} lds')
    emit_list(wq_chunk(1)); emit_list(h_loads(1))
    for j in range(2):
        a.e(f'v_add_u32 v6, {4*j}, v4', 'v_lshlrev_b32 v6, 1, v6', 'v_xor_b32 v6, v6, v3', 'v_lshlrev_b32 v6, 4, v6', f'v_lshl_add_u32 {V(DV+j)}, v4, 8, v6')
    a.e('v_xor_b32 v5, v3, v4', 'v_lshlrev_b32 v5, 4, v5', f'v_lshl_add_u32 {V(KA)}, v3, 8, v5')
    for t in range(1, 4): a.e(f'v_xor_b32 {V(KA+t)}, {t*64}, {V(KA)}')
    a.e('v_lshrrev_b32 v6, 2, v2', 'v_lshlrev_b32 v7, 8, v6', 'v_and_b32 v6, 7, v6', 'v_and_b32 v9, 3, v2', 'v_lshl_add_u32 v7, v9, 3, v7')
    for db in range(8):
        a.e(f'v_xor_b32 v10, {db}, v6', f'v_lshl_add_u32 v10, v10, 5, v7', f'v_add_u32 {V(VA+db)}, 0x10000, v10')
    a.e('v_bfe_u32 v6, v2, 2, 2', 'v_lshl_add_u32 v7, v4, 3, v6', 'v_lshlrev_b32 v7, 8, v7', 'v_add_u32 v7, 0x4000, v7', 'v_lshlrev_b32 v6, 2, v6')
    for tp in range(4):
        a.e(f'v_add_u32 v10, {4*tp}, v9', 'v_xor_b32 v10, v10, v6', f'v_lshl_add_u32 {V(WA+tp)}, v10, 4, v7')
    for i in range(4): a.e(f'v_mov_b32 {V(ONES+i)}, 0x3f803f80')
    for i in range(8): a.e(f'v_mov_b32 {V(LV+i)}, 0')
    for p in range(2):
        a.e(f's_add_u32 s53, s28, {6+4*p}', 's_and_b32 s53, s53, 7', f's_lshl_b32 s{30+p}, s53, 13')
        a.e(f's_add_u32 s53, s28, {3+4*p}', 's_and_b32 s53, s53, 7', 's_lshl_b32 s53, s53, 13', f's_add_u32 s{32+p}, s53, 65536')
    a.e(f's_add_u32 s34, s48, {6*8192}', 's_add_u32 s35, s34, 4096', f's_add_u32 s36, s48, {3*8192}', 's_add_u32 s37, s36, 4096')
    a.e('s_mov_b32 s39, 0')
    for i, size in enumerate((4194304, 1835008, 1835008, 1835008)): a.e(f's_mov_b32 s{66+4*i}, {size}', f's_mov_b32 s{67+4*i}, 0x20000')
    sc = Sched(a)
    QA = lambda qb, j: 16 + 32*qb + 4*j
    AR = lambda j: AK + 16*(j & 3)
    def a_reads(j):
        return [f'ds_read_b64_tr_b16 {A(AR(j)+4*tt+2*v,2)}, {V(WA+(j>>1))} offset:{tt*8192+v*1024+(j&1)*8}' for tt in range(4) for v in range(2)]
    a.e('s_waitcnt vmcnt(28)', 's_barrier')
    stamp(a, opt, 1)
    for j in range(2):
        for r in a_reads(j): sc.emit_filler(r)
    k25 = []
    st, ins = dma_group(0, 0, 's54', 's54'); k25 += [[[f's_add_u32 s54, s48, {2*8192}', st], ins[0]]] + [[[], x] for x in ins[1:]]
    st, ins = dma_group(0, 0, 's55', 's55'); k25 += [[[f's_add_u32 s55, s54, 4096', st], ins[0]]] + [[[], x] for x in ins[1:]]
    later = {0: wq_chunk(2) + h_loads(2) + wq_chunk(3), 1: h_loads(3), 2: [], 3: []}
    after_bar = {0: [], 1: k25, 2: [], 3: []}
    vm_at_bar = {0: 32, 1: 24, 2: 8, 3: None}
    for ss in range(4):
        mf = []; gaps = []
        lst = list(later[ss])
        for j in range(8):
            for qb in range(4):
                for tt in range(4):
                    c = '0' if (ss == 0 and tt == 0) else V(QA(qb, j), 4)
                    mf.append(f'{MF} {V(QA(qb,j),4)}, {A(AR(j)+4*tt,4)}, {A(HB[ss]+16*qb+4*tt,4)}, {c}')
                    gaps.append([])
            g0 = 16*j
            if j == 6:
                b = []
                if ss < 3: b = [f's_waitcnt vmcnt({vm_at_bar[ss]}) lgkmcnt(0)', 's_barrier'] + [f'v_add_u32 {V(WA+tp)}, 0x8000, {V(WA+tp)}' for tp in range(4)]
                else: b = ['s_waitcnt lgkmcnt(0)', 's_barrier']
                gaps[g0-1] += b
                lst = list(after_bar[ss])
            if j < 6: rd = a_reads(j+2)
            elif ss < 3: rd = a_reads(j-6)
            else: rd = kreads(0)[4*(j-6):4*(j-6)+4]
            for i, r in enumerate(rd): gaps[g0 + 2*i].append(r)
            for g in range(g0+1, g0+16, 2):
                if lst:
                    sal, ins = lst.pop(0)
                    gaps[g-1] = sal + gaps[g-1]
                    gaps[g].append(ins)
        assert not lst
        if ss == 3:
            pass
        sc.run(mf, gaps)
    stamp(a, opt, 2)
    a.e('s_cmp_eq_u32 s28, 0', f's_cbranch_scc1 {L}_nov')
    a.e('s_sub_u32 s54, s48, 8192', 's_add_u32 s55, s54, 4096', 's_add_u32 s56, s54, 65536')
    for grp in range(2):
        st, ins = dma_group(1, grp, 's56', f's{54+grp}'); a.e(st, 's_nop 0', ins)
    a.e(f'{L}_nov:')
    def cvtq(qb): return [f'v_cvt_pk_bf16_f32 {V(Q+16*qb+2*j+h)}, {V(QA(qb,j)+2*h)}, {V(QA(qb,j)+2*h+1)}' for j in range(8) for h in range(2)]
    a.e('s_nop 7')
    a.e(cvtq(0), 's_nop 1')
    mf = qk_mfmas(S_[0], czero=True, order='qkt')
    gaps = [[] for _ in mf]
    for qb in range(1, 4):
        cv = cvtq(qb)
        for i, x in enumerate(cv): gaps[8*(qb-1) + min(i//2, 6) if i < 14 else 8*(qb-1)+6].append(x)
        gaps[8*(qb-1)+7].append('s_nop 0')
    sc.run(mf, gaps)
    a.e('s_nop 3')
    for r in kreads(8192): sc.emit_filler(r)
    S0 = S_[0]
    for qb in range(4):
        b = S0 + 8*qb
        a.e(f'v_max3_f32 {V(8+qb)}, {V(b)}, {V(b+1)}, {V(b+2)}', f'v_max3_f32 {V(12+qb)}, {V(b+3)}, {V(b+4)}, {V(b+5)}')
    for qb in range(4):
        b = S0 + 8*qb
        a.e(f'v_max3_f32 {V(8+qb)}, {V(8+qb)}, {V(b+6)}, {V(b+7)}')
    for qb in range(4): a.e(f'v_max_f32 {V(8+qb)}, {V(8+qb)}, {V(12+qb)}')
    for perm in ('32', '16'):
        for qb in range(4): a.e(f'v_mov_b32 {V(12+qb)}, {V(8+qb)}')
        a.e('s_nop 0')
        for qb in range(4): a.e(f'v_permlane{perm}_swap_b32 {V(8+qb)}, {V(12+qb)}')
        a.e('s_nop 0')
        for qb in range(4): a.e(f'v_max_f32 {V(8+qb)}, {V(8+qb)}, {V(12+qb)}')
    for qb in range(4): a.e(f'v_sub_f32 {V(CI+4*qb)}, {f32hex(-opt.get("delta", DELTA))}, {V(8+qb)}')
    for qb in range(4):
        for i in range(1, 4): a.e(f'v_mov_b32 {V(CI+4*qb+i)}, {V(CI+4*qb)}')
    for e in range(32): a.e(f'v_add_f32 {V(S0+e)}, {V(S0+e)}, {V(CI+4*(e>>3))}')
    for db in range(8): a.e(f'v_subrev_u32 {V(VT+db)}, 0x10000, {V(VA+db)}')
    if opt.get('pf', 1):
        a.e('s_lshl_b32 s53, s2, 2', 's_add_u32 s53, s53, s28', 's_lshl_b32 s54, s53, 12', 's_mul_i32 s55, s53, 1792')
        a.e('v_lshlrev_b32 v5, 6, v2', f'v_add_u32 {V(PF)}, s54, v5', 'v_min_u32 v5, 1728, v5', f'v_add_u32 {V(PF+1)}, s55, v5')
    a.e('s_waitcnt vmcnt(0) lgkmcnt(0)', 's_barrier'); sc.pend = []
    stamp(a, opt, 3)
    def adv():
        return ['s_add_u32 s34, s34, 32768', 's_add_u32 s35, s35, 32768', 's_add_u32 s36, s36, 32768', 's_add_u32 s37, s37, 32768']
    def epoch(E, kind):
        d = epoch_dmas(E, opt)
        if kind == 'e14':
            d = d[8:]
        if kind == 'e15': d = []
        npf = 0
        if kind == 'e14' and opt.get('pf', 1):
            for ptr, size, vo in ((32, 4194304, PF), (48, 1835008, PF+1), (56, 1835008, PF+1), (64, 1835008, PF+1)):
                d.append([[], f'buffer_load_dword {V(PF+2)}, {V(vo)}, s[{64+4*npf}:{67+4*npf}], 0 offen'])
                npf += 1
        split = opt['dsplit']
        for sl in range(4):
            s = 4*E + sl
            n = split[sl]
            dm = d[:n]; d = d[n:]
            if kind == 'e14' and sl == 0:
                a.e('s_cmp_eq_u32 s28, 3', f's_cbranch_scc1 {L}_e14d', 's_cmp_eq_u32 s28, 2', f's_cbranch_scc1 {L}_e14v')
                for sal, ins in epoch_dmas(E, opt)[:8]: a.e(sal, 's_nop 0' if sal else [], ins)
                a.e(f's_branch {L}_e14d', f'{L}_e14v:', f's_mov_b32 s54, {63*8192}', f's_mov_b32 s55, {63*8192+4096}', 's_mov_b32 s56, 0')
                for grp in range(2):
                    st, ins = dma_group(1, grp, 's56', f's{54+grp}'); a.e(st, 's_nop 0', ins)
                a.e(f'{L}_e14d:')
            if s == 0:
                exps, items = sm_items(S_[0], P_[0], XQ)
                mf = qk_mfmas(S_[1])
                kr = kreads(2*8192)
                ds_at = [(17+2*i, kr[i]) for i in range(4)]
                extra = []
                for n_, (sal, ins) in enumerate(dm):
                    extra += [(2+2*n_, x) for x in sal] + [(3+2*n_, ins)]
                packed(sc, mf, ds_at, exps, items, extra)
                for r in kr[4:]: sc.emit_filler(r)
            elif s == 62:
                normal_slot(sc, opt, s, dm, kread=False, late_v=vreads(VA, (62 % 8)*8192))
            elif s == 63:
                exps, items = sm_items(S_[1], P_[1], XQ)
                mf = pv_mfmas(P_[0], XQ)
                vr = vreads(VT, 0)
                ds_at = [(min(4*(i >> 1) + 4 + (i & 1), len(mf)-1), vr[i]) for i in range(16)]
                packed(sc, mf, ds_at, exps, items)
            else:
                normal_slot(sc, opt, s, dm, first_pv=(s == 1))
        assert not d
        if kind != 'e15':
            a.e(adv())
            a.e(f's_waitcnt vmcnt({npf}) lgkmcnt(0)', 's_barrier'); sc.pend = []
    epoch(0, 'n'); epoch(1, 'n')
    a.e('s_mov_b32 s38, 0', '.p2align 6', f'{L}_loop:')
    epoch(2, 'n'); epoch(3, 'n')
    a.e('s_add_u32 s38, s38, 1', 's_cmp_lt_u32 s38, 6', f's_cbranch_scc1 {L}_loop')
    epoch(14, 'e14'); epoch(15, 'e15')
    a.e('s_nop 1')
    mf = pv_mfmas(P_[1], XQ)
    gaps = [[] for _ in mf]
    sc.run(mf, gaps)
    stamp(a, opt, 4)
    a.e('v_lshlrev_b32 v5, 4, v4')
    for qb in range(4):
        if qb in XQ: continue
        l = LV + 2*qb
        a.e(f'v_add_f32 {V(l)}, {V(l)}, {V(l+1)}'); xlane_sum(a, V(l), 'v6')
        for i in range(4): a.e(f'ds_bpermute_b32 {V(LM+4*qb+i)}, v5, {V(l)} offset:{4*i}')
    a.e('s_nop 7', 's_waitcnt lgkmcnt(0)')
    a.e(f'{L}_norm:')
    a.e(f'v_add_f32 v8, {V(LM)}, {V(LM+1)}')
    for i in range(2, 16): a.e(f'v_add_f32 v8, v8, {V(LM+i)}')
    for i in range(16): a.e(f'v_rcp_f32 {V(LM+i)}, {V(LM+i)}')
    a.e('v_lshlrev_b32 v6, 2, v4', 'v_xor_b32 v6, v6, v2', 'v_lshlrev_b32 v6, 4, v6')
    W = 96
    T = 16
    cnt = 0
    for j in range(4):
        for qb in range(4):
            b = T + 8*(cnt % 8); pk = 80 + 4*(cnt % 4); cnt += 1
            for u in range(2):
                for i in range(4): a.e(f'v_accvgpr_read_b32 {V(b+4*u+i)}, {A(AO+16*(2*j+u)+4*qb+i)}')
            for i in range(4):
                w = W + 4*qb + i
                a.e(f'v_maximum3_f32 {V(w)}, abs({V(b+i)}), abs({V(b+4+i)}), {"0" if j == 0 else V(w)}')
            for u in range(2):
                for i in range(4): a.e(f'v_mul_f32 {V(b+4*u+i)}, {V(b+4*u+i)}, {V(LM+4*qb+i)}')
            for h in range(4): a.e(f'v_cvt_pk_bf16_f32 {V(pk+h)}, {V(b+2*h)}, {V(b+2*h+1)}')
            off = (j*4+qb)*1024
            a.e(f's_mov_b32 s54, {off & ~4095}', f'buffer_store_dwordx4 {V(pk,4)}, v6, s[24:27], s54 offen offset:{off & 4095}')
    a.e(f'v_minimum3_f32 v9, {V(W)}, {V(W+1)}, {V(W+15)}', f'v_maximum3_f32 v10, {V(W)}, {V(W+1)}, {V(W+15)}')
    for i in range(2, 15, 2): a.e(f'v_minimum3_f32 v9, v9, {V(W+i)}, {V(W+i+1)}', f'v_maximum3_f32 v10, v10, {V(W+i)}, {V(W+i+1)}')
    a.e(f's_mov_b32 s54, {f32hex(2.0**100)}', f's_mov_b32 s55, {f32hex(2.0**-120)}', f's_mov_b32 s60, 0x7f000000')
    a.e('v_cmp_nle_f32 s[56:57], v8, s54', 'v_cmp_nge_f32 s[58:59], v9, s55', 'v_cmp_nle_f32 s[62:63], v10, s60', 's_nop 1',
        's_or_b64 s[56:57], s[56:57], s[58:59]', 's_or_b64 s[56:57], s[56:57], s[62:63]', 's_cmp_eq_u64 s[56:57], 0')
    if opt.get('force_fb'): a.e('s_cmp_eq_u32 s2, 1000')
    a.e(f's_cbranch_scc1 {L}_fin', 's_cmp_eq_u32 s39, 1', f's_cbranch_scc1 {L}_fin')
    a.e('s_mov_b32 s39, 1', 's_add_u32 s48, s48, 8192', 's_waitcnt vmcnt(0)')
    MR = CI; LR = CI + 4; AL = CI + 8; AR_ = 96
    for i in range(128): a.e(f'v_accvgpr_write_b32 {A(i)}, 0')
    for qb in range(4): a.e(f'v_mov_b32 {V(MR+qb)}, 0xff7fffff', f'v_mov_b32 {V(LR+qb)}, 0')
    for db in range(8): a.e(f'v_add_u32 {V(VT+db)}, s48, {V(VT+db)}')
    a.e('v_lshlrev_b32 v7, 8, v3', 'v_lshl_add_u32 v7, v4, 4, v7')
    a.e('s_mov_b32 s54, 0', f'{L}_fb:', 's_add_u32 s55, s54, 4096')
    for f in range(8): a.e(f'buffer_load_dwordx4 {A(AK+4*f,4)}, v7, s[8:11], s{54+(f>>2)} offen offset:{64*(f&3)}')
    for grp in range(2):
        st, ins = dma_group(1, grp, 's48', f's{54+grp}'); a.e(st, 's_nop 0', ins)
    a.e('s_waitcnt vmcnt(0)')
    a.e(vreads(VT, 0))
    a.e(qk_mfmas(S0, czero=True), 's_nop 7', 's_nop 3')
    for qb in range(4):
        b = S0 + 8*qb; m = V(MR+qb); al = V(AL+qb)
        a.e(f'v_max3_f32 v8, {V(b)}, {V(b+1)}, {V(b+2)}', f'v_max3_f32 v8, v8, {V(b+3)}, {V(b+4)}', f'v_max3_f32 v8, v8, {V(b+5)}, {V(b+6)}', f'v_max3_f32 v8, v8, {V(b+7)}, {m}')
        for perm in ('32', '16'):
            a.e('v_mov_b32 v9, v8', 's_nop 1', f'v_permlane{perm}_swap_b32 v8, v9', 's_nop 1', 'v_max_f32 v8, v8, v9')
        a.e(f'v_sub_f32 {al}, {m}, v8', f'v_exp_f32 {al}, {al}', f'v_mov_b32 {m}, v8')
        for e in range(8): a.e(f'v_sub_f32 {V(b+e)}, {V(b+e)}, v8')
        for e in range(8): a.e(f'v_exp_f32 {V(b+e)}, {V(b+e)}')
        a.e(f'v_mul_f32 {V(LR+qb)}, {V(LR+qb)}, {al}')
        for e in range(8): a.e(f'v_add_f32 {V(LR+qb)}, {V(LR+qb)}, {V(b+e)}')
        for h in range(4): a.e(f'v_cvt_pk_bf16_f32 {V(P_[0]+4*qb+h)}, {V(b+2*h)}, {V(b+2*h+1)}')
        for i in range(4): a.e(f'ds_bpermute_b32 {V(AR_+4*qb+i)}, v5, {al} offset:{4*i}')
    a.e('s_waitcnt lgkmcnt(0)')
    for db in range(8):
        for qb in range(4):
            for i in range(4):
                o = AO + 16*db + 4*qb + i
                a.e(f'v_accvgpr_read_b32 v8, {A(o)}', f'v_mul_f32 v8, v8, {V(AR_+4*qb+i)}', f'v_accvgpr_write_b32 {A(o)}, v8')
    a.e('s_nop 1')
    a.e(pv_mfmas(P_[0], []), 's_nop 7', 's_nop 3')
    a.e('s_add_u32 s54, s54, 8192', 's_cmp_lt_u32 s54, 524288', f's_cbranch_scc1 {L}_fb')
    for qb in range(4):
        xlane_sum(a, V(LR+qb), 'v6')
        for i in range(4): a.e(f'ds_bpermute_b32 {V(LM+4*qb+i)}, v5, {V(LR+qb)} offset:{4*i}')
    a.e('s_waitcnt lgkmcnt(0)', f's_branch {L}_norm')
    a.e(f'{L}_fin:')
    if opt.get('stamps'):
        a.e('s_waitcnt vmcnt(0)')
        stamp(a, opt, 5); a.e('s_memrealtime s[98:99]', 's_waitcnt lgkmcnt(0)')
        srd(a, 20, 42, 43, 1 << 20, add=(48 << 20))
        a.e('s_lshl_b32 s54, s2, 2', 's_add_u32 s54, s54, s28', 's_lshl_b32 s54, s54, 5', 'v_mov_b32 v7, s54')
        for i in range(1, 6): a.e(f's_sub_u32 s55, s{80+2*i}, s80', f'v_mov_b32 v{8+i}, s55')
        a.e('v_mov_b32 v8, s92', 's_sub_u32 s55, s98, s92', 'v_mov_b32 v14, s55', 'v_mov_b32 v15, s39')
        a.e('v_cmp_eq_u32 vcc, 0, v2', 's_and_saveexec_b64 s[56:57], vcc')
        a.e('buffer_store_dwordx4 v[8:11], v7, s[20:23], 0 offen', 'buffer_store_dwordx4 v[12:15], v7, s[20:23], 0 offen offset:16')
    a.e('s_waitcnt vmcnt(0)'); tl_end(a); a.e(f'{L}_end:', 's_endpgm')
    return dict(label=L, grid=256, block=256, lds=147456, vgpr=512, accum=256)
```

```python
from asmlib import *
from gen_pre import *
from gen_attn import Sched, MF

def gen_ksplit(a, L, kind, opt):
    isO = kind == 'o'
    NS = 32 if isO else 14
    R = 4
    SLOT = 8192 if isO else 4096
    WREG = R * SLOT
    ACC = 0
    FA = [64, 80]; FB = [96, 112]
    BD = 32
    DA = 8; DB = 12; RA = 16; RB = 20
    kernel_head(a, L)
    a.e('s_cmp_ge_u32 s2, 256', f's_cbranch_scc1 {L}_end')
    tl_start(a)
    a.e(f's_load_dwordx2 s[4:5], s[0:1], {32 if isO else 64}', 's_load_dwordx2 s[6:7], s[0:1], 104',
        f's_load_dwordx2 s[40:41], s[0:1], {0 if isO else 88}')
    a.e('v_lshrrev_b32 v1, 6, v0', 'v_and_b32 v2, 63, v0', 'v_readfirstlane_b32 s28, v1')
    a.e('s_and_b32 s44, s2, 7', 's_lshr_b32 s45, s2, 3', 's_lshr_b32 s46, s44, 1', 's_lshl_b32 s46, s46, 3', 's_lshr_b32 s47, s45, 2', 's_add_u32 s46, s46, s47')
    a.e('s_and_b32 s44, s44, 1', 's_lshl_b32 s44, s44, 2', 's_and_b32 s45, s45, 3', 's_add_u32 s44, s44, s45')
    a.e('v_and_b32 v3, 15, v2', 'v_lshrrev_b32 v4, 4, v2')
    a.e('v_lshrrev_b32 v5, 3, v2', 'v_bfe_u32 v6, v2, 4, 2', 'v_lshlrev_b32 v6, 1, v6', 'v_and_b32 v7, 7, v2', 'v_xor_b32 v6, v6, v7', 'v_lshlrev_b32 v6, 4, v6')
    if isO:
        a.e('v_lshrrev_b32 v7, 5, v2', 'v_lshlrev_b32 v7, 4, v7', 'v_and_b32 v5, 3, v5', 'v_add_u32 v5, v5, v7')
        rowoff = [0, 8, 4, 12]
    else:
        rowoff = [0, 8, 16, 24]
    a.e('v_lshl_add_u32 v5, v5, 10, v6')
    for i in range(4): a.e(f'v_add_u32 {V(DA+i)}, {rowoff[i]*1024 - i*1024}, v5')
    a.e(f'v_lshlrev_b32 {V(DB)}, 4, v2')
    a.e('s_waitcnt lgkmcnt(0)')
    a.e('s_lshl_b32 s47, s44, 7'); srd(a, 8, 4, 5, 0, add='s47'); a.e(f's_sub_u32 s10, {4096*1024 if isO else 1792*1024}, s47')
    if isO:
        a.e('s_lshl_b32 s47, s46, 19', 's_lshl_b32 s48, s28, 17', 's_add_u32 s47, s47, s48', f's_add_u32 s47, s47, {WS_O}'); srd(a, 12, 6, 7, 131072, add='s47')
        a.e('s_lshl_b32 s34, s28, 20')
    else:
        a.e(f's_mul_i32 s47, s46, {4*56*1024}', f's_add_u32 s47, s47, {WS_HH}'); srd(a, 12, 6, 7, 4*56*1024, add='s47')
        a.e(f's_mul_i32 s34, s28, {14*32*1024}')
    a.e(f's_mul_i32 s30, s28, {WREG}')
    a.e('s_mov_b32 s35, 0')
    def dma(s):
        r = []
        base = (s % R) * SLOT
        r.append([[f's_add_u32 m0, s30, {base}'], f'buffer_load_dwordx4 {V(DA)}, s[8:11], s34 offen lds'])
        for i in range(1, 4): r.append([[], f'buffer_load_dwordx4 {V(DA+i)}, s[8:11], s34 offen offset:{1024*i} lds'])
        if isO:
            r.append([['s_add_u32 s34, s34, 32768', f's_add_u32 m0, s30, {base+4096}'], f'buffer_load_dwordx4 {V(DB)}, s[12:15], s35 offen lds'])
            for i in range(1, 4): r.append([[], f'buffer_load_dwordx4 {V(DB)}, s[12:15], s35 offen offset:{1024*i} lds'])
            r.append([['s_add_u32 s35, s35, 4096'], None])
        else:
            r.append([['s_add_u32 s34, s34, 32768'], None])
        return r
    def bload(s):
        r = []
        for qb in range(4):
            r.append([[f's_add_u32 s36, s37, {qb*56*1024 + s*1024}'], f'buffer_load_dwordx4 {V(BD+16*s+4*qb,4)}, {V(DB)}, s[12:15], s36 offen'])
        return r
    def emit(lst):
        for sal, ins in lst:
            a.e(sal)
            if ins:
                if sal and 'm0' in sal[-1]: a.e('s_nop 0')
                a.e(ins)
    vm = []
    def track(lst, tag):
        for sal, ins in lst:
            if ins: vm.append(tag)
    if not isO: a.e(f's_mul_i32 s37, s28, {14*1024}')
    PRE = 6 if not isO else 0
    for s in range(R):
        if not isO: emit(bload(s)); track(bload(s), ('b', s))
        emit(dma(s)); track(dma(s), ('a', s))
    for s in range(R, PRE): emit(bload(s)); track(bload(s), ('b', s))
    a.e('v_bfe_u32 v5, v2, 2, 2', 'v_lshl_add_u32 v5, v4, 2, v5', 'v_and_b32 v6, 3, v2')
    a.e('v_lshlrev_b32 v7, 7, v5', 'v_lshl_add_u32 v7, v6, 3, v7', 'v_add_u32 v7, s30, v7', 'v_bfe_u32 v5, v5, 1, 2')
    for nb in range(4): a.e(f'v_xor_b32 v24, {nb}, v5', f'v_lshl_add_u32 {V(RA+nb)}, v24, 5, v7')
    if isO:
        a.e('v_bfe_u32 v5, v2, 2, 2', 'v_lshrrev_b32 v7, 5, v2', 'v_lshl_add_u32 v5, v7, 3, v5', 'v_lshlrev_b32 v7, 2, v6', 'v_xor_b32 v5, v5, v7', 'v_lshl_add_u32 v5, v6, 4, v5')
        a.e('v_and_b32 v7, 1, v4', 'v_lshlrev_b32 v7, 3, v7', 'v_lshl_add_u32 v5, v5, 4, v7', 'v_add_u32 v5, 4096, v5', f'v_add_u32 {V(RB)}, s30, v5')
        a.e(f'v_xor_b32 v5, 64, v5', f'v_add_u32 {V(RB+1)}, s30, v5')
    def reads(s):
        base = (s % R) * SLOT; p = s & 1
        r = []
        for x in range(4):
            for v in range(2):
                r.append(f'ds_read_b64_tr_b16 {A(FA[p]+4*x+2*v,2)}, {V(RA+x)} offset:{base+2048*v}')
            if isO:
                for u in range(2):
                    r.append(f'ds_read_b64_tr_b16 {A(FB[p]+4*x+2*u,2)}, {V(RB+u)} offset:{base+1024*x}')
        return r
    def vmwait(tags):
        last = max([i for i, t in enumerate(vm) if t in tags], default=-1)
        if last < 0: return []
        n = len(vm) - 1 - last
        del vm[:last+1]
        return [f's_waitcnt vmcnt({n})']
    sc = Sched(a, age=6)
    a.e(vmwait({('a', 0), ('b', 0)}))
    for r in reads(0): sc.emit_filler(r)
    for s in range(NS):
        p = s & 1
        mf = []
        for nb in range(4):
            for qb in range(4):
                acc = A(ACC+16*nb+4*qb, 4)
                b = A(FB[p]+4*qb, 4) if isO else V(BD+16*s+4*qb, 4)
                mf.append(f'{MF} {acc}, {A(FA[p]+4*nb,4)}, {b}, {"0" if s == 0 else acc}')
        gaps = [[] for _ in mf]
        a.e('s_waitcnt lgkmcnt(0)'); sc.pend = []
        iss = []
        if s + R < NS: iss += [(x, ('a', s+R)) for x in dma(s+R)]
        if not isO and s + PRE < NS: iss += [(x, ('b', s+PRE)) for x in bload(s+PRE)]
        g = 0
        for (sal, ins), tag in iss:
            gaps[g] += sal
            if ins:
                if sal and 'm0' in sal[-1]: gaps[g].append('s_nop 0')
                gaps[g].append(ins); vm.append(tag); g += 1
        if s + 1 < NS:
            rd = reads(s+1)
            g0 = 8 if isO else 8
            w = vmwait({('a', s+1), ('b', s+1)})
            gaps[g0-1] += w
            per = len(rd) // 8
            for i, r in enumerate(rd): gaps[g0 - 1 + i // per if False else min(g0 - 1 + i // per, 15)].append(r)
        sc.run(mf, gaps)
    a.e('s_nop 7', 's_barrier')
    a.e('v_mul_u32_u24 v5, 272, v3', 'v_lshl_add_u32 v6, v4, 4, v5', f's_mul_i32 s47, s28, 17408', 'v_add_u32 v6, s47, v6')
    for nb in range(4):
        for qb in range(4):
            a.e(f'ds_write_b128 v6, {A(ACC+16*nb+4*qb,4)} offset:{qb*16*272 + nb*64}')
    XR = 32; GV = 40; PT = 64
    a.e('s_lshl_b32 s47, s46, 2', 's_add_u32 s47, s47, s28')
    srd(a, 16, 6, 7, 12288)
    a.e('v_lshlrev_b32 v7, 5, v4', 's_lshl_b32 s48, s44, 8', f's_add_u32 s48, s48, {(2 if isO else 5)*2048}')
    for t in range(2):
        for h in range(2): a.e(f'buffer_load_dwordx4 {V(GV+8*t+4*h,4)}, v7, s[16:19], s48 offen offset:{128*t+16*h}')
    a.e('s_lshl_b32 s49, s47, 14', 's_lshl_b32 s50, s44, 7', 's_add_u32 s50, s50, s49', 'v_lshlrev_b32 v8, 10, v3', 'v_lshl_add_u32 v8, v4, 4, v8')
    a.e('s_lshl_b32 s51, s44, 11', 's_add_u32 s51, s51, s49', 'v_lshlrev_b32 v9, 4, v2')
    srd(a, 20, 40, 41, 2097152); srd(a, 24, 6, 7, 2097152, add=WS_X1)
    for t in range(2):
        if isO: a.e(f'buffer_load_dwordx4 {V(XR+4*t,4)}, v8, s[20:23], s50 offen offset:{64*t}')
        else: a.e(f'buffer_load_dwordx4 {V(XR+4*t,4)}, v9, s[24:27], s51 offen offset:{1024*t}')
    a.e('s_waitcnt lgkmcnt(0)', 's_barrier')
    a.e('s_mul_i32 s47, s28, 4352', 'v_lshl_add_u32 v6, v4, 5, v5', 'v_add_u32 v6, s47, v6')
    for pw in range(4):
        for t in range(2):
            for h in range(2): a.e(f'ds_read_b128 {V(PT+16*pw+8*t+4*h,4)}, v6 offset:{pw*17408 + t*128 + h*16}')
    a.e('s_waitcnt lgkmcnt(8)')
    for i in range(16): a.e(f'v_add_f32 {V(PT+i)}, {V(PT+i)}, {V(PT+16+i)}')
    a.e('s_waitcnt lgkmcnt(0)')
    for i in range(16): a.e(f'v_add_f32 {V(PT+32+i)}, {V(PT+32+i)}, {V(PT+48+i)}')
    for i in range(16): a.e(f'v_add_f32 {V(PT+i)}, {V(PT+i)}, {V(PT+32+i)}')
    a.e('s_waitcnt vmcnt(0)')
    for i in range(8): a.e(f'v_lshlrev_b32 {V(PT+16+2*i)}, 16, {V(XR+i)}', f'v_and_b32 {V(PT+17+2*i)}, 0xffff0000, {V(XR+i)}')
    for i in range(16): a.e(f'v_fmac_f32 {V(PT+16+i)}, {V(PT+i)}, {V(GV+i)}')
    for i in range(8): a.e(f'v_cvt_pk_bf16_f32 {V(XR+i)}, {V(PT+16+2*i)}, {V(PT+17+2*i)}')
    for t in range(2):
        if isO: a.e(f'buffer_store_dwordx4 {V(XR+4*t,4)}, v9, s[24:27], s51 offen offset:{1024*t}')
        else: a.e(f'buffer_store_dwordx4 {V(XR+4*t,4)}, v8, s[20:23], s50 offen offset:{64*t}')
    a.e('s_waitcnt vmcnt(0)'); tl_end(a); a.e(f'{L}_end:', 's_endpgm')
    return dict(label=L, grid=256, block=256, lds=max(4*WREG, 69632), vgpr=384, accum=256)

def gen_gateup(a, opt):
    L = 'gateup_kernel'
    R = 5; STG = 28672
    BD = 16
    DA = 144
    RA = 152
    ACC = 0
    FA = 112
    kernel_head(a, L)
    a.e('s_cmp_ge_u32 s2, 256', f's_cbranch_scc1 {L}_end')
    tl_start(a)
    a.e('s_load_dwordx4 s[4:7], s[0:1], 48', 's_load_dwordx2 s[40:41], s[0:1], 104')
    a.e('v_lshrrev_b32 v1, 6, v0', 'v_and_b32 v2, 63, v0', 'v_readfirstlane_b32 s28, v1')
    a.e('s_and_b32 s44, s2, 7', 's_lshr_b32 s45, s2, 3', 's_and_b32 s46, s44, 1', 's_lshl_b32 s46, s46, 3', 's_lshr_b32 s47, s45, 2', 's_add_u32 s46, s46, s47')
    a.e('s_lshr_b32 s44, s44, 1', 's_lshl_b32 s44, s44, 2', 's_and_b32 s45, s45, 3', 's_add_u32 s44, s44, s45')
    a.e('v_and_b32 v3, 15, v2', 'v_lshrrev_b32 v4, 4, v2')
    a.e('s_and_b32 s47, s28, 1', 's_mul_i32 s47, s47, 448', 'v_add_u32 v5, s47, v2', 's_mov_b32 s48, 4682', 's_mov_b32 s49, 3584')
    for i in range(7):
        a.e(f'v_add_u32 v6, {64*i}, v5', 'v_mul_lo_u32 v7, v6, s48', 'v_lshrrev_b32 v7, 16, v7', 'v_mul_u32_u24 v8, 14, v7', 'v_sub_u32 v8, v6, v8')
        a.e('v_and_b32 v9, 35, v7', 'v_bfe_u32 v10, v7, 2, 2', 'v_lshl_add_u32 v9, v10, 3, v9', 'v_bfe_u32 v10, v7, 4, 1', 'v_lshl_add_u32 v9, v10, 2, v9')
        a.e('v_mul_lo_u32 v9, v9, s49', 'v_lshl_add_u32 v9, v8, 4, v9', f'v_subrev_u32 {V(DA+i)}, {1024*(i & 3)}, v9')
    a.e('v_lshlrev_b32 v11, 4, v2')
    a.e('s_waitcnt lgkmcnt(0)')
    a.e('s_cmp_lt_u32 s28, 2', 's_cselect_b32 s50, s4, s6', 's_cselect_b32 s51, s5, s7', 's_mul_i32 s47, s44, 224')
    srd(a, 8, 50, 51, 0, add='s47'); a.e(f's_sub_u32 s10, {512*3584}, s47')
    a.e('s_lshl_b32 s47, s46, 3', 's_lshl_b32 s48, s28, 1', 's_add_u32 s47, s47, s48')
    a.e('s_lshl_b32 s48, s47, 14', f's_add_u32 s48, s48, {WS_H2}'); srd(a, 12, 40, 41, 32768, add='s48')
    a.e(f's_mul_i32 s48, s47, {56*1024}', f's_add_u32 s48, s48, {WS_HH}'); srd(a, 16, 40, 41, 2*56*1024, add='s48')
    a.e('s_lshr_b32 s48, s28, 1', 's_mul_i32 s48, s48, 14336', 's_and_b32 s49, s28, 1', 's_mul_i32 s49, s49, 7168', 's_add_u32 s30, s48, s49')
    a.e('s_mov_b32 s34, 0')
    vm = []
    def dma(st):
        r = []
        base = (st % R) * STG
        for i in range(7):
            sal = [f's_add_u32 m0, s30, {base + 4096*(i//4)}'] if i % 4 == 0 else []
            r.append([sal, f'buffer_load_dwordx4 {V(DA+i)}, s[8:11], s34 offen offset:{1024*(i&3)} lds'])
        r.append([[f's_add_u32 s34, s34, {64*3584}'], None])
        return r
    def bload(st):
        r = []
        for t in (2*st, 2*st+1):
            for qb in range(2):
                off = qb*16384 + t*1024
                r.append([[f's_mov_b32 s36, {off}'], f'buffer_load_dwordx4 {V(BD+8*t+4*qb,4)}, v11, s[12:15], s36 offen'])
        return r
    def emit(lst, tag):
        for sal, ins in lst:
            a.e(sal)
            if ins:
                if sal and 'm0' in sal[-1]: a.e('s_nop 0')
                a.e(ins); vm.append(tag)
    def vmwait(tags):
        last = max([i for i, t in enumerate(vm) if t in tags], default=-1)
        if last < 0: return []
        n = len(vm) - 1 - last
        del vm[:last+1]
        return [f's_waitcnt vmcnt({n})']
    for st in range(R-1):
        emit(dma(st), ('a', st)); emit(bload(st), ('b', st))
    a.e('v_lshrrev_b32 v5, 2, v2', 'v_mul_u32_u24 v5, 224, v5', 'v_and_b32 v6, 3, v2', f'v_lshl_add_u32 {V(RA)}, v6, 3, v5')
    for i in range(1, R): a.e(f'v_add_u32 {V(RA+i)}, {i*STG}, {V(RA)}')
    def rd(n):
        ks, b = divmod(n, 14); st, tt = divmod(ks, 2)
        off = (b // 7)*14336 + tt*7168 + (b % 7)*32
        return [f'ds_read_b64_tr_b16 {A(FA+4*(n % 8)+2*v,2)}, {V(RA + st % R)} offset:{off+3584*v}' for v in range(2)]
    D = 5
    sc = Sched(a, age=6)
    a.e(vmwait({('a', 0), ('b', 0)}), 's_barrier')
    for n in range(D):
        for r in rd(n): sc.emit_filler(r)
    NF = 16*14
    mf = []; gaps = []
    for n in range(NF):
        ks, b = divmod(n, 14); st, tt = divmod(ks, 2)
        for qb in range(2):
            acc = A(ACC+8*b+4*qb, 4)
            mf.append(f'{MF} {acc}, {A(FA+4*(n % 8),4)}, {V(BD+8*ks+4*qb,4)}, {"0" if ks == 0 else acc}')
            gaps.append([])
        nn = n + D
        if nn < NF:
            if nn % 28 == 0:
                s2 = nn // 28
                gaps[2*n-1] += vmwait({('a', s2), ('b', s2)}) + ['s_barrier']
                pendq = []
                if s2 + R - 2 < 8:
                    pendq = [(x, ('a', s2+R-2)) for x in dma(s2+R-2)] + [(x, ('b', s2+R-2)) for x in bload(s2+R-2)]
                gq = 2*n
                late = []
                for (sal, ins), tag in pendq:
                    late.append((gq, sal, ins, tag))
                    if ins: gq += 2
                pend_late = late
            r = rd(nn)
            gaps[2*n].append(r[0]); gaps[2*n+1].append(r[1])
        if 'pend_late' in locals():
            keep = []
            for gq, sal, ins, tag in pend_late:
                if gq // 2 == n:
                    gaps[gq] = sal + gaps[gq]
                    if ins:
                        gaps[gq+1].append(ins); vm.append(tag)
                else: keep.append((gq, sal, ins, tag))
            pend_late = keep
    sc.run(mf, gaps)
    a.e('s_nop 7')
    a.e('s_mul_i32 s47, s44, 7')
    for b in range(7):
        a.e(f's_add_u32 s48, s47, {b}', 's_lshr_b32 s49, s48, 1', 's_lshl_b32 s49, s49, 10', 's_and_b32 s48, s48, 1', 's_lshl_b32 s48, s48, 3', f's_add_u32 s{52+b}, s48, s49', f's_add_u32 s{62+b}, s{52+b}, {56*1024}')
    for b in range(7):
        for qb in range(2):
            t = 16 + 10*((2*b+qb) % 8)
            for i in range(4): a.e(f'v_accvgpr_read_b32 {V(t+i)}, {A(ACC+8*b+4*qb+i)}', f'v_accvgpr_read_b32 {V(t+4+i)}, {A(ACC+8*(b+7)+4*qb+i)}')
            for i in range(4): a.e(f'v_mul_f32 {V(t+i)}, {V(t+i)}, {V(t+4+i)}')
            a.e(f'v_cvt_pk_bf16_f32 {V(t+8)}, {V(t)}, {V(t+1)}', f'v_cvt_pk_bf16_f32 {V(t+9)}, {V(t+2)}, {V(t+3)}')
            a.e(f'buffer_store_dwordx2 {V(t+8,2)}, v11, s[16:19], s{(52 if qb == 0 else 62)+b} offen')
    a.e('s_waitcnt vmcnt(0)'); tl_end(a); a.e(f'{L}_end:', 's_endpgm')
    return dict(label=L, grid=256, block=256, lds=R*STG, vgpr=160+144, accum=160)

def gen_post(a, opt):
    ks = [gen_ksplit(a, 'oproj_kernel', 'o', opt)]
    ks.append(gen_ln(a, 'ln2_kernel', WS_X1, 3, 4, WS_H2, 1.0))
    ks.append(gen_gateup(a, opt))
    ks.append(gen_ksplit(a, 'down_kernel', 'd', opt))
    return ks
```

```python
from asmlib import *
import struct, math
def f32hex(x): return hex(struct.unpack('<I', struct.pack('<f', x))[0])

WS_MOD = 0
WS_H   = 1 << 20
WS_O   = 4 << 20
WS_X1  = 24 << 20
WS_H2  = 28 << 20
WS_HH  = 32 << 20
WS_ST  = 40 << 20
QSCALE = math.log2(math.e) / math.sqrt(128.0)

def round_bf16(a, dst, src):
    a.e(f'v_cvt_pk_bf16_f32 {dst}, {src}, {src}', f'v_and_b32 {dst}, 0xffff0000, {dst}')

def code_prefetch(a, L, nwg_per_xcd, dst):
    a.e('s_getpc_b64 s[30:31]', f'{L}_pc:', f's_sub_u32 s30, s30, {L}_pc - code_begin', 's_subb_u32 s31, s31, 0')
    a.e('s_lshr_b32 s32, s2, 3', 's_lshl_b32 s32, s32, 14', f'v_lshlrev_b32 {dst}, 6, v0', f'v_add_u32 {dst}, s32, {dst}',
        f'v_min_u32 {dst}, code_end - code_begin - 4, {dst}', f'global_load_dword {dst}, {dst}, s[30:31]')

def gen_mod(a, opt=None):
    opt = opt or {}
    L = 'mod_kernel'
    a.e('.text', 'code_begin:')
    kernel_head(a, L)
    a.e('s_cmp_ge_u32 s2, 96', f's_cbranch_scc1 {L}_end')
    tl_start(a)
    if opt.get('cpf', 1): code_prefetch(a, L, 12, 'v63')
    a.e('s_load_dwordx4 s[4:7], s[0:1], 72')
    a.e('s_load_dwordx2 s[20:21], s[0:1], 104')
    a.e('v_lshrrev_b32 v1, 2, v0')
    a.e('v_and_b32 v2, 3, v0')
    a.e('v_lshlrev_b32 v3, 1, v1')
    a.e('s_mov_b32 s22, 6144', 'v_mul_lo_u32 v4, v1, s22', 'v_lshl_add_u32 v4, v2, 4, v4')
    a.e('s_lshl_b32 s23, s2, 6')
    a.e('v_add_u32 v4, s23, v4')
    a.e('s_waitcnt lgkmcnt(0)')
    srd(a, 8, 4, 5, 1024); srd(a, 12, 6, 7, 512*6144); srd(a, 16, 20, 21, 12288)
    for i in range(8): a.e(f'buffer_load_ushort v{8+i}, v3, s[8:11], 0 offen offset:{i*128}')
    a.e('s_mov_b32 s24, 0')
    for i in range(8):
        a.e(f'buffer_load_dwordx4 v[{16+4*i}:{19+4*i}], v4, s[12:15], s24 offen nt')
        if i < 7: a.e(f's_add_u32 s24, s24, {64*6144}')
    for j in range(8): a.e(f'v_mov_b32 v{48+j}, 0')
    a.e('s_waitcnt vmcnt(8)')
    a.e(f's_mov_b32 s25, {f32hex(-math.log2(math.e))}')
    for i in range(8): a.e(f'v_lshlrev_b32 v{8+i}, 16, v{8+i}')
    for i in range(8): a.e(f'v_mul_f32 v{64+i}, s25, v{8+i}')
    for i in range(8): a.e(f'v_exp_f32 v{64+i}, v{64+i}')
    a.e('s_nop 0')
    for i in range(8): a.e(f'v_add_f32 v{64+i}, 1.0, v{64+i}')
    for i in range(8): a.e(f'v_rcp_f32 v{64+i}, v{64+i}')
    a.e('s_nop 0')
    for i in range(8): a.e(f'v_mul_f32 v{8+i}, v{8+i}, v{64+i}')
    for i in range(8): round_bf16(a, f'v{8+i}', f'v{8+i}')
    for i in range(8):
        a.e(f's_waitcnt vmcnt({7-i})')
        for d in range(4):
            w = 16+4*i+d
            a.e(f'v_lshlrev_b32 v5, 16, v{w}', f'v_and_b32 v6, 0xffff0000, v{w}',
                f'v_fmac_f32 v{48+2*d}, v5, v{8+i}', f'v_fmac_f32 v{49+2*d}, v6, v{8+i}')
    a.e('v_mul_u32_u24 v5, 144, v1', 'v_lshl_add_u32 v5, v2, 5, v5')
    a.e('ds_write_b128 v5, v[48:51]', 'ds_write_b128 v5, v[52:55] offset:16', 's_waitcnt lgkmcnt(0)', 's_barrier')
    a.e('v_and_b32 v6, 31, v0', 'v_lshrrev_b32 v7, 5, v0', 'v_mul_u32_u24 v5, 1152, v7', 'v_lshl_add_u32 v5, v6, 2, v5')
    for i in range(8): a.e(f'ds_read_b32 v{16+i}, v5 offset:{144*i}')
    a.e('s_waitcnt lgkmcnt(0)')
    for i in range(1, 8): a.e(f'v_add_f32 v16, v16, v{16+i}')
    a.e('v_lshlrev_b32 v5, 2, v0', 'ds_write_b32 v5, v16 offset:9216', 's_waitcnt lgkmcnt(0)', 's_barrier')
    a.e('v_cmp_gt_u32 vcc, 32, v0', 's_and_saveexec_b64 s[26:27], vcc', f's_cbranch_execz {L}_end')
    for i in range(8): a.e(f'ds_read_b32 v{16+i}, v5 offset:{9216+128*i}')
    a.e('s_waitcnt lgkmcnt(0)')
    for i in range(1, 8): a.e(f'v_add_f32 v16, v16, v{16+i}')
    round_bf16(a, 'v16', 'v16')
    a.e('s_lshr_b32 s28, s2, 4', 's_cmp_eq_u32 s28, 1', 's_cselect_b32 s29, 1, 0', 's_cmp_eq_u32 s28, 4', 's_cselect_b32 s29, 1, s29', 's_cmp_eq_u32 s29, 0', f's_cbranch_scc1 {L}_st')
    a.e('v_add_f32 v16, 1.0, v16'); round_bf16(a, 'v16', 'v16')
    a.e(f'{L}_st:', 's_lshl_b32 s23, s2, 7', 'v_add_u32 v5, s23, v5', 'buffer_store_dword v16, v5, s[16:19], 0 offen', 's_waitcnt vmcnt(0)')
    tl_end(a); a.e(f'{L}_end:', 's_endpgm')
    return dict(label=L, grid=96, block=256, lds=10240, vgpr=72, accum=72)

def xlane_sum(a, v, t):
    a.e(f'v_mov_b32 {t}, {v}', 's_nop 1', f'v_permlane32_swap_b32 {v}, {t}', 's_nop 1', f'v_add_f32 {v}, {v}, {t}',
        f'v_mov_b32 {t}, {v}', 's_nop 1', f'v_permlane16_swap_b32 {v}, {t}', 's_nop 1', f'v_add_f32 {v}, {v}, {t}')

def gen_ln(a, L, src, shift_part, scale_part, dst_off, outscale):
    kernel_head(a, L)
    a.e('s_cmp_ge_u32 s2, 128', f's_cbranch_scc1 {L}_end')
    tl_start(a)
    a.e('s_load_dwordx2 s[4:5], s[0:1], 0', 's_load_dwordx2 s[20:21], s[0:1], 104')
    a.e('v_and_b32 v1, 63, v0', 'v_lshrrev_b32 v2, 6, v0', 'v_and_b32 v3, 15, v0', 'v_bfe_u32 v4, v0, 4, 2')
    a.e('s_lshl_b32 s22, s2, 14', 'v_lshlrev_b32 v5, 12, v2', 'v_lshl_add_u32 v5, v1, 4, v5', 'v_add_u32 v5, s22, v5')
    if src == 'x':
        a.e('v_lshlrev_b32 v6, 10, v3', 'v_lshl_add_u32 v6, v2, 8, v6', 'v_lshl_add_u32 v6, v4, 4, v6', 'v_add_u32 v6, s22, v6')
    a.e('v_lshlrev_b32 v7, 9, v2', 'v_lshl_add_u32 v7, v4, 5, v7')
    a.e('s_waitcnt lgkmcnt(0)')
    if src == 'x': srd(a, 8, 4, 5, 2097152)
    else: srd(a, 8, 20, 21, 2097152, add=src)
    srd(a, 12, 20, 21, 12288); srd(a, 16, 20, 21, 2097152, add=dst_off)
    for j in range(4):
        if src == 'x': a.e(f'buffer_load_dwordx4 v[{16+4*j}:{19+4*j}], v6, s[8:11], 0 offen offset:{64*j}')
        else: a.e(f'buffer_load_dwordx4 v[{16+4*j}:{19+4*j}], v5, s[8:11], 0 offen offset:{1024*j}')
    a.e(f's_mov_b32 s23, {scale_part*2048}', f's_mov_b32 s24, {shift_part*2048}')
    for j in range(4):
        for hh in range(2):
            a.e(f'buffer_load_dwordx4 v[{64+8*j+4*hh}:{67+8*j+4*hh}], v7, s[12:15], s23 offen offset:{128*j+16*hh}')
            a.e(f'buffer_load_dwordx4 v[{96+8*j+4*hh}:{99+8*j+4*hh}], v7, s[12:15], s24 offen offset:{128*j+16*hh}')
    a.e('s_waitcnt vmcnt(16)')
    for i in range(16):
        a.e(f'v_lshlrev_b32 v{32+2*i}, 16, v{16+i}', f'v_and_b32 v{33+2*i}, 0xffff0000, v{16+i}')
    a.e('v_add_f32 v8, v32, v33')
    for i in range(2, 32): a.e(f'v_add_f32 v8, v8, v{32+i}')
    xlane_sum(a, 'v8', 'v9')
    a.e('v_lshlrev_b32 v10, 2, v3', 'v_lshl_add_u32 v11, v2, 6, v10', 'ds_write_b32 v11, v8', 's_waitcnt lgkmcnt(0)', 's_barrier')
    for i in range(4): a.e(f'ds_read_b32 v{12+i}, v10 offset:{64*i}')
    a.e('s_waitcnt lgkmcnt(0)', 'v_add_f32 v12, v12, v13', 'v_add_f32 v14, v14, v15', 'v_add_f32 v12, v12, v14')
    a.e(f'v_mul_f32 v12, {f32hex(1/512)}, v12')
    for i in range(32): a.e(f'v_sub_f32 v{32+i}, v{32+i}, v12')
    a.e('v_mul_f32 v8, v32, v32')
    for i in range(1, 32): a.e(f'v_fmac_f32 v8, v{32+i}, v{32+i}')
    xlane_sum(a, 'v8', 'v9')
    a.e('ds_write_b32 v11, v8 offset:256', 's_waitcnt lgkmcnt(0)', 's_barrier')
    for i in range(4): a.e(f'ds_read_b32 v{12+i}, v10 offset:{256+64*i}')
    a.e('s_waitcnt lgkmcnt(0)', 'v_add_f32 v12, v12, v13', 'v_add_f32 v14, v14, v15', 'v_add_f32 v12, v12, v14')
    a.e(f'v_mov_b32 v13, {f32hex(1e-5)}', f'v_fmac_f32 v13, {f32hex(1/512)}, v12', 'v_rsq_f32 v13, v13', 's_nop 0')
    a.e('s_waitcnt vmcnt(0)')
    for i in range(32): a.e(f'v_mul_f32 v{32+i}, v{32+i}, v13')
    for i in range(32): a.e(f'v_fma_f32 v{32+i}, v{32+i}, v{64+i}, v{96+i}')
    if outscale != 1.0:
        a.e(f's_mov_b32 s25, {f32hex(outscale)}')
        for i in range(32): a.e(f'v_mul_f32 v{32+i}, s25, v{32+i}')
    for i in range(16): a.e(f'v_cvt_pk_bf16_f32 v{16+i}, v{32+2*i}, v{33+2*i}')
    for j in range(4): a.e(f'buffer_store_dwordx4 v[{16+4*j}:{19+4*j}], v5, s[16:19], 0 offen offset:{1024*j}')
    a.e('s_waitcnt vmcnt(0)'); tl_end(a); a.e(f'{L}_end:', 's_endpgm')
    return dict(label=L, grid=128, block=256, lds=512, vgpr=128, accum=128)
```

```python
NAME = 'adaLN_cond__mha_block_cached__glu_gated_bilinear__prompt'

class Asm:
    def __init__(self):
        self.o = []
    def e(self, *lines):
        for l in lines:
            if isinstance(l, (list, tuple)): self.e(*l)
            else: self.o.append(l)
    def text(self): return '\n'.join(self.o) + '\n'

def kernel_head(a, label):
    a.e('.text', f'.globl {label}', '.p2align 8', f'.type {label},@function', f'{label}:')

def kernel_desc(a, label, vgpr, accum, sgpr=102):
    a.e('.section .rodata,"a"', '.p2align 6', f'.amdhsa_kernel {label}',
        f'  .amdhsa_next_free_vgpr {vgpr}', f'  .amdhsa_next_free_sgpr {sgpr}', f'  .amdhsa_accum_offset {accum}',
        '  .amdhsa_group_segment_fixed_size 0', '  .amdhsa_kernarg_size 112', '  .amdhsa_user_sgpr_count 2',
        '  .amdhsa_user_sgpr_kernarg_segment_ptr 1', '  .amdhsa_system_sgpr_workgroup_id_x 1', '.end_amdhsa_kernel')

def srd(a, d, lo, hi, size, add=None):
    if add is None:
        a.e(f's_mov_b32 s{d}, s{lo}', f's_mov_b32 s{d+1}, s{hi}')
    else:
        a.e(f's_add_u32 s{d}, s{lo}, {add}', f's_addc_u32 s{d+1}, s{hi}, 0')
    a.e(f's_mov_b32 s{d+2}, {size}', f's_mov_b32 s{d+3}, 0x20000')

def V(b, n=1): return f'v{b}' if n == 1 else f'v[{b}:{b+n-1}]'
def A(b, n=1): return f'a{b}' if n == 1 else f'a[{b}:{b+n-1}]'
def S(b, n=1): return f's{b}' if n == 1 else f's[{b}:{b+n-1}]'

WS_TL = 56 << 20
TL = {'on': False, 'idx': 0}
def tl_start(a):
    if TL['on']: a.e('s_memrealtime s[94:95]', 's_memtime s[96:97]', 's_mov_b32 s88, 0', 's_mov_b32 s90, 0', 's_mov_b32 s92, 0')
def tl_mark(a, i):
    if TL['on'] and TL.get('marks'): a.e(f's_memtime s[{88+2*i}:{89+2*i}]')
def tl_end(a, wait=True):
    if not TL['on']: return
    i = TL['idx']; TL['idx'] += 1
    a.e('s_waitcnt vmcnt(0) lgkmcnt(0)' if wait else 's_waitcnt lgkmcnt(0)', 's_memrealtime s[98:99]', 's_memtime s[100:101]', 's_load_dwordx2 s[80:81], s[0:1], 104', 's_waitcnt lgkmcnt(0)')
    a.e(f's_add_u32 s84, s80, {WS_TL + i*65536}', 's_addc_u32 s85, s81, 0', 's_mov_b32 s86, 65536', 's_mov_b32 s87, 0x20000')
    a.e('s_sub_u32 s100, s100, s96', 's_sub_u32 s88, s88, s96', 's_sub_u32 s90, s90, s96', 's_sub_u32 s92, s92, s96', 's_mov_b64 exec, 1',
        'v_mov_b32 v0, s94', 'v_mov_b32 v1, s98', 'v_mov_b32 v2, s100', 's_getreg_b32 s82, hwreg(HW_REG_XCC_ID)', 'v_mov_b32 v3, s82',
        'v_mov_b32 v4, s88', 'v_mov_b32 v5, s90', 'v_mov_b32 v6, s92', 'v_mov_b32 v7, 0',
        's_lshl_b32 s83, s2, 5', 'v_mov_b32 v8, s83', 'buffer_store_dwordx4 v[0:3], v8, s[84:87], 0 offen', 'buffer_store_dwordx4 v[4:7], v8, s[84:87], 0 offen offset:16')
```

```python
from asmlib import *
from gen_pre import *
import re

S_ = [16, 48]; P_ = [80, 96]; CI = 112; VT = 128
KA = 144; VA = 148; DK = 156; DV = 160; LV = 162; ONES = 172; LM = 176; Q = 192
WA = 176; DW = 180; HV = 181
AO = 0; AK = 192; AV = 224
DELTA = 100.0
MF = 'v_mfma_f32_16x16x32_bf16'
NT = {'kv': '', 'wq': ''}
PF = 136

class Sched:
    def __init__(self, a, age=8):
        self.a = a
        self.pend = []
        self.t = 0; self.age = age
    @staticmethod
    def regs(tok):
        m = re.match(r'([av])\[(\d+):(\d+)\]', tok)
        if m: return {(m.group(1), i) for i in range(int(m.group(2)), int(m.group(3))+1)}
        m = re.match(r'([av])(\d+)$', tok)
        if m: return {(m.group(1), int(m.group(2)))}
        return set()
    def need(self, ins):
        ops = [t.strip() for t in ins.split(None, 1)[1].split(',')]
        rs = set()
        for t in ops[1:3]: rs |= self.regs(t.split()[0])
        last = -1
        for i, p in enumerate(self.pend):
            if p[0] & rs: last = i
        if last < 0: return None
        while last + 1 < len(self.pend) and self.pend[last+1][1] <= self.t - self.age: last += 1
        return len(self.pend) - 1 - last
    def wait(self, n):
        n = min(n, 15)
        self.a.e(f's_waitcnt lgkmcnt({n})')
        self.pend = self.pend[len(self.pend)-n:] if n else []
    def emit_filler(self, ins):
        if ins.startswith('WAITDS '):
            n = self.need('x d, ' + ins[7:])
            if n is not None: self.wait(n)
            return
        self.a.e(ins)
        if ins.startswith('ds_read') or ins.startswith('ds_bpermute'):
            self.pend.append((self.regs(ins.split(None, 1)[1].split(',')[0].strip()), self.t))
        elif ins.startswith('ds_'):
            self.pend.append((set(), self.t))
        elif ins.startswith('s_waitcnt') and 'lgkmcnt(0)' in ins:
            self.pend = []
    def run(self, mf, gaps, nextmf=None):
        n0 = self.need(mf[0]) if mf else None
        if n0 is not None: self.wait(n0)
        for g, m in enumerate(mf):
            self.a.e(m); self.t += 1
            nxt = mf[g+1] if g+1 < len(mf) else nextmf
            if nxt is not None:
                n = self.need(nxt)
                if n is not None: self.wait(n)
            for f in gaps[g]: self.emit_filler(f)
            if nxt is not None:
                n = self.need(nxt)
                if n is not None: self.wait(n)

def qk_mfmas(Sw, czero=False, order='kqt'):
    it = [(kb, qb, t) for kb in range(2) for qb in range(4) for t in range(4)] if order == 'kqt' else \
         [(kb, qb, t) for qb in range(4) for kb in range(2) for t in range(4)]
    r = []
    for kb, qb, t in it:
        d = Sw + 8*qb + 4*kb
        c = (('0' if czero else V(CI+4*qb, 4)) if t == 0 else V(d, 4))
        r.append(f'{MF} {V(d,4)}, {A(AK+16*kb+4*t,4)}, {V(Q+16*qb+4*t,4)}, {c}')
    return r

def pv_mfmas(Pr, XQ, first=False):
    r = []
    for db in range(8):
        for qb in range(4):
            o = AO + 16*db + 4*qb
            r.append(f'{MF} {A(o,4)}, {V(Pr+4*qb,4)}, {A(AV+4*db,4)}, {"0" if first else A(o,4)}')
    for qb in XQ:
        r.append(f'{MF} {V(LM+4*qb,4)}, {V(Pr+4*qb,4)}, {V(ONES,4)}, {"0" if first else V(LM+4*qb,4)}')
    return r

def vreads(base_reg, off):
    return [f'ds_read_b64_tr_b16 {A(AV+4*db+2*u,2)}, {V(base_reg+db)} offset:{off+4096*u}' for db in range(8) for u in range(2)]
def kreads(off):
    return [f'ds_read_b128 {A(AK+4*f,4)}, {V(KA+(f&3))} offset:{off+4096*(f>>2)}' for f in range(8)]

def sm_items(Sr, Pw, XQ):
    exps = [f'v_exp_f32 {V(Sr+e)}, {V(Sr+e)}' for e in range(32)]
    items = []
    for e in range(32):
        qb = e >> 3
        if qb not in XQ:
            l = LV + 2*qb + (e & 1)
            items.append((e, f'v_add_f32 {V(l)}, {V(l)}, {V(Sr+e)}'))
        if e & 1: items.append((e, f'v_cvt_pk_bf16_f32 {V(Pw+e//2)}, {V(Sr+e-1)}, {V(Sr+e)}'))
    return exps, items

def dma_group(isV, grp, m0s, soff):
    srd_ = 's[12:15]' if isV else 's[8:11]'
    st = f's_mov_b32 m0, {m0s}' if grp == 0 else f's_add_u32 m0, {m0s}, 4096'
    r = []
    for j in range(4):
        vo = DV + (j & 1) if isV else DK + j
        r.append(f'buffer_load_dwordx4 {V(vo)}, {srd_}, {soff} offen offset:{j*1024}{NT["kv"]} lds')
    return st, r

def normal_slot(sc, opt, s, dmas, kread=True, first_pv=False, late_v=None, salu=()):
    XQ = opt['XQ']
    par = s & 1
    mf = qk_mfmas(S_[par ^ 1]) + pv_mfmas(P_[par ^ 1], XQ, first_pv)
    N = len(mf)
    gaps = [[] for _ in range(N)]; cap = [0 if (g < 64 and g % 2 == 0) else 2 for g in range(N)]
    pre = [[] for _ in range(N)]
    exps, items = sm_items(S_[par], P_[par], XQ)
    for e in range(32): gaps[2*e].append(exps[e])
    for n, (sal, ins) in enumerate(dmas):
        g = opt['dpos'][n]
        for k, x in enumerate(sal): pre[g-1-k].append(x)
        gaps[g].append(ins); cap[g] -= opt['dcost']
    if opt.get('nodma'):
        gaps = [[x for x in gp if not x.startswith('buffer_load')] for gp in gaps]
    for k, x in enumerate(salu): pre[40 + 2*k].append(x)
    LAT = opt.get('dslat', 10)
    ds = []
    for i, r in enumerate(vreads(VA, ((s-1) % 8)*8192)): ds.append((0, 32 + 4*(i >> 1) - LAT, r))
    if kread:
        for f, r in enumerate(kreads(((s+2) % 8)*8192)): ds.append((16 if f < 4 else 32, N - LAT if (f < 4 or (s % 4) == 3) else N - 1, r))
    if late_v is not None:
        for i, r in enumerate(late_v): ds.append((min(36 + 4*(i >> 1), N-1), N - 1, r))
    va = [(2*e + 1, N - 1, t) for e, t in items]
    maxds = opt.get('maxds', 1)
    for g in range(N):
        nds = 0
        while cap[g] > 0:
            rd = [x for x in ds if x[0] <= g]
            rv = [x for x in va if x[0] <= g]
            pick = None
            if rd:
                rd.sort(key=lambda x: x[1])
                urgent = rd[0][1] <= g + 2*sum(1 for x in rd if x[1] <= rd[0][1] + 4)
                if nds < maxds or urgent or not rv: pick = ('d', rd[0])
            if pick is None and rv: pick = ('v', rv[0])
            if pick is None: break
            if pick[0] == 'd':
                ds.remove(pick[1]); gaps[g].insert(nds, pick[1][2]); nds += 1
            else:
                va.remove(pick[1]); gaps[g].append(pick[1][2])
            cap[g] -= 1
    gaps[N-1] = [x[2] for x in ds] + gaps[N-1] + [x[2] for x in va]
    if opt.get('verbose'): print('slot', s, 'overflow', len(ds), len(va), 'free', sum(cap))
    sc.run(mf, [pre[g] + gaps[g] for g in range(N)], nextmf=(qk_mfmas(S_[par])[0] if kread else None))

def packed(sc, mf, ds_at, exps, items, extra=None):
    N = len(mf)
    gaps = [[] for _ in range(N)]
    for g, r in ds_at: gaps[g].append(r)
    q = list(items); ne = len(exps)
    e = 0
    for g in range(N):
        k = 0
        while q and q[0][0] < e and k < 2:
            gaps[g].append(q.pop(0)[1]); k += 1
        if e < ne: gaps[g].append(exps[e]); e += 1
    assert e == ne
    if q: gaps[N-1] += ['s_nop 0'] + [x[1] for x in q]
    if extra:
        for g, x in extra: gaps[g].append(x)
    sc.run(mf, gaps)

def epoch_dmas(E, opt, mode='full'):
    p = E & 1
    r = []
    for isV in (0, 1):
        for grp in (0, 1):
            st, ins = dma_group(isV, grp, f's{30+2*isV+p}', f's{34+2*isV+grp}')
            for j, x in enumerate(ins):
                sal = [st] if j == 0 else []
                r.append([sal, x])
    return r

def stamp(a, opt, idx):
    if opt.get('stamps'):
        a.e(f's_memtime s[{80+2*idx}:{81+2*idx}]')

def gen_attn(a, opt=None):
    opt = dict(opt or {})
    opt.setdefault('XQ', [0, 2]); opt.setdefault('kpos', [33, 35, 37, 39, 41, 43, 45, 47])
    opt.setdefault('dpos', [5, 15, 25, 35, 45, 55, 61, 51]); opt.setdefault('dcost', 2); opt.setdefault('dsplit', [6, 5, 5, 0])
    XQ = opt['XQ']
    assert opt['dsplit'][3] == 0 and opt['dpos'][:max(opt['dsplit'])] == sorted(opt['dpos'][:max(opt['dsplit'])])
    NT['kv'] = ' nt' if opt.get('ntkv', 1) else ''; NT['wq'] = ' nt' if opt.get('ntwq', 1) else ''
    L = 'attn_kernel'
    kernel_head(a, L)
    a.e('s_cmp_ge_u32 s2, 256', f's_cbranch_scc1 {L}_end')
    tl_start(a)
    stamp(a, opt, 0)
    if opt.get('stamps'): a.e('s_memrealtime s[92:93]')
    a.e('s_load_dwordx4 s[4:7], s[0:1], 8', 's_load_dwordx2 s[40:41], s[0:1], 24', 's_load_dwordx2 s[42:43], s[0:1], 104')
    a.e('s_load_dwordx2 s[64:65], s[0:1], 32', 's_load_dwordx2 s[68:69], s[0:1], 48', 's_load_dwordx2 s[72:73], s[0:1], 56', 's_load_dwordx2 s[76:77], s[0:1], 64')
    a.e('v_lshrrev_b32 v1, 6, v0', 'v_and_b32 v2, 63, v0', 'v_readfirstlane_b32 s28, v1')
    if opt.get('map', 8) == 4:
        a.e('s_and_b32 s44, s2, 7', 's_lshl_b32 s44, s44, 2', 's_lshr_b32 s45, s2, 3', 's_and_b32 s46, s45, 3', 's_add_u32 s44, s44, s46')
        a.e('s_lshr_b32 s45, s45, 2')
    else:
        a.e('s_bfe_u32 s44, s2, 0x20001', 's_lshl_b32 s44, s44, 3', 's_bfe_u32 s46, s2, 0x30003', 's_add_u32 s44, s44, s46')
        a.e('s_and_b32 s45, s2, 1', 's_lshl_b32 s45, s45, 2', 's_lshr_b32 s46, s2, 6', 's_add_u32 s45, s45, s46')
    a.e('s_lshl_b32 s45, s45, 2', 's_add_u32 s45, s45, s28')
    C0, S0q, C1, S1q = 144, 148, 152, 160
    WA = 164; DW = 168; HV = 169; CSA = 170; TM = 8; RING = 176
    a.e('v_and_b32 v3, 15, v2', 'v_lshrrev_b32 v4, 4, v2')
    a.e('v_lshlrev_b32 v5, 2, v4', 'v_xor_b32 v5, v5, v3', 'v_lshlrev_b32 v5, 4, v5', f'v_lshl_add_u32 {V(DW)}, v4, 13, v5')
    a.e(f'v_lshlrev_b32 {V(HV)}, 4, v2')
    a.e('s_lshl_b32 s48, s28, 13', 's_lshl_b32 s49, s28, 10')
    a.e('s_waitcnt lgkmcnt(0)')
    srd(a, 24, 42, 43, 4096, add=WS_MODQ)
    a.e('s_add_u32 m0, s49, 147456')
    a.e('s_lshl_b32 s46, s44, 8'); srd(a, 16, 40, 41, 0, add='s46'); a.e('s_sub_u32 s18, 4194304, s46')
    vm = []
    def vmwait(tags, extra=''):
        last = max([i for i, t in enumerate(vm) if t in tags], default=-1)
        if last < 0: return [f's_waitcnt{extra}'] if extra else []
        n = len(vm) - 1 - last
        del vm[:last+1]
        return [f's_waitcnt vmcnt({n}){extra}']
    a.e(f'buffer_load_dwordx4 {V(HV)}, s[24:27], s49 offen lds'); vm.append(('w', 0))
    a.e('s_lshl_b32 s46, s45, 16', f's_add_u32 s46, s46, {WS_H}'); srd(a, 20, 42, 43, 65536, add='s46')
    def wq(s0, n):
        r = []
        for i in range(2*n):
            sal = []
            if i == 0: sal += [f's_mul_i32 s57, s28, {8*n*8192}', f's_mul_i32 s58, s28, {8*n*256}']
            if i % 4 == 0: sal.append(f's_add_u32 m0, s58, {16384 + s0*8192 + 4096*(i//4)}')
            sal.append(f's_add_u32 s50, s57, {s0*32*8192 + 32768*i - 1024*(i & 3)}')
            r.append([sal, f'buffer_load_dwordx4 {V(DW)}, s[16:19], s50 offen offset:{1024*(i&3)}{NT["wq"]} lds', ('w', s0)])
        return r
    HR = lambda s: RING + 16*(s % 5)
    def hl(s):
        return [[[f's_mov_b32 s51, {qb*16384 + (s & ~3)*1024}'], f'buffer_load_dwordx4 {V(HR(s)+4*qb,4)}, {V(HV)}, s[20:23], s51 offen offset:{1024*(s & 3)}', ('h', s)] for qb in range(4)]
    def emit_list(lst):
        for sal, ins, tag in lst:
            a.e(sal, ins); vm.append(tag)
    up3 = opt.get('up3', 0)
    emit_list(wq(0, 1) + hl(0) + wq(1, 1) + hl(1) + wq(2, 2) + hl(2) + (hl(3) if up3 else []))
    a.e('s_lshl_b32 s46, s44, 19'); srd(a, 8, 4, 5, 524288, add='s46'); srd(a, 12, 6, 7, 524288, add='s46')
    for j in range(4):
        a.e(f'v_add_u32 v6, {4*j}, v4', 'v_xor_b32 v6, v6, v3', 'v_lshlrev_b32 v6, 4, v6', f'v_lshl_add_u32 {V(DK+j)}, v4, 8, v6')
    a.e('v_and_b32 v1, 3, v2', 'v_bfe_u32 v6, v2, 2, 2', 'v_lshl_add_u32 v7, v4, 3, v6', 'v_lshlrev_b32 v7, 8, v7', 'v_add_u32 v7, 0x4000, v7', 'v_lshlrev_b32 v6, 2, v6')
    for tp in range(4):
        a.e(f'v_add_u32 v5, {4*tp}, v1', 'v_xor_b32 v5, v5, v6', f'v_lshl_add_u32 {V(WA+tp)}, v5, 4, v7')
    a.e(f'v_lshlrev_b32 v5, 5, v4', f'v_add_u32 {V(CSA)}, 147456, v5')
    for p in range(2):
        a.e(f's_add_u32 s53, s28, {6+4*p}', 's_and_b32 s53, s53, 7', f's_lshl_b32 s{30+p}, s53, 13')
        a.e(f's_add_u32 s53, s28, {3+4*p}', 's_and_b32 s53, s53, 7', 's_lshl_b32 s53, s53, 13', f's_add_u32 s{32+p}, s53, 65536')
    a.e(f's_add_u32 s34, s48, {6*8192}', 's_add_u32 s35, s34, 4096', f's_add_u32 s36, s48, {3*8192}', 's_add_u32 s37, s36, 4096')
    a.e('s_mov_b32 s39, 0')
    for i, size in enumerate((4194304, 1835008, 1835008, 1835008)): a.e(f's_mov_b32 s{66+4*i}, {size}', f's_mov_b32 s{67+4*i}, 0x20000')
    sc = Sched(a)
    QA = lambda qb, j: 16 + 32*qb + 4*j
    AR = lambda n: AK + 4*(n % 16)
    def a_reads(n):
        s_, j = divmod(n, 8)
        return [f'ds_read_b64_tr_b16 {A(AR(n)+2*v,2)}, {V(WA+(j>>1))} offset:{(s_ % 4)*8192+v*1024+(j&1)*8}' for v in range(2)]
    def cs_reads(s_, h):
        return [f'ds_read_b128 {V((C0, C1)[h],4)}, {V(CSA)} offset:{128*s_+16*h}', f'ds_read_b128 {V((S0q, S1q)[h],4)}, {V(CSA)} offset:{2048+128*s_+16*h}']
    def xform(s_, h):
        r = []; k = 0
        c, sh = (C0, C1)[h], (S0q, S1q)[h]
        for qb in range(4):
            for d in range(2):
                reg = HR(s_) + 4*qb + 2*h + d; t = TM + 2*(k % 4); k += 1
                r.append(f'v_fma_mix_f32 {V(t)}, {V(reg)}, {V(c+2*d)}, {V(sh+2*d)} op_sel_hi:[1,0,0]')
                r.append(f'v_fma_mix_f32 {V(t+1)}, {V(reg)}, {V(c+2*d+1)}, {V(sh+2*d+1)} op_sel:[1,0,0] op_sel_hi:[1,0,0]')
                if opt.get('fakefma'): r[-2:] = [x.replace('v_fma_mix_f32', 'v_fma_f32').split(' op_sel')[0] for x in r[-2:]]
                r.append(f'v_cvt_pk_bf16_f32 {V(reg)}, {V(t)}, {V(t+1)}')
        if opt.get('noxf'): r = ['s_nop 0' for x in r]
        return r
    D = opt.get('qdist', 6)
    a.e(vmwait({('w', 0)}), 's_barrier')
    stamp(a, opt, 1)
    for h in range(2):
        for r in cs_reads(0, h): sc.emit_filler(r)
    for n in range(D):
        for r in a_reads(n): sc.emit_filler(r)
    a.e(vmwait({('h', 0)}))
    sc.emit_filler(f'WAITDS {V(C0,4)}, {V(S0q,4)}'); a.e(xform(0, 0))
    for r in cs_reads(1, 0): sc.emit_filler(r)
    sc.emit_filler(f'WAITDS {V(C1,4)}, {V(S1q,4)}'); a.e(xform(0, 1), 's_nop 1')
    def kdma(step_expr_setup, isV, base_s, n, m0base):
        pass
    k01 = [[[f's_lshl_b32 s52, s28, 12', 's_mov_b32 m0, s52'] if j == 0 else [], f'buffer_load_dwordx4 {V(DK+j)}, s[8:11], s52 offen offset:{1024*j}{NT["kv"]} lds', ('k', 0)] for j in range(4)]
    k25 = []
    for grp in range(2):
        st, ins = dma_group(0, 0, f's{54+grp}', f's{54+grp}')
        k25 += [[[f's_add_u32 s{54+grp}, s48, {2*8192 + 4096*grp}', st] if j == 0 else [], x, ('k', 2)] for j, x in enumerate(ins)]
    v02 = []
    for i in range(6):
        sal = []
        if i == 0: sal = ['s_mul_i32 s54, s28, 6144', 's_add_u32 m0, s54, 65536']
        if i == 4: sal = ['s_add_u32 s54, s54, 4096', 's_add_u32 m0, s54, 65536']
        v02.append([sal, f'buffer_load_dwordx4 {V(DV+(i&1))}, s[12:15], s54 offen offset:{1024*(i&3)}{NT["kv"]} lds', ('v', 0)])
    w47, w8b, wcf = wq(4, 4), wq(8, 4), wq(12, 4)
    plan = {0: hl(3) + w47[:4], 1: w47[4:] + hl(4), 2: hl(5) + hl(6), 3: hl(7) + k01, 4: hl(8) + w8b[:4], 5: w8b[4:] + hl(9), 6: hl(10) + wcf[:4],
            7: hl(11) + wcf[4:], 8: hl(12) + k25[:4], 9: hl(13) + k25[4:], 10: hl(14), 11: hl(15), 12: [], 13: [], 14: [], 15: v02}
    if up3: plan[0] = hl(4) + w47[:4]; plan[1] = w47[4:] + hl(5); plan[2] = hl(6)
    if opt.get('novm'):
        for k_ in plan: plan[k_] = [[x[0], 's_nop 0', x[2]] for x in plan[k_]]
    groups = [1, 2, 4, 8, 12]
    late = []
    for j in range(2):
        late += [f'v_add_u32 v6, {4*j}, v4', 'v_lshlrev_b32 v6, 1, v6', 'v_xor_b32 v6, v6, v3', 'v_lshlrev_b32 v6, 4, v6', f'v_lshl_add_u32 {V(DV+j)}, v4, 8, v6']
    late += ['v_xor_b32 v5, v3, v4', 'v_lshlrev_b32 v5, 4, v5', f'v_lshl_add_u32 {V(KA)}, v3, 8, v5'] + [f'v_xor_b32 {V(KA+t)}, {t*64}, {V(KA)}' for t in range(1, 4)]
    late2 = ['v_lshrrev_b32 v6, 2, v2', 'v_lshlrev_b32 v7, 8, v6', 'v_and_b32 v6, 7, v6', 'v_lshl_add_u32 v7, v1, 3, v7', 'v_add_u32 v7, 0x10000, v7']
    for db in range(8): late2 += [f'v_xor_b32 v5, {db}, v6', f'v_lshl_add_u32 {V(VA+db)}, v5, 5, v7']
    for s_ in range(16):
        mf = []; gaps = [[] for _ in range(32)]; pre = [[] for _ in range(32)]
        for j in range(8):
            for qb in range(4):
                c = '0' if s_ == 0 else V(QA(qb, j), 4)
                mf.append(f'{MF} {V(QA(qb,j),4)}, {A(AR(8*s_+j),4)}, {V(HR(s_)+4*qb,4)}, {c}')
        vq = list(plan[s_])
        valu = []
        if s_ < 15:
            valu = xform(s_+1, 0) + xform(s_+1, 1)
        else:
            valu = late + late2
        vi = 0
        for g in range(32):
            j, ph = divmod(g, 4)
            n = 8*s_ + j + D
            if ph < 2:
                if n < 128:
                    if ph == 0 and n % 8 == 0:
                        if n // 8 in groups:
                            gaps[g-1 if g else 0] += vmwait({('w', n // 8)}) + ['s_barrier']
                        if (n // 8) % 4 == 0:
                            gaps[g-1] += [f'v_add_u32 {V(WA+tp)}, 0x8000, {V(WA+tp)}' for tp in range(4)]
                    gaps[g].append(a_reads(n)[ph])
                elif s_ == 15 and g >= 16:
                    gaps[g].append(kreads(0)[(g-16)//4*2 + ph])
            elif ph == 2:
                if s_ < 15 and g in (2, 6): gaps[g].append(cs_reads(s_+1, 1)[g // 4])
                elif s_ < 14 and g in (18, 22): gaps[g].append(cs_reads(s_+2, 0)[(g-18) // 4])
            elif vq and not (s_ == 15 and g < 8):
                sal, ins, tag = vq.pop(0)
                pre[g-1] += sal
                gaps[g].append(ins); vm.append(tag)
            if s_ < 15:
                if g == 0: gaps[g] += vmwait({('h', s_+1)}) + [f'WAITDS {V(C0,4)}, {V(S0q,4)}']
                if vi == 24 and g >= 15: gaps[g].append(f'WAITDS {V(C1,4)}, {V(S1q,4)}')
                lim = 24 if g < 15 else 48
                k = (1 if ph == 3 else 2) if g < 30 else 0
                while k and vi < lim:
                    gaps[g].append(valu[vi]); vi += 1; k -= 1
            else:
                k = 2 if ph != 3 else 1
                while k and vi < len(valu):
                    gaps[g].append(valu[vi]); vi += 1; k -= 1
        assert not vq and vi == len(valu), (s_, vi, len(valu))
        sc.run(mf, [pre[g] + gaps[g] for g in range(32)])
    stamp(a, opt, 2)
    for i in range(4): a.e(f'v_mov_b32 {V(ONES+i)}, 0x3f803f80')
    for i in range(8): a.e(f'v_mov_b32 {V(LV+i)}, 0')
    a.e('s_lshl_b32 s46, s45, 19', 's_lshl_b32 s47, s44, 14', 's_add_u32 s46, s46, s47', f's_add_u32 s46, s46, {WS_O}'); srd(a, 24, 42, 43, 16384, add='s46')
    def cvtq(qb): return [f'v_cvt_pk_bf16_f32 {V(Q+16*qb+2*j+h)}, {V(QA(qb,j)+2*h)}, {V(QA(qb,j)+2*h+1)}' for j in range(8) for h in range(2)]
    a.e(cvtq(0), 's_nop 1')
    mf = qk_mfmas(S_[0], czero=True, order='qkt')
    gaps = [[] for _ in mf]
    for qb in range(1, 4):
        cv = cvtq(qb)
        for i, x in enumerate(cv): gaps[8*(qb-1) + min(i//2, 6) if i < 14 else 8*(qb-1)+6].append(x)
        gaps[8*(qb-1)+7].append('s_nop 0')
    sc.run(mf, gaps)
    a.e('s_nop 3')
    for r in kreads(8192): sc.emit_filler(r)
    S0 = S_[0]
    for qb in range(4):
        b = S0 + 8*qb
        a.e(f'v_max3_f32 {V(8+qb)}, {V(b)}, {V(b+1)}, {V(b+2)}', f'v_max3_f32 {V(12+qb)}, {V(b+3)}, {V(b+4)}, {V(b+5)}')
    for qb in range(4):
        b = S0 + 8*qb
        a.e(f'v_max3_f32 {V(8+qb)}, {V(8+qb)}, {V(b+6)}, {V(b+7)}')
    for qb in range(4): a.e(f'v_max_f32 {V(8+qb)}, {V(8+qb)}, {V(12+qb)}')
    for perm in ('32', '16'):
        for qb in range(4): a.e(f'v_mov_b32 {V(12+qb)}, {V(8+qb)}')
        a.e('s_nop 0')
        for qb in range(4): a.e(f'v_permlane{perm}_swap_b32 {V(8+qb)}, {V(12+qb)}')
        a.e('s_nop 0')
        for qb in range(4): a.e(f'v_max_f32 {V(8+qb)}, {V(8+qb)}, {V(12+qb)}')
    for qb in range(4): a.e(f'v_sub_f32 {V(CI+4*qb)}, {f32hex(-opt.get("delta", DELTA))}, {V(8+qb)}')
    for qb in range(4):
        for i in range(1, 4): a.e(f'v_mov_b32 {V(CI+4*qb+i)}, {V(CI+4*qb)}')
    for e in range(32): a.e(f'v_add_f32 {V(S0+e)}, {V(S0+e)}, {V(CI+4*(e>>3))}')
    for db in range(8): a.e(f'v_subrev_u32 {V(VT+db)}, 0x10000, {V(VA+db)}')
    if opt.get('pf', 1):
        a.e('s_lshl_b32 s53, s2, 2', 's_add_u32 s53, s53, s28', 's_lshl_b32 s54, s53, 12', 's_mul_i32 s55, s53, 1792')
        a.e('v_lshlrev_b32 v5, 6, v2', f'v_add_u32 {V(PF)}, s54, v5', 'v_min_u32 v5, 1728, v5', f'v_add_u32 {V(PF+1)}, s55, v5')
    a.e('s_waitcnt vmcnt(0) lgkmcnt(0)', 's_barrier'); sc.pend = []
    stamp(a, opt, 3)
    def adv():
        return ['s_add_u32 s34, s34, 32768', 's_add_u32 s35, s35, 32768', 's_add_u32 s36, s36, 32768', 's_add_u32 s37, s37, 32768']
    def epoch(E, kind):
        d = epoch_dmas(E, opt)
        if kind == 'e14':
            d = d[8:]
        if kind == 'e15': d = []
        npf = 0
        if kind == 'e14' and opt.get('pf', 1):
            for ptr, size, vo in ((32, 4194304, PF), (48, 1835008, PF+1), (56, 1835008, PF+1), (64, 1835008, PF+1)):
                d.append([[], f'buffer_load_dword {V(PF+2)}, {V(vo)}, s[{64+4*npf}:{67+4*npf}], 0 offen'])
                npf += 1
        split = opt['dsplit']
        for sl in range(4):
            s = 4*E + sl
            n = split[sl]
            dm = d[:n]; d = d[n:]
            if kind == 'e14' and sl == 0:
                a.e('s_cmp_eq_u32 s28, 3', f's_cbranch_scc1 {L}_e14d', 's_cmp_eq_u32 s28, 2', f's_cbranch_scc1 {L}_e14v')
                for sal, ins in epoch_dmas(E, opt)[:8]: a.e(sal, 's_nop 0' if sal else [], ins)
                a.e(f's_branch {L}_e14d', f'{L}_e14v:', f's_mov_b32 s54, {63*8192}', f's_mov_b32 s55, {63*8192+4096}', 's_mov_b32 s56, 0')
                for grp in range(2):
                    st, ins = dma_group(1, grp, 's56', f's{54+grp}'); a.e(st, 's_nop 0', ins)
                a.e(f'{L}_e14d:')
            if s == 0:
                exps, items = sm_items(S_[0], P_[0], XQ)
                mf = qk_mfmas(S_[1])
                kr = kreads(2*8192)
                ds_at = [(17+2*i, kr[i]) for i in range(4)]
                extra = []
                for n_, (sal, ins) in enumerate(dm):
                    extra += [(2+2*n_, x) for x in sal] + [(3+2*n_, ins)]
                packed(sc, mf, ds_at, exps, items, extra)
                for r in kr[4:]: sc.emit_filler(r)
            elif s == 62:
                normal_slot(sc, opt, s, dm, kread=False, late_v=vreads(VA, (62 % 8)*8192))
            elif s == 63:
                exps, items = sm_items(S_[1], P_[1], XQ)
                mf = pv_mfmas(P_[0], XQ)
                vr = vreads(VT, 0)
                ds_at = [(min(4*(i >> 1) + 4 + (i & 1), len(mf)-1), vr[i]) for i in range(16)]
                packed(sc, mf, ds_at, exps, items)
            else:
                normal_slot(sc, opt, s, dm, first_pv=(s == 1), salu=(adv() + (['s_add_u32 s38, s38, 1', 's_cmp_lt_u32 s38, 6'] if E == 3 else []) if sl == 3 else ()))
        assert not d
        if kind != 'e15':
            if not opt.get('nobar'): a.e(f's_waitcnt vmcnt({npf}) lgkmcnt(0)', 's_barrier')
            else: a.e('s_waitcnt lgkmcnt(0)')
            sc.pend = []
    epoch(0, 'n'); epoch(1, 'n')
    a.e('s_mov_b32 s38, 0', '.p2align 6', f'{L}_loop:')
    epoch(2, 'n'); epoch(3, 'n')
    a.e(f's_cbranch_scc1 {L}_loop')
    epoch(14, 'e14'); epoch(15, 'e15')
    a.e('s_nop 1')
    mf = pv_mfmas(P_[1], XQ)
    gaps = [[] for _ in mf]
    sc.run(mf, gaps)
    stamp(a, opt, 4)
    a.e('v_lshlrev_b32 v5, 4, v4')
    for qb in range(4):
        if qb in XQ: continue
        l = LV + 2*qb
        a.e(f'v_add_f32 {V(l)}, {V(l)}, {V(l+1)}'); xlane_sum(a, V(l), 'v6')
        for i in range(4): a.e(f'ds_bpermute_b32 {V(LM+4*qb+i)}, v5, {V(l)} offset:{4*i}')
    a.e('s_nop 7', 's_waitcnt lgkmcnt(0)')
    a.e(f'{L}_norm:')
    a.e(f'v_add_f32 v8, {V(LM)}, {V(LM+1)}')
    for i in range(2, 16): a.e(f'v_add_f32 v8, v8, {V(LM+i)}')
    for i in range(16): a.e(f'v_rcp_f32 {V(LM+i)}, {V(LM+i)}')
    a.e('v_lshlrev_b32 v6, 2, v4', 'v_xor_b32 v6, v6, v2', 'v_lshlrev_b32 v6, 4, v6')
    W = 96
    T = 16
    cnt = 0
    for j in range(4):
        for qb in range(4):
            b = T + 8*(cnt % 8); pk = 80 + 4*(cnt % 4); cnt += 1
            for u in range(2):
                for i in range(4): a.e(f'v_accvgpr_read_b32 {V(b+4*u+i)}, {A(AO+16*(2*j+u)+4*qb+i)}')
            for i in range(4):
                w = W + 4*qb + i
                a.e(f'v_maximum3_f32 {V(w)}, abs({V(b+i)}), abs({V(b+4+i)}), {"0" if j == 0 else V(w)}')
            for u in range(2):
                for i in range(4): a.e(f'v_mul_f32 {V(b+4*u+i)}, {V(b+4*u+i)}, {V(LM+4*qb+i)}')
            for h in range(4): a.e(f'v_cvt_pk_bf16_f32 {V(pk+h)}, {V(b+2*h)}, {V(b+2*h+1)}')
            off = (j*4+qb)*1024
            a.e(f's_mov_b32 s54, {off & ~4095}', f'buffer_store_dwordx4 {V(pk,4)}, v6, s[24:27], s54 offen offset:{off & 4095}{opt.get("wt_a", " sc1")}')
    a.e(f'v_minimum3_f32 v9, {V(W)}, {V(W+1)}, {V(W+15)}', f'v_maximum3_f32 v10, {V(W)}, {V(W+1)}, {V(W+15)}')
    for i in range(2, 15, 2): a.e(f'v_minimum3_f32 v9, v9, {V(W+i)}, {V(W+i+1)}', f'v_maximum3_f32 v10, v10, {V(W+i)}, {V(W+i+1)}')
    a.e(f's_mov_b32 s54, {f32hex(2.0**100)}', f's_mov_b32 s55, {f32hex(2.0**-120)}', f's_mov_b32 s60, 0x7f000000')
    a.e('v_cmp_nle_f32 s[56:57], v8, s54', 'v_cmp_nge_f32 s[58:59], v9, s55', 'v_cmp_nle_f32 s[62:63], v10, s60', 's_nop 1',
        's_or_b64 s[56:57], s[56:57], s[58:59]', 's_or_b64 s[56:57], s[56:57], s[62:63]', 's_cmp_eq_u64 s[56:57], 0')
    if opt.get('force_fb'): a.e('s_cmp_eq_u32 s2, 1000')
    a.e(f's_cbranch_scc1 {L}_fin', 's_cmp_eq_u32 s39, 1', f's_cbranch_scc1 {L}_fin')
    a.e('s_mov_b32 s39, 1', 's_add_u32 s48, s48, 8192', 's_waitcnt vmcnt(0)')
    MR = CI; LR = CI + 4; AL = CI + 8; AR_ = 96
    for i in range(128): a.e(f'v_accvgpr_write_b32 {A(i)}, 0')
    for qb in range(4): a.e(f'v_mov_b32 {V(MR+qb)}, 0xff7fffff', f'v_mov_b32 {V(LR+qb)}, 0')
    for db in range(8): a.e(f'v_add_u32 {V(VT+db)}, s48, {V(VT+db)}')
    a.e('v_lshlrev_b32 v7, 8, v3', 'v_lshl_add_u32 v7, v4, 4, v7')
    a.e('s_mov_b32 s54, 0', f'{L}_fb:', 's_add_u32 s55, s54, 4096')
    for f in range(8): a.e(f'buffer_load_dwordx4 {A(AK+4*f,4)}, v7, s[8:11], s{54+(f>>2)} offen offset:{64*(f&3)}')
    for grp in range(2):
        st, ins = dma_group(1, grp, 's48', f's{54+grp}'); a.e(st, 's_nop 0', ins)
    a.e('s_waitcnt vmcnt(0)')
    a.e(vreads(VT, 0))
    a.e(qk_mfmas(S0, czero=True), 's_nop 7', 's_nop 3')
    for qb in range(4):
        b = S0 + 8*qb; m = V(MR+qb); al = V(AL+qb)
        a.e(f'v_max3_f32 v8, {V(b)}, {V(b+1)}, {V(b+2)}', f'v_max3_f32 v8, v8, {V(b+3)}, {V(b+4)}', f'v_max3_f32 v8, v8, {V(b+5)}, {V(b+6)}', f'v_max3_f32 v8, v8, {V(b+7)}, {m}')
        for perm in ('32', '16'):
            a.e('v_mov_b32 v9, v8', 's_nop 1', f'v_permlane{perm}_swap_b32 v8, v9', 's_nop 1', 'v_max_f32 v8, v8, v9')
        a.e(f'v_sub_f32 {al}, {m}, v8', f'v_exp_f32 {al}, {al}', f'v_mov_b32 {m}, v8')
        for e in range(8): a.e(f'v_sub_f32 {V(b+e)}, {V(b+e)}, v8')
        for e in range(8): a.e(f'v_exp_f32 {V(b+e)}, {V(b+e)}')
        a.e(f'v_mul_f32 {V(LR+qb)}, {V(LR+qb)}, {al}')
        for e in range(8): a.e(f'v_add_f32 {V(LR+qb)}, {V(LR+qb)}, {V(b+e)}')
        for h in range(4): a.e(f'v_cvt_pk_bf16_f32 {V(P_[0]+4*qb+h)}, {V(b+2*h)}, {V(b+2*h+1)}')
        for i in range(4): a.e(f'ds_bpermute_b32 {V(AR_+4*qb+i)}, v5, {al} offset:{4*i}')
    a.e('s_waitcnt lgkmcnt(0)')
    for db in range(8):
        for qb in range(4):
            for i in range(4):
                o = AO + 16*db + 4*qb + i
                a.e(f'v_accvgpr_read_b32 v8, {A(o)}', f'v_mul_f32 v8, v8, {V(AR_+4*qb+i)}', f'v_accvgpr_write_b32 {A(o)}, v8')
    a.e('s_nop 1')
    a.e(pv_mfmas(P_[0], []), 's_nop 7', 's_nop 3')
    a.e('s_add_u32 s54, s54, 8192', 's_cmp_lt_u32 s54, 524288', f's_cbranch_scc1 {L}_fb')
    for qb in range(4):
        xlane_sum(a, V(LR+qb), 'v6')
        for i in range(4): a.e(f'ds_bpermute_b32 {V(LM+4*qb+i)}, v5, {V(LR+qb)} offset:{4*i}')
    a.e('s_waitcnt lgkmcnt(0)', f's_branch {L}_norm')
    a.e(f'{L}_fin:')
    if opt.get('stamps'):
        a.e('s_waitcnt vmcnt(0)')
        stamp(a, opt, 5); a.e('s_memrealtime s[98:99]', 's_waitcnt lgkmcnt(0)')
        srd(a, 20, 42, 43, 1 << 20, add=(58 << 20))
        a.e('s_lshl_b32 s54, s2, 2', 's_add_u32 s54, s54, s28', 's_lshl_b32 s54, s54, 5', 'v_mov_b32 v7, s54')
        for i in range(1, 6): a.e(f's_sub_u32 s55, s{80+2*i}, s80', f'v_mov_b32 v{8+i}, s55')
        a.e('v_mov_b32 v8, s92', 's_sub_u32 s55, s98, s92', 'v_mov_b32 v14, s55', 'v_mov_b32 v15, s39')
        a.e('v_cmp_eq_u32 vcc, 0, v2', 's_and_saveexec_b64 s[56:57], vcc')
        a.e('buffer_store_dwordx4 v[8:11], v7, s[20:23], 0 offen', 'buffer_store_dwordx4 v[12:15], v7, s[20:23], 0 offen offset:16')
    tl_end(a); a.e(f'{L}_end:', 's_endpgm')
    return dict(label=L, grid=256, block=256, lds=151552, vgpr=512, accum=256)
```

```python
from asmlib import *
from gen_pre import *
from gen_attn import Sched, MF

def gen_ksplit(a, L, kind, opt):
    isO = kind == 'o'
    NS = 32 if isO else 14
    R = 4
    SLOT = 8192 if isO else 4096
    WREG = R * SLOT
    ACC = 0
    FA = [64, 80]; FB = [96, 112]
    BD = 32
    DA = 8; DB = 12; RA = 16; RB = 20
    kernel_head(a, L)
    a.e('s_cmp_ge_u32 s2, 256', f's_cbranch_scc1 {L}_end')
    tl_start(a)
    a.e(f's_load_dwordx2 s[4:5], s[0:1], {32 if isO else 64}', 's_load_dwordx2 s[6:7], s[0:1], 104',
        f's_load_dwordx2 s[40:41], s[0:1], {0 if isO else 88}')
    a.e('v_lshrrev_b32 v1, 6, v0', 'v_and_b32 v2, 63, v0', 'v_readfirstlane_b32 s28, v1')
    a.e('s_and_b32 s44, s2, 7', 's_lshr_b32 s45, s2, 3', 's_lshr_b32 s46, s44, 1', 's_lshl_b32 s46, s46, 3', 's_lshr_b32 s47, s45, 2', 's_add_u32 s46, s46, s47')
    a.e('s_and_b32 s44, s44, 1', 's_lshl_b32 s44, s44, 2', 's_and_b32 s45, s45, 3', 's_add_u32 s44, s44, s45')
    a.e('v_and_b32 v3, 15, v2', 'v_lshrrev_b32 v4, 4, v2')
    a.e('v_lshrrev_b32 v5, 3, v2', 'v_bfe_u32 v6, v2, 4, 2', 'v_lshlrev_b32 v6, 1, v6', 'v_and_b32 v7, 7, v2', 'v_xor_b32 v6, v6, v7', 'v_lshlrev_b32 v6, 4, v6')
    if isO:
        a.e('v_lshrrev_b32 v7, 5, v2', 'v_lshlrev_b32 v7, 4, v7', 'v_and_b32 v5, 3, v5', 'v_add_u32 v5, v5, v7')
        rowoff = [0, 8, 4, 12]
    else:
        rowoff = [0, 8, 16, 24]
    a.e('v_lshl_add_u32 v5, v5, 10, v6')
    for i in range(4): a.e(f'v_add_u32 {V(DA+i)}, {rowoff[i]*1024 - i*1024}, v5')
    a.e(f'v_lshlrev_b32 {V(DB)}, 4, v2')
    a.e('s_waitcnt lgkmcnt(0)')
    a.e('s_lshl_b32 s47, s44, 7'); srd(a, 8, 4, 5, 0, add='s47'); a.e(f's_sub_u32 s10, {4096*1024 if isO else 1792*1024}, s47')
    if isO:
        a.e('s_lshl_b32 s47, s46, 19', 's_lshl_b32 s48, s28, 17', 's_add_u32 s47, s47, s48', f's_add_u32 s47, s47, {WS_O}'); srd(a, 12, 6, 7, 131072, add='s47')
        a.e('s_lshl_b32 s34, s28, 20')
    else:
        a.e(f's_mul_i32 s47, s46, {4*56*1024}', f's_add_u32 s47, s47, {WS_HH}'); srd(a, 12, 6, 7, 4*56*1024, add='s47')
        a.e(f's_mul_i32 s34, s28, {14*32*1024}')
    a.e(f's_mul_i32 s30, s28, {WREG}')
    a.e('s_mov_b32 s35, 0')
    def dma(s):
        r = []
        base = (s % R) * SLOT
        r.append([[f's_add_u32 m0, s30, {base}'], f'buffer_load_dwordx4 {V(DA)}, s[8:11], s34 offen lds'])
        for i in range(1, 4): r.append([[], f'buffer_load_dwordx4 {V(DA+i)}, s[8:11], s34 offen offset:{1024*i} lds'])
        if isO:
            r.append([['s_add_u32 s34, s34, 32768', f's_add_u32 m0, s30, {base+4096}'], f'buffer_load_dwordx4 {V(DB)}, s[12:15], s35 offen lds'])
            for i in range(1, 4): r.append([[], f'buffer_load_dwordx4 {V(DB)}, s[12:15], s35 offen offset:{1024*i} lds'])
            r.append([['s_add_u32 s35, s35, 4096'], None])
        else:
            r.append([['s_add_u32 s34, s34, 32768'], None])
        return r
    def bload(s):
        r = []
        for qb in range(4):
            r.append([[f's_add_u32 s36, s37, {qb*56*1024 + s*1024}'], f'buffer_load_dwordx4 {V(BD+16*s+4*qb,4)}, {V(DB)}, s[12:15], s36 offen'])
        return r
    def emit(lst):
        for sal, ins in lst:
            a.e(sal)
            if ins:
                if sal and 'm0' in sal[-1]: a.e('s_nop 0')
                a.e(ins)
    vm = []
    def track(lst, tag):
        for sal, ins in lst:
            if ins: vm.append(tag)
    if not isO: a.e(f's_mul_i32 s37, s28, {14*1024}')
    PRE = 6 if not isO else 0
    for s in range(R):
        if not isO: emit(bload(s)); track(bload(s), ('b', s))
        emit(dma(s)); track(dma(s), ('a', s))
    for s in range(R, PRE): emit(bload(s)); track(bload(s), ('b', s))
    a.e('v_bfe_u32 v5, v2, 2, 2', 'v_lshl_add_u32 v5, v4, 2, v5', 'v_and_b32 v6, 3, v2')
    a.e('v_lshlrev_b32 v7, 7, v5', 'v_lshl_add_u32 v7, v6, 3, v7', 'v_add_u32 v7, s30, v7', 'v_bfe_u32 v5, v5, 1, 2')
    for nb in range(4): a.e(f'v_xor_b32 v24, {nb}, v5', f'v_lshl_add_u32 {V(RA+nb)}, v24, 5, v7')
    if isO:
        a.e('v_bfe_u32 v5, v2, 2, 2', 'v_lshrrev_b32 v7, 5, v2', 'v_lshl_add_u32 v5, v7, 3, v5', 'v_lshlrev_b32 v7, 2, v6', 'v_xor_b32 v5, v5, v7', 'v_lshl_add_u32 v5, v6, 4, v5')
        a.e('v_and_b32 v7, 1, v4', 'v_lshlrev_b32 v7, 3, v7', 'v_lshl_add_u32 v5, v5, 4, v7', 'v_add_u32 v5, 4096, v5', f'v_add_u32 {V(RB)}, s30, v5')
        a.e(f'v_xor_b32 v5, 64, v5', f'v_add_u32 {V(RB+1)}, s30, v5')
    def reads(s):
        base = (s % R) * SLOT; p = s & 1
        r = []
        for x in range(4):
            for v in range(2):
                r.append(f'ds_read_b64_tr_b16 {A(FA[p]+4*x+2*v,2)}, {V(RA+x)} offset:{base+2048*v}')
            if isO:
                for u in range(2):
                    r.append(f'ds_read_b64_tr_b16 {A(FB[p]+4*x+2*u,2)}, {V(RB+u)} offset:{base+1024*x}')
        return r
    def vmwait(tags):
        last = max([i for i, t in enumerate(vm) if t in tags], default=-1)
        if last < 0: return []
        n = len(vm) - 1 - last
        del vm[:last+1]
        return [f's_waitcnt vmcnt({n})']
    sc = Sched(a, age=6)
    a.e(vmwait({('a', 0), ('b', 0)})); tl_mark(a, 0)
    for r in reads(0): sc.emit_filler(r)
    for s in range(NS):
        p = s & 1
        mf = []
        for nb in range(4):
            for qb in range(4):
                acc = A(ACC+16*nb+4*qb, 4)
                b = A(FB[p]+4*qb, 4) if isO else V(BD+16*s+4*qb, 4)
                mf.append(f'{MF} {acc}, {A(FA[p]+4*nb,4)}, {b}, {"0" if s == 0 else acc}')
        gaps = [[] for _ in mf]
        a.e('s_waitcnt lgkmcnt(0)'); sc.pend = []
        iss = []
        if s + R < NS: iss += [(x, ('a', s+R)) for x in dma(s+R)]
        if not isO and s + PRE < NS: iss += [(x, ('b', s+PRE)) for x in bload(s+PRE)]
        g = 0
        for (sal, ins), tag in iss:
            gaps[g] += sal
            if ins:
                if sal and 'm0' in sal[-1]: gaps[g].append('s_nop 0')
                gaps[g].append(ins); vm.append(tag); g += 1
        if s + 1 < NS:
            rd = reads(s+1)
            g0 = 8 if isO else 8
            w = vmwait({('a', s+1), ('b', s+1)})
            gaps[g0-1] += w
            per = len(rd) // 8
            for i, r in enumerate(rd): gaps[g0 - 1 + i // per if False else min(g0 - 1 + i // per, 15)].append(r)
        sc.run(mf, gaps)
    tl_mark(a, 1)
    a.e('s_nop 7', 's_barrier')
    a.e('v_mul_u32_u24 v5, 272, v3', 'v_lshl_add_u32 v6, v4, 4, v5', f's_mul_i32 s47, s28, 17408', 'v_add_u32 v6, s47, v6')
    for nb in range(4):
        for qb in range(4):
            a.e(f'ds_write_b128 v6, {A(ACC+16*nb+4*qb,4)} offset:{qb*16*272 + nb*64}')
    XR = 32; GV = 40; PT = 64
    a.e('s_lshl_b32 s47, s46, 2', 's_add_u32 s47, s47, s28')
    srd(a, 16, 6, 7, 12288)
    a.e('v_lshlrev_b32 v7, 4, v4', 's_lshl_b32 s48, s44, 8', f's_add_u32 s48, s48, {(2 if isO else 5)*2048}')
    for t in range(2):
        for h in range(2): a.e(f'buffer_load_dwordx4 {V(GV+8*t+4*h,4)}, v7, s[16:19], s48 offen offset:{128*t+64*h}')
    a.e('s_lshl_b32 s49, s47, 14', 's_lshl_b32 s50, s44, 7', 's_add_u32 s50, s50, s49', 'v_lshlrev_b32 v8, 10, v3', 'v_lshl_add_u32 v8, v4, 3, v8')
    a.e('s_lshl_b32 s51, s44, 11', 's_add_u32 s51, s51, s49', 'v_lshlrev_b32 v9, 4, v2')
    srd(a, 20, 40, 41, 2097152); srd(a, 24, 6, 7, 2097152, add=WS_X1)
    for t in range(2):
        if isO: a.e(f'buffer_load_dwordx4 {V(XR+4*t,4)}, v8, s[20:23], s50 offen offset:{64*t}')
        else: a.e(f'buffer_load_dwordx4 {V(XR+4*t,4)}, v9, s[24:27], s51 offen offset:{1024*t}')
    a.e('s_waitcnt lgkmcnt(0)', 's_barrier')
    a.e('s_mul_i32 s47, s28, 4352', 'v_lshl_add_u32 v6, v4, 4, v5', 'v_add_u32 v6, s47, v6')
    for pw in range(4):
        for t in range(2):
            for h in range(2): a.e(f'ds_read_b128 {V(PT+16*pw+8*t+4*h,4)}, v6 offset:{pw*17408 + t*128 + h*64}')
    a.e('s_waitcnt lgkmcnt(8)')
    for i in range(16): a.e(f'v_add_f32 {V(PT+i)}, {V(PT+i)}, {V(PT+16+i)}')
    a.e('s_waitcnt lgkmcnt(0)')
    for i in range(16): a.e(f'v_add_f32 {V(PT+32+i)}, {V(PT+32+i)}, {V(PT+48+i)}')
    for i in range(16): a.e(f'v_add_f32 {V(PT+i)}, {V(PT+i)}, {V(PT+32+i)}')
    a.e('s_waitcnt vmcnt(0)')
    for i in range(8): a.e(f'v_lshlrev_b32 {V(PT+16+2*i)}, 16, {V(XR+i)}', f'v_and_b32 {V(PT+17+2*i)}, 0xffff0000, {V(XR+i)}')
    for i in range(16): a.e(f'v_fmac_f32 {V(PT+16+i)}, {V(PT+i)}, {V(GV+i)}')
    for i in range(8): a.e(f'v_cvt_pk_bf16_f32 {V(XR+i)}, {V(PT+16+2*i)}, {V(PT+17+2*i)}')
    for t in range(2):
        if isO: a.e(f'buffer_store_dwordx4 {V(XR+4*t,4)}, v9, s[24:27], s51 offen offset:{1024*t}')
        else:
            for h in range(2): a.e(f'buffer_store_dwordx2 {V(XR+4*t+2*h,2)}, v8, s[20:23], s50 offen offset:{64*t+32*h}')
    tl_end(a); a.e(f'{L}_end:', 's_endpgm')
    return dict(label=L, grid=256, block=256, lds=max(4*WREG, 69632), vgpr=384, accum=256)

def gen_gateup(a, opt):
    L = 'gateup_kernel'
    R = 5; STG = 28672
    BD = 16
    DA = 144
    RA = 152
    ACC = 0
    FA = 112
    kernel_head(a, L)
    a.e('s_cmp_ge_u32 s2, 256', f's_cbranch_scc1 {L}_end')
    tl_start(a)
    a.e('s_load_dwordx4 s[4:7], s[0:1], 48', 's_load_dwordx2 s[40:41], s[0:1], 104')
    a.e('v_lshrrev_b32 v1, 6, v0', 'v_and_b32 v2, 63, v0', 'v_readfirstlane_b32 s28, v1')
    a.e('s_and_b32 s44, s2, 7', 's_lshr_b32 s45, s2, 3', 's_and_b32 s46, s44, 1', 's_lshl_b32 s46, s46, 3', 's_lshr_b32 s47, s45, 2', 's_add_u32 s46, s46, s47')
    a.e('s_lshr_b32 s44, s44, 1', 's_lshl_b32 s44, s44, 2', 's_and_b32 s45, s45, 3', 's_add_u32 s44, s44, s45')
    a.e('v_and_b32 v3, 15, v2', 'v_lshrrev_b32 v4, 4, v2')
    a.e('s_and_b32 s47, s28, 1', 's_mul_i32 s47, s47, 448', 'v_add_u32 v5, s47, v2', 's_mov_b32 s48, 4682', 's_mov_b32 s49, 3584')
    for i in range(7):
        a.e(f'v_add_u32 v6, {64*i}, v5', 'v_mul_lo_u32 v7, v6, s48', 'v_lshrrev_b32 v7, 16, v7', 'v_mul_u32_u24 v8, 14, v7', 'v_sub_u32 v8, v6, v8')
        a.e('v_mul_lo_u32 v9, v7, s49', 'v_lshl_add_u32 v9, v8, 4, v9', f'v_subrev_u32 {V(DA+i)}, {1024*(i & 3)}, v9')
    a.e('v_lshlrev_b32 v11, 4, v2')
    a.e('s_waitcnt lgkmcnt(0)')
    a.e('s_cmp_lt_u32 s28, 2', 's_cselect_b32 s50, s4, s6', 's_cselect_b32 s51, s5, s7', 's_mul_i32 s47, s44, 224')
    srd(a, 8, 50, 51, 0, add='s47'); a.e(f's_sub_u32 s10, {512*3584}, s47')
    a.e('s_lshl_b32 s47, s46, 3', 's_lshl_b32 s48, s28, 1', 's_add_u32 s47, s47, s48')
    a.e('s_lshl_b32 s48, s47, 14', f's_add_u32 s48, s48, {WS_H2}'); srd(a, 12, 40, 41, 32768, add='s48')
    a.e(f's_mul_i32 s48, s47, {56*1024}', f's_add_u32 s48, s48, {WS_HH}'); srd(a, 16, 40, 41, 2*56*1024, add='s48')
    a.e('s_lshr_b32 s48, s28, 1', 's_mul_i32 s48, s48, 14336', 's_and_b32 s49, s28, 1', 's_mul_i32 s49, s49, 7168', 's_add_u32 s30, s48, s49')
    a.e('s_mov_b32 s34, 0')
    vm = []
    def dma(st):
        r = []
        base = (st % R) * STG
        for i in range(7):
            sal = [f's_add_u32 m0, s30, {base + 4096*(i//4)}'] if i % 4 == 0 else []
            r.append([sal, f'buffer_load_dwordx4 {V(DA+i)}, s[8:11], s34 offen offset:{1024*(i&3)} lds'])
        r.append([[f's_add_u32 s34, s34, {64*3584}'], None])
        return r
    def bload(st):
        r = []
        for t in (2*st, 2*st+1):
            for qb in range(2):
                off = qb*16384 + t*1024
                r.append([[f's_mov_b32 s36, {off}'], f'buffer_load_dwordx4 {V(BD+8*t+4*qb,4)}, v11, s[12:15], s36 offen'])
        return r
    def emit(lst, tag):
        for sal, ins in lst:
            a.e(sal)
            if ins:
                if sal and 'm0' in sal[-1]: a.e('s_nop 0')
                a.e(ins); vm.append(tag)
    def vmwait(tags):
        last = max([i for i, t in enumerate(vm) if t in tags], default=-1)
        if last < 0: return []
        n = len(vm) - 1 - last
        del vm[:last+1]
        return [f's_waitcnt vmcnt({n})']
    for st in range(R-1):
        emit(dma(st), ('a', st)); emit(bload(st), ('b', st))
    a.e('v_lshrrev_b32 v5, 2, v2', 'v_mul_u32_u24 v5, 224, v5', 'v_and_b32 v6, 3, v2', f'v_lshl_add_u32 {V(RA)}, v6, 3, v5')
    for i in range(1, R): a.e(f'v_add_u32 {V(RA+i)}, {i*STG}, {V(RA)}')
    def rd(n):
        ks, b = divmod(n, 14); st, tt = divmod(ks, 2)
        off = (b // 7)*14336 + tt*7168 + (b % 7)*32
        return [f'ds_read_b64_tr_b16 {A(FA+4*(n % 8)+2*v,2)}, {V(RA + st % R)} offset:{off+3584*v}' for v in range(2)]
    D = 5
    sc = Sched(a, age=6)
    a.e(vmwait({('a', 0), ('b', 0)}), 's_barrier'); tl_mark(a, 0)
    for n in range(D):
        for r in rd(n): sc.emit_filler(r)
    NF = 16*14
    mf = []; gaps = []
    for n in range(NF):
        ks, b = divmod(n, 14); st, tt = divmod(ks, 2)
        for qb in range(2):
            acc = A(ACC+8*b+4*qb, 4)
            mf.append(f'{MF} {acc}, {A(FA+4*(n % 8),4)}, {V(BD+8*ks+4*qb,4)}, {"0" if ks == 0 else acc}')
            gaps.append([])
        nn = n + D
        if nn < NF:
            if nn % 28 == 0:
                s2 = nn // 28
                gaps[2*n-1] += vmwait({('a', s2), ('b', s2)}) + ['s_barrier']
                pendq = []
                if s2 + R - 2 < 8:
                    pendq = [(x, ('a', s2+R-2)) for x in dma(s2+R-2)] + [(x, ('b', s2+R-2)) for x in bload(s2+R-2)]
                gq = 2*n
                late = []
                for (sal, ins), tag in pendq:
                    late.append((gq, sal, ins, tag))
                    if ins: gq += 2
                pend_late = late
            r = rd(nn)
            gaps[2*n].append(r[0]); gaps[2*n+1].append(r[1])
        if 'pend_late' in locals():
            keep = []
            for gq, sal, ins, tag in pend_late:
                if gq // 2 == n:
                    gaps[gq] = sal + gaps[gq]
                    if ins:
                        gaps[gq+1].append(ins); vm.append(tag)
                else: keep.append((gq, sal, ins, tag))
            pend_late = keep
    sc.run(mf, gaps); tl_mark(a, 1)
    a.e('s_nop 7')
    a.e('s_mul_i32 s47, s44, 7')
    for b in range(7):
        a.e(f's_add_u32 s48, s47, {b}', 's_lshr_b32 s49, s48, 1', 's_lshl_b32 s49, s49, 10', 's_and_b32 s48, s48, 1', 's_lshl_b32 s48, s48, 3', f's_add_u32 s{52+b}, s48, s49', f's_add_u32 s{62+b}, s{52+b}, {56*1024}')
    for b in range(7):
        for qb in range(2):
            t = 16 + 10*((2*b+qb) % 8)
            for i in range(4): a.e(f'v_accvgpr_read_b32 {V(t+i)}, {A(ACC+8*b+4*qb+i)}', f'v_accvgpr_read_b32 {V(t+4+i)}, {A(ACC+8*(b+7)+4*qb+i)}')
            for i in range(4): a.e(f'v_mul_f32 {V(t+i)}, {V(t+i)}, {V(t+4+i)}')
            a.e(f'v_cvt_pk_bf16_f32 {V(t+8)}, {V(t)}, {V(t+1)}', f'v_cvt_pk_bf16_f32 {V(t+9)}, {V(t+2)}, {V(t+3)}')
            a.e(f'buffer_store_dwordx2 {V(t+8,2)}, v11, s[16:19], s{(52 if qb == 0 else 62)+b} offen')
    tl_end(a); a.e(f'{L}_end:', 's_endpgm')
    return dict(label=L, grid=256, block=256, lds=R*STG, vgpr=160+144, accum=160)


WS_PART = 44 << 20

def gen_oproj(a, opt):
    L = 'oproj_kernel'
    ACC = 64
    FA = [0, 32]; FB = [64, 96]
    DA = 8; DB = 12; RA = 16; RB = 24
    WT = opt.get('wt_o', ' sc1')
    kernel_head(a, L)
    a.e('s_cmp_ge_u32 s2, 256', f's_cbranch_scc1 {L}_end')
    tl_start(a)
    a.e('s_load_dwordx2 s[4:5], s[0:1], 32', 's_load_dwordx2 s[6:7], s[0:1], 104')
    a.e('v_lshrrev_b32 v1, 6, v0', 'v_and_b32 v2, 63, v0', 'v_readfirstlane_b32 s29, v1')
    a.e('s_bfe_u32 s44, s2, 0x20001')
    a.e('s_and_b32 s45, s2, 1', 's_lshl_b32 s45, s45, 3', 's_lshr_b32 s46, s2, 5', 's_add_u32 s45, s45, s46')
    a.e('s_bfe_u32 s46, s2, 0x20003')
    a.e('v_and_b32 v3, 15, v2', 'v_lshrrev_b32 v4, 4, v2', f'v_lshlrev_b32 {V(DB)}, 4, v2')
    a.e('s_and_b32 s28, s29, 3', 's_lshr_b32 s47, s28, 1', 's_and_b32 s48, s28, 1')
    a.e('s_cmp_lt_u32 s29, 4', f's_cbranch_scc1 {L}_comp')
    for i in range(4):
        a.e(f'v_add_u32 v5, {4*(i&1)}, v4', 'v_lshlrev_b32 v5, 1, v5', 'v_xor_b32 v5, v5, v3', 'v_lshlrev_b32 v5, 4, v5', 'v_lshl_add_u32 v5, v4, 10, v5',
            f'v_add_u32 {V(DA+i)}, {(16*(i&1) + 8*(i>>1) - i)*1024}, v5')
    a.e('s_lshl_b32 s49, s47, 15', 's_lshl_b32 s50, s48, 12', 's_add_u32 s36, s49, s50')
    a.e('s_lshl_b32 s49, s44, 20', 's_lshl_b32 s50, s46, 8', 's_add_u32 s49, s49, s50', 's_add_u32 s36, s49, s36')
    a.e('s_lshl_b32 s49, s45, 1', 's_add_u32 s49, s49, s47', 's_lshl_b32 s49, s49, 19', 's_lshl_b32 s50, s44, 17', 's_add_u32 s49, s49, s50',
        's_lshl_b32 s50, s48, 12', 's_add_u32 s49, s49, s50', f's_add_u32 s37, s49, {WS_O}')
    a.e('s_mov_b32 s34, 0', 's_mov_b32 s35, 0', 's_lshl_b32 s30, s28, 12')
    a.e('s_waitcnt lgkmcnt(0)')
    srd(a, 8, 4, 5, 0, add='s36'); a.e('s_sub_u32 s10, 4194304, s36'); srd(a, 12, 6, 7, 131072, add='s37')
    def dma(slot):
        a.e(f's_add_u32 m0, s30, {slot*32768+16384}', 's_nop 0')
        for i in range(4): a.e(f'buffer_load_dwordx4 {V(DB)}, s[12:15], s35 offen offset:{1024*i} lds')
        a.e(f's_add_u32 m0, s30, {slot*32768}', 's_add_u32 s35, s35, 8192')
        for i in range(4): a.e(f'buffer_load_dwordx4 {V(DA+i)}, s[8:11], s34 offen offset:{1024*i} lds')
        a.e('s_add_u32 s34, s34, 65536')
    dma(0); dma(1)
    a.e('s_waitcnt vmcnt(8)', 's_barrier')
    dma(2)
    for st in range(16):
        a.e(f's_waitcnt vmcnt({8 if st < 14 else 0})', 's_barrier')
        if st + 3 < 16: dma((st+3) % 4)
    a.e(f's_branch {L}_end')
    a.e(f'{L}_comp:')
    if opt.get('prio', 1): a.e('s_setprio 1')
    a.e('v_lshrrev_b32 v5, 2, v2', 'v_and_b32 v6, 3, v2', 'v_lshlrev_b32 v7, 8, v5', 'v_lshl_add_u32 v7, v6, 3, v7', 'v_and_b32 v5, 7, v5', 's_lshl_b32 s49, s48, 2')
    for nb in range(4): a.e(f's_add_u32 s50, s49, {nb}', 'v_xor_b32 v28, s50, v5', f'v_lshl_add_u32 {V(RA+nb)}, v28, 5, v7', f'v_add_u32 {V(RA+4+nb)}, 0x10000, {V(RA+nb)}')
    a.e('v_bfe_u32 v5, v2, 2, 2', 'v_lshrrev_b32 v7, 5, v2', 'v_lshl_add_u32 v5, v7, 3, v5', 'v_lshlrev_b32 v7, 2, v6', 'v_xor_b32 v5, v5, v7', 'v_lshl_add_u32 v5, v6, 4, v5')
    a.e('v_and_b32 v7, 1, v4', 'v_lshlrev_b32 v7, 3, v7', 'v_lshl_add_u32 v5, v5, 4, v7', 's_lshl_b32 s49, s47, 13', 's_add_u32 s49, s49, 16384')
    a.e(f'v_add_u32 {V(RB)}, s49, v5', 'v_xor_b32 v5, 64, v5', f'v_add_u32 {V(RB+1)}, s49, v5', f'v_add_u32 {V(RB+2)}, 0x10000, {V(RB)}', f'v_add_u32 {V(RB+3)}, 0x10000, {V(RB+1)}')
    for i in range(64): a.e(f'v_mov_b32 {V(ACC+i)}, 0')
    a.e('s_lshl_b32 s49, s45, 1', 's_add_u32 s49, s49, s47', 's_lshl_b32 s49, s49, 16', 's_lshl_b32 s50, s44, 21', 's_add_u32 s49, s49, s50',
        's_lshl_b32 s50, s46, 12', 's_add_u32 s49, s49, s50', 's_lshl_b32 s50, s48, 11', 's_add_u32 s49, s49, s50', f's_add_u32 s49, s49, {WS_PART}')
    a.e('s_waitcnt lgkmcnt(0)')
    srd(a, 16, 6, 7, 65536, add='s49')
    def reads(slot, p):
        hi = slot >> 1; base = (slot & 1)*32768
        ra = [f'ds_read_b64_tr_b16 {A(FA[p]+8*x+4*tt+2*v,2)}, {V(RA+4*hi+x)} offset:{base+tt*8192+v*4096}' for x in range(4) for tt in range(2) for v in range(2)]
        rb = [f'ds_read_b64_tr_b16 {A(FB[p]+8*x+4*tt+2*u,2)}, {V(RB+2*hi+u)} offset:{base+tt*4096+x*1024}' for x in range(4) for tt in range(2) for u in range(2)]
        return ra[:4] + rb + ra[4:]
    sc = Sched(a, age=6)
    a.e('s_barrier'); tl_mark(a, 0)
    for r in reads(0, 0): sc.emit_filler(r)
    a.e('s_mov_b32 s38, 0', f'{L}_loop:')
    per = opt.get('o_rpg', 2)
    for st in range(4):
        p = st & 1
        a.e('s_waitcnt lgkmcnt(0)', 's_barrier'); sc.pend = []
        mf = [f'{MF} {V(ACC+16*nb+4*qb,4)}, {A(FA[p]+8*nb+4*tt,4)}, {A(FB[p]+8*qb+4*tt,4)}, {V(ACC+16*nb+4*qb,4)}' for nb in range(4) for qb in range(4) for tt in range(2)]
        gaps = [[] for _ in mf]
        rd = reads((st+1) % 4, p ^ 1)
        g = 0
        for i, r in enumerate(rd):
            gaps[int(i*opt.get('o_span', 24)/32)].append(r)
        if st == 3: gaps[30] += ['s_add_u32 s38, s38, 1', 's_cmp_lt_u32 s38, 4']
        sc.run(mf, gaps)
    a.e(f's_cbranch_scc1 {L}_loop'); tl_mark(a, 1)
    n = 0
    for jp in range(2):
        for qb in range(4):
            t = 32 + 4*n; n += 1
            for u in range(2):
                b = ACC + 16*(2*jp+u) + 4*qb
                a.e(f'v_cvt_pk_bf16_f32 {V(t+2*u)}, {V(b)}, {V(b+1)}', f'v_cvt_pk_bf16_f32 {V(t+2*u+1)}, {V(b+2)}, {V(b+3)}')
            a.e(f's_mov_b32 s50, {qb*16384}', f'buffer_store_dwordx4 {V(t,4)}, {V(DB)}, s[16:19], s50 offen offset:{1024*jp}{WT}')
    a.e('s_waitcnt lgkmcnt(0)'); tl_end(a); a.e(f'{L}_end:', 's_endpgm')
    return dict(label=L, grid=256, block=512, lds=131072, vgpr=256, accum=128)

def gen_red(a, opt):
    L = 'red_kernel'
    kernel_head(a, L)
    a.e('s_cmp_ge_u32 s2, 256', f's_cbranch_scc1 {L}_end')
    tl_start(a)
    a.e('s_load_dwordx2 s[4:5], s[0:1], 0', 's_load_dwordx2 s[6:7], s[0:1], 104')
    a.e('v_lshrrev_b32 v2, 6, v0', 'v_and_b32 v3, 7, v0', 'v_bfe_u32 v4, v0, 3, 2', 'v_bfe_u32 v5, v0, 5, 1', 'v_lshl_add_u32 v6, v2, 2, v5')
    a.e('s_lshr_b32 s27, s2, 1', 's_lshl_b32 s27, s27, 14', 's_and_b32 s28, s2, 1', 's_lshl_b32 s28, s28, 7', 's_add_u32 s27, s27, s28')
    a.e('v_lshlrev_b32 v7, 10, v6', 'v_lshl_add_u32 v7, v3, 4, v7', 'v_lshl_add_u32 v7, v4, 8, v7')
    a.e('v_lshlrev_b32 v8, 10, v3', 'v_lshl_add_u32 v8, v6, 6, v8', 'v_lshl_add_u32 v8, v4, 3, v8', 's_lshl_b32 s26, s2, 13')
    a.e('v_lshlrev_b32 v9, 7, v6', 'v_lshl_add_u32 v9, v4, 4, v9')
    a.e('s_waitcnt lgkmcnt(0)')
    srd(a, 8, 6, 7, 8388608, add=WS_PART); srd(a, 12, 4, 5, 2097152); srd(a, 16, 6, 7, 12288)
    PT = 16; XR = 48; GA = 56; CB = 72; SB = 88; F = 104
    for ks in range(4):
        a.e(f's_add_u32 s29, s27, {ks << 21}')
        for i in range(2): a.e(f'buffer_load_dwordx4 {V(PT+8*ks+4*i,4)}, v7, s[8:11], s29 offen offset:{2048*i}')
    for i in range(2):
        for v in range(2): a.e(f'buffer_load_dwordx2 {V(XR+4*i+2*v,2)}, v8, s[12:15], s26 offen offset:{128*i+32*v}')
    for part, reg in ((2, GA), (4, CB), (3, SB)):
        a.e(f's_mov_b32 s29, {part*2048}')
        for i in range(2):
            for v in range(2): a.e(f'buffer_load_dwordx4 {V(reg+8*i+4*v,4)}, v9, s[16:19], s29 offen offset:{256*i+64*v}')
    srd(a, 20, 6, 7, 2097152, add=WS_X1); srd(a, 32, 6, 7, 2097152, add=WS_H2)
    a.e('v_lshlrev_b32 v12, 2, v3', 'v_lshl_add_u32 v13, v2, 5, v12')
    for ks in range(4):
        a.e(f's_waitcnt vmcnt({22-2*ks})')
        if ks in (0, 3): tl_mark(a, 0 if ks == 0 else 1)
        for r in range(8):
            src = V(PT+8*ks+r)
            if ks == 0: a.e(f'v_lshlrev_b32 {V(F+2*r)}, 16, {src}', f'v_and_b32 {V(F+2*r+1)}, 0xffff0000, {src}')
            else: a.e(f'v_lshlrev_b32 v10, 16, {src}', f'v_and_b32 v11, 0xffff0000, {src}', f'v_add_f32 {V(F+2*r)}, {V(F+2*r)}, v10', f'v_add_f32 {V(F+2*r+1)}, {V(F+2*r+1)}, v11')
    a.e('s_waitcnt vmcnt(8)')
    for r in range(8): a.e(f'v_lshlrev_b32 {V(PT+2*r)}, 16, {V(XR+r)}', f'v_and_b32 {V(PT+2*r+1)}, 0xffff0000, {V(XR+r)}')
    for e in range(16): a.e(f'v_fmac_f32 {V(PT+e)}, {V(F+e)}, {V(GA+e)}')
    for r in range(8): a.e(f'v_cvt_pk_bf16_f32 {V(XR+r)}, {V(PT+2*r)}, {V(PT+2*r+1)}')
    for i in range(2): a.e(f'buffer_store_dwordx4 {V(XR+4*i,4)}, v7, s[20:23], s27 offen offset:{2048*i}{opt.get("wt_r", " sc1")}')
    for r in range(8): a.e(f'v_lshlrev_b32 {V(F+2*r)}, 16, {V(XR+r)}', f'v_and_b32 {V(F+2*r+1)}, 0xffff0000, {V(XR+r)}')
    a.e(f'v_add_f32 v10, {V(F)}, {V(F+1)}', f'v_add_f32 v11, {V(F+2)}, {V(F+3)}')
    for e in range(4, 16, 2): a.e(f'v_add_f32 v10, v10, {V(F+e)}', f'v_add_f32 v11, v11, {V(F+e+1)}')
    a.e('v_add_f32 v10, v10, v11'); lane8_sum(a, 'v10', 'v11')
    a.e('ds_write_b32 v13, v10', 's_waitcnt lgkmcnt(0)', 's_barrier')
    for i in range(4): a.e(f'ds_read_b32 v{24+i}, v12 offset:{32*i}')
    a.e('s_waitcnt lgkmcnt(0)', 'v_add_f32 v24, v24, v25', 'v_add_f32 v26, v26, v27', 'v_add_f32 v24, v24, v26', f'v_mul_f32 v24, {f32hex(1/512)}, v24')
    for e in range(16): a.e(f'v_sub_f32 {V(F+e)}, {V(F+e)}, v24')
    a.e(f'v_mul_f32 v10, {V(F)}, {V(F)}', f'v_mul_f32 v11, {V(F+1)}, {V(F+1)}')
    for e in range(2, 16, 2): a.e(f'v_fmac_f32 v10, {V(F+e)}, {V(F+e)}', f'v_fmac_f32 v11, {V(F+e+1)}, {V(F+e+1)}')
    a.e('v_add_f32 v10, v10, v11'); lane8_sum(a, 'v10', 'v11')
    a.e('ds_write_b32 v13, v10 offset:128', 's_waitcnt lgkmcnt(0)', 's_barrier')
    for i in range(4): a.e(f'ds_read_b32 v{24+i}, v12 offset:{128+32*i}')
    a.e('s_waitcnt lgkmcnt(0)', 'v_add_f32 v24, v24, v25', 'v_add_f32 v26, v26, v27', 'v_add_f32 v24, v24, v26')
    a.e(f'v_mov_b32 v25, {f32hex(1e-5)}', f'v_fmac_f32 v25, {f32hex(1/512)}, v24', 'v_rsq_f32 v25, v25', 's_waitcnt vmcnt(2)')
    for e in range(16): a.e(f'v_mul_f32 {V(F+e)}, {V(F+e)}, v25')
    for e in range(16): a.e(f'v_fma_f32 {V(F+e)}, {V(F+e)}, {V(CB+e)}, {V(SB+e)}')
    for r in range(8): a.e(f'v_cvt_pk_bf16_f32 {V(PT+r)}, {V(F+2*r)}, {V(F+2*r+1)}')
    for i in range(2): a.e(f'buffer_store_dwordx4 {V(PT+4*i,4)}, v7, s[32:35], s27 offen offset:{2048*i}{opt.get("wt_r", " sc1")}')
    tl_end(a); a.e(f'{L}_end:', 's_endpgm')
    return dict(label=L, grid=256, block=256, lds=512, vgpr=120, accum=120)

def gen_post(a, opt):
    ks = [gen_oproj(a, opt), gen_red(a, opt), gen_gateup(a, opt), gen_ksplit(a, 'down_kernel', 'd', opt)]
    return ks
```

```python
from asmlib import *
import struct, math
def f32hex(x): return hex(struct.unpack('<I', struct.pack('<f', x))[0])

WS_MOD = 0
WS_MODQ = 16384
WS_H   = 1 << 20
WS_O   = 4 << 20
WS_X1  = 24 << 20
WS_H2  = 28 << 20
WS_HH  = 32 << 20
WS_ST  = 40 << 20
QSCALE = math.log2(math.e) / math.sqrt(128.0)

def round_bf16(a, dst, src):
    a.e(f'v_cvt_pk_bf16_f32 {dst}, {src}, {src}', f'v_and_b32 {dst}, 0xffff0000, {dst}')

def code_prefetch(a, L, nwg_per_xcd, dst):
    a.e('s_getpc_b64 s[30:31]', f'{L}_pc:', f's_sub_u32 s30, s30, {L}_pc - code_begin', 's_subb_u32 s31, s31, 0')
    a.e('s_lshr_b32 s32, s2, 3', 's_lshl_b32 s32, s32, 14', f'v_lshlrev_b32 {dst}, 6, v0', f'v_add_u32 {dst}, s32, {dst}',
        f'v_min_u32 {dst}, code_end - code_begin - 4, {dst}', f'global_load_dword {dst}, {dst}, s[30:31]')

def gen_mod(a, opt=None):
    opt = opt or {}
    L = 'mod_kernel'
    a.e('.text', 'code_begin:')
    kernel_head(a, L)
    a.e('s_cmp_ge_u32 s2, 96', f's_cbranch_scc1 {L}_end')
    tl_start(a)
    if opt.get('cpf', 1): code_prefetch(a, L, 12, 'v63')
    a.e('s_load_dwordx4 s[4:7], s[0:1], 72')
    a.e('s_load_dwordx2 s[20:21], s[0:1], 104')
    a.e('v_lshrrev_b32 v1, 2, v0')
    a.e('v_and_b32 v2, 3, v0')
    a.e('v_lshlrev_b32 v3, 1, v1')
    a.e('s_mov_b32 s22, 6144', 'v_mul_lo_u32 v4, v1, s22', 'v_lshl_add_u32 v4, v2, 4, v4')
    a.e('s_lshl_b32 s23, s2, 6')
    a.e('v_add_u32 v4, s23, v4')
    a.e('s_waitcnt lgkmcnt(0)')
    srd(a, 8, 4, 5, 1024); srd(a, 12, 6, 7, 512*6144); srd(a, 16, 20, 21, 12288)
    for i in range(8): a.e(f'buffer_load_ushort v{8+i}, v3, s[8:11], 0 offen offset:{i*128}')
    a.e('s_mov_b32 s24, 0')
    for i in range(8):
        a.e(f'buffer_load_dwordx4 v[{16+4*i}:{19+4*i}], v4, s[12:15], s24 offen nt')
        if i < 7: a.e(f's_add_u32 s24, s24, {64*6144}')
    for j in range(8): a.e(f'v_mov_b32 v{48+j}, 0')
    a.e('s_waitcnt vmcnt(8)')
    a.e(f's_mov_b32 s25, {f32hex(-math.log2(math.e))}')
    for i in range(8): a.e(f'v_lshlrev_b32 v{8+i}, 16, v{8+i}')
    for i in range(8): a.e(f'v_mul_f32 v{64+i}, s25, v{8+i}')
    for i in range(8): a.e(f'v_exp_f32 v{64+i}, v{64+i}')
    a.e('s_nop 0')
    for i in range(8): a.e(f'v_add_f32 v{64+i}, 1.0, v{64+i}')
    for i in range(8): a.e(f'v_rcp_f32 v{64+i}, v{64+i}')
    a.e('s_nop 0')
    for i in range(8): a.e(f'v_mul_f32 v{8+i}, v{8+i}, v{64+i}')
    for i in range(8): round_bf16(a, f'v{8+i}', f'v{8+i}')
    for i in range(8):
        a.e(f's_waitcnt vmcnt({7-i})')
        for d in range(4):
            w = 16+4*i+d
            a.e(f'v_lshlrev_b32 v5, 16, v{w}', f'v_and_b32 v6, 0xffff0000, v{w}',
                f'v_fmac_f32 v{48+2*d}, v5, v{8+i}', f'v_fmac_f32 v{49+2*d}, v6, v{8+i}')
    a.e('v_mul_u32_u24 v5, 144, v1', 'v_lshl_add_u32 v5, v2, 5, v5')
    a.e('ds_write_b128 v5, v[48:51]', 'ds_write_b128 v5, v[52:55] offset:16', 's_waitcnt lgkmcnt(0)', 's_barrier')
    a.e('v_and_b32 v6, 31, v0', 'v_lshrrev_b32 v7, 5, v0', 'v_mul_u32_u24 v5, 1152, v7', 'v_lshl_add_u32 v5, v6, 2, v5')
    for i in range(8): a.e(f'ds_read_b32 v{16+i}, v5 offset:{144*i}')
    a.e('s_waitcnt lgkmcnt(0)')
    for i in range(1, 8): a.e(f'v_add_f32 v16, v16, v{16+i}')
    a.e('v_lshlrev_b32 v5, 2, v0', 'ds_write_b32 v5, v16 offset:9216', 's_waitcnt lgkmcnt(0)', 's_barrier')
    a.e('v_cmp_gt_u32 vcc, 32, v0', 's_and_saveexec_b64 s[26:27], vcc', f's_cbranch_execz {L}_end')
    for i in range(8): a.e(f'ds_read_b32 v{16+i}, v5 offset:{9216+128*i}')
    a.e('s_waitcnt lgkmcnt(0)')
    for i in range(1, 8): a.e(f'v_add_f32 v16, v16, v{16+i}')
    round_bf16(a, 'v16', 'v16')
    a.e('s_lshr_b32 s28, s2, 4', 's_cmp_eq_u32 s28, 1', 's_cselect_b32 s29, 1, 0', 's_cmp_eq_u32 s28, 4', 's_cselect_b32 s29, 1, s29', 's_cmp_eq_u32 s29, 0', f's_cbranch_scc1 {L}_st')
    a.e('v_add_f32 v16, 1.0, v16'); round_bf16(a, 'v16', 'v16')
    a.e(f'{L}_st:', 's_lshl_b32 s23, s2, 7', 'v_add_u32 v5, s23, v5', 'buffer_store_dword v16, v5, s[16:19], 0 offen', 's_waitcnt vmcnt(0)')
    tl_end(a); a.e(f'{L}_end:', 's_endpgm')
    return dict(label=L, grid=96, block=256, lds=10240, vgpr=72, accum=72)

def xlane_sum(a, v, t):
    a.e(f'v_mov_b32 {t}, {v}', 's_nop 1', f'v_permlane32_swap_b32 {v}, {t}', 's_nop 1', f'v_add_f32 {v}, {v}, {t}',
        f'v_mov_b32 {t}, {v}', 's_nop 1', f'v_permlane16_swap_b32 {v}, {t}', 's_nop 1', f'v_add_f32 {v}, {v}, {t}')

def gen_ln(a, L, src, shift_part, scale_part, dst_off, outscale):
    kernel_head(a, L)
    a.e('s_cmp_ge_u32 s2, 128', f's_cbranch_scc1 {L}_end')
    tl_start(a)
    a.e('s_load_dwordx2 s[4:5], s[0:1], 0', 's_load_dwordx2 s[20:21], s[0:1], 104')
    a.e('v_and_b32 v1, 63, v0', 'v_lshrrev_b32 v2, 6, v0', 'v_and_b32 v3, 15, v0', 'v_bfe_u32 v4, v0, 4, 2')
    a.e('s_lshl_b32 s22, s2, 14', 'v_lshlrev_b32 v5, 12, v2', 'v_lshl_add_u32 v5, v1, 4, v5', 'v_add_u32 v5, s22, v5')
    if src == 'x':
        a.e('v_lshlrev_b32 v6, 10, v3', 'v_lshl_add_u32 v6, v2, 8, v6', 'v_lshl_add_u32 v6, v4, 4, v6', 'v_add_u32 v6, s22, v6')
    a.e('v_lshlrev_b32 v7, 9, v2', 'v_lshl_add_u32 v7, v4, 5, v7')
    a.e('s_waitcnt lgkmcnt(0)')
    if src == 'x': srd(a, 8, 4, 5, 2097152)
    else: srd(a, 8, 20, 21, 2097152, add=src)
    srd(a, 12, 20, 21, 12288); srd(a, 16, 20, 21, 2097152, add=dst_off)
    for j in range(4):
        if src == 'x': a.e(f'buffer_load_dwordx4 v[{16+4*j}:{19+4*j}], v6, s[8:11], 0 offen offset:{64*j}')
        else: a.e(f'buffer_load_dwordx4 v[{16+4*j}:{19+4*j}], v5, s[8:11], 0 offen offset:{1024*j}')
    a.e(f's_mov_b32 s23, {scale_part*2048}', f's_mov_b32 s24, {shift_part*2048}')
    for j in range(4):
        for hh in range(2):
            a.e(f'buffer_load_dwordx4 v[{64+8*j+4*hh}:{67+8*j+4*hh}], v7, s[12:15], s23 offen offset:{128*j+16*hh}')
            a.e(f'buffer_load_dwordx4 v[{96+8*j+4*hh}:{99+8*j+4*hh}], v7, s[12:15], s24 offen offset:{128*j+16*hh}')
    a.e('s_waitcnt vmcnt(16)')
    for i in range(16):
        a.e(f'v_lshlrev_b32 v{32+2*i}, 16, v{16+i}', f'v_and_b32 v{33+2*i}, 0xffff0000, v{16+i}')
    a.e('v_add_f32 v8, v32, v33')
    for i in range(2, 32): a.e(f'v_add_f32 v8, v8, v{32+i}')
    xlane_sum(a, 'v8', 'v9')
    a.e('v_lshlrev_b32 v10, 2, v3', 'v_lshl_add_u32 v11, v2, 6, v10', 'ds_write_b32 v11, v8', 's_waitcnt lgkmcnt(0)', 's_barrier')
    for i in range(4): a.e(f'ds_read_b32 v{12+i}, v10 offset:{64*i}')
    a.e('s_waitcnt lgkmcnt(0)', 'v_add_f32 v12, v12, v13', 'v_add_f32 v14, v14, v15', 'v_add_f32 v12, v12, v14')
    a.e(f'v_mul_f32 v12, {f32hex(1/512)}, v12')
    for i in range(32): a.e(f'v_sub_f32 v{32+i}, v{32+i}, v12')
    a.e('v_mul_f32 v8, v32, v32')
    for i in range(1, 32): a.e(f'v_fmac_f32 v8, v{32+i}, v{32+i}')
    xlane_sum(a, 'v8', 'v9')
    a.e('ds_write_b32 v11, v8 offset:256', 's_waitcnt lgkmcnt(0)', 's_barrier')
    for i in range(4): a.e(f'ds_read_b32 v{12+i}, v10 offset:{256+64*i}')
    a.e('s_waitcnt lgkmcnt(0)', 'v_add_f32 v12, v12, v13', 'v_add_f32 v14, v14, v15', 'v_add_f32 v12, v12, v14')
    a.e(f'v_mov_b32 v13, {f32hex(1e-5)}', f'v_fmac_f32 v13, {f32hex(1/512)}, v12', 'v_rsq_f32 v13, v13', 's_nop 0')
    a.e('s_waitcnt vmcnt(0)')
    for i in range(32): a.e(f'v_mul_f32 v{32+i}, v{32+i}, v13')
    for i in range(32): a.e(f'v_fma_f32 v{32+i}, v{32+i}, v{64+i}, v{96+i}')
    if outscale != 1.0:
        a.e(f's_mov_b32 s25, {f32hex(outscale)}')
        for i in range(32): a.e(f'v_mul_f32 v{32+i}, s25, v{32+i}')
    for i in range(16): a.e(f'v_cvt_pk_bf16_f32 v{16+i}, v{32+2*i}, v{33+2*i}')
    for j in range(4): a.e(f'buffer_store_dwordx4 v[{16+4*j}:{19+4*j}], v5, s[16:19], 0 offen offset:{1024*j}')
    a.e('s_waitcnt vmcnt(0)'); tl_end(a); a.e(f'{L}_end:', 's_endpgm')
    return dict(label=L, grid=128, block=256, lds=512, vgpr=128, accum=128)

def lane8_sum(a, v, t):
    xlane_sum(a, v, t)
    a.e('s_nop 1', f'v_add_f32_dpp {v}, {v}, {v} row_ror:8 row_mask:0xf bank_mask:0xf')

def gen_pre(a, opt):
    L = 'pre_kernel'
    a.e('.text', 'code_begin:')
    kernel_head(a, L)
    a.e('s_cmp_ge_u32 s2, 352', f's_cbranch_scc1 {L}_end')
    tl_start(a)
    a.e('s_cmp_lt_u32 s2, 96', f's_cbranch_scc1 {L}_mod')
    a.e('s_mov_b32 s3, s2', 's_sub_u32 s2, s2, 96')
    a.e('s_load_dwordx4 s[4:7], s[0:1], 0', 's_load_dwordx4 s[36:39], s[0:1], 16', 's_load_dwordx2 s[20:21], s[0:1], 104')
    a.e('v_and_b32 v1, 63, v0', 'v_lshrrev_b32 v2, 6, v0', 'v_and_b32 v3, 7, v0', 'v_bfe_u32 v4, v0, 3, 2', 'v_bfe_u32 v5, v0, 5, 1')
    a.e('s_and_b32 s22, s2, 1', 's_lshl_b32 s22, s22, 7', 's_bfe_u32 s23, s2, 0x20001', 's_lshl_b32 s24, s23, 5', 's_add_u32 s22, s22, s24', 's_lshr_b32 s25, s2, 3', 's_add_u32 s22, s22, s25')
    a.e('s_lshl_b32 s26, s22, 13', 'v_lshl_add_u32 v6, v2, 2, v5', 'v_lshlrev_b32 v7, 10, v3', 'v_lshl_add_u32 v7, v6, 6, v7', 'v_lshl_add_u32 v7, v4, 4, v7')
    a.e('s_waitcnt lgkmcnt(0)')
    srd(a, 8, 4, 5, 2097152)
    for i in range(2): a.e(f'buffer_load_dwordx4 v[{16+4*i}:{19+4*i}], v7, s[8:11], s26 offen offset:{128*i}')
    npf = 0
    fl = ' nt' if opt.get('pfnt', 0) else ''
    if opt.get('l2pf', 1):
        srd(a, 12, 38, 39, 4194304)
        a.e('v_lshrrev_b32 v8, 4, v0', 'v_lshlrev_b32 v8, 13, v8', 'v_and_b32 v9, 15, v0', 'v_lshl_add_u32 v8, v9, 7, v8', 's_lshl_b32 s27, s25, 17', 's_lshl_b32 s28, s23, 11', 's_add_u32 s27, s27, s28')
        a.e(f'buffer_load_dword v10, v8, s[12:15], s27 offen{fl}'); npf += 1
        if opt.get('pf64', 1): a.e(f'buffer_load_dword v10, v8, s[12:15], s27 offen offset:64{fl}'); npf += 1
        a.e('s_lshl_b32 s27, s23, 3', 's_and_b32 s28, s25, 7', 's_add_u32 s27, s27, s28', 's_lshl_b32 s27, s27, 19', 's_lshr_b32 s28, s25, 3')
        a.e('s_mul_i32 s29, s28, 12288', 's_add_u32 s29, s29, s27', 's_mul_i32 s28, s28, 6144', 's_add_u32 s28, s28, s27')
        srd(a, 12, 6, 7, 16777216); srd(a, 40, 36, 37, 16777216)
        a.e('v_lshlrev_b32 v8, 6, v0', 'v_min_u32 v9, 12224, v8', f'buffer_load_dword v10, v9, s[12:15], s29 offen{fl}', 'v_min_u32 v9, 6080, v8', f'buffer_load_dword v10, v9, s[40:43], s28 offen{fl}'); npf += 2
    if opt.get('cpf', 1): code_prefetch(a, L, 32, 'v11'); npf += 1
    a.e('s_lshr_b32 s27, s22, 1', 's_lshl_b32 s27, s27, 14', 's_and_b32 s28, s22, 1', 's_lshl_b32 s28, s28, 7', 's_add_u32 s27, s27, s28')
    a.e('v_lshlrev_b32 v7, 10, v6', 'v_lshl_add_u32 v7, v3, 4, v7', 'v_lshl_add_u32 v7, v4, 8, v7')
    srd(a, 16, 20, 21, 2097152, add=WS_H)
    a.e('v_lshlrev_b32 v12, 2, v3', 'v_lshl_add_u32 v13, v2, 5, v12')
    a.e(f's_waitcnt vmcnt({npf})')
    for i in range(8): a.e(f'v_lshlrev_b32 v{32+2*i}, 16, v{16+i}', f'v_and_b32 v{33+2*i}, 0xffff0000, v{16+i}')
    a.e('v_add_f32 v8, v32, v33', 'v_add_f32 v9, v34, v35')
    for i in range(4, 16, 2): a.e(f'v_add_f32 v8, v8, v{32+i}', f'v_add_f32 v9, v9, v{33+i}')
    a.e('v_add_f32 v8, v8, v9')
    lane8_sum(a, 'v8', 'v9')
    a.e('ds_write_b32 v13, v8', 's_waitcnt lgkmcnt(0)', 's_barrier')
    for i in range(4): a.e(f'ds_read_b32 v{24+i}, v12 offset:{32*i}')
    a.e('s_waitcnt lgkmcnt(0)', 'v_add_f32 v24, v24, v25', 'v_add_f32 v26, v26, v27', 'v_add_f32 v24, v24, v26', f'v_mul_f32 v24, {f32hex(1/512)}, v24')
    for i in range(16): a.e(f'v_sub_f32 v{32+i}, v{32+i}, v24')
    a.e('v_mul_f32 v8, v32, v32', 'v_mul_f32 v9, v33, v33')
    for i in range(2, 16, 2): a.e(f'v_fmac_f32 v8, v{32+i}, v{32+i}', f'v_fmac_f32 v9, v{33+i}, v{33+i}')
    a.e('v_add_f32 v8, v8, v9')
    lane8_sum(a, 'v8', 'v9')
    a.e('ds_write_b32 v13, v8 offset:128', 's_waitcnt lgkmcnt(0)', 's_barrier')
    for i in range(4): a.e(f'ds_read_b32 v{24+i}, v12 offset:{128+32*i}')
    a.e('s_waitcnt lgkmcnt(0)', 'v_add_f32 v24, v24, v25', 'v_add_f32 v26, v26, v27', 'v_add_f32 v24, v24, v26')
    a.e(f'v_mov_b32 v25, {f32hex(1e-5)}', f'v_fmac_f32 v25, {f32hex(1/512)}, v24', 'v_rsq_f32 v25, v25', 's_nop 0')
    for i in range(16): a.e(f'v_mul_f32 v{32+i}, v{32+i}, v25')
    for i in range(8): a.e(f'v_cvt_pk_f16_f32 v{16+i}, v{32+2*i}, v{33+2*i}')
    for i in range(2): a.e(f'buffer_store_dwordx4 v[{16+4*i}:{19+4*i}], v7, s[16:19], s27 offen offset:{2048*i}{opt.get("wt_p", " sc1")}')
    a.e('s_mov_b32 s2, s3', f's_branch {L}_fin')
    a.e(f'{L}_mod:')
    a.e('s_load_dwordx4 s[4:7], s[0:1], 72', 's_load_dwordx2 s[20:21], s[0:1], 104', 's_mov_b32 s33, s2')
    a.e('v_lshrrev_b32 v1, 2, v0', 'v_and_b32 v2, 3, v0', 'v_lshlrev_b32 v3, 1, v1')
    a.e('s_mov_b32 s22, 6144', 'v_mul_lo_u32 v4, v1, s22', 'v_lshl_add_u32 v4, v2, 4, v4', 's_lshl_b32 s23, s33, 6', 'v_add_u32 v4, s23, v4')
    a.e('s_waitcnt lgkmcnt(0)')
    srd(a, 8, 4, 5, 1024); srd(a, 12, 6, 7, 512*6144)
    for i in range(8): a.e(f'buffer_load_ushort v{8+i}, v3, s[8:11], 0 offen offset:{i*128}')
    a.e('s_mov_b32 s24, 0')
    for i in range(8):
        a.e(f'buffer_load_dwordx4 v[{16+4*i}:{19+4*i}], v4, s[12:15], s24 offen nt')
        if i < 7: a.e(f's_add_u32 s24, s24, {64*6144}')
    srd(a, 16, 20, 21, WS_MODQ + 4096)
    for j in range(8): a.e(f'v_mov_b32 v{48+j}, 0')
    a.e('v_mul_u32_u24 v7, 144, v1', 'v_lshl_add_u32 v7, v2, 5, v7')
    a.e('s_waitcnt vmcnt(8)')
    a.e(f's_mov_b32 s25, {f32hex(-math.log2(math.e))}')
    for i in range(8): a.e(f'v_lshlrev_b32 v{8+i}, 16, v{8+i}')
    for i in range(8): a.e(f'v_mul_f32 v{56+i}, s25, v{8+i}')
    for i in range(8): a.e(f'v_exp_f32 v{56+i}, v{56+i}')
    a.e('s_nop 0')
    for i in range(8): a.e(f'v_add_f32 v{56+i}, 1.0, v{56+i}')
    for i in range(8): a.e(f'v_rcp_f32 v{56+i}, v{56+i}')
    a.e('s_nop 0')
    for i in range(8): a.e(f'v_mul_f32 v{8+i}, v{8+i}, v{56+i}')
    for i in range(8): round_bf16(a, f'v{8+i}', f'v{8+i}')
    for i in range(8):
        a.e(f's_waitcnt vmcnt({7-i})')
        for d in range(4):
            w = 16+4*i+d
            a.e(f'v_lshlrev_b32 v5, 16, v{w}', f'v_and_b32 v6, 0xffff0000, v{w}', f'v_fmac_f32 v{48+2*d}, v5, v{8+i}', f'v_fmac_f32 v{49+2*d}, v6, v{8+i}')
    a.e('ds_write_b128 v7, v[48:51]', 'ds_write_b128 v7, v[52:55] offset:16')
    a.e('v_and_b32 v6, 31, v0', 'v_lshrrev_b32 v7, 5, v0', 'v_mul_u32_u24 v5, 1152, v7', 'v_lshl_add_u32 v5, v6, 2, v5')
    a.e('s_waitcnt lgkmcnt(0)', 's_barrier')
    for i in range(8): a.e(f'ds_read_b32 v{16+i}, v5 offset:{144*i}')
    a.e('v_lshlrev_b32 v5, 2, v0', 's_waitcnt lgkmcnt(0)')
    for i in range(1, 8): a.e(f'v_add_f32 v16, v16, v{16+i}')
    a.e('ds_write_b32 v5, v16 offset:9216', 's_waitcnt lgkmcnt(0)', 's_barrier')
    a.e('v_cmp_gt_u32 vcc, 32, v0', 's_and_saveexec_b64 s[26:27], vcc', f's_cbranch_execz {L}_end')
    for i in range(8): a.e(f'ds_read_b32 v{16+i}, v5 offset:{9216+128*i}')
    a.e('s_lshr_b32 s28, s33, 4', 's_cmp_eq_u32 s28, 1', 's_cselect_b32 s29, 1.0, 0', 's_cmp_eq_u32 s28, 4', 's_cselect_b32 s29, 1.0, s29')
    a.e('s_lshl_b32 s23, s33, 7', 'v_add_u32 v5, s23, v5')
    a.e('s_waitcnt lgkmcnt(0)')
    for i in range(1, 8): a.e(f'v_add_f32 v16, v16, v{16+i}')
    round_bf16(a, 'v16', 'v16')
    a.e('v_add_f32 v16, s29, v16'); round_bf16(a, 'v16', 'v16')
    a.e('buffer_store_dword v16, v5, s[16:19], 0 offen')
    a.e('s_cmp_ge_u32 s28, 2', f's_cbranch_scc1 {L}_fin')
    a.e(f'v_mul_f32 v16, {f32hex(QSCALE)}, v16', 'v_xor_b32 v5, 2048, v5', f's_mov_b32 s23, {WS_MODQ}', 'buffer_store_dword v16, v5, s[16:19], s23 offen')
    a.e(f'{L}_fin:')
    if opt.get('endwait', 0): a.e('s_waitcnt vmcnt(0)')
    tl_end(a, wait=False); a.e(f'{L}_end:', 's_endpgm')
    return dict(label=L, grid=352, block=256, lds=10240, vgpr=64, accum=64)
```

```python
import sys, json
from asmlib import *
from gen_pre import *
from gen_attn import gen_attn
HEAD = open('cdna_kernels/' + NAME + '.s.ref').read().split('; Override launch')[0] if False else ''
def build_text(opt=None, upto=None):
    opt = opt or {}
    body = Asm(); ks = []
    TL['on'] = bool(opt.get('tl')); TL['idx'] = 0; TL['marks'] = opt.get('marks', 0); TL['dbg'] = opt.get('dbg', 0); TL['nk'] = opt.get('nk', 6); TL['spin'] = opt.get('spin')
    ks.append(gen_pre(body, opt))
    ks.append(gen_attn(body, opt.get('attn')))
    if not opt.get('attn', {}).get('fuse', 1):
        from gen_post import gen_post
        ks += gen_post(body, opt)
    if upto: ks = ks[:upto]
    a = Asm()
    for k in ks: a.e(f'; @launch kernel={k["label"]} grid=({k["grid"]},1,1) block=({k["block"]},1,1) lds={k["lds"]}')
    a.e('.amdgcn_target "amdgcn-amd-amdhsa--gfx950"')
    wt = opt.get('wt', '')
    if wt:
        body.o = [(l + ' ' + wt) if (l.startswith('buffer_store') and 's[84:87]' not in l) else l for l in body.o]
    a.o += body.o
    a.e('code_end:')
    return a, ks, body
def full_text(opt=None):
    a, ks, body = build_text(opt)
    for k in ks: kernel_desc(a, k['label'], k['vgpr'], k['accum'])
    return a.text()
if __name__ == '__main__':
    opt = json.loads(sys.argv[2]) if len(sys.argv) > 2 else {}
    open(sys.argv[1], 'w').write(full_text(opt))
```

```python
NAME = 'adaLN_cond__mha_block_cached__glu_gated_bilinear__prompt'

class Asm:
    def __init__(self):
        self.o = []
    def e(self, *lines):
        for l in lines:
            if isinstance(l, (list, tuple)): self.e(*l)
            else: self.o.append(l)
    def text(self): return '\n'.join(self.o) + '\n'

def kernel_head(a, label):
    a.e('.text', f'.globl {label}', '.p2align 8', f'.type {label},@function', f'{label}:')

def kernel_desc(a, label, vgpr, accum, sgpr=102):
    a.e('.section .rodata,"a"', '.p2align 6', f'.amdhsa_kernel {label}',
        f'  .amdhsa_next_free_vgpr {vgpr}', f'  .amdhsa_next_free_sgpr {sgpr}', f'  .amdhsa_accum_offset {accum}',
        '  .amdhsa_group_segment_fixed_size 0', '  .amdhsa_kernarg_size 112', '  .amdhsa_user_sgpr_count 2',
        '  .amdhsa_user_sgpr_kernarg_segment_ptr 1', '  .amdhsa_system_sgpr_workgroup_id_x 1', '.end_amdhsa_kernel')

def srd(a, d, lo, hi, size, add=None):
    if add is None:
        a.e(f's_mov_b32 s{d}, s{lo}', f's_mov_b32 s{d+1}, s{hi}')
    else:
        a.e(f's_add_u32 s{d}, s{lo}, {add}', f's_addc_u32 s{d+1}, s{hi}, 0')
    a.e(f's_mov_b32 s{d+2}, {size}', f's_mov_b32 s{d+3}, 0x20000')

def V(b, n=1): return f'v{b}' if n == 1 else f'v[{b}:{b+n-1}]'
def A(b, n=1): return f'a{b}' if n == 1 else f'a[{b}:{b+n-1}]'
def S(b, n=1): return f's{b}' if n == 1 else f's[{b}:{b+n-1}]'

WS_TL = 56 << 20
TL = {'on': False, 'idx': 0}
def tl_start(a):
    if TL['on'] or TL.get('dbg'): a.e('s_memrealtime s[94:95]', 's_memtime s[96:97]', 's_mov_b32 s88, 0', 's_mov_b32 s90, 0', 's_mov_b32 s92, 0')
def tl_mark(a, i):
    if TL['on'] and TL.get('marks'): a.e(f's_memtime s[{88+2*i}:{89+2*i}]')
def tl_end(a, wait=True):
    if TL.get('dbg'):
        i = TL['idx']; TL['idx'] += 1
        a.e('s_waitcnt vmcnt(0) lgkmcnt(0)', 's_memrealtime s[98:99]', 's_load_dwordx2 s[84:85], s[0:1], 96', 's_waitcnt lgkmcnt(0)', 's_mov_b32 s86, 256', 's_mov_b32 s87, 0x20000')
        a.e('s_mov_b64 exec, 1', 'v_mov_b32 v0, s94', 'v_mov_b32 v1, s98', f'v_mov_b32 v8, {8*i}', 's_cmp_lg_u32 s2, 0', f's_cbranch_scc1 dbgskip{i}', 'buffer_store_dwordx2 v[0:1], v8, s[84:87], 0 offen', f'dbgskip{i}:')
        return
    if not TL['on']: return
    i = TL['idx']; TL['idx'] += 1
    a.e('s_waitcnt vmcnt(0) lgkmcnt(0)' if wait else 's_waitcnt lgkmcnt(0)', 's_memrealtime s[98:99]', 's_memtime s[100:101]', 's_load_dwordx2 s[80:81], s[0:1], 104', 's_waitcnt lgkmcnt(0)')
    a.e(f's_add_u32 s84, s80, {WS_TL + i*65536}', 's_addc_u32 s85, s81, 0', 's_mov_b32 s86, 65536', 's_mov_b32 s87, 0x20000')
    a.e('s_sub_u32 s100, s100, s96', 's_sub_u32 s88, s88, s96', 's_sub_u32 s90, s90, s96', 's_sub_u32 s92, s92, s96', 's_mov_b64 exec, 1',
        'v_mov_b32 v0, s94', 'v_mov_b32 v1, s98', 'v_mov_b32 v2, s100', 's_getreg_b32 s82, hwreg(HW_REG_XCC_ID)', 'v_mov_b32 v3, s82',
        'v_mov_b32 v4, s88', 'v_mov_b32 v5, s90', 'v_mov_b32 v6, s92', 'v_mov_b32 v7, 0',
        's_lshl_b32 s83, s2, 5', 'v_mov_b32 v8, s83', 'buffer_store_dwordx4 v[0:3], v8, s[84:87], 0 offen', 'buffer_store_dwordx4 v[4:7], v8, s[84:87], 0 offen offset:16')
```

```python
NAME = 'adaLN_cond__mha_block_cached__glu_gated_bilinear__prompt'

class Asm:
    def __init__(self):
        self.o = []
    def e(self, *lines):
        for l in lines:
            if isinstance(l, (list, tuple)): self.e(*l)
            else: self.o.append(l)
    def text(self): return '\n'.join(self.o) + '\n'

def kernel_head(a, label):
    a.e('.text', f'.globl {label}', '.p2align 8', f'.type {label},@function', f'{label}:')

def kernel_desc(a, label, vgpr, accum, sgpr=102):
    a.e('.section .rodata,"a"', '.p2align 6', f'.amdhsa_kernel {label}',
        f'  .amdhsa_next_free_vgpr {vgpr}', f'  .amdhsa_next_free_sgpr {sgpr}', f'  .amdhsa_accum_offset {accum}',
        '  .amdhsa_group_segment_fixed_size 0', '  .amdhsa_kernarg_size 112', '  .amdhsa_user_sgpr_count 2',
        '  .amdhsa_user_sgpr_kernarg_segment_ptr 1', '  .amdhsa_system_sgpr_workgroup_id_x 1', '.end_amdhsa_kernel')

def srd(a, d, lo, hi, size, add=None):
    if add is None:
        a.e(f's_mov_b32 s{d}, s{lo}', f's_mov_b32 s{d+1}, s{hi}')
    else:
        a.e(f's_add_u32 s{d}, s{lo}, {add}', f's_addc_u32 s{d+1}, s{hi}, 0')
    a.e(f's_mov_b32 s{d+2}, {size}', f's_mov_b32 s{d+3}, 0x20000')

def V(b, n=1): return f'v{b}' if n == 1 else f'v[{b}:{b+n-1}]'
def A(b, n=1): return f'a{b}' if n == 1 else f'a[{b}:{b+n-1}]'
def S(b, n=1): return f's{b}' if n == 1 else f's[{b}:{b+n-1}]'

WS_TL = 56 << 20
TL = {'on': False, 'idx': 0}
def tl_start(a):
    if TL['on'] or TL.get('dbg'): a.e('s_memrealtime s[94:95]', 's_memtime s[96:97]', 's_mov_b32 s88, 0', 's_mov_b32 s90, 0', 's_mov_b32 s92, 0')
def tl_mark(a, i):
    if TL['on'] and TL.get('marks'): a.e(f's_memtime s[{88+2*i}:{89+2*i}]')
def tl_end(a, wait=True):
    if TL.get('dbg'):
        i = TL['idx']; TL['idx'] += 1
        W = TL['dbg'] - 1
        a.e('s_waitcnt vmcnt(0) lgkmcnt(0)', 's_memrealtime s[98:99]', 's_load_dwordx2 s[84:85], s[0:1], 96', 's_load_dwordx2 s[80:81], s[0:1], 104', 's_waitcnt lgkmcnt(0)',
            's_mov_b32 s86, 256', 's_mov_b32 s87, 0x20000', f's_add_u32 s88, s80, {WS_TL}', 's_addc_u32 s89, s81, 0', 's_mov_b32 s90, 256', 's_mov_b32 s91, 0x20000')
        a.e(f's_cmp_lg_u32 s2, {W}', f's_cbranch_scc1 dbgskip{i}', 's_mov_b64 exec, 1', 'v_mov_b32 v0, s94', 'v_mov_b32 v1, s98', f'v_mov_b32 v8, {8*i}', 'buffer_store_dwordx2 v[0:1], v8, s[88:91], 0 offen sc1')
        if i == TL['nk'] - 1:
            a.e('s_waitcnt vmcnt(0)', 's_mov_b64 exec, 0xffff', 'v_mbcnt_lo_u32_b32 v8, -1, 0', 'v_lshlrev_b32 v8, 2, v8', 'buffer_load_dword v0, v8, s[88:91], 0 offen sc1', 'v_mov_b32 v9, 0', 'buffer_load_dword v1, v9, s[88:91], 0 offen sc1',
                's_waitcnt vmcnt(0)', 'v_sub_u32 v0, v0, v1', 'buffer_store_dword v0, v8, s[84:87], 0 offen')
        a.e(f'dbgskip{i}:')
        return
    if not TL['on']: return
    i = TL['idx']; TL['idx'] += 1
    a.e('s_waitcnt vmcnt(0) lgkmcnt(0)' if wait else 's_waitcnt lgkmcnt(0)', 's_memrealtime s[98:99]', 's_memtime s[100:101]', 's_load_dwordx2 s[80:81], s[0:1], 104', 's_waitcnt lgkmcnt(0)')
    a.e(f's_add_u32 s84, s80, {WS_TL + i*65536}', 's_addc_u32 s85, s81, 0', 's_mov_b32 s86, 65536', 's_mov_b32 s87, 0x20000')
    a.e('s_sub_u32 s100, s100, s96', 's_sub_u32 s88, s88, s96', 's_sub_u32 s90, s90, s96', 's_sub_u32 s92, s92, s96', 's_mov_b64 exec, 1',
        'v_mov_b32 v0, s94', 'v_mov_b32 v1, s98', 'v_mov_b32 v2, s100', 's_getreg_b32 s82, hwreg(HW_REG_XCC_ID)', 'v_mov_b32 v3, s82',
        'v_mov_b32 v4, s88', 'v_mov_b32 v5, s90', 'v_mov_b32 v6, s92', 'v_mov_b32 v7, 0',
        's_lshl_b32 s83, s2, 5', 'v_mov_b32 v8, s83', 'buffer_store_dwordx4 v[0:3], v8, s[84:87], 0 offen', 'buffer_store_dwordx4 v[4:7], v8, s[84:87], 0 offen offset:16')
```

```python
NAME = 'adaLN_cond__mha_block_cached__glu_gated_bilinear__prompt'

class Asm:
    def __init__(self):
        self.o = []
    def e(self, *lines):
        for l in lines:
            if isinstance(l, (list, tuple)): self.e(*l)
            else: self.o.append(l)
    def text(self): return '\n'.join(self.o) + '\n'

def kernel_head(a, label):
    a.e('.text', f'.globl {label}', '.p2align 8', f'.type {label},@function', f'{label}:')

def kernel_desc(a, label, vgpr, accum, sgpr=102):
    a.e('.section .rodata,"a"', '.p2align 6', f'.amdhsa_kernel {label}',
        f'  .amdhsa_next_free_vgpr {vgpr}', f'  .amdhsa_next_free_sgpr {sgpr}', f'  .amdhsa_accum_offset {accum}',
        '  .amdhsa_group_segment_fixed_size 0', '  .amdhsa_kernarg_size 112', '  .amdhsa_user_sgpr_count 2',
        '  .amdhsa_user_sgpr_kernarg_segment_ptr 1', '  .amdhsa_system_sgpr_workgroup_id_x 1', '.end_amdhsa_kernel')

def srd(a, d, lo, hi, size, add=None):
    if add is None:
        a.e(f's_mov_b32 s{d}, s{lo}', f's_mov_b32 s{d+1}, s{hi}')
    else:
        a.e(f's_add_u32 s{d}, s{lo}, {add}', f's_addc_u32 s{d+1}, s{hi}, 0')
    a.e(f's_mov_b32 s{d+2}, {size}', f's_mov_b32 s{d+3}, 0x20000')

def V(b, n=1): return f'v{b}' if n == 1 else f'v[{b}:{b+n-1}]'
def A(b, n=1): return f'a{b}' if n == 1 else f'a[{b}:{b+n-1}]'
def S(b, n=1): return f's{b}' if n == 1 else f's[{b}:{b+n-1}]'

WS_TL = 56 << 20
TL = {'on': False, 'idx': 0}
def tl_start(a):
    if TL['on'] or TL.get('dbg') or TL.get('dm'): a.e('s_memrealtime s[94:95]', 's_memtime s[96:97]', 's_mov_b32 s88, 0', 's_mov_b32 s90, 0', 's_mov_b32 s92, 0')
def tl_mark(a, i):
    if TL['on'] and TL.get('marks'): a.e(f's_memtime s[{88+2*i}:{89+2*i}]')
def tl_end(a, wait=True):
    if TL.get('dbg'):
        i = TL['idx']; TL['idx'] += 1
        W = TL['dbg'] - 1
        a.e('s_waitcnt vmcnt(0) lgkmcnt(0)', 's_memrealtime s[98:99]', 's_load_dwordx2 s[84:85], s[0:1], 96', 's_load_dwordx2 s[80:81], s[0:1], 104', 's_waitcnt lgkmcnt(0)',
            's_mov_b32 s86, 256', 's_mov_b32 s87, 0x20000', f's_add_u32 s88, s80, {WS_TL}', 's_addc_u32 s89, s81, 0', 's_mov_b32 s90, 256', 's_mov_b32 s91, 0x20000')
        a.e(f's_cmp_lg_u32 s2, {W}', f's_cbranch_scc1 dbgskip{i}', 's_mov_b64 exec, 1', 'v_mov_b32 v0, s94', 'v_mov_b32 v1, s98', f'v_mov_b32 v8, {8*i}', 'buffer_store_dwordx2 v[0:1], v8, s[88:91], 0 offen sc1')
        if i == TL['nk'] - 1:
            a.e('s_waitcnt vmcnt(0)', 's_mov_b64 exec, 0xffff', 'v_mbcnt_lo_u32_b32 v8, -1, 0', 'v_lshlrev_b32 v8, 2, v8', 'buffer_load_dword v0, v8, s[88:91], 0 offen sc1', 'v_mov_b32 v9, 0', 'buffer_load_dword v1, v9, s[88:91], 0 offen sc1',
                's_waitcnt vmcnt(0)', 'v_sub_u32 v0, v0, v1', 'buffer_store_dword v0, v8, s[84:87], 0 offen')
            if TL.get('spin'):
                x, y, f = TL['spin']
                a.e('s_nop 1', f'v_readlane_b32 s92, v0, {x}', f'v_readlane_b32 s93, v0, {y}', 's_nop 3', 's_sub_u32 s92, s93, s92', f's_mul_i32 s92, s92, {f}', 's_min_u32 s92, s92, 100000',
                    'spinl:', 's_memrealtime s[96:97]', 's_waitcnt lgkmcnt(0)', 's_sub_u32 s96, s96, s98', 's_cmp_lt_u32 s96, s92', 's_cbranch_scc1 spinl')
        a.e(f'dbgskip{i}:')
        return
    if not TL['on']: return
    i = TL['idx']; TL['idx'] += 1
    a.e('s_waitcnt vmcnt(0) lgkmcnt(0)' if wait else 's_waitcnt lgkmcnt(0)', 's_memrealtime s[98:99]', 's_memtime s[100:101]', 's_load_dwordx2 s[80:81], s[0:1], 104', 's_waitcnt lgkmcnt(0)')
    a.e(f's_add_u32 s84, s80, {WS_TL + i*65536}', 's_addc_u32 s85, s81, 0', 's_mov_b32 s86, 65536', 's_mov_b32 s87, 0x20000')
    a.e('s_sub_u32 s100, s100, s96', 's_sub_u32 s88, s88, s96', 's_sub_u32 s90, s90, s96', 's_sub_u32 s92, s92, s96', 's_mov_b64 exec, 1',
        'v_mov_b32 v0, s94', 'v_mov_b32 v1, s98', 'v_mov_b32 v2, s100', 's_getreg_b32 s82, hwreg(HW_REG_XCC_ID)', 'v_mov_b32 v3, s82',
        'v_mov_b32 v4, s88', 'v_mov_b32 v5, s90', 'v_mov_b32 v6, s92', 'v_mov_b32 v7, 0',
        's_lshl_b32 s83, s2, 5', 'v_mov_b32 v8, s83', 'buffer_store_dwordx4 v[0:3], v8, s[84:87], 0 offen', 'buffer_store_dwordx4 v[4:7], v8, s[84:87], 0 offen offset:16')
```

```python
from asmlib import *
from gen_pre import *
import gen_fuse as gf
import re

S_ = [16, 48]; P_ = [80, 96]; CI = 112; VT = 128
KA = 144; VA = 148; DK = 156; DV = 160; LV = 162; ONES = 172; LM = 176; Q = 192
WA = 176; DW = 180; HV = 181
AO = 0; AK = 192; AV = 224
DELTA = 100.0
MF = 'v_mfma_f32_16x16x32_bf16'
NT = {'kv': '', 'wq': ''}
PF = 136

class Sched:
    def __init__(self, a, age=8):
        self.a = a
        self.pend = []
        self.t = 0; self.age = age
    @staticmethod
    def regs(tok):
        m = re.match(r'([av])\[(\d+):(\d+)\]', tok)
        if m: return {(m.group(1), i) for i in range(int(m.group(2)), int(m.group(3))+1)}
        m = re.match(r'([av])(\d+)$', tok)
        if m: return {(m.group(1), int(m.group(2)))}
        return set()
    def need(self, ins):
        ops = [t.strip() for t in ins.split(None, 1)[1].split(',')]
        rs = set()
        for t in ops[1:3]: rs |= self.regs(t.split()[0])
        last = -1
        for i, p in enumerate(self.pend):
            if p[0] & rs: last = i
        if last < 0: return None
        while last + 1 < len(self.pend) and self.pend[last+1][1] <= self.t - self.age: last += 1
        return len(self.pend) - 1 - last
    def wait(self, n):
        n = min(n, 15)
        self.a.e(f's_waitcnt lgkmcnt({n})')
        self.pend = self.pend[len(self.pend)-n:] if n else []
    def emit_filler(self, ins):
        if ins.startswith('WAITDS '):
            n = self.need('x d, ' + ins[7:])
            if n is not None: self.wait(n)
            return
        self.a.e(ins)
        if ins.startswith('ds_read') or ins.startswith('ds_bpermute'):
            self.pend.append((self.regs(ins.split(None, 1)[1].split(',')[0].strip()), self.t))
        elif ins.startswith('ds_'):
            self.pend.append((set(), self.t))
        elif ins.startswith('s_waitcnt') and 'lgkmcnt(0)' in ins:
            self.pend = []
    def run(self, mf, gaps, nextmf=None):
        n0 = self.need(mf[0]) if mf else None
        if n0 is not None: self.wait(n0)
        for g, m in enumerate(mf):
            self.a.e(m); self.t += 1
            nxt = mf[g+1] if g+1 < len(mf) else nextmf
            if nxt is not None:
                n = self.need(nxt)
                if n is not None: self.wait(n)
            for f in gaps[g]: self.emit_filler(f)
            if nxt is not None:
                n = self.need(nxt)
                if n is not None: self.wait(n)

def qk_mfmas(Sw, czero=False, order='kqt'):
    it = [(kb, qb, t) for kb in range(2) for qb in range(4) for t in range(4)] if order == 'kqt' else \
         [(kb, qb, t) for qb in range(4) for kb in range(2) for t in range(4)]
    r = []
    for kb, qb, t in it:
        d = Sw + 8*qb + 4*kb
        c = (('0' if czero else V(CI+4*qb, 4)) if t == 0 else V(d, 4))
        r.append(f'{MF} {V(d,4)}, {A(AK+16*kb+4*t,4)}, {V(Q+16*qb+4*t,4)}, {c}')
    return r

def pv_mfmas(Pr, XQ, first=False):
    r = []
    for db in range(8):
        for qb in range(4):
            o = AO + 16*db + 4*qb
            r.append(f'{MF} {A(o,4)}, {V(Pr+4*qb,4)}, {A(AV+4*db,4)}, {"0" if first else A(o,4)}')
    for qb in XQ:
        r.append(f'{MF} {V(LM+4*qb,4)}, {V(Pr+4*qb,4)}, {V(ONES,4)}, {"0" if first else V(LM+4*qb,4)}')
    return r

def vreads(base_reg, off):
    return [f'ds_read_b64_tr_b16 {A(AV+4*db+2*u,2)}, {V(base_reg+db)} offset:{off+4096*u}' for db in range(8) for u in range(2)]
def kreads(off):
    return [f'ds_read_b128 {A(AK+4*f,4)}, {V(KA+(f&3))} offset:{off+4096*(f>>2)}' for f in range(8)]

def sm_items(Sr, Pw, XQ):
    exps = [f'v_exp_f32 {V(Sr+e)}, {V(Sr+e)}' for e in range(32)]
    items = []
    for e in range(32):
        qb = e >> 3
        if qb not in XQ:
            l = LV + 2*qb + (e & 1)
            items.append((e, f'v_add_f32 {V(l)}, {V(l)}, {V(Sr+e)}'))
        if e & 1: items.append((e, f'v_cvt_pk_bf16_f32 {V(Pw+e//2)}, {V(Sr+e-1)}, {V(Sr+e)}'))
    return exps, items

def dma_group(isV, grp, m0s, soff):
    srd_ = 's[12:15]' if isV else 's[8:11]'
    st = f's_mov_b32 m0, {m0s}' if grp == 0 else f's_add_u32 m0, {m0s}, 4096'
    r = []
    for j in range(4):
        vo = DV + (j & 1) if isV else DK + j
        r.append(f'buffer_load_dwordx4 {V(vo)}, {srd_}, {soff} offen offset:{j*1024}{NT["kv"]} lds')
    return st, r

def normal_slot(sc, opt, s, dmas, kread=True, first_pv=False, late_v=None, salu=(), extra_v=()):
    XQ = opt['XQ']
    par = s & 1
    mf = qk_mfmas(S_[par ^ 1]) + pv_mfmas(P_[par ^ 1], XQ, first_pv)
    N = len(mf)
    gaps = [[] for _ in range(N)]; cap = [0 if (g < 64 and g % 2 == 0) else 2 for g in range(N)]
    pre = [[] for _ in range(N)]
    exps, items = sm_items(S_[par], P_[par], XQ)
    for e in range(32): gaps[2*e].append(exps[e])
    for n, (sal, ins) in enumerate(dmas):
        g = opt['dpos'][n]
        for k, x in enumerate(sal): pre[g-1-k].append(x)
        gaps[g].append(ins); cap[g] -= opt['dcost']
    if opt.get('nodma'):
        gaps = [[x for x in gp if not x.startswith('buffer_load')] for gp in gaps]
    for k, x in enumerate(salu): pre[40 + 2*k].append(x)
    LAT = opt.get('dslat', 10)
    ds = []
    for i, r in enumerate(vreads(VA, ((s-1) % 8)*8192)): ds.append((0, 32 + 4*(i >> 1) - LAT, r))
    if kread:
        for f, r in enumerate(kreads(((s+2) % 8)*8192)): ds.append((16 if f < 4 else 32, N - LAT if (f < 4 or (s % 4) == 3) else N - 1, r))
    if late_v is not None:
        for i, r in enumerate(late_v): ds.append((min(36 + 4*(i >> 1), N-1), N - 1, r))
    va = [(2*e + 1, N - 1, t) for e, t in items]
    for i, t in enumerate(extra_v): va.append((4*i + 1, N - 1, t))
    va.sort(key=lambda x: x[0])
    maxds = opt.get('maxds', 1)
    for g in range(N):
        nds = 0
        while cap[g] > 0:
            rd = [x for x in ds if x[0] <= g]
            rv = [x for x in va if x[0] <= g]
            pick = None
            if rd:
                rd.sort(key=lambda x: x[1])
                urgent = rd[0][1] <= g + 2*sum(1 for x in rd if x[1] <= rd[0][1] + 4)
                if nds < maxds or urgent or not rv: pick = ('d', rd[0])
            if pick is None and rv: pick = ('v', rv[0])
            if pick is None: break
            if pick[0] == 'd':
                ds.remove(pick[1]); gaps[g].insert(nds, pick[1][2]); nds += 1
            else:
                va.remove(pick[1]); gaps[g].append(pick[1][2])
            cap[g] -= 1
    gaps[N-1] = [x[2] for x in ds] + gaps[N-1] + [x[2] for x in va]
    if opt.get('verbose'): print('slot', s, 'overflow', len(ds), len(va), 'free', sum(cap))
    sc.run(mf, [pre[g] + gaps[g] for g in range(N)], nextmf=(qk_mfmas(S_[par])[0] if kread else None))

def packed(sc, mf, ds_at, exps, items, extra=None):
    N = len(mf)
    gaps = [[] for _ in range(N)]
    for g, r in ds_at: gaps[g].append(r)
    q = list(items); ne = len(exps)
    e = 0
    for g in range(N):
        k = 0
        while q and q[0][0] < e and k < 2:
            gaps[g].append(q.pop(0)[1]); k += 1
        if e < ne: gaps[g].append(exps[e]); e += 1
    assert e == ne
    if q: gaps[N-1] += ['s_nop 0'] + [x[1] for x in q]
    if extra:
        for g, x in extra: gaps[g].append(x)
    sc.run(mf, gaps)

def epoch_dmas(E, opt, mode='full'):
    p = E & 1
    r = []
    for isV in (0, 1):
        for grp in (0, 1):
            st, ins = dma_group(isV, grp, f's{30+2*isV+p}', f's{34+2*isV+grp}')
            for j, x in enumerate(ins):
                sal = [st] if j == 0 else []
                r.append([sal, x])
    return r

def stamp(a, opt, idx):
    if opt.get('stamps'):
        a.e(f's_memtime s[{80+2*idx}:{81+2*idx}]')

def gen_attn(a, opt=None):
    opt = dict(opt or {})
    opt.setdefault('XQ', [0, 2]); opt.setdefault('kpos', [33, 35, 37, 39, 41, 43, 45, 47])
    opt.setdefault('dpos', [5, 15, 25, 35, 45, 55, 61, 51]); opt.setdefault('dcost', 2); opt.setdefault('dsplit', [6, 5, 5, 0])
    XQ = opt['XQ']
    assert opt['dsplit'][3] == 0 and opt['dpos'][:max(opt['dsplit'])] == sorted(opt['dpos'][:max(opt['dsplit'])])
    NT['kv'] = ' nt' if opt.get('ntkv', 1) else ''; NT['wq'] = ' nt' if opt.get('ntwq', 1) else ''
    L = 'attn_kernel'
    kernel_head(a, L)
    a.e('s_cmp_ge_u32 s2, 256', f's_cbranch_scc1 {L}_end')
    tl_start(a)
    stamp(a, opt, 0)
    if opt.get('stamps'): a.e('s_memrealtime s[92:93]')
    a.e('s_load_dwordx4 s[4:7], s[0:1], 8', 's_load_dwordx2 s[40:41], s[0:1], 24', 's_load_dwordx2 s[42:43], s[0:1], 104')
    fuse = opt.get('fuse', 1)
    if fuse:
        a.e('s_load_dwordx2 s[80:81], s[0:1], 0', 's_load_dwordx2 s[82:83], s[0:1], 88')
        if TL['on']: a.e(f'v_mov_b32 {V(gf.DIAG)}, 0'); gf.mark(a, 0)
    a.e('s_load_dwordx2 s[64:65], s[0:1], 32', 's_load_dwordx2 s[68:69], s[0:1], 48', 's_load_dwordx2 s[72:73], s[0:1], 56', 's_load_dwordx2 s[76:77], s[0:1], 64')
    a.e('v_lshrrev_b32 v1, 6, v0', 'v_and_b32 v2, 63, v0', 'v_readfirstlane_b32 s28, v1')
    if opt.get('map', 8) == 4:
        a.e('s_and_b32 s44, s2, 7', 's_lshl_b32 s44, s44, 2', 's_lshr_b32 s45, s2, 3', 's_and_b32 s46, s45, 3', 's_add_u32 s44, s44, s46')
        a.e('s_lshr_b32 s45, s45, 2')
    else:
        a.e('s_bfe_u32 s44, s2, 0x20001', 's_lshl_b32 s44, s44, 3', 's_bfe_u32 s46, s2, 0x30003', 's_add_u32 s44, s44, s46')
        a.e('s_and_b32 s45, s2, 1', 's_lshl_b32 s45, s45, 2', 's_lshr_b32 s46, s2, 6', 's_add_u32 s45, s45, s46')
    a.e('s_lshl_b32 s45, s45, 2', 's_add_u32 s45, s45, s28')
    C0, S0q, C1, S1q = 144, 148, 152, 160
    WA = 164; DW = 168; HV = 169; CSA = 170; TM = 8; RING = 176
    a.e('v_and_b32 v3, 15, v2', 'v_lshrrev_b32 v4, 4, v2')
    a.e('v_lshlrev_b32 v5, 2, v4', 'v_xor_b32 v5, v5, v3', 'v_lshlrev_b32 v5, 4, v5', f'v_lshl_add_u32 {V(DW)}, v4, 13, v5')
    a.e(f'v_lshlrev_b32 {V(HV)}, 4, v2')
    a.e('s_lshl_b32 s48, s28, 13', 's_lshl_b32 s49, s28, 10')
    a.e('s_waitcnt lgkmcnt(0)')
    srd(a, 24, 42, 43, 4096, add=WS_MODQ)
    a.e('s_add_u32 m0, s49, 147456')
    a.e('s_lshl_b32 s46, s44, 8'); srd(a, 16, 40, 41, 0, add='s46'); a.e('s_sub_u32 s18, 4194304, s46')
    vm = []
    def vmwait(tags, extra=''):
        last = max([i for i, t in enumerate(vm) if t in tags], default=-1)
        if last < 0: return [f's_waitcnt{extra}'] if extra else []
        n = len(vm) - 1 - last
        del vm[:last+1]
        return [f's_waitcnt vmcnt({n}){extra}']
    a.e(f'buffer_load_dwordx4 {V(HV)}, s[24:27], s49 offen lds'); vm.append(('w', 0))
    a.e('s_lshl_b32 s46, s45, 16', f's_add_u32 s46, s46, {WS_H}'); srd(a, 20, 42, 43, 65536, add='s46')
    def wq(s0, n):
        r = []
        for i in range(2*n):
            sal = []
            if i == 0: sal += [f's_mul_i32 s57, s28, {8*n*8192}', f's_mul_i32 s58, s28, {8*n*256}']
            if i % 4 == 0: sal.append(f's_add_u32 m0, s58, {16384 + s0*8192 + 4096*(i//4)}')
            sal.append(f's_add_u32 s50, s57, {s0*32*8192 + 32768*i - 1024*(i & 3)}')
            r.append([sal, f'buffer_load_dwordx4 {V(DW)}, s[16:19], s50 offen offset:{1024*(i&3)}{NT["wq"]} lds', ('w', s0)])
        return r
    HR = lambda s: RING + 16*(s % 5)
    def hl(s):
        return [[[f's_mov_b32 s51, {qb*16384 + (s & ~3)*1024}'], f'buffer_load_dwordx4 {V(HR(s)+4*qb,4)}, {V(HV)}, s[20:23], s51 offen offset:{1024*(s & 3)}', ('h', s)] for qb in range(4)]
    def emit_list(lst):
        for sal, ins, tag in lst:
            a.e(sal, ins); vm.append(tag)
    up3 = opt.get('up3', 0)
    emit_list(wq(0, 1) + hl(0) + wq(1, 1) + hl(1) + wq(2, 2) + hl(2) + (hl(3) if up3 else []))
    a.e('s_lshl_b32 s46, s44, 19'); srd(a, 8, 4, 5, 524288, add='s46'); srd(a, 12, 6, 7, 524288, add='s46')
    for j in range(4):
        a.e(f'v_add_u32 v6, {4*j}, v4', 'v_xor_b32 v6, v6, v3', 'v_lshlrev_b32 v6, 4, v6', f'v_lshl_add_u32 {V(DK+j)}, v4, 8, v6')
    a.e('v_and_b32 v1, 3, v2', 'v_bfe_u32 v6, v2, 2, 2', 'v_lshl_add_u32 v7, v4, 3, v6', 'v_lshlrev_b32 v7, 8, v7', 'v_add_u32 v7, 0x4000, v7', 'v_lshlrev_b32 v6, 2, v6')
    for tp in range(4):
        a.e(f'v_add_u32 v5, {4*tp}, v1', 'v_xor_b32 v5, v5, v6', f'v_lshl_add_u32 {V(WA+tp)}, v5, 4, v7')
    a.e(f'v_lshlrev_b32 v5, 5, v4', f'v_add_u32 {V(CSA)}, 147456, v5')
    for p in range(2):
        a.e(f's_add_u32 s53, s28, {6+4*p}', 's_and_b32 s53, s53, 7', f's_lshl_b32 s{30+p}, s53, 13')
        a.e(f's_add_u32 s53, s28, {3+4*p}', 's_and_b32 s53, s53, 7', 's_lshl_b32 s53, s53, 13', f's_add_u32 s{32+p}, s53, 65536')
    a.e(f's_add_u32 s34, s48, {6*8192}', 's_add_u32 s35, s34, 4096', f's_add_u32 s36, s48, {3*8192}', 's_add_u32 s37, s36, 4096')
    a.e('s_mov_b32 s39, 0')
    for i, size in enumerate((4194304, 1835008, 1835008, 1835008)): a.e(f's_mov_b32 s{66+4*i}, {size}', f's_mov_b32 s{67+4*i}, 0x20000')
    sc = Sched(a)
    QA = lambda qb, j: 16 + 32*qb + 4*j
    AR = lambda n: AK + 4*(n % 16)
    def a_reads(n):
        s_, j = divmod(n, 8)
        return [f'ds_read_b64_tr_b16 {A(AR(n)+2*v,2)}, {V(WA+(j>>1))} offset:{(s_ % 4)*8192+v*1024+(j&1)*8}' for v in range(2)]
    def cs_reads(s_, h):
        return [f'ds_read_b128 {V((C0, C1)[h],4)}, {V(CSA)} offset:{128*s_+16*h}', f'ds_read_b128 {V((S0q, S1q)[h],4)}, {V(CSA)} offset:{2048+128*s_+16*h}']
    def xform(s_, h):
        r = []; k = 0
        c, sh = (C0, C1)[h], (S0q, S1q)[h]
        for qb in range(4):
            for d in range(2):
                reg = HR(s_) + 4*qb + 2*h + d; t = TM + 2*(k % 4); k += 1
                r.append(f'v_fma_mix_f32 {V(t)}, {V(reg)}, {V(c+2*d)}, {V(sh+2*d)} op_sel_hi:[1,0,0]')
                r.append(f'v_fma_mix_f32 {V(t+1)}, {V(reg)}, {V(c+2*d+1)}, {V(sh+2*d+1)} op_sel:[1,0,0] op_sel_hi:[1,0,0]')
                if opt.get('fakefma'): r[-2:] = [x.replace('v_fma_mix_f32', 'v_fma_f32').split(' op_sel')[0] for x in r[-2:]]
                r.append(f'v_cvt_pk_bf16_f32 {V(reg)}, {V(t)}, {V(t+1)}')
        if opt.get('noxf'): r = ['s_nop 0' for x in r]
        return r
    D = opt.get('qdist', 6)
    a.e(vmwait({('w', 0)}), 's_barrier')
    stamp(a, opt, 1)
    for h in range(2):
        for r in cs_reads(0, h): sc.emit_filler(r)
    for n in range(D):
        for r in a_reads(n): sc.emit_filler(r)
    a.e(vmwait({('h', 0)}))
    sc.emit_filler(f'WAITDS {V(C0,4)}, {V(S0q,4)}'); a.e(xform(0, 0))
    for r in cs_reads(1, 0): sc.emit_filler(r)
    sc.emit_filler(f'WAITDS {V(C1,4)}, {V(S1q,4)}'); a.e(xform(0, 1), 's_nop 1')
    def kdma(step_expr_setup, isV, base_s, n, m0base):
        pass
    k01 = [[[f's_lshl_b32 s52, s28, 12', 's_mov_b32 m0, s52'] if j == 0 else [], f'buffer_load_dwordx4 {V(DK+j)}, s[8:11], s52 offen offset:{1024*j}{NT["kv"]} lds', ('k', 0)] for j in range(4)]
    k25 = []
    for grp in range(2):
        st, ins = dma_group(0, 0, f's{54+grp}', f's{54+grp}')
        k25 += [[[f's_add_u32 s{54+grp}, s48, {2*8192 + 4096*grp}', st] if j == 0 else [], x, ('k', 2)] for j, x in enumerate(ins)]
    v02 = []
    for i in range(6):
        sal = []
        if i == 0: sal = ['s_mul_i32 s54, s28, 6144', 's_add_u32 m0, s54, 65536']
        if i == 4: sal = ['s_add_u32 s54, s54, 4096', 's_add_u32 m0, s54, 65536']
        v02.append([sal, f'buffer_load_dwordx4 {V(DV+(i&1))}, s[12:15], s54 offen offset:{1024*(i&3)}{NT["kv"]} lds', ('v', 0)])
    w47, w8b, wcf = wq(4, 4), wq(8, 4), wq(12, 4)
    plan = {0: hl(3) + w47[:4], 1: w47[4:] + hl(4), 2: hl(5) + hl(6), 3: hl(7) + k01, 4: hl(8) + w8b[:4], 5: w8b[4:] + hl(9), 6: hl(10) + wcf[:4],
            7: hl(11) + wcf[4:], 8: hl(12) + k25[:4], 9: hl(13) + k25[4:], 10: hl(14), 11: hl(15), 12: [], 13: [], 14: [], 15: v02}
    if up3: plan[0] = hl(4) + w47[:4]; plan[1] = w47[4:] + hl(5); plan[2] = hl(6)
    if opt.get('novm'):
        for k_ in plan: plan[k_] = [[x[0], 's_nop 0', x[2]] for x in plan[k_]]
    groups = [1, 2, 4, 8, 12]
    late = []
    for j in range(2):
        late += [f'v_add_u32 v6, {4*j}, v4', 'v_lshlrev_b32 v6, 1, v6', 'v_xor_b32 v6, v6, v3', 'v_lshlrev_b32 v6, 4, v6', f'v_lshl_add_u32 {V(DV+j)}, v4, 8, v6']
    late += ['v_xor_b32 v5, v3, v4', 'v_lshlrev_b32 v5, 4, v5', f'v_lshl_add_u32 {V(KA)}, v3, 8, v5'] + [f'v_xor_b32 {V(KA+t)}, {t*64}, {V(KA)}' for t in range(1, 4)]
    late2 = ['v_lshrrev_b32 v6, 2, v2', 'v_lshlrev_b32 v7, 8, v6', 'v_and_b32 v6, 7, v6', 'v_lshl_add_u32 v7, v1, 3, v7', 'v_add_u32 v7, 0x10000, v7']
    for db in range(8): late2 += [f'v_xor_b32 v5, {db}, v6', f'v_lshl_add_u32 {V(VA+db)}, v5, 5, v7']
    for s_ in range(16):
        mf = []; gaps = [[] for _ in range(32)]; pre = [[] for _ in range(32)]
        for j in range(8):
            for qb in range(4):
                c = '0' if s_ == 0 else V(QA(qb, j), 4)
                mf.append(f'{MF} {V(QA(qb,j),4)}, {A(AR(8*s_+j),4)}, {V(HR(s_)+4*qb,4)}, {c}')
        vq = list(plan[s_])
        valu = []
        if s_ < 15:
            valu = xform(s_+1, 0) + xform(s_+1, 1)
        else:
            valu = late + late2
        vi = 0
        for g in range(32):
            j, ph = divmod(g, 4)
            n = 8*s_ + j + D
            if ph < 2:
                if n < 128:
                    if ph == 0 and n % 8 == 0:
                        if n // 8 in groups:
                            gaps[g-1 if g else 0] += vmwait({('w', n // 8)}) + ['s_barrier']
                        if (n // 8) % 4 == 0:
                            gaps[g-1] += [f'v_add_u32 {V(WA+tp)}, 0x8000, {V(WA+tp)}' for tp in range(4)]
                    gaps[g].append(a_reads(n)[ph])
                elif s_ == 15 and g >= 16:
                    gaps[g].append(kreads(0)[(g-16)//4*2 + ph])
            elif ph == 2:
                if s_ < 15 and g in (2, 6): gaps[g].append(cs_reads(s_+1, 1)[g // 4])
                elif s_ < 14 and g in (18, 22): gaps[g].append(cs_reads(s_+2, 0)[(g-18) // 4])
            elif vq and not (s_ == 15 and g < 8):
                sal, ins, tag = vq.pop(0)
                pre[g-1] += sal
                gaps[g].append(ins); vm.append(tag)
            if s_ < 15:
                if g == 0: gaps[g] += vmwait({('h', s_+1)}) + [f'WAITDS {V(C0,4)}, {V(S0q,4)}']
                if vi == 24 and g >= 15: gaps[g].append(f'WAITDS {V(C1,4)}, {V(S1q,4)}')
                lim = 24 if g < 15 else 48
                k = (1 if ph == 3 else 2) if g < 30 else 0
                while k and vi < lim:
                    gaps[g].append(valu[vi]); vi += 1; k -= 1
            else:
                k = 2 if ph != 3 else 1
                while k and vi < len(valu):
                    gaps[g].append(valu[vi]); vi += 1; k -= 1
        assert not vq and vi == len(valu), (s_, vi, len(valu))
        sc.run(mf, [pre[g] + gaps[g] for g in range(32)])
    stamp(a, opt, 2)
    for i in range(4): a.e(f'v_mov_b32 {V(ONES+i)}, 0x3f803f80')
    for i in range(8): a.e(f'v_mov_b32 {V(LV+i)}, 0')
    a.e('s_lshl_b32 s46, s45, 19', 's_lshl_b32 s47, s44, 14', 's_add_u32 s46, s46, s47', f's_add_u32 s46, s46, {WS_O}'); srd(a, 24, 42, 43, 16384, add='s46')
    def cvtq(qb): return [f'v_cvt_pk_bf16_f32 {V(Q+16*qb+2*j+h)}, {V(QA(qb,j)+2*h)}, {V(QA(qb,j)+2*h+1)}' for j in range(8) for h in range(2)]
    a.e(cvtq(0), 's_nop 1')
    mf = qk_mfmas(S_[0], czero=True, order='qkt')
    gaps = [[] for _ in mf]
    for qb in range(1, 4):
        cv = cvtq(qb)
        for i, x in enumerate(cv): gaps[8*(qb-1) + min(i//2, 6) if i < 14 else 8*(qb-1)+6].append(x)
        gaps[8*(qb-1)+7].append('s_nop 0')
    sc.run(mf, gaps)
    a.e('s_nop 3')
    for r in kreads(8192): sc.emit_filler(r)
    S0 = S_[0]
    for qb in range(4):
        b = S0 + 8*qb
        a.e(f'v_max3_f32 {V(8+qb)}, {V(b)}, {V(b+1)}, {V(b+2)}', f'v_max3_f32 {V(12+qb)}, {V(b+3)}, {V(b+4)}, {V(b+5)}')
    for qb in range(4):
        b = S0 + 8*qb
        a.e(f'v_max3_f32 {V(8+qb)}, {V(8+qb)}, {V(b+6)}, {V(b+7)}')
    for qb in range(4): a.e(f'v_max_f32 {V(8+qb)}, {V(8+qb)}, {V(12+qb)}')
    for perm in ('32', '16'):
        for qb in range(4): a.e(f'v_mov_b32 {V(12+qb)}, {V(8+qb)}')
        a.e('s_nop 0')
        for qb in range(4): a.e(f'v_permlane{perm}_swap_b32 {V(8+qb)}, {V(12+qb)}')
        a.e('s_nop 0')
        for qb in range(4): a.e(f'v_max_f32 {V(8+qb)}, {V(8+qb)}, {V(12+qb)}')
    for qb in range(4): a.e(f'v_sub_f32 {V(CI+4*qb)}, {f32hex(-opt.get("delta", DELTA))}, {V(8+qb)}')
    for qb in range(4):
        for i in range(1, 4): a.e(f'v_mov_b32 {V(CI+4*qb+i)}, {V(CI+4*qb)}')
    for e in range(32): a.e(f'v_add_f32 {V(S0+e)}, {V(S0+e)}, {V(CI+4*(e>>3))}')
    for db in range(8): a.e(f'v_subrev_u32 {V(VT+db)}, 0x10000, {V(VA+db)}')
    if opt.get('pf', 1):
        a.e('s_lshr_b32 s53, s2, 3', 's_lshl_b32 s53, s53, 2', 's_add_u32 s53, s53, s28', 's_bfe_u32 s56, s2, 0x20001')
        a.e('s_lshl_b32 s54, s53, 13', 's_lshl_b32 s55, s56, 20', 's_add_u32 s54, s54, s55', 'v_lshlrev_b32 v5, 7, v2', f'v_add_u32 {V(PF)}, s54, v5')
        a.e('v_and_b32 v5, 31, v2', 'v_min_u32 v5, 27, v5', 'v_mul_u32_u24 v6, 37, v5', 'v_lshrrev_b32 v6, 8, v6', 'v_mul_u32_u24 v7, 7, v6', 'v_sub_u32 v5, v5, v7',
            'v_mul_u32_u24 v6, 3584, v6', 'v_lshl_add_u32 v6, v5, 7, v6', 'v_lshrrev_b32 v5, 5, v2', 'v_lshl_add_u32 v6, v5, 6, v6',
            's_mul_i32 s54, s53, 14336', 's_mul_i32 s55, s56, 896', 's_add_u32 s54, s54, s55', f'v_add_u32 {V(PF+1)}, s54, v6')
        a.e('v_min_u32 v5, 55, v2', 'v_lshrrev_b32 v6, 2, v5', 'v_and_b32 v5, 3, v5', 'v_lshlrev_b32 v6, 10, v6', 'v_lshl_add_u32 v6, v5, 7, v6',
            's_mul_i32 s54, s53, 14336', 's_and_b32 s55, s2, 1', 's_lshl_b32 s55, s55, 9', 's_add_u32 s54, s54, s55', f'v_add_u32 {V(PF+2)}, s54, v6')
    if fuse: a.e(gf.flag_setup())
    if opt.get('touch', 0):
        srd(a, 20, 42, 43, 24 << 20, add=WS_O)
        a.e('s_lshl_b32 s29, s2, 2', 's_add_u32 s29, s29, s28', 's_lshl_b32 s29, s29, 12', f'v_lshlrev_b32 {V(PF+4)}, 6, v2', f'v_add_u32 {V(PF+4)}, s29, {V(PF+4)}')
    a.e('s_waitcnt vmcnt(0) lgkmcnt(0)', 's_barrier'); sc.pend = []
    stamp(a, opt, 3)
    def adv():
        return ['s_add_u32 s34, s34, 32768', 's_add_u32 s35, s35, 32768', 's_add_u32 s36, s36, 32768', 's_add_u32 s37, s37, 32768']
    def epoch(E, kind):
        d = epoch_dmas(E, opt)
        if kind == 'e14':
            d = d[8:]
        if kind == 'e15': d = []
        ov, os_ = gf.o_setup() if fuse else ([], [])
        oad = [[x[0], x[1]] for st in range(4) for x in gf.o_dma_a(st)] if fuse else []
        npf = 0
        if kind == 'e14' and opt.get('pf', 1):
            for srd_, vo, off in ((64, PF, 0), (64, PF, 64), (68, PF+1, 0), (72, PF+1, 0), (76, PF+2, 0), (76, PF+2, 64)):
                if off and not opt.get('pf64', 1): continue
                d.append([[], f'buffer_load_dword {V(PF+3)}, {V(vo)}, s[{srd_}:{srd_+3}], 0 offen offset:{off}'])
                npf += 1
        split = list(opt['dsplit'])
        tch = []
        if opt.get('touch', 0) and E == 2:
            d.append([[], f'buffer_load_dword {V(PF+3)}, {V(PF+4)}, s[20:23], 0 offen']); split[2] += 1; npf = 1
            tch = [f'v_add_u32 {V(PF+4)}, 0x400000, {V(PF+4)}']
        for sl in range(4):
            s = 4*E + sl
            n = split[sl]
            dm = d[:n]; d = d[n:]
            if kind == 'e14' and sl == 0:
                a.e('s_cmp_eq_u32 s28, 3', f's_cbranch_scc1 {L}_e14d', 's_cmp_eq_u32 s28, 2', f's_cbranch_scc1 {L}_e14v')
                for sal, ins in epoch_dmas(E, opt)[:8]: a.e(sal, 's_nop 0' if sal else [], ins)
                a.e(f's_branch {L}_e14d', f'{L}_e14v:', f's_mov_b32 s54, {63*8192}', f's_mov_b32 s55, {63*8192+4096}', 's_mov_b32 s56, 0')
                for grp in range(2):
                    st, ins = dma_group(1, grp, 's56', f's{54+grp}'); a.e(st, 's_nop 0', ins)
                a.e(f'{L}_e14d:')
            if s == 0:
                exps, items = sm_items(S_[0], P_[0], XQ)
                mf = qk_mfmas(S_[1])
                kr = kreads(2*8192)
                ds_at = [(17+2*i, kr[i]) for i in range(4)]
                extra = []
                for n_, (sal, ins) in enumerate(dm):
                    extra += [(2+2*n_, x) for x in sal] + [(3+2*n_, ins)]
                packed(sc, mf, ds_at, exps, items, extra)
                for r in kr[4:]: sc.emit_filler(r)
            elif s == 59:
                normal_slot(sc, opt, s, dm, salu=adv(), extra_v=ov[:12])
            elif s == 60:
                a.e(os_)
                normal_slot(sc, opt, s, dm, extra_v=ov[12:])
            elif s == 61:
                normal_slot(sc, opt, s, oad[:6])
            elif s == 62:
                normal_slot(sc, opt, s, oad[6:10], kread=False, late_v=vreads(VA, (62 % 8)*8192))
            elif s == 63:
                exps, items = sm_items(S_[1], P_[1], XQ)
                mf = pv_mfmas(P_[0], XQ)
                vr = vreads(VT, 0)
                ds_at = [(min(4*(i >> 1) + 4 + (i & 1), len(mf)-1), vr[i]) for i in range(16)]
                extra = []
                for n_, (sal, ins) in enumerate(oad[10:]):
                    extra += [(2+5*n_, x) for x in sal] + [(3+5*n_, ins)]
                packed(sc, mf, ds_at, exps, items, extra)
            else:
                normal_slot(sc, opt, s, dm, first_pv=(s == 1), salu=(adv() + (['s_add_u32 s38, s38, 1', 's_cmp_lt_u32 s38, 6'] if E == 3 else []) if sl == 3 else ()))
        assert not d
        a.e(tch)
        if kind != 'e15':
            if not opt.get('nobar'): a.e(f's_waitcnt vmcnt({npf}) lgkmcnt(0)', 's_barrier')
            else: a.e('s_waitcnt lgkmcnt(0)')
            sc.pend = []
    epoch(0, 'n'); epoch(1, 'n')
    a.e('s_mov_b32 s38, 0', '.p2align 6', f'{L}_loop:')
    epoch(2, 'n'); epoch(3, 'n')
    a.e(f's_cbranch_scc1 {L}_loop')
    epoch(14, 'e14'); epoch(15, 'e15')
    a.e('s_nop 1')
    mf = pv_mfmas(P_[1], XQ)
    gaps = [[] for _ in mf]
    sc.run(mf, gaps)
    stamp(a, opt, 4)
    a.e('v_lshlrev_b32 v5, 4, v4')
    for qb in range(4):
        if qb in XQ: continue
        l = LV + 2*qb
        a.e(f'v_add_f32 {V(l)}, {V(l)}, {V(l+1)}'); xlane_sum(a, V(l), 'v6')
        for i in range(4): a.e(f'ds_bpermute_b32 {V(LM+4*qb+i)}, v5, {V(l)} offset:{4*i}')
    a.e('s_nop 7', 's_waitcnt lgkmcnt(0)')
    a.e(f'{L}_norm:')
    a.e(f'v_add_f32 v8, {V(LM)}, {V(LM+1)}')
    for i in range(2, 16): a.e(f'v_add_f32 v8, v8, {V(LM+i)}')
    for i in range(16): a.e(f'v_rcp_f32 {V(LM+i)}, {V(LM+i)}')
    a.e('v_lshlrev_b32 v6, 2, v4', 'v_xor_b32 v6, v6, v2', 'v_lshlrev_b32 v6, 4, v6')
    W = 96
    T = 16
    cnt = 0
    for j in range(4):
        for qb in range(4):
            b = T + 8*(cnt % 8); pk = 80 + 4*(cnt % 4); cnt += 1
            for u in range(2):
                for i in range(4): a.e(f'v_accvgpr_read_b32 {V(b+4*u+i)}, {A(AO+16*(2*j+u)+4*qb+i)}')
            for i in range(4):
                w = W + 4*qb + i
                a.e(f'v_maximum3_f32 {V(w)}, abs({V(b+i)}), abs({V(b+4+i)}), {"0" if j == 0 else V(w)}')
            for u in range(2):
                for i in range(4): a.e(f'v_mul_f32 {V(b+4*u+i)}, {V(b+4*u+i)}, {V(LM+4*qb+i)}')
            for h in range(4): a.e(f'v_cvt_pk_bf16_f32 {V(pk+h)}, {V(b+2*h)}, {V(b+2*h+1)}')
            off = (j*4+qb)*1024
            a.e(f's_mov_b32 s54, {off & ~4095}', f'buffer_store_dwordx4 {V(pk,4)}, v6, s[24:27], s54 offen offset:{off & 4095}{opt.get("wt_a", " sc1")}')
    a.e(f'v_minimum3_f32 v9, {V(W)}, {V(W+1)}, {V(W+15)}', f'v_maximum3_f32 v10, {V(W)}, {V(W+1)}, {V(W+15)}')
    for i in range(2, 15, 2): a.e(f'v_minimum3_f32 v9, v9, {V(W+i)}, {V(W+i+1)}', f'v_maximum3_f32 v10, v10, {V(W+i)}, {V(W+i+1)}')
    a.e(f's_mov_b32 s54, {f32hex(2.0**100)}', f's_mov_b32 s55, {f32hex(2.0**-120)}', f's_mov_b32 s60, 0x7f000000')
    a.e('v_cmp_nle_f32 s[56:57], v8, s54', 'v_cmp_nge_f32 s[58:59], v9, s55', 'v_cmp_nle_f32 s[62:63], v10, s60', 's_nop 1',
        's_or_b64 s[56:57], s[56:57], s[58:59]', 's_or_b64 s[56:57], s[56:57], s[62:63]', 's_cmp_eq_u64 s[56:57], 0')
    if opt.get('force_fb'): a.e('s_cmp_eq_u32 s2, 1000')
    a.e(f's_cbranch_scc1 {L}_fin', 's_cmp_eq_u32 s39, 1', f's_cbranch_scc1 {L}_fin')
    a.e('s_mov_b32 s39, 1', 's_mov_b32 s48, 40960', 's_cmp_eq_u32 s28, 1', 's_cselect_b32 s48, 65536, s48', 's_cmp_eq_u32 s28, 2', 's_cselect_b32 s48, 139264, s48',
        's_cmp_eq_u32 s28, 3', 's_cselect_b32 s48, 147456, s48', 's_waitcnt vmcnt(0)')
    MR = CI; LR = CI + 4; AL = CI + 8; AR_ = 96
    for i in range(128): a.e(f'v_accvgpr_write_b32 {A(i)}, 0')
    for qb in range(4): a.e(f'v_mov_b32 {V(MR+qb)}, 0xff7fffff', f'v_mov_b32 {V(LR+qb)}, 0')
    for db in range(8): a.e(f'v_add_u32 {V(VT+db)}, s48, {V(VT+db)}')
    a.e('v_lshlrev_b32 v7, 8, v3', 'v_lshl_add_u32 v7, v4, 4, v7')
    a.e('s_mov_b32 s54, 0', f'{L}_fb:', 's_add_u32 s55, s54, 4096')
    for f in range(8): a.e(f'buffer_load_dwordx4 {A(AK+4*f,4)}, v7, s[8:11], s{54+(f>>2)} offen offset:{64*(f&3)}')
    for grp in range(2):
        st, ins = dma_group(1, grp, 's48', f's{54+grp}'); a.e(st, 's_nop 0', ins)
    a.e('s_waitcnt vmcnt(0)')
    a.e(vreads(VT, 0))
    a.e(qk_mfmas(S0, czero=True), 's_nop 7', 's_nop 3')
    for qb in range(4):
        b = S0 + 8*qb; m = V(MR+qb); al = V(AL+qb)
        a.e(f'v_max3_f32 v8, {V(b)}, {V(b+1)}, {V(b+2)}', f'v_max3_f32 v8, v8, {V(b+3)}, {V(b+4)}', f'v_max3_f32 v8, v8, {V(b+5)}, {V(b+6)}', f'v_max3_f32 v8, v8, {V(b+7)}, {m}')
        for perm in ('32', '16'):
            a.e('v_mov_b32 v9, v8', 's_nop 1', f'v_permlane{perm}_swap_b32 v8, v9', 's_nop 1', 'v_max_f32 v8, v8, v9')
        a.e(f'v_sub_f32 {al}, {m}, v8', f'v_exp_f32 {al}, {al}', f'v_mov_b32 {m}, v8')
        for e in range(8): a.e(f'v_sub_f32 {V(b+e)}, {V(b+e)}, v8')
        for e in range(8): a.e(f'v_exp_f32 {V(b+e)}, {V(b+e)}')
        a.e(f'v_mul_f32 {V(LR+qb)}, {V(LR+qb)}, {al}')
        for e in range(8): a.e(f'v_add_f32 {V(LR+qb)}, {V(LR+qb)}, {V(b+e)}')
        for h in range(4): a.e(f'v_cvt_pk_bf16_f32 {V(P_[0]+4*qb+h)}, {V(b+2*h)}, {V(b+2*h+1)}')
        for i in range(4): a.e(f'ds_bpermute_b32 {V(AR_+4*qb+i)}, v5, {al} offset:{4*i}')
    a.e('s_waitcnt lgkmcnt(0)')
    for db in range(8):
        for qb in range(4):
            for i in range(4):
                o = AO + 16*db + 4*qb + i
                a.e(f'v_accvgpr_read_b32 v8, {A(o)}', f'v_mul_f32 v8, v8, {V(AR_+4*qb+i)}', f'v_accvgpr_write_b32 {A(o)}, v8')
    a.e('s_nop 1')
    a.e(pv_mfmas(P_[0], []), 's_nop 7', 's_nop 3')
    a.e('s_add_u32 s54, s54, 8192', 's_cmp_lt_u32 s54, 524288', f's_cbranch_scc1 {L}_fb')
    for qb in range(4):
        xlane_sum(a, V(LR+qb), 'v6')
        for i in range(4): a.e(f'ds_bpermute_b32 {V(LM+4*qb+i)}, v5, {V(LR+qb)} offset:{4*i}')
    a.e('s_waitcnt lgkmcnt(0)', f's_branch {L}_norm')
    a.e(f'{L}_fin:')
    if fuse: gf.fused_post(a, L, opt, Sched)
    if opt.get('stamps'):
        a.e('s_waitcnt vmcnt(0)')
        stamp(a, opt, 5); a.e('s_memrealtime s[98:99]', 's_waitcnt lgkmcnt(0)')
        srd(a, 20, 42, 43, 1 << 20, add=(58 << 20))
        a.e('s_lshl_b32 s54, s2, 2', 's_add_u32 s54, s54, s28', 's_lshl_b32 s54, s54, 5', 'v_mov_b32 v7, s54')
        for i in range(1, 6): a.e(f's_sub_u32 s55, s{80+2*i}, s80', f'v_mov_b32 v{8+i}, s55')
        a.e('v_mov_b32 v8, s92', 's_sub_u32 s55, s98, s92', 'v_mov_b32 v14, s55', 'v_mov_b32 v15, s39')
        a.e('v_cmp_eq_u32 vcc, 0, v2', 's_and_saveexec_b64 s[56:57], vcc')
        a.e('buffer_store_dwordx4 v[8:11], v7, s[20:23], 0 offen', 'buffer_store_dwordx4 v[12:15], v7, s[20:23], 0 offen offset:16')
    tl_end(a); a.e(f'{L}_end:', 's_endpgm')
    return dict(label=L, grid=256, block=256, lds=163840, vgpr=512, accum=256)
```

```python
from asmlib import *
from gen_pre import *
MF = 'v_mfma_f32_16x16x32_bf16'
FLA = 141; FLB = 142; DIAG = 143
SC = ' sc1'

class VM:
    def __init__(self): self.q = []; self.seen = set()
    def add(self, tag): self.q.append(tag); self.seen.add(tag)
    def wait(self, tags, extra=''):
        last = max([i for i, t in enumerate(self.q) if t in tags], default=-1)
        if last < 0: return [f's_waitcnt{extra}'] if extra else []
        n = len(self.q) - 1 - last
        del self.q[:last+1]
        assert n < 64
        return [f's_waitcnt vmcnt({n}){extra}']
    def clear(self): self.q = []

def mark(a, i):
    if TL['on']: a.e('s_memrealtime s[98:99]', 's_waitcnt lgkmcnt(0)', f'v_writelane_b32 {V(DIAG)}, s98, {i}')

def flag_setup():
    r = ['s_and_b32 s53, s2, 0xc7', 'v_and_b32 v5, 7, v2', 'v_lshlrev_b32 v5, 3, v5', 'v_add_u32 v5, s53, v5', f'v_lshlrev_b32 {V(FLA)}, 6, v5',
         's_and_b32 s53, s2, 0xe1', 'v_and_b32 v5, 3, v2', 'v_lshlrev_b32 v5, 3, v5', 'v_bfe_u32 v6, v2, 2, 2', 'v_lshl_add_u32 v5, v6, 1, v5', 'v_add_u32 v5, s53, v5', f'v_lshlrev_b32 {V(FLB)}, 6, v5']
    return r

def signal(a, L, k, waitlist):
    a.e(waitlist, 's_barrier')
    srd(a, 60, 42, 43, 16384, add=WS_FLAG + k*16384)
    a.e('s_cmp_lg_u32 s28, 0', f's_cbranch_scc1 {L}_sg{k}', 's_lshl_b32 s53, s2, 6', 's_mov_b64 exec, 1', 'v_mov_b32 v5, s53', 'v_mov_b32 v6, 1',
        f'buffer_store_dword v6, v5, s[60:63], 0 offen{SC}', 's_mov_b64 exec, -1', f'{L}_sg{k}:')

def poll(a, L, k, grp):
    a.e('s_mov_b32 s53, 0', f'{L}_pl{k}:', f'buffer_load_dword v5, {V(grp)}, s[60:63], 0 offen{SC}', 's_add_u32 s53, s53, 1', 's_waitcnt vmcnt(0)',
        'v_cmp_eq_u32 vcc, 1, v5', 's_cmp_gt_u32 s53, 200000', f's_cbranch_scc1 {L}_pd{k}', 's_cmp_eq_u64 vcc, -1', f's_cbranch_scc0 {L}_pl{k}', f'{L}_pd{k}:')

OA = [8192, 24576, 73728, 122880]; OB = [40960, 57344, 90112, 106496]
ODA = 156
def o_setup():
    r = []
    for i in range(4):
        r += [f'v_add_u32 v5, {4*(i&1)}, v4', 'v_lshlrev_b32 v5, 1, v5', 'v_xor_b32 v5, v5, v3', 'v_lshlrev_b32 v5, 4, v5', 'v_lshl_add_u32 v5, v4, 10, v5',
              f'v_add_u32 {V(ODA+i)}, {(16*(i&1) + 8*(i>>1) - i)*1024}, v5']
    s = ['s_lshr_b32 s47, s28, 1', 's_and_b32 s49, s28, 1', 's_lshl_b32 s50, s47, 15', 's_lshl_b32 s51, s49, 12', 's_add_u32 s50, s50, s51',
         's_bfe_u32 s51, s2, 0x20001', 's_lshl_b32 s51, s51, 20', 's_add_u32 s50, s50, s51', 's_bfe_u32 s51, s2, 0x20003', 's_lshl_b32 s51, s51, 8', 's_add_u32 s50, s50, s51',
         's_add_u32 s16, s64, s50', 's_addc_u32 s17, s65, 0', 's_sub_u32 s18, 4194304, s50', 's_mov_b32 s19, 0x20000', 's_lshl_b32 s30, s28, 12']
    return r, s
def o_dma_a(st):
    return [[[f's_add_u32 m0, s30, {OA[st % 4]}', f's_mov_b32 s34, {st*65536}'] if i == 0 else [], f'buffer_load_dwordx4 {V(ODA+i)}, s[16:19], s34 offen offset:{1024*i} lds', ('oa', st)] for i in range(4)]

def phase_o(a, L, opt, Sched):
    ACC = 64; FA = [0, 32]; FB = [64, 96]; DB = 12; RA = 16; RB = 24
    vm = VM()
    a.e('s_lshr_b32 s47, s28, 1', 's_and_b32 s48, s28, 1', 's_bfe_u32 s44, s2, 0x20001', 's_and_b32 s45, s2, 1', 's_lshl_b32 s45, s45, 3', 's_lshr_b32 s46, s2, 5', 's_add_u32 s45, s45, s46', 's_bfe_u32 s46, s2, 0x20003')
    a.e(f'v_lshlrev_b32 {V(DB)}, 4, v2')
    a.e('v_lshrrev_b32 v5, 2, v2', 'v_and_b32 v6, 3, v2', 'v_lshlrev_b32 v7, 8, v5', 'v_lshl_add_u32 v7, v6, 3, v7', 'v_and_b32 v5, 7, v5', 's_lshl_b32 s49, s48, 2')
    for nb in range(4): a.e(f's_add_u32 s50, s49, {nb}', 'v_xor_b32 v8, s50, v5', f'v_lshl_add_u32 {V(RA+nb)}, v8, 5, v7', f'v_add_u32 {V(RA+4+nb)}, {OA[2]}, {V(RA+nb)}')
    a.e('v_bfe_u32 v5, v2, 2, 2', 'v_lshrrev_b32 v7, 5, v2', 'v_lshl_add_u32 v5, v7, 3, v5', 'v_lshlrev_b32 v7, 2, v6', 'v_xor_b32 v5, v5, v7', 'v_lshl_add_u32 v5, v6, 4, v5')
    a.e('v_and_b32 v7, 1, v4', 'v_lshlrev_b32 v7, 3, v7', 'v_lshl_add_u32 v5, v5, 4, v7', 's_lshl_b32 s49, s47, 13', f's_add_u32 s49, s49, {OB[0]}')
    a.e(f'v_add_u32 {V(RB)}, s49, v5', 'v_xor_b32 v5, 64, v5', f'v_add_u32 {V(RB+1)}, s49, v5', f'v_add_u32 {V(RB+2)}, {OB[2]-OB[0]}, {V(RB)}', f'v_add_u32 {V(RB+3)}, {OB[2]-OB[0]}, {V(RB+1)}')
    a.e('s_lshl_b32 s49, s45, 1', 's_add_u32 s49, s49, s47', 's_lshl_b32 s50, s49, 19', 's_lshl_b32 s51, s44, 17', 's_add_u32 s50, s50, s51',
        's_lshl_b32 s51, s48, 12', 's_add_u32 s50, s50, s51', f's_add_u32 s50, s50, {WS_O}'); srd(a, 12, 42, 43, 131072, add='s50')
    a.e('s_lshl_b32 s49, s49, 16', 's_lshl_b32 s50, s44, 21', 's_add_u32 s49, s49, s50', 's_lshl_b32 s50, s46, 12', 's_add_u32 s49, s49, s50',
        's_lshl_b32 s50, s48, 11', 's_add_u32 s49, s49, s50', f's_add_u32 s49, s49, {WS_PART}'); srd(a, 8, 42, 43, 65536, add='s49')
    r_setup(a)
    signal(a, L, 0, ['s_waitcnt vmcnt(0)']); mark(a, 1)
    poll(a, L, 0, FLA); mark(a, 2)
    def dma_b(st):
        return [[[f's_add_u32 m0, s30, {OB[st % 4]}', f's_mov_b32 s35, {st*8192}'] if i == 0 else [], f'buffer_load_dwordx4 {V(DB)}, s[12:15], s35 offen offset:{1024*i}{SC} lds', ('ob', st)] for i in range(4)]
    for st in range(4):
        for sal, ins, tag in dma_b(st): a.e(sal, ins); vm.add(tag)
    def reads(st):
        p = st & 1; sl = st % 4
        ra = [f'ds_read_b64_tr_b16 {A(FA[p]+8*x+4*tt+2*v,2)}, {V(RA+(4 if sl >= 2 else 0)+x)} offset:{OA[sl] - (OA[2] if sl >= 2 else 0)+tt*8192+v*4096}' for x in range(4) for tt in range(2) for v in range(2)]
        rb = [f'ds_read_b64_tr_b16 {A(FB[p]+8*x+4*tt+2*u,2)}, {V(RB+2*(sl >> 1)+u)} offset:{(sl & 1)*16384+tt*4096+x*1024}' for x in range(4) for tt in range(2) for u in range(2)]
        return ra[:4] + rb + ra[4:]
    sc = Sched(a, age=6)
    a.e(vm.wait({('ob', 0)}), 's_barrier')
    for r in reads(0): sc.emit_filler(r)
    rl = r_loads()
    for st in range(16):
        p = st & 1
        a.e(vm.wait({('oa', st+1), ('ob', st+1)}, ' lgkmcnt(0)'), 's_barrier' if st < 15 else []); sc.pend = []
        mf = [f'{MF} {V(ACC+16*nb+4*qb,4)}, {A(FA[p]+8*nb+4*tt,4)}, {A(FB[p]+8*qb+4*tt,4)}, {"0" if (st == 0 and tt == 0) else V(ACC+16*nb+4*qb,4)}' for nb in range(4) for qb in range(4) for tt in range(2)]
        gaps = [[] for _ in mf]; pre = [[] for _ in mf]
        rd = reads(st+1) if st < 15 else []
        d = (dma_b(st+4) + o_dma_a(st+4)) if st + 4 < 16 else rl[8*(st-12):8*(st-12)+8]
        ri = 0
        for g in range(32):
            if g % 4 == 2 and d:
                sal, ins, tag = d.pop(0)
                pre[g-1] += sal; gaps[g].append(ins); vm.add(tag)
            else:
                k = 2
                while k and ri < len(rd):
                    gaps[g].append(rd[ri]); ri += 1; k -= 1
        assert not d
        if st == 15:
            n = 0
            for qb in range(4):
                t = 32 + 4*qb
                ins = []
                for u in range(2):
                    b = ACC + 16*u + 4*qb
                    ins += [f'v_cvt_pk_bf16_f32 {V(t+2*u)}, {V(b)}, {V(b+1)}', f'v_cvt_pk_bf16_f32 {V(t+2*u+1)}, {V(b+2)}, {V(b+3)}']
                g = 20 + 3*qb
                gaps[g] += ins[:2]; gaps[g+1] += ins[2:]; pre[g+1].append(f's_mov_b32 s50, {qb*16384}')
                gaps[g+2].append(f'buffer_store_dwordx4 {V(t,4)}, {V(DB)}, s[8:11], s50 offen{SC}'); vm.add(('st', 0))
        sc.run(mf, [pre[g] + gaps[g] for g in range(32)])
    mark(a, 3)
    a.e('s_nop 1')
    for qb in range(4):
        t = 48 + 4*qb
        for u in range(2):
            b = ACC + 16*(2+u) + 4*qb
            a.e(f'v_cvt_pk_bf16_f32 {V(t+2*u)}, {V(b)}, {V(b+1)}', f'v_cvt_pk_bf16_f32 {V(t+2*u+1)}, {V(b+2)}, {V(b+3)}')
        a.e(f's_mov_b32 s50, {qb*16384}', f'buffer_store_dwordx4 {V(t,4)}, {V(DB)}, s[8:11], s50 offen offset:1024{SC}'); vm.add(('st', 0))
    return vm

RX = 144; RGA = 160; RCB = 176; RSB = 192; RO = 152
RSTAT = 159744
def r_setup(a):
    a.e('s_lshl_b32 s29, s45, 4', 's_lshl_b32 s50, s44, 2', 's_add_u32 s29, s29, s50', 's_add_u32 s29, s29, s46')
    a.e('v_and_b32 v5, 7, v2', 'v_bfe_u32 v6, v2, 3, 2', 'v_lshrrev_b32 v7, 5, v2', 's_lshl_b32 s50, s28, 2', 'v_add_u32 v7, s50, v7')
    a.e(f'v_lshlrev_b32 {V(RO)}, 10, v7', f'v_lshl_add_u32 {V(RO)}, v5, 4, {V(RO)}', f'v_lshl_add_u32 {V(RO)}, v6, 8, {V(RO)}')
    a.e(f'v_lshlrev_b32 {V(RO+1)}, 10, v5', f'v_lshl_add_u32 {V(RO+1)}, v7, 6, {V(RO+1)}', f'v_lshl_add_u32 {V(RO+1)}, v6, 3, {V(RO+1)}')
    a.e(f'v_lshlrev_b32 {V(RO+2)}, 7, v7', f'v_lshl_add_u32 {V(RO+2)}, v6, 4, {V(RO+2)}')
    a.e(f'v_lshlrev_b32 {V(RO+3)}, 2, v5', f'v_add_u32 {V(RO+3)}, {RSTAT}, {V(RO+3)}')
    srd(a, 20, 80, 81, 2097152); srd(a, 24, 42, 43, 12288)
    a.e('s_lshl_b32 s31, s29, 13', 's_lshr_b32 s50, s29, 1', 's_lshl_b32 s50, s50, 14', 's_and_b32 s51, s29, 1', 's_lshl_b32 s51, s51, 7', 's_add_u32 s29, s50, s51')
def r_loads():
    r = [[[], f'buffer_load_dwordx2 {V(RX+4*i+2*v,2)}, {V(RO+1)}, s[20:23], s31 offen offset:{128*i+32*v}', ('r', 0)] for i in range(2) for v in range(2)]
    for part, reg in ((2, RGA), (4, RCB), (3, RSB)):
        for i in range(2):
            for v in range(2):
                r.append([[f's_mov_b32 s36, {part*2048}'] if (i == 0 and v == 0) else [], f'buffer_load_dwordx4 {V(reg+8*i+4*v,4)}, {V(RO+2)}, s[24:27], s36 offen offset:{256*i+64*v}', ('r', 0)])
    return r

def phase_r(a, L, opt, vm):
    PT = 16; F = 48
    n0 = opt.get('g_pre0', 2); n1 = opt.get('g_pre1', 4)
    g_setup(a)
    a.e('s_barrier')
    for st in range(n0):
        for sal, ins, tag in g_dma(st): a.e(sal, ins); vm.add(tag)
    srd(a, 12, 42, 43, 8388608, add=WS_PART); srd(a, 20, 42, 43, 4194304, add=WS_X1)
    signal(a, L, 1, vm.wait({('st', 0)})); mark(a, 4)
    for r in range(8): a.e(f'v_lshlrev_b32 {V(64+2*r)}, 16, {V(RX+r)}', f'v_and_b32 {V(65+2*r)}, 0xffff0000, {V(RX+r)}')
    poll(a, L, 1, FLB); vm.clear(); mark(a, 5)
    for ks in range(4):
        a.e(f's_add_u32 s50, s29, {ks << 21}')
        for i in range(2): a.e(f'buffer_load_dwordx4 {V(PT+8*ks+4*i,4)}, {V(RO)}, s[12:15], s50 offen offset:{2048*i}{SC}'); vm.add(('p', ks))
    for st in range(n0, n1):
        for sal, ins, tag in g_dma(st): a.e(sal, ins); vm.add(tag)
    for ks in range(4):
        a.e(vm.wait({('p', ks)}))
        for r in range(8):
            src = V(PT+8*ks+r)
            if ks == 0: a.e(f'v_lshlrev_b32 {V(F+2*r)}, 16, {src}', f'v_and_b32 {V(F+2*r+1)}, 0xffff0000, {src}')
            else: a.e(f'v_lshlrev_b32 v10, 16, {src}', f'v_and_b32 v11, 0xffff0000, {src}', f'v_add_f32 {V(F+2*r)}, {V(F+2*r)}, v10', f'v_add_f32 {V(F+2*r+1)}, {V(F+2*r+1)}, v11')
    for e in range(16): a.e(f'v_fmac_f32 {V(64+e)}, {V(F+e)}, {V(RGA+e)}')
    for r in range(8): a.e(f'v_cvt_pk_bf16_f32 {V(RX+r)}, {V(64+2*r)}, {V(65+2*r)}')
    for i in range(2): a.e(f'buffer_store_dwordx4 {V(RX+4*i,4)}, {V(RO)}, s[20:23], s29 offen offset:{2048*i}{SC}'); vm.add(('st', 1))
    for r in range(8): a.e(f'v_lshlrev_b32 {V(F+2*r)}, 16, {V(RX+r)}', f'v_and_b32 {V(F+2*r+1)}, 0xffff0000, {V(RX+r)}')
    a.e(f'v_add_f32 v10, {V(F)}, {V(F+1)}', f'v_add_f32 v11, {V(F+2)}, {V(F+3)}')
    for e in range(4, 16, 2): a.e(f'v_add_f32 v10, v10, {V(F+e)}', f'v_add_f32 v11, v11, {V(F+e+1)}')
    a.e('v_add_f32 v10, v10, v11'); lane8_sum(a, 'v10', 'v11')
    a.e('s_lshl_b32 s50, s28, 5', f'v_add_u32 v13, s50, {V(RO+3)}', 'ds_write_b32 v13, v10', 's_waitcnt lgkmcnt(0)', 's_barrier')
    for i in range(4): a.e(f'ds_read_b32 v{24+i}, {V(RO+3)} offset:{32*i}')
    a.e('s_waitcnt lgkmcnt(0)', 'v_add_f32 v24, v24, v25', 'v_add_f32 v26, v26, v27', 'v_add_f32 v24, v24, v26', f'v_mul_f32 v24, {f32hex(1/512)}, v24')
    for e in range(16): a.e(f'v_sub_f32 {V(F+e)}, {V(F+e)}, v24')
    a.e(f'v_mul_f32 v10, {V(F)}, {V(F)}', f'v_mul_f32 v11, {V(F+1)}, {V(F+1)}')
    for e in range(2, 16, 2): a.e(f'v_fmac_f32 v10, {V(F+e)}, {V(F+e)}', f'v_fmac_f32 v11, {V(F+e+1)}, {V(F+e+1)}')
    a.e('v_add_f32 v10, v10, v11'); lane8_sum(a, 'v10', 'v11')
    a.e('ds_write_b32 v13, v10 offset:128', 's_waitcnt lgkmcnt(0)', 's_barrier')
    for i in range(4): a.e(f'ds_read_b32 v{24+i}, {V(RO+3)} offset:{128+32*i}')
    for e in range(16): a.e(f'v_mul_f32 {V(F+e)}, {V(F+e)}, {V(RCB+e)}')
    a.e('s_waitcnt lgkmcnt(0)', 'v_add_f32 v24, v24, v25', 'v_add_f32 v26, v26, v27', 'v_add_f32 v24, v24, v26')
    a.e(f'v_mov_b32 v25, {f32hex(1e-5)}', f'v_fmac_f32 v25, {f32hex(1/512)}, v24', 'v_rsq_f32 v25, v25', f's_add_u32 s50, s29, {WS_H2 - WS_X1}')
    for e in range(16): a.e(f'v_fma_f32 {V(F+e)}, {V(F+e)}, v25, {V(RSB+e)}')
    for r in range(8): a.e(f'v_cvt_pk_bf16_f32 {V(PT+r)}, {V(F+2*r)}, {V(F+2*r+1)}')
    for i in range(2): a.e(f'buffer_store_dwordx4 {V(PT+4*i,4)}, {V(RO)}, s[20:23], s50 offen offset:{2048*i}{SC}'); vm.add(('st', 1))
    return vm

GR = 5; GSTG = 28672; GDA = 208
def g_setup(a):
    a.e('s_lshl_b32 s52, s44, 2', 's_add_u32 s52, s52, s46')
    a.e('s_and_b32 s47, s28, 1', 's_mul_i32 s47, s47, 448', 'v_add_u32 v5, s47, v2', 's_mov_b32 s48, 4682', 's_mov_b32 s49, 3584')
    for i in range(7):
        a.e(f'v_add_u32 v6, {64*i}, v5', 'v_mul_lo_u32 v7, v6, s48', 'v_lshrrev_b32 v7, 16, v7', 'v_mul_u32_u24 v8, 14, v7', 'v_sub_u32 v8, v6, v8')
        a.e('v_mul_lo_u32 v9, v7, s49', 'v_lshl_add_u32 v9, v8, 4, v9', f'v_subrev_u32 {V(GDA+i)}, {1024*(i & 3)}, v9')
    a.e('s_cmp_lt_u32 s28, 2', 's_cselect_b32 s50, s68, s72', 's_cselect_b32 s51, s69, s73', 's_mul_i32 s47, s52, 224')
    srd(a, 16, 50, 51, 0, add='s47'); a.e(f's_sub_u32 s18, {512*3584}, s47')
    a.e('s_lshr_b32 s47, s28, 1', 's_mul_i32 s47, s47, 14336', 's_and_b32 s50, s28, 1', 's_mul_i32 s50, s50, 7168', 's_add_u32 s30, s47, s50')
def g_dma(st):
    base = (st % GR) * GSTG
    return [[([f's_add_u32 m0, s30, {base + 4096*(i//4)}', f's_mov_b32 s34, {st*64*3584}'] if i % 4 == 0 else []),
             f'buffer_load_dwordx4 {V(GDA+i)}, s[16:19], s34 offen offset:{1024*(i&3)} lds', ('ga', st)] for i in range(7)]

def phase_g(a, L, opt, vm, Sched):
    ACC = 16; RA = 8; FA = 128; BD = 0
    n1 = opt.get('g_pre1', 4)
    a.e('v_lshrrev_b32 v5, 2, v2', 'v_mul_u32_u24 v5, 224, v5', 'v_and_b32 v6, 3, v2', f'v_lshl_add_u32 {V(RA)}, v6, 3, v5', 'v_lshlrev_b32 v7, 4, v2')
    for i in range(1, GR): a.e(f'v_add_u32 {V(RA+i)}, {i*GSTG}, {V(RA)}')
    a.e('s_lshl_b32 s47, s45, 2', 's_add_u32 s47, s47, s28', 's_lshl_b32 s48, s47, 15', f's_add_u32 s48, s48, {WS_H2}'); srd(a, 12, 42, 43, 32768, add='s48')
    a.e(f's_mul_i32 s47, s47, {112*1024}', 's_mul_i32 s48, s52, 7168', 's_add_u32 s47, s47, s48', f's_add_u32 s47, s47, {WS_HH}'); srd(a, 8, 42, 43, 7168, add='s47')
    signal(a, L, 2, vm.wait({('st', 1)})); mark(a, 6)
    def rd(n):
        ks, b = divmod(n, 14); st, tt = divmod(ks, 2)
        off = (b // 7)*14336 + tt*7168 + (b % 7)*32
        return [f'ds_read_b64_tr_b16 {A(FA+4*(n % 8)+2*v,2)}, {V(RA + st % GR)} offset:{off+3584*v}' for v in range(2)]
    D = opt.get('g_dist', 5)
    sc = Sched(a, age=6)
    d_setup(a)
    for n in range(D):
        for r in rd(n): sc.emit_filler(r)
    poll(a, L, 2, FLB); vm.clear(); mark(a, 7)
    def bl(ks):
        return [[[f's_mov_b32 s36, {qb*16384 + (ks & ~3)*1024}'], f'buffer_load_dwordx4 {A(BD+8*ks+4*qb,4)}, v7, s[12:15], s36 offen offset:{(ks & 3)*1024}{SC}', ('gb', ks)] for qb in range(2)]
    UP = opt.get('g_up', 6)
    for ks in range(UP):
        for sal, ins, tag in bl(ks): a.e(sal, ins); vm.add(tag)
    q = []
    for ks in range(UP, 16): q += bl(ks)
    for st in range(n1, GR): q = q[:4] + g_dma(st) + q[4:]
    NF = 16*14
    mf = []; gaps = []; pre = []
    a.e(vm.wait({('gb', 0)}))
    for n in range(NF):
        ks, b = divmod(n, 14)
        for qb in range(2):
            acc = V(ACC+8*b+4*qb, 4)
            mf.append(f'{MF} {acc}, {A(FA+4*(n % 8),4)}, {A(BD+8*ks+4*qb,4)}, {"0" if ks == 0 else acc}')
            gaps.append([]); pre.append([])
        nn = n + D
        if nn < NF:
            if nn % 28 == 0:
                s2 = nn // 28
                assert ('ga', s2) in vm.seen and not any(x[2] == ('ga', s2) for x in q)
                w = vm.wait({('ga', s2)})
                if s2 >= n1 or s2 + GR - 2 < 8: gaps[2*n-1] += w + ['s_barrier']
                if n1 <= s2 + GR - 2 < 8 and s2 + GR - 2 >= GR: q += g_dma(s2 + GR - 2)
            r = rd(nn)
            gaps[2*n].append(r[0]); gaps[2*n+1].append(r[1])
        if q and n % 2 == 0:
            sal, ins, tag = q.pop(0)
            pre[2*n] += sal; gaps[2*n+1].append(ins); vm.add(tag)
        if b == 13 and ks < 15:
            assert not any(x[2] == ('gb', ks+1) for x in q)
            gaps[2*n+1] += vm.wait({('gb', ks+1)})
    assert not q
    sc.run(mf, [pre[g] + gaps[g] for g in range(len(mf))])
    mark(a, 8)
    a.e('s_barrier')
    for b in range(7):
        t = ACC + 8*b
        for i in range(0, 8, 2): a.e(f'v_pk_mul_f32 {V(t+i,2)}, {V(t+i,2)}, {V(t+56+i,2)}')
        for i in range(4): a.e(f'v_cvt_pk_bf16_f32 {V(t+i)}, {V(t+2*i)}, {V(t+2*i+1)}')
        a.e(f's_mov_b32 s48, {(b*1024) & ~4095}', f'buffer_store_dwordx4 {V(t,4)}, v7, s[8:11], s48 offen offset:{(b*1024) & 4095}{SC}'); vm.add(('st', 2))
    return vm

DR = 9; DDA = 216
def d_setup(a):
    a.e('s_lshl_b32 s54, s45, 1', 's_and_b32 s50, s44, 1', 's_add_u32 s54, s54, s50', 's_lshr_b32 s55, s44, 1', 's_lshl_b32 s55, s55, 2', 's_add_u32 s55, s55, s46')
    a.e('v_lshrrev_b32 v5, 3, v2', 'v_lshlrev_b32 v6, 1, v4', 'v_and_b32 v13, 7, v2', 'v_xor_b32 v6, v6, v13', 'v_lshlrev_b32 v6, 4, v6', 'v_lshl_add_u32 v5, v5, 10, v6')
    for i in range(4): a.e(f'v_add_u32 {V(DDA+i)}, {7*i*1024}, v5')
    a.e('s_lshl_b32 s50, s55, 7', f's_mul_i32 s51, s28, {14*32*1024}', 's_add_u32 s50, s50, s51')
    srd(a, 24, 76, 77, 0, add='s50'); a.e(f's_sub_u32 s26, {1792*1024}, s50', f's_mul_i32 s31, s28, {DR*4096}')
def d_dma(s):
    return [[([f's_add_u32 m0, s31, {(s % DR)*4096}', f's_mov_b32 s35, {s*32768}'] if i == 0 else []),
             f'buffer_load_dwordx4 {V(DDA+i)}, s[24:27], s35 offen offset:{1024*i} lds', ('da', s)] for i in range(4)]

def phase_d(a, L, opt, vm, Sched):
    NS = 14
    ACC = 0; FA = [64, 80]; XR = 96; GV = 104; RA = 8
    BR = lambda s: (16 + 16*s) if s < 7 else (144 + 16*(s-7))
    n0 = opt.get('d_pre0', 6)
    for s in range(n0):
        for sal, ins, tag in d_dma(s): a.e(sal, ins); vm.add(tag)
    a.e(f's_mul_i32 s48, s54, {2*112*1024}', f's_mul_i32 s49, s28, {28*1024}', 's_add_u32 s48, s48, s49', f's_add_u32 s48, s48, {WS_HH}'); srd(a, 12, 42, 43, 2*112*1024, add='s48')
    a.e('v_lshrrev_b32 v5, 2, v2', 'v_and_b32 v6, 3, v2', 'v_lshlrev_b32 v12, 7, v5', 'v_lshl_add_u32 v12, v6, 3, v12', 'v_add_u32 v12, s31, v12', 'v_bfe_u32 v5, v5, 1, 2')
    for nb in range(4): a.e(f'v_xor_b32 v6, {nb}, v5', f'v_lshl_add_u32 {V(RA+nb)}, v6, 5, v12')
    E = 128
    a.e('v_lshrrev_b32 v5, 3, v2', 'v_and_b32 v6, 7, v2')
    a.e(f'v_and_b32 {V(E)}, 1, v6', f'v_lshlrev_b32 {V(E)}, 9, {V(E)}', f'v_lshl_add_u32 {V(E)}, v5, 4, {V(E)}', 'v_bfe_u32 v12, v6, 1, 1', f'v_lshl_add_u32 {V(E)}, v12, 3, {V(E)}', 'v_lshrrev_b32 v12, 2, v6', f'v_lshl_add_u32 {V(E)}, v12, 10, {V(E)}')
    a.e(f'v_lshlrev_b32 {V(E+1)}, 5, v6', f'v_lshlrev_b32 {V(E+2)}, 10, v5', f'v_lshl_add_u32 {V(E+2)}, v6, 4, {V(E+2)}')
    a.e(f'v_mul_u32_u24 {V(E+3)}, 272, v5', f'v_lshl_add_u32 {V(E+3)}, v6, 5, {V(E+3)}', 's_mul_i32 s47, s28, 4352', f'v_add_u32 {V(E+3)}, s47, {V(E+3)}')
    a.e(f'v_mul_u32_u24 {V(E+4)}, 272, v3', f'v_lshl_add_u32 {V(E+4)}, v4, 4, {V(E+4)}', 's_mul_i32 s47, s28, 17408', f'v_add_u32 {V(E+4)}, s47, {V(E+4)}')
    for i in range(4): a.e(f'v_mov_b32 {V(136+i)}, {V(DDA+i)}')
    a.e('s_lshl_b32 s47, s54, 2', 's_add_u32 s47, s47, s28', 's_lshl_b32 s49, s47, 14', 's_lshl_b32 s50, s55, 7', 's_add_u32 s56, s50, s49', 's_lshl_b32 s51, s55, 11', 's_add_u32 s57, s51, s49')
    a.e('s_lshl_b32 s58, s55, 8', f's_add_u32 s58, s58, {5*2048}')
    signal(a, L, 3, vm.wait({('st', 2)})); mark(a, 9)
    srd(a, 16, 42, 43, 12288); srd(a, 8, 82, 83, 2097152)
    for p in range(2):
        for e in range(2): a.e(f'buffer_load_dwordx2 {A(XR+4*p+2*e,2)}, {V(E)}, s[20:23], s57 offen offset:{128*p+256*e}{SC}')
    for h in range(2): a.e(f'buffer_load_dwordx4 {A(GV+4*h,4)}, {V(E+1)}, s[16:19], s58 offen offset:{16*h}')
    poll(a, L, 3, FLB); vm.clear(); mark(a, 10)
    def dma2(s): return [[x[0], x[1].replace(f'v{DDA+i},', f'v{136+i},'), x[2]] for i, x in enumerate(d_dma(s))]
    def bload(s):
        return [[[f's_mov_b32 s36, {qp*112*1024 + 2048*s}'] if u == 0 else [], f'buffer_load_dwordx4 {V(BR(s)+8*qp+4*u,4)}, v7, s[12:15], s36 offen offset:{1024*u}{SC}', ('db', s)] for qp in range(2) for u in range(2)]
    def reads(s): return [f'ds_read_b64_tr_b16 {A(FA[s & 1]+4*x+2*v,2)}, {V(RA+x)} offset:{(s % DR)*4096+2048*v}' for x in range(4) for v in range(2)]
    def swaps(s): return [f'v_swap_b32 {V(BR(s)+8*qp+2+i)}, {V(BR(s)+8*qp+4+i)}' for qp in range(2) for i in range(2)]
    sc = Sched(a, age=6)
    for r in reads(0): sc.emit_filler(r)
    PRE = opt.get('d_pre', 4)
    for s in range(PRE):
        for sal, ins, tag in bload(s): a.e(sal, ins); vm.add(tag)
    a.e(vm.wait({('db', 0)}), swaps(0))
    nb_ = PRE; na_ = n0
    for s in range(NS):
        mf = [f'{MF} {A(ACC+16*nb+4*qb,4)}, {A(FA[s & 1]+4*nb,4)}, {V(BR(s)+4*qb,4)}, {"0" if s == 0 else A(ACC+16*nb+4*qb,4)}' for nb in range(4) for qb in range(4)]
        gaps = [[] for _ in mf]
        a.e('s_waitcnt lgkmcnt(0)'); sc.pend = []
        iss = []
        if nb_ < NS: iss += bload(nb_); nb_ += 1
        if na_ < NS and na_ <= s + DR and na_ <= nb_ + 1: iss += dma2(na_); na_ += 1
        elif nb_ < NS: iss += bload(nb_); nb_ += 1
        for g, (sal, ins, tag) in enumerate(iss[:7]):
            gaps[g] += sal + [ins]; vm.add(tag)
        if s + 1 < NS:
            assert ('da', s+1) in vm.seen and ('db', s+1) in vm.seen and not any(x[2][1] == s+1 for x in iss[7:])
            gaps[7] += vm.wait({('da', s+1), ('db', s+1)})
            for i, r in enumerate(reads(s+1)): gaps[7 + i//2].append(r)
            for i, x in enumerate(swaps(s+1)): gaps[11 + i//2].append(x)
        for i, (sal, ins, tag) in enumerate(iss[7:]):
            gaps[13] += sal + [ins]; vm.add(tag)
        sc.run(mf, gaps)
    assert nb_ == NS and na_ == NS, (nb_, na_)
    mark(a, 11)
    PT = 32
    a.e('s_nop 3', 's_barrier')
    for nb in range(4):
        for qb in range(4):
            a.e(f'ds_write_b128 {V(E+4)}, {A(ACC+16*nb+4*qb,4)} offset:{qb*16*272 + nb*64}')
    for i in range(8): a.e(f'v_accvgpr_read_b32 {V(112+i)}, {A(XR+i)}', f'v_accvgpr_read_b32 {V(120+i)}, {A(GV+i)}')
    for i in range(8): a.e(f'v_lshlrev_b32 {V(96+2*i)}, 16, {V(112+i)}', f'v_and_b32 {V(97+2*i)}, 0xffff0000, {V(112+i)}')
    a.e('s_waitcnt lgkmcnt(0)', 's_barrier')
    for p in range(2):
        for pw in range(4):
            for h in range(2): a.e(f'ds_read_b128 {V(PT+32*p+8*pw+4*h,4)}, {V(E+3)} offset:{pw*17408 + p*8*272 + h*16}')
    for p in range(2):
        b = PT + 32*p
        a.e(f's_waitcnt lgkmcnt({12-8*p})')
        for i in range(0, 8, 2): a.e(f'v_pk_add_f32 {V(b+i,2)}, {V(b+i,2)}, {V(b+8+i,2)}')
        a.e(f's_waitcnt lgkmcnt({8-8*p})')
        for i in range(0, 8, 2): a.e(f'v_pk_add_f32 {V(b+16+i,2)}, {V(b+16+i,2)}, {V(b+24+i,2)}')
        for i in range(0, 8, 2): a.e(f'v_pk_add_f32 {V(b+i,2)}, {V(b+i,2)}, {V(b+16+i,2)}')
        for i in range(0, 8, 2): a.e(f'v_pk_fma_f32 {V(96+8*p+i,2)}, {V(b+i,2)}, {V(120+i,2)}, {V(96+8*p+i,2)}')
        for i in range(4): a.e(f'v_cvt_pk_bf16_f32 {V(b+i)}, {V(96+8*p+2*i)}, {V(97+8*p+2*i)}')
        if p: a.e('s_add_u32 s56, s56, 8192')
        a.e(f'buffer_store_dwordx4 {V(b,4)}, {V(E+2)}, s[8:11], s56 offen{opt.get("wt_d", "")}')

def fused_post(a, L, opt, Sched):
    vm = phase_o(a, L, opt, Sched)
    vm = phase_r(a, L, opt, vm)
    vm = phase_g(a, L, opt, vm, Sched)
    phase_d(a, L, opt, vm, Sched)
    if TL['on']:
        a.e('s_waitcnt vmcnt(0)'); mark(a, 12)
        srd(a, 8, 42, 43, 1 << 20, add=(58 << 20))
        a.e('s_lshl_b32 s54, s2, 2', 's_add_u32 s54, s54, s28', 's_lshl_b32 s54, s54, 6', 'v_lshlrev_b32 v5, 2, v2', 's_mov_b64 exec, 0xffff')
        a.e(f'buffer_store_dword {V(DIAG)}, v5, s[8:11], s54 offen', 's_mov_b64 exec, -1')
```

```python
from asmlib import *
from gen_pre import *
from gen_attn import Sched, MF

def gen_down(a, opt):
    L = 'down_kernel'
    NS = 14; R = opt.get('d_ring', 6); SLOT = 4096; WREG = R*SLOT
    ACC = 0; FA = [64, 80]; BD = 32
    DA = 8; DB = 12; RA = 16
    XR = 96; GV = 104
    WT = opt.get('wt_d', '')
    kernel_head(a, L)
    a.e('s_cmp_ge_u32 s2, 256', f's_cbranch_scc1 {L}_end')
    tl_start(a)
    a.e('s_load_dwordx2 s[4:5], s[0:1], 64', 's_load_dwordx2 s[6:7], s[0:1], 104', 's_load_dwordx2 s[40:41], s[0:1], 88')
    a.e('v_lshrrev_b32 v1, 6, v0', 'v_and_b32 v2, 63, v0', 'v_readfirstlane_b32 s28, v1')
    a.e('s_bfe_u32 s46, s2, 0x20001', 's_lshl_b32 s46, s46, 3', 's_lshr_b32 s47, s2, 5', 's_add_u32 s46, s46, s47')
    a.e('s_and_b32 s44, s2, 1', 's_lshl_b32 s44, s44, 2', 's_bfe_u32 s45, s2, 0x20003', 's_add_u32 s44, s44, s45')
    a.e('v_and_b32 v3, 15, v2', 'v_lshrrev_b32 v4, 4, v2')
    a.e('v_lshrrev_b32 v5, 3, v2', 'v_lshlrev_b32 v6, 1, v4', 'v_and_b32 v7, 7, v2', 'v_xor_b32 v6, v6, v7', 'v_lshlrev_b32 v6, 4, v6', 'v_lshl_add_u32 v5, v5, 10, v6')
    for i in range(4): a.e(f'v_add_u32 {V(DA+i)}, {7*i*1024}, v5')
    a.e(f'v_lshlrev_b32 {V(DB)}, 4, v2')
    a.e('s_lshl_b32 s47, s44, 7', f's_mul_i32 s48, s28, {14*32*1024}', 's_add_u32 s47, s47, s48')
    a.e(f's_mul_i32 s48, s46, {2*112*1024}', f's_mul_i32 s49, s28, {28*1024}', 's_add_u32 s48, s48, s49', f's_add_u32 s48, s48, {WS_HH}')
    a.e(f's_mul_i32 s30, s28, {WREG}', 's_mov_b32 s34, 0')
    a.e('s_waitcnt lgkmcnt(0)')
    srd(a, 12, 6, 7, 2*112*1024, add='s48')
    srd(a, 8, 4, 5, 0, add='s47'); a.e(f's_sub_u32 s10, {1792*1024}, s47')
    vm = []
    def dma(s):
        r = [[[f's_add_u32 m0, s30, {(s % R)*SLOT}'] + ([f's_add_u32 s34, s34, 32768'] if s else ['s_nop 0']), f'buffer_load_dwordx4 {V(DA)}, s[8:11], s34 offen lds', ('a', s)]]
        for i in range(1, 4): r.append([[], f'buffer_load_dwordx4 {V(DA+i)}, s[8:11], s34 offen offset:{1024*i} lds', ('a', s)])
        return r
    def bload(s):
        r = []
        for qp in range(2):
            for u in range(2):
                sal = [f's_mov_b32 s36, {qp*112*1024 + 2048*s}'] if u == 0 else []
                r.append([sal, f'buffer_load_dwordx4 {V(BD+16*s+8*qp+4*u,4)}, {V(DB)}, s[12:15], s36 offen offset:{1024*u}', ('b', s)])
        return r
    def emit(lst):
        for sal, ins, tag in lst: a.e(sal, ins); vm.append(tag)
    def vmwait(tags):
        last = max([i for i, t in enumerate(vm) if t in tags], default=-1)
        if last < 0: return []
        n = len(vm) - 1 - last
        del vm[:last+1]
        return [f's_waitcnt vmcnt({n})']
    PRE = opt.get('d_pre', 3)
    for s in range(PRE): emit(bload(s) + dma(s))
    a.e('v_lshrrev_b32 v5, 2, v2', 'v_and_b32 v6, 3, v2', 'v_lshlrev_b32 v7, 7, v5', 'v_lshl_add_u32 v7, v6, 3, v7', 'v_add_u32 v7, s30, v7', 'v_bfe_u32 v5, v5, 1, 2')
    for nb in range(4): a.e(f'v_xor_b32 v24, {nb}, v5', f'v_lshl_add_u32 {V(RA+nb)}, v24, 5, v7')
    a.e('v_lshrrev_b32 v20, 3, v2', 'v_and_b32 v21, 7, v2')
    a.e('v_and_b32 v22, 1, v21', 'v_lshlrev_b32 v22, 9, v22', 'v_lshl_add_u32 v22, v20, 4, v22', 'v_bfe_u32 v23, v21, 1, 1', 'v_lshl_add_u32 v22, v23, 3, v22', 'v_lshrrev_b32 v23, 2, v21', 'v_lshl_add_u32 v22, v23, 10, v22')
    a.e('v_lshlrev_b32 v23, 5, v21')
    a.e('v_lshlrev_b32 v25, 10, v20', 'v_lshl_add_u32 v25, v21, 4, v25')
    a.e('v_mul_u32_u24 v26, 272, v20', 'v_lshl_add_u32 v26, v21, 5, v26', 's_mul_i32 s47, s28, 4352', 'v_add_u32 v26, s47, v26')
    a.e('v_mul_u32_u24 v27, 272, v3', 'v_lshl_add_u32 v27, v4, 4, v27', 's_mul_i32 s47, s28, 17408', 'v_add_u32 v27, s47, v27')
    a.e('s_lshl_b32 s47, s46, 2', 's_add_u32 s47, s47, s28', 's_lshl_b32 s49, s47, 14', 's_lshl_b32 s50, s44, 7', 's_add_u32 s50, s50, s49', 's_lshl_b32 s51, s44, 11', 's_add_u32 s51, s51, s49')
    a.e('s_lshl_b32 s48, s44, 8', f's_add_u32 s48, s48, {5*2048}')
    srd(a, 16, 6, 7, 12288); srd(a, 20, 40, 41, 2097152); srd(a, 24, 6, 7, 2097152, add=WS_X1)
    epi = [[[], f'buffer_load_dwordx2 {A(XR+4*p+2*e,2)}, v22, s[24:27], s51 offen offset:{128*p+256*e}', ('e', 0)] for p in range(2) for e in range(2)]
    epi += [[[], f'buffer_load_dwordx4 {A(GV+4*h,4)}, v23, s[16:19], s48 offen offset:{16*h}', ('e', 0)] for h in range(2)]
    def reads(s):
        return [f'ds_read_b64_tr_b16 {A(FA[s & 1]+4*x+2*v,2)}, {V(RA+x)} offset:{(s % R)*SLOT+2048*v}' for x in range(4) for v in range(2)]
    def swaps(s):
        return [f'v_swap_b32 {V(BD+16*s+8*qp+2+i)}, {V(BD+16*s+8*qp+4+i)}' for qp in range(2) for i in range(2)]
    sc = Sched(a, age=6)
    a.e(vmwait({('a', 0), ('b', 0)})); tl_mark(a, 0)
    for r in reads(0): sc.emit_filler(r)
    a.e(swaps(0))
    nb_ = PRE; na_ = PRE
    for s in range(NS):
        mf = [f'{MF} {A(ACC+16*nb+4*qb,4)}, {A(FA[s & 1]+4*nb,4)}, {V(BD+16*s+4*qb,4)}, {"0" if s == 0 else A(ACC+16*nb+4*qb,4)}' for nb in range(4) for qb in range(4)]
        gaps = [[] for _ in mf]
        a.e('s_waitcnt lgkmcnt(0)'); sc.pend = []
        iss = []
        k = 2 if s < opt.get('d_boost', 2) else 1
        for _ in range(k):
            if nb_ < NS and nb_ - s <= opt.get('d_maxb', 6): iss += bload(nb_); nb_ += 1
            if na_ < NS and na_ < s + R: iss += dma(na_); na_ += 1
        if s == opt.get('d_epi', 9): iss += epi
        first = iss[:7]; rest = iss[7:]
        for g, (sal, ins, tag) in enumerate(first):
            gaps[g] += sal + [ins]; vm.append(tag)
        if s + 1 < NS:
            gaps[7] += vmwait({('a', s+1), ('b', s+1)})
            for i, r in enumerate(reads(s+1)): gaps[7 + i//2].append(r)
            for i, x in enumerate(swaps(s+1)): gaps[11 + i//2].append(x)
        for i, (sal, ins, tag) in enumerate(rest):
            g = min(11 + i//2, 15)
            gaps[g] += sal + [ins]; vm.append(tag)
        sc.run(mf, gaps)
    assert nb_ == NS and na_ == NS
    tl_mark(a, 1)
    PT = 32
    a.e('s_nop 3', 's_barrier')
    for nb in range(4):
        for qb in range(4):
            a.e(f'ds_write_b128 v27, {A(ACC+16*nb+4*qb,4)} offset:{qb*16*272 + nb*64}')
    a.e('s_waitcnt vmcnt(0)')
    for i in range(8): a.e(f'v_accvgpr_read_b32 {V(112+i)}, {A(XR+i)}', f'v_accvgpr_read_b32 {V(120+i)}, {A(GV+i)}')
    for i in range(8): a.e(f'v_lshlrev_b32 {V(96+2*i)}, 16, {V(112+i)}', f'v_and_b32 {V(97+2*i)}, 0xffff0000, {V(112+i)}')
    a.e('s_waitcnt lgkmcnt(0)', 's_barrier')
    for p in range(2):
        for pw in range(4):
            for h in range(2): a.e(f'ds_read_b128 {V(PT+32*p+8*pw+4*h,4)}, v26 offset:{pw*17408 + p*8*272 + h*16}')
    for p in range(2):
        b = PT + 32*p
        a.e(f's_waitcnt lgkmcnt({12-8*p})')
        for i in range(8): a.e(f'v_add_f32 {V(b+i)}, {V(b+i)}, {V(b+8+i)}')
        a.e(f's_waitcnt lgkmcnt({8-8*p})')
        for i in range(8): a.e(f'v_add_f32 {V(b+16+i)}, {V(b+16+i)}, {V(b+24+i)}')
        for i in range(8): a.e(f'v_add_f32 {V(b+i)}, {V(b+i)}, {V(b+16+i)}')
        for i in range(8): a.e(f'v_fmac_f32 {V(96+8*p+i)}, {V(b+i)}, {V(120+i)}')
        for i in range(4): a.e(f'v_cvt_pk_bf16_f32 {V(b+i)}, {V(96+8*p+2*i)}, {V(97+8*p+2*i)}')
        if p: a.e('s_add_u32 s50, s50, 8192')
        a.e(f'buffer_store_dwordx4 {V(b,4)}, v25, s[20:23], s50 offen{WT}')
    tl_end(a); a.e(f'{L}_end:', 's_endpgm')
    return dict(label=L, grid=256, block=256, lds=max(4*WREG, 69632), vgpr=256+112, accum=256)

def gen_gateup(a, opt):
    L = 'gateup_kernel'
    R = 3; STG = 45056; BOFF = 28672
    ACC = 16
    DA = 16
    RA = 8; RB = 12
    FA = 0
    FB = 32
    WT = opt.get('wt_g', ' sc1')
    kernel_head(a, L)
    a.e('s_cmp_ge_u32 s2, 256', f's_cbranch_scc1 {L}_end')
    tl_start(a)
    a.e('s_load_dwordx4 s[4:7], s[0:1], 48', 's_load_dwordx2 s[40:41], s[0:1], 104')
    a.e('v_lshrrev_b32 v1, 6, v0', 'v_and_b32 v2, 63, v0', 'v_readfirstlane_b32 s29, v1')
    a.e('s_and_b32 s46, s2, 1', 's_lshl_b32 s46, s46, 3', 's_lshr_b32 s47, s2, 5', 's_add_u32 s46, s46, s47')
    a.e('s_bfe_u32 s44, s2, 0x20001', 's_lshl_b32 s44, s44, 2', 's_bfe_u32 s45, s2, 0x20003', 's_add_u32 s44, s44, s45')
    a.e('v_lshlrev_b32 v11, 4, v2', 's_and_b32 s28, s29, 3', 's_cmp_lt_u32 s29, 4', f's_cbranch_scc1 {L}_comp')
    a.e('s_and_b32 s47, s28, 1', 's_mul_i32 s47, s47, 448', 'v_add_u32 v5, s47, v2', 's_mov_b32 s48, 4682', 's_mov_b32 s49, 3584')
    a.e('s_lshl_b32 s47, s46, 2', 's_add_u32 s47, s47, s28', 's_lshl_b32 s47, s47, 15', f's_add_u32 s52, s47, {WS_H2}')
    a.e('s_lshl_b32 s31, s28, 12', f's_add_u32 s31, s31, {BOFF}')
    a.e('s_lshr_b32 s47, s28, 1', 's_mul_i32 s47, s47, 14336', 's_and_b32 s50, s28, 1', 's_mul_i32 s50, s50, 7168', 's_add_u32 s30, s47, s50')
    a.e('s_mov_b32 s34, 0', 's_mov_b32 s35, 0', 's_mov_b32 s36, 15360', 's_mul_i32 s53, s44, 224')
    def voff(i):
        a.e(f'v_add_u32 v6, {64*i}, v5', 'v_mul_lo_u32 v7, v6, s48', 'v_lshrrev_b32 v7, 16, v7', 'v_mul_u32_u24 v8, 14, v7', 'v_sub_u32 v8, v6, v8')
        a.e('v_mul_lo_u32 v9, v7, s49', 'v_lshl_add_u32 v9, v8, 4, v9', f'v_subrev_u32 {V(DA+i)}, {1024*(i & 3)}, v9')
    for i in range(7): voff(i)
    a.e('s_waitcnt lgkmcnt(0)')
    srd(a, 12, 40, 41, 32768, add='s52')
    a.e('s_cmp_lt_u32 s28, 2', 's_cselect_b32 s50, s4, s6', 's_cselect_b32 s51, s5, s7')
    srd(a, 8, 50, 51, 0, add='s53'); a.e(f's_sub_u32 s10, {512*3584}, s53')
    def dma(st):
        base = (st % R) * STG
        a.e(f's_add_u32 m0, s31, {base}', 's_nop 0')
        a.e('buffer_load_dwordx4 v11, s[12:15], s35 offen lds', 'buffer_load_dwordx4 v11, s[12:15], s36 offen offset:1024 lds')
        a.e('s_sub_u32 s35, s35, 1024', 's_sub_u32 s36, s36, 1024') if False else None
        a.e(f's_add_u32 m0, s31, {base+2048}', 's_add_u32 s35, s35, 1024', 's_add_u32 s36, s36, 1024')
        a.e('buffer_load_dwordx4 v11, s[12:15], s35 offen lds', 'buffer_load_dwordx4 v11, s[12:15], s36 offen offset:1024 lds')
        a.e('s_add_u32 s35, s35, 1024', 's_add_u32 s36, s36, 1024')
        for i in range(7):
            if i % 4 == 0: a.e(f's_add_u32 m0, s30, {base + 4096*(i//4)}', 's_nop 0')
            a.e(f'buffer_load_dwordx4 {V(DA+i)}, s[8:11], s34 offen offset:{1024*(i&3)} lds')
        a.e(f's_add_u32 s34, s34, {64*3584}')
    dma(0); dma(1)
    a.e('s_waitcnt vmcnt(11)', 's_barrier')
    dma(2)
    for st in range(1, 8):
        a.e(f's_waitcnt vmcnt({11 if st < 7 else 0})', 's_barrier')
        if st + 2 < 8: dma(st + 2)
    a.e(f's_branch {L}_end')
    a.e(f'{L}_comp:')
    if opt.get('prio', 1): a.e('s_setprio 1')
    a.e('v_lshrrev_b32 v5, 2, v2', 'v_mul_u32_u24 v5, 224, v5', 'v_and_b32 v6, 3, v2', f'v_lshl_add_u32 {V(RA)}, v6, 3, v5')
    a.e('s_lshl_b32 s31, s28, 12', f's_add_u32 s31, s31, {BOFF}', f'v_add_u32 {V(RB)}, s31, v11')
    a.e(f'v_mov_b32 v7, v11')
    for i in range(1, R): a.e(f'v_add_u32 {V(RA+i)}, {i*STG}, {V(RA)}', f'v_add_u32 {V(RB+i)}, {i*STG}, {V(RB)}')
    a.e('s_lshl_b32 s47, s46, 2', 's_add_u32 s47, s47, s28', f's_mul_i32 s47, s47, {112*1024}', 's_mul_i32 s48, s44, 7168', 's_add_u32 s47, s47, s48', f's_add_u32 s47, s47, {WS_HH}')
    a.e('s_waitcnt lgkmcnt(0)')
    srd(a, 16, 40, 41, 7168, add='s47')
    def rd(n):
        ks, b = divmod(n, 14); st, tt = divmod(ks, 2)
        off = (b // 7)*14336 + tt*7168 + (b % 7)*32
        return [f'ds_read_b64_tr_b16 {A(FA+4*(n % 8)+2*v,2)}, {V(RA + st % R)} offset:{off+3584*v}' for v in range(2)]
    def rdb(ks):
        st, tt = divmod(ks, 2)
        return [f'ds_read_b128 {A(FB+8*(ks & 1)+4*qb,4)}, {V(RB + st % R)} offset:{2048*tt+1024*qb}' for qb in range(2)]
    D = opt.get('g_dist', 6); PAUSE = opt.get('g_pause', 3)
    sc = Sched(a, age=6)
    a.e('s_barrier'); tl_mark(a, 0)
    for r in rdb(0): sc.emit_filler(r)
    for n in range(D):
        for r in rd(n): sc.emit_filler(r)
    NF = 16*14
    mf = []; gaps = []
    nxt = D
    for n in range(NF):
        ks, b = divmod(n, 14)
        for qb in range(2):
            acc = V(ACC+8*b+4*qb, 4)
            mf.append(f'{MF} {acc}, {A(FA+4*(n % 8),4)}, {A(FB+8*(ks & 1)+4*qb,4)}, {"0" if ks == 0 else acc}')
            gaps.append([])
        q = []
        if nxt < NF and nxt % 28 == 0 and nxt - n > D - PAUSE:
            pass
        elif nxt < NF:
            if nxt % 28 == 0:
                gaps[2*n-1] += ['s_waitcnt lgkmcnt(0)', 's_barrier']
                q += rdb(nxt // 14)
            elif b == 4 and ks % 2 == 0: q += rdb(ks + 1)
            while nxt < NF and nxt <= n + D and len(q) <= 2:
                q += rd(nxt); nxt += 1
                if nxt % 28 == 0: break
        h = (len(q) + 1) // 2
        gaps[2*n] += q[:h]; gaps[2*n+1] += q[h:]
    assert nxt == NF
    sc.run(mf, gaps); tl_mark(a, 1)
    a.e('s_nop 3')
    for b in range(7):
        t = ACC + 8*b
        for i in range(8): a.e(f'v_mul_f32 {V(t+i)}, {V(t+i)}, {V(t+56+i)}')
        for i in range(4): a.e(f'v_cvt_pk_bf16_f32 {V(t+i)}, {V(t+2*i)}, {V(t+2*i+1)}')
        a.e(f's_mov_b32 s48, {(b*1024) & ~4095}', f'buffer_store_dwordx4 {V(t,4)}, v7, s[16:19], s48 offen offset:{(b*1024) & 4095}{WT}')
    tl_end(a); a.e(f'{L}_end:', 's_endpgm')
    return dict(label=L, grid=256, block=512, lds=R*STG, vgpr=128+48, accum=128)


def gen_oproj(a, opt):
    L = 'oproj_kernel'
    ACC = 64
    FA = [0, 32]; FB = [64, 96]
    DA = 8; DB = 12; RA = 16; RB = 24
    WT = opt.get('wt_o', ' sc1')
    kernel_head(a, L)
    a.e('s_cmp_ge_u32 s2, 256', f's_cbranch_scc1 {L}_end')
    tl_start(a)
    a.e('s_load_dwordx2 s[4:5], s[0:1], 32', 's_load_dwordx2 s[6:7], s[0:1], 104')
    a.e('v_lshrrev_b32 v1, 6, v0', 'v_and_b32 v2, 63, v0', 'v_readfirstlane_b32 s29, v1')
    a.e('s_bfe_u32 s44, s2, 0x20001')
    a.e('s_and_b32 s45, s2, 1', 's_lshl_b32 s45, s45, 3', 's_lshr_b32 s46, s2, 5', 's_add_u32 s45, s45, s46')
    a.e('s_bfe_u32 s46, s2, 0x20003')
    a.e('v_and_b32 v3, 15, v2', 'v_lshrrev_b32 v4, 4, v2', f'v_lshlrev_b32 {V(DB)}, 4, v2')
    a.e('s_and_b32 s28, s29, 3', 's_lshr_b32 s47, s28, 1', 's_and_b32 s48, s28, 1')
    a.e('s_cmp_lt_u32 s29, 4', f's_cbranch_scc1 {L}_comp')
    for i in range(4):
        a.e(f'v_add_u32 v5, {4*(i&1)}, v4', 'v_lshlrev_b32 v5, 1, v5', 'v_xor_b32 v5, v5, v3', 'v_lshlrev_b32 v5, 4, v5', 'v_lshl_add_u32 v5, v4, 10, v5',
            f'v_add_u32 {V(DA+i)}, {(16*(i&1) + 8*(i>>1) - i)*1024}, v5')
    a.e('s_lshl_b32 s49, s47, 15', 's_lshl_b32 s50, s48, 12', 's_add_u32 s36, s49, s50')
    a.e('s_lshl_b32 s49, s44, 20', 's_lshl_b32 s50, s46, 8', 's_add_u32 s49, s49, s50', 's_add_u32 s36, s49, s36')
    a.e('s_lshl_b32 s49, s45, 1', 's_add_u32 s49, s49, s47', 's_lshl_b32 s49, s49, 19', 's_lshl_b32 s50, s44, 17', 's_add_u32 s49, s49, s50',
        's_lshl_b32 s50, s48, 12', 's_add_u32 s49, s49, s50', f's_add_u32 s37, s49, {WS_O}')
    a.e('s_mov_b32 s34, 0', 's_mov_b32 s35, 0', 's_lshl_b32 s30, s28, 12')
    a.e('s_waitcnt lgkmcnt(0)')
    srd(a, 8, 4, 5, 0, add='s36'); a.e('s_sub_u32 s10, 4194304, s36'); srd(a, 12, 6, 7, 131072, add='s37')
    def dma(slot):
        a.e(f's_add_u32 m0, s30, {slot*32768+16384}', 's_nop 0')
        for i in range(4): a.e(f'buffer_load_dwordx4 {V(DB)}, s[12:15], s35 offen offset:{1024*i} lds')
        a.e(f's_add_u32 m0, s30, {slot*32768}', 's_add_u32 s35, s35, 8192')
        for i in range(4): a.e(f'buffer_load_dwordx4 {V(DA+i)}, s[8:11], s34 offen offset:{1024*i} lds')
        a.e('s_add_u32 s34, s34, 65536')
    if opt.get('o_nodma'):
        dma = lambda slot: None
    dma(0); dma(1)
    a.e('s_waitcnt vmcnt(8)', 's_barrier')
    dma(2)
    if opt.get('o_depth', 4) == 3:
        for st in range(16):
            a.e(f's_waitcnt vmcnt({8 if st < 14 else 0})', 's_barrier')
            if st + 3 < 16: dma((st+3) % 4)
    else:
        a.e('s_waitcnt vmcnt(8)', 's_barrier'); dma(3); dma(0)
        for st in range(1, 16):
            a.e(f's_waitcnt vmcnt({min(16, 8*max(14-st, 0))})', 's_barrier')
            if st + 4 < 16: dma(st % 4)
    a.e(f's_branch {L}_end')
    a.e(f'{L}_comp:')
    if opt.get('prio', 1): a.e('s_setprio 1')
    a.e('v_lshrrev_b32 v5, 2, v2', 'v_and_b32 v6, 3, v2', 'v_lshlrev_b32 v7, 8, v5', 'v_lshl_add_u32 v7, v6, 3, v7', 'v_and_b32 v5, 7, v5', 's_lshl_b32 s49, s48, 2')
    for nb in range(4): a.e(f's_add_u32 s50, s49, {nb}', 'v_xor_b32 v28, s50, v5', f'v_lshl_add_u32 {V(RA+nb)}, v28, 5, v7', f'v_add_u32 {V(RA+4+nb)}, 0x10000, {V(RA+nb)}')
    a.e('v_bfe_u32 v5, v2, 2, 2', 'v_lshrrev_b32 v7, 5, v2', 'v_lshl_add_u32 v5, v7, 3, v5', 'v_lshlrev_b32 v7, 2, v6', 'v_xor_b32 v5, v5, v7', 'v_lshl_add_u32 v5, v6, 4, v5')
    a.e('v_and_b32 v7, 1, v4', 'v_lshlrev_b32 v7, 3, v7', 'v_lshl_add_u32 v5, v5, 4, v7', 's_lshl_b32 s49, s47, 13', 's_add_u32 s49, s49, 16384')
    a.e(f'v_add_u32 {V(RB)}, s49, v5', 'v_xor_b32 v5, 64, v5', f'v_add_u32 {V(RB+1)}, s49, v5', f'v_add_u32 {V(RB+2)}, 0x10000, {V(RB)}', f'v_add_u32 {V(RB+3)}, 0x10000, {V(RB+1)}')
    for i in range(64): a.e(f'v_mov_b32 {V(ACC+i)}, 0')
    a.e('s_lshl_b32 s49, s45, 1', 's_add_u32 s49, s49, s47', 's_lshl_b32 s49, s49, 16', 's_lshl_b32 s50, s44, 21', 's_add_u32 s49, s49, s50',
        's_lshl_b32 s50, s46, 12', 's_add_u32 s49, s49, s50', 's_lshl_b32 s50, s48, 11', 's_add_u32 s49, s49, s50', f's_add_u32 s49, s49, {WS_PART}')
    a.e('s_waitcnt lgkmcnt(0)')
    srd(a, 16, 6, 7, 65536, add='s49')
    def reads(slot, p):
        hi = slot >> 1; base = (slot & 1)*32768
        ra = [f'ds_read_b64_tr_b16 {A(FA[p]+8*x+4*tt+2*v,2)}, {V(RA+4*hi+x)} offset:{base+tt*8192+v*4096}' for x in range(4) for tt in range(2) for v in range(2)]
        rb = [f'ds_read_b64_tr_b16 {A(FB[p]+8*x+4*tt+2*u,2)}, {V(RB+2*hi+u)} offset:{base+tt*4096+x*1024}' for x in range(4) for tt in range(2) for u in range(2)]
        return ra[:4] + rb + ra[4:]
    sc = Sched(a, age=6)
    a.e('s_barrier'); tl_mark(a, 0)
    for r in reads(0, 0): sc.emit_filler(r)
    a.e('s_mov_b32 s38, 0', f'{L}_loop:')
    per = opt.get('o_rpg', 2)
    for st in range(4):
        p = st & 1
        a.e('s_waitcnt lgkmcnt(0)', 's_barrier'); sc.pend = []
        mf = [f'{MF} {V(ACC+16*nb+4*qb,4)}, {A(FA[p]+8*nb+4*tt,4)}, {A(FB[p]+8*qb+4*tt,4)}, {V(ACC+16*nb+4*qb,4)}' for nb in range(4) for qb in range(4) for tt in range(2)]
        gaps = [[] for _ in mf]
        rd = reads((st+1) % 4, p ^ 1)
        g = 0
        for i, r in enumerate(rd):
            gaps[int(i*opt.get('o_span', 24)/32)].append(r)
        if opt.get('o_nords'): gaps = [[] for _ in mf]
        if opt.get('o_nomf'): mf = ['s_nop 0 , x, y' for x in mf]; mf = ['s_nop 0' for x in mf]
        if st == 3: gaps[30] += ['s_add_u32 s38, s38, 1', 's_cmp_lt_u32 s38, 4']
        if opt.get('o_nomf'):
            for g in range(32): a.e(gaps[g])
        else: sc.run(mf, gaps)
    a.e(f's_cbranch_scc1 {L}_loop'); tl_mark(a, 1)
    n = 0
    for jp in range(2):
        for qb in range(4):
            t = 32 + 4*n; n += 1
            for u in range(2):
                b = ACC + 16*(2*jp+u) + 4*qb
                a.e(f'v_cvt_pk_bf16_f32 {V(t+2*u)}, {V(b)}, {V(b+1)}', f'v_cvt_pk_bf16_f32 {V(t+2*u+1)}, {V(b+2)}, {V(b+3)}')
            a.e(f's_mov_b32 s50, {qb*16384}', f'buffer_store_dwordx4 {V(t,4)}, {V(DB)}, s[16:19], s50 offen offset:{1024*jp}{WT}')
    a.e('s_waitcnt lgkmcnt(0)'); tl_end(a); a.e(f'{L}_end:', 's_endpgm')
    return dict(label=L, grid=256, block=512, lds=131072, vgpr=256, accum=128)

def gen_red(a, opt):
    L = 'red_kernel'
    kernel_head(a, L)
    a.e('s_cmp_ge_u32 s2, 256', f's_cbranch_scc1 {L}_end')
    tl_start(a)
    a.e('s_load_dwordx2 s[4:5], s[0:1], 0', 's_load_dwordx2 s[6:7], s[0:1], 104')
    a.e('v_lshrrev_b32 v2, 6, v0', 'v_and_b32 v3, 7, v0', 'v_bfe_u32 v4, v0, 3, 2', 'v_bfe_u32 v5, v0, 5, 1', 'v_lshl_add_u32 v6, v2, 2, v5')
    a.e('s_lshr_b32 s27, s2, 1', 's_lshl_b32 s27, s27, 14', 's_and_b32 s28, s2, 1', 's_lshl_b32 s28, s28, 7', 's_add_u32 s27, s27, s28')
    a.e('v_lshlrev_b32 v7, 10, v6', 'v_lshl_add_u32 v7, v3, 4, v7', 'v_lshl_add_u32 v7, v4, 8, v7')
    a.e('v_lshlrev_b32 v8, 10, v3', 'v_lshl_add_u32 v8, v6, 6, v8', 'v_lshl_add_u32 v8, v4, 3, v8', 's_lshl_b32 s26, s2, 13')
    a.e('v_lshlrev_b32 v9, 7, v6', 'v_lshl_add_u32 v9, v4, 4, v9')
    a.e('s_waitcnt lgkmcnt(0)')
    srd(a, 8, 6, 7, 8388608, add=WS_PART); srd(a, 12, 4, 5, 2097152); srd(a, 16, 6, 7, 12288)
    PT = 16; XR = 48; GA = 56; CB = 72; SB = 88; F = 104
    for ks in range(4):
        a.e(f's_add_u32 s29, s27, {ks << 21}')
        for i in range(2): a.e(f'buffer_load_dwordx4 {V(PT+8*ks+4*i,4)}, v7, s[8:11], s29 offen offset:{2048*i}')
    for i in range(2):
        for v in range(2): a.e(f'buffer_load_dwordx2 {V(XR+4*i+2*v,2)}, v8, s[12:15], s26 offen offset:{128*i+32*v}')
    for part, reg in ((2, GA), (4, CB), (3, SB)):
        a.e(f's_mov_b32 s29, {part*2048}')
        for i in range(2):
            for v in range(2): a.e(f'buffer_load_dwordx4 {V(reg+8*i+4*v,4)}, v9, s[16:19], s29 offen offset:{256*i+64*v}')
    srd(a, 20, 6, 7, 2097152, add=WS_X1); srd(a, 32, 6, 7, 2097152, add=WS_H2)
    a.e('v_lshlrev_b32 v12, 2, v3', 'v_lshl_add_u32 v13, v2, 5, v12')
    for ks in range(4):
        a.e(f's_waitcnt vmcnt({22-2*ks})')
        if ks in (0, 3): tl_mark(a, 0 if ks == 0 else 1)
        for r in range(8):
            src = V(PT+8*ks+r)
            if ks == 0: a.e(f'v_lshlrev_b32 {V(F+2*r)}, 16, {src}', f'v_and_b32 {V(F+2*r+1)}, 0xffff0000, {src}')
            else: a.e(f'v_lshlrev_b32 v10, 16, {src}', f'v_and_b32 v11, 0xffff0000, {src}', f'v_add_f32 {V(F+2*r)}, {V(F+2*r)}, v10', f'v_add_f32 {V(F+2*r+1)}, {V(F+2*r+1)}, v11')
    a.e('s_waitcnt vmcnt(8)')
    for r in range(8): a.e(f'v_lshlrev_b32 {V(PT+2*r)}, 16, {V(XR+r)}', f'v_and_b32 {V(PT+2*r+1)}, 0xffff0000, {V(XR+r)}')
    for e in range(16): a.e(f'v_fmac_f32 {V(PT+e)}, {V(F+e)}, {V(GA+e)}')
    for r in range(8): a.e(f'v_cvt_pk_bf16_f32 {V(XR+r)}, {V(PT+2*r)}, {V(PT+2*r+1)}')
    for i in range(2): a.e(f'buffer_store_dwordx4 {V(XR+4*i,4)}, v7, s[20:23], s27 offen offset:{2048*i}{opt.get("wt_r", " sc1")}')
    for r in range(8): a.e(f'v_lshlrev_b32 {V(F+2*r)}, 16, {V(XR+r)}', f'v_and_b32 {V(F+2*r+1)}, 0xffff0000, {V(XR+r)}')
    a.e(f'v_add_f32 v10, {V(F)}, {V(F+1)}', f'v_add_f32 v11, {V(F+2)}, {V(F+3)}')
    for e in range(4, 16, 2): a.e(f'v_add_f32 v10, v10, {V(F+e)}', f'v_add_f32 v11, v11, {V(F+e+1)}')
    a.e('v_add_f32 v10, v10, v11'); lane8_sum(a, 'v10', 'v11')
    a.e('ds_write_b32 v13, v10', 's_waitcnt lgkmcnt(0)', 's_barrier')
    for i in range(4): a.e(f'ds_read_b32 v{24+i}, v12 offset:{32*i}')
    a.e('s_waitcnt lgkmcnt(0)', 'v_add_f32 v24, v24, v25', 'v_add_f32 v26, v26, v27', 'v_add_f32 v24, v24, v26', f'v_mul_f32 v24, {f32hex(1/512)}, v24')
    for e in range(16): a.e(f'v_sub_f32 {V(F+e)}, {V(F+e)}, v24')
    a.e(f'v_mul_f32 v10, {V(F)}, {V(F)}', f'v_mul_f32 v11, {V(F+1)}, {V(F+1)}')
    for e in range(2, 16, 2): a.e(f'v_fmac_f32 v10, {V(F+e)}, {V(F+e)}', f'v_fmac_f32 v11, {V(F+e+1)}, {V(F+e+1)}')
    a.e('v_add_f32 v10, v10, v11'); lane8_sum(a, 'v10', 'v11')
    a.e('ds_write_b32 v13, v10 offset:128', 's_waitcnt lgkmcnt(0)', 's_barrier')
    for i in range(4): a.e(f'ds_read_b32 v{24+i}, v12 offset:{128+32*i}')
    a.e('s_waitcnt lgkmcnt(0)', 'v_add_f32 v24, v24, v25', 'v_add_f32 v26, v26, v27', 'v_add_f32 v24, v24, v26')
    a.e(f'v_mov_b32 v25, {f32hex(1e-5)}', f'v_fmac_f32 v25, {f32hex(1/512)}, v24', 'v_rsq_f32 v25, v25', 's_waitcnt vmcnt(2)')
    for e in range(16): a.e(f'v_mul_f32 {V(F+e)}, {V(F+e)}, v25')
    for e in range(16): a.e(f'v_fma_f32 {V(F+e)}, {V(F+e)}, {V(CB+e)}, {V(SB+e)}')
    for r in range(8): a.e(f'v_cvt_pk_bf16_f32 {V(PT+r)}, {V(F+2*r)}, {V(F+2*r+1)}')
    for i in range(2): a.e(f'buffer_store_dwordx4 {V(PT+4*i,4)}, v7, s[32:35], s27 offen offset:{2048*i}{opt.get("wt_r", " sc1")}')
    tl_end(a); a.e(f'{L}_end:', 's_endpgm')
    return dict(label=L, grid=256, block=256, lds=512, vgpr=120, accum=120)

def gen_post(a, opt):
    ks = [gen_oproj(a, opt), gen_red(a, opt), gen_gateup(a, opt), gen_down(a, opt)]
    return ks
```

```python
from asmlib import *
import struct, math
def f32hex(x): return hex(struct.unpack('<I', struct.pack('<f', x))[0])

WS_MOD = 0
WS_MODQ = 16384
WS_H   = 1 << 20
WS_O   = 4 << 20
WS_PART = 20 << 20
WS_X1  = 28 << 20
WS_H2  = 30 << 20
WS_HH  = 32 << 20
WS_FLAG = 65536
WS_ST  = 40 << 20
QSCALE = math.log2(math.e) / math.sqrt(128.0)

def round_bf16(a, dst, src):
    a.e(f'v_cvt_pk_bf16_f32 {dst}, {src}, {src}', f'v_and_b32 {dst}, 0xffff0000, {dst}')

def code_prefetch(a, L, nwg_per_xcd, dst):
    a.e('s_getpc_b64 s[30:31]', f'{L}_pc:', f's_sub_u32 s30, s30, {L}_pc - code_begin', 's_subb_u32 s31, s31, 0')
    a.e('s_lshr_b32 s32, s2, 3', 's_lshl_b32 s32, s32, 14', f'v_lshlrev_b32 {dst}, 6, v0', f'v_add_u32 {dst}, s32, {dst}',
        f'v_min_u32 {dst}, code_end - code_begin - 4, {dst}', f'global_load_dword {dst}, {dst}, s[30:31]')

def gen_mod(a, opt=None):
    opt = opt or {}
    L = 'mod_kernel'
    a.e('.text', 'code_begin:')
    kernel_head(a, L)
    a.e('s_cmp_ge_u32 s2, 96', f's_cbranch_scc1 {L}_end')
    tl_start(a)
    if opt.get('cpf', 1): code_prefetch(a, L, 12, 'v63')
    a.e('s_load_dwordx4 s[4:7], s[0:1], 72')
    a.e('s_load_dwordx2 s[20:21], s[0:1], 104')
    a.e('v_lshrrev_b32 v1, 2, v0')
    a.e('v_and_b32 v2, 3, v0')
    a.e('v_lshlrev_b32 v3, 1, v1')
    a.e('s_mov_b32 s22, 6144', 'v_mul_lo_u32 v4, v1, s22', 'v_lshl_add_u32 v4, v2, 4, v4')
    a.e('s_lshl_b32 s23, s2, 6')
    a.e('v_add_u32 v4, s23, v4')
    a.e('s_waitcnt lgkmcnt(0)')
    srd(a, 8, 4, 5, 1024); srd(a, 12, 6, 7, 512*6144); srd(a, 16, 20, 21, 12288)
    for i in range(8): a.e(f'buffer_load_ushort v{8+i}, v3, s[8:11], 0 offen offset:{i*128}')
    a.e('s_mov_b32 s24, 0')
    for i in range(8):
        a.e(f'buffer_load_dwordx4 v[{16+4*i}:{19+4*i}], v4, s[12:15], s24 offen nt')
        if i < 7: a.e(f's_add_u32 s24, s24, {64*6144}')
    for j in range(8): a.e(f'v_mov_b32 v{48+j}, 0')
    a.e('s_waitcnt vmcnt(8)')
    a.e(f's_mov_b32 s25, {f32hex(-math.log2(math.e))}')
    for i in range(8): a.e(f'v_lshlrev_b32 v{8+i}, 16, v{8+i}')
    for i in range(8): a.e(f'v_mul_f32 v{64+i}, s25, v{8+i}')
    for i in range(8): a.e(f'v_exp_f32 v{64+i}, v{64+i}')
    a.e('s_nop 0')
    for i in range(8): a.e(f'v_add_f32 v{64+i}, 1.0, v{64+i}')
    for i in range(8): a.e(f'v_rcp_f32 v{64+i}, v{64+i}')
    a.e('s_nop 0')
    for i in range(8): a.e(f'v_mul_f32 v{8+i}, v{8+i}, v{64+i}')
    for i in range(8): round_bf16(a, f'v{8+i}', f'v{8+i}')
    for i in range(8):
        a.e(f's_waitcnt vmcnt({7-i})')
        for d in range(4):
            w = 16+4*i+d
            a.e(f'v_lshlrev_b32 v5, 16, v{w}', f'v_and_b32 v6, 0xffff0000, v{w}',
                f'v_fmac_f32 v{48+2*d}, v5, v{8+i}', f'v_fmac_f32 v{49+2*d}, v6, v{8+i}')
    a.e('v_mul_u32_u24 v5, 144, v1', 'v_lshl_add_u32 v5, v2, 5, v5')
    a.e('ds_write_b128 v5, v[48:51]', 'ds_write_b128 v5, v[52:55] offset:16', 's_waitcnt lgkmcnt(0)', 's_barrier')
    a.e('v_and_b32 v6, 31, v0', 'v_lshrrev_b32 v7, 5, v0', 'v_mul_u32_u24 v5, 1152, v7', 'v_lshl_add_u32 v5, v6, 2, v5')
    for i in range(8): a.e(f'ds_read_b32 v{16+i}, v5 offset:{144*i}')
    a.e('s_waitcnt lgkmcnt(0)')
    for i in range(1, 8): a.e(f'v_add_f32 v16, v16, v{16+i}')
    a.e('v_lshlrev_b32 v5, 2, v0', 'ds_write_b32 v5, v16 offset:9216', 's_waitcnt lgkmcnt(0)', 's_barrier')
    a.e('v_cmp_gt_u32 vcc, 32, v0', 's_and_saveexec_b64 s[26:27], vcc', f's_cbranch_execz {L}_end')
    for i in range(8): a.e(f'ds_read_b32 v{16+i}, v5 offset:{9216+128*i}')
    a.e('s_waitcnt lgkmcnt(0)')
    for i in range(1, 8): a.e(f'v_add_f32 v16, v16, v{16+i}')
    round_bf16(a, 'v16', 'v16')
    a.e('s_lshr_b32 s28, s2, 4', 's_cmp_eq_u32 s28, 1', 's_cselect_b32 s29, 1, 0', 's_cmp_eq_u32 s28, 4', 's_cselect_b32 s29, 1, s29', 's_cmp_eq_u32 s29, 0', f's_cbranch_scc1 {L}_st')
    a.e('v_add_f32 v16, 1.0, v16'); round_bf16(a, 'v16', 'v16')
    a.e(f'{L}_st:', 's_lshl_b32 s23, s2, 7', 'v_add_u32 v5, s23, v5', 'buffer_store_dword v16, v5, s[16:19], 0 offen', 's_waitcnt vmcnt(0)')
    tl_end(a); a.e(f'{L}_end:', 's_endpgm')
    return dict(label=L, grid=96, block=256, lds=10240, vgpr=72, accum=72)

def xlane_sum(a, v, t):
    a.e(f'v_mov_b32 {t}, {v}', 's_nop 1', f'v_permlane32_swap_b32 {v}, {t}', 's_nop 1', f'v_add_f32 {v}, {v}, {t}',
        f'v_mov_b32 {t}, {v}', 's_nop 1', f'v_permlane16_swap_b32 {v}, {t}', 's_nop 1', f'v_add_f32 {v}, {v}, {t}')

def gen_ln(a, L, src, shift_part, scale_part, dst_off, outscale):
    kernel_head(a, L)
    a.e('s_cmp_ge_u32 s2, 128', f's_cbranch_scc1 {L}_end')
    tl_start(a)
    a.e('s_load_dwordx2 s[4:5], s[0:1], 0', 's_load_dwordx2 s[20:21], s[0:1], 104')
    a.e('v_and_b32 v1, 63, v0', 'v_lshrrev_b32 v2, 6, v0', 'v_and_b32 v3, 15, v0', 'v_bfe_u32 v4, v0, 4, 2')
    a.e('s_lshl_b32 s22, s2, 14', 'v_lshlrev_b32 v5, 12, v2', 'v_lshl_add_u32 v5, v1, 4, v5', 'v_add_u32 v5, s22, v5')
    if src == 'x':
        a.e('v_lshlrev_b32 v6, 10, v3', 'v_lshl_add_u32 v6, v2, 8, v6', 'v_lshl_add_u32 v6, v4, 4, v6', 'v_add_u32 v6, s22, v6')
    a.e('v_lshlrev_b32 v7, 9, v2', 'v_lshl_add_u32 v7, v4, 5, v7')
    a.e('s_waitcnt lgkmcnt(0)')
    if src == 'x': srd(a, 8, 4, 5, 2097152)
    else: srd(a, 8, 20, 21, 2097152, add=src)
    srd(a, 12, 20, 21, 12288); srd(a, 16, 20, 21, 2097152, add=dst_off)
    for j in range(4):
        if src == 'x': a.e(f'buffer_load_dwordx4 v[{16+4*j}:{19+4*j}], v6, s[8:11], 0 offen offset:{64*j}')
        else: a.e(f'buffer_load_dwordx4 v[{16+4*j}:{19+4*j}], v5, s[8:11], 0 offen offset:{1024*j}')
    a.e(f's_mov_b32 s23, {scale_part*2048}', f's_mov_b32 s24, {shift_part*2048}')
    for j in range(4):
        for hh in range(2):
            a.e(f'buffer_load_dwordx4 v[{64+8*j+4*hh}:{67+8*j+4*hh}], v7, s[12:15], s23 offen offset:{128*j+16*hh}')
            a.e(f'buffer_load_dwordx4 v[{96+8*j+4*hh}:{99+8*j+4*hh}], v7, s[12:15], s24 offen offset:{128*j+16*hh}')
    a.e('s_waitcnt vmcnt(16)')
    for i in range(16):
        a.e(f'v_lshlrev_b32 v{32+2*i}, 16, v{16+i}', f'v_and_b32 v{33+2*i}, 0xffff0000, v{16+i}')
    a.e('v_add_f32 v8, v32, v33')
    for i in range(2, 32): a.e(f'v_add_f32 v8, v8, v{32+i}')
    xlane_sum(a, 'v8', 'v9')
    a.e('v_lshlrev_b32 v10, 2, v3', 'v_lshl_add_u32 v11, v2, 6, v10', 'ds_write_b32 v11, v8', 's_waitcnt lgkmcnt(0)', 's_barrier')
    for i in range(4): a.e(f'ds_read_b32 v{12+i}, v10 offset:{64*i}')
    a.e('s_waitcnt lgkmcnt(0)', 'v_add_f32 v12, v12, v13', 'v_add_f32 v14, v14, v15', 'v_add_f32 v12, v12, v14')
    a.e(f'v_mul_f32 v12, {f32hex(1/512)}, v12')
    for i in range(32): a.e(f'v_sub_f32 v{32+i}, v{32+i}, v12')
    a.e('v_mul_f32 v8, v32, v32')
    for i in range(1, 32): a.e(f'v_fmac_f32 v8, v{32+i}, v{32+i}')
    xlane_sum(a, 'v8', 'v9')
    a.e('ds_write_b32 v11, v8 offset:256', 's_waitcnt lgkmcnt(0)', 's_barrier')
    for i in range(4): a.e(f'ds_read_b32 v{12+i}, v10 offset:{256+64*i}')
    a.e('s_waitcnt lgkmcnt(0)', 'v_add_f32 v12, v12, v13', 'v_add_f32 v14, v14, v15', 'v_add_f32 v12, v12, v14')
    a.e(f'v_mov_b32 v13, {f32hex(1e-5)}', f'v_fmac_f32 v13, {f32hex(1/512)}, v12', 'v_rsq_f32 v13, v13', 's_nop 0')
    a.e('s_waitcnt vmcnt(0)')
    for i in range(32): a.e(f'v_mul_f32 v{32+i}, v{32+i}, v13')
    for i in range(32): a.e(f'v_fma_f32 v{32+i}, v{32+i}, v{64+i}, v{96+i}')
    if outscale != 1.0:
        a.e(f's_mov_b32 s25, {f32hex(outscale)}')
        for i in range(32): a.e(f'v_mul_f32 v{32+i}, s25, v{32+i}')
    for i in range(16): a.e(f'v_cvt_pk_bf16_f32 v{16+i}, v{32+2*i}, v{33+2*i}')
    for j in range(4): a.e(f'buffer_store_dwordx4 v[{16+4*j}:{19+4*j}], v5, s[16:19], 0 offen offset:{1024*j}')
    a.e('s_waitcnt vmcnt(0)'); tl_end(a); a.e(f'{L}_end:', 's_endpgm')
    return dict(label=L, grid=128, block=256, lds=512, vgpr=128, accum=128)

def lane8_sum(a, v, t):
    xlane_sum(a, v, t)
    a.e('s_nop 1', f'v_add_f32_dpp {v}, {v}, {v} row_ror:8 row_mask:0xf bank_mask:0xf')

def gen_pre(a, opt):
    L = 'pre_kernel'
    a.e('.text', 'code_begin:')
    kernel_head(a, L)
    a.e('s_cmp_ge_u32 s2, 352', f's_cbranch_scc1 {L}_end')
    tl_start(a)
    a.e('s_cmp_lt_u32 s2, 96', f's_cbranch_scc1 {L}_mod')
    a.e('s_mov_b32 s3, s2', 's_sub_u32 s2, s2, 96')
    a.e('s_load_dwordx4 s[4:7], s[0:1], 0', 's_load_dwordx4 s[36:39], s[0:1], 16', 's_load_dwordx2 s[20:21], s[0:1], 104')
    a.e('v_and_b32 v1, 63, v0', 'v_lshrrev_b32 v2, 6, v0', 'v_and_b32 v3, 7, v0', 'v_bfe_u32 v4, v0, 3, 2', 'v_bfe_u32 v5, v0, 5, 1')
    a.e('s_and_b32 s22, s2, 1', 's_lshl_b32 s22, s22, 7', 's_bfe_u32 s23, s2, 0x20001', 's_lshl_b32 s24, s23, 5', 's_add_u32 s22, s22, s24', 's_lshr_b32 s25, s2, 3', 's_add_u32 s22, s22, s25')
    a.e('s_lshl_b32 s26, s22, 13', 'v_lshl_add_u32 v6, v2, 2, v5', 'v_lshlrev_b32 v7, 10, v3', 'v_lshl_add_u32 v7, v6, 6, v7', 'v_lshl_add_u32 v7, v4, 4, v7')
    a.e('s_waitcnt lgkmcnt(0)')
    srd(a, 8, 4, 5, 2097152)
    for i in range(2): a.e(f'buffer_load_dwordx4 v[{16+4*i}:{19+4*i}], v7, s[8:11], s26 offen offset:{128*i}')
    npf = 0
    fl = ' nt' if opt.get('pfnt', 0) else ''
    if opt.get('l2pf', 1):
        srd(a, 12, 38, 39, 4194304)
        a.e('v_lshrrev_b32 v8, 4, v0', 'v_lshlrev_b32 v8, 13, v8', 'v_and_b32 v9, 15, v0', 'v_lshl_add_u32 v8, v9, 7, v8', 's_lshl_b32 s27, s25, 17', 's_lshl_b32 s28, s23, 11', 's_add_u32 s27, s27, s28')
        a.e(f'buffer_load_dword v10, v8, s[12:15], s27 offen{fl}'); npf += 1
        if opt.get('pf64', 1): a.e(f'buffer_load_dword v10, v8, s[12:15], s27 offen offset:64{fl}'); npf += 1
        a.e('s_lshl_b32 s27, s23, 3', 's_and_b32 s28, s25, 7', 's_add_u32 s27, s27, s28', 's_lshl_b32 s27, s27, 19', 's_lshr_b32 s28, s25, 3')
        a.e('s_mul_i32 s29, s28, 12288', 's_add_u32 s29, s29, s27', 's_mul_i32 s28, s28, 6144', 's_add_u32 s28, s28, s27')
        srd(a, 12, 6, 7, 16777216); srd(a, 40, 36, 37, 16777216)
        a.e('v_lshlrev_b32 v8, 6, v0', 'v_min_u32 v9, 12224, v8', f'buffer_load_dword v10, v9, s[12:15], s29 offen{fl}', 'v_min_u32 v9, 6080, v8', f'buffer_load_dword v10, v9, s[40:43], s28 offen{fl}'); npf += 2
    if opt.get('cpf', 1): code_prefetch(a, L, 32, 'v11'); npf += 1
    a.e('s_lshr_b32 s27, s22, 1', 's_lshl_b32 s27, s27, 14', 's_and_b32 s28, s22, 1', 's_lshl_b32 s28, s28, 7', 's_add_u32 s27, s27, s28')
    a.e('v_lshlrev_b32 v7, 10, v6', 'v_lshl_add_u32 v7, v3, 4, v7', 'v_lshl_add_u32 v7, v4, 8, v7')
    srd(a, 16, 20, 21, 2097152, add=WS_H)
    a.e('v_lshlrev_b32 v12, 2, v3', 'v_lshl_add_u32 v13, v2, 5, v12')
    srd(a, 44, 20, 21, 65536, add=WS_FLAG)
    a.e('s_lshl_b32 s28, s2, 6', 'v_lshlrev_b32 v14, 14, v2', 'v_mov_b32 v15, 0', 's_mov_b64 exec, 1', 'buffer_store_dword v15, v14, s[44:47], s28 offen sc1', 's_mov_b64 exec, -1'); npf += 1
    a.e(f's_waitcnt vmcnt({npf})')
    for i in range(8): a.e(f'v_lshlrev_b32 v{32+2*i}, 16, v{16+i}', f'v_and_b32 v{33+2*i}, 0xffff0000, v{16+i}')
    a.e('v_add_f32 v8, v32, v33', 'v_add_f32 v9, v34, v35')
    for i in range(4, 16, 2): a.e(f'v_add_f32 v8, v8, v{32+i}', f'v_add_f32 v9, v9, v{33+i}')
    a.e('v_add_f32 v8, v8, v9')
    lane8_sum(a, 'v8', 'v9')
    a.e('ds_write_b32 v13, v8', 's_waitcnt lgkmcnt(0)', 's_barrier')
    for i in range(4): a.e(f'ds_read_b32 v{24+i}, v12 offset:{32*i}')
    a.e('s_waitcnt lgkmcnt(0)', 'v_add_f32 v24, v24, v25', 'v_add_f32 v26, v26, v27', 'v_add_f32 v24, v24, v26', f'v_mul_f32 v24, {f32hex(1/512)}, v24')
    for i in range(16): a.e(f'v_sub_f32 v{32+i}, v{32+i}, v24')
    a.e('v_mul_f32 v8, v32, v32', 'v_mul_f32 v9, v33, v33')
    for i in range(2, 16, 2): a.e(f'v_fmac_f32 v8, v{32+i}, v{32+i}', f'v_fmac_f32 v9, v{33+i}, v{33+i}')
    a.e('v_add_f32 v8, v8, v9')
    lane8_sum(a, 'v8', 'v9')
    a.e('ds_write_b32 v13, v8 offset:128', 's_waitcnt lgkmcnt(0)', 's_barrier')
    for i in range(4): a.e(f'ds_read_b32 v{24+i}, v12 offset:{128+32*i}')
    a.e('s_waitcnt lgkmcnt(0)', 'v_add_f32 v24, v24, v25', 'v_add_f32 v26, v26, v27', 'v_add_f32 v24, v24, v26')
    a.e(f'v_mov_b32 v25, {f32hex(1e-5)}', f'v_fmac_f32 v25, {f32hex(1/512)}, v24', 'v_rsq_f32 v25, v25', 's_nop 0')
    for i in range(16): a.e(f'v_mul_f32 v{32+i}, v{32+i}, v25')
    for i in range(8): a.e(f'v_cvt_pk_f16_f32 v{16+i}, v{32+2*i}, v{33+2*i}')
    for i in range(2): a.e(f'buffer_store_dwordx4 v[{16+4*i}:{19+4*i}], v7, s[16:19], s27 offen offset:{2048*i}{opt.get("wt_p", " sc1")}')
    a.e('s_mov_b32 s2, s3', f's_branch {L}_fin')
    a.e(f'{L}_mod:')
    a.e('s_load_dwordx4 s[4:7], s[0:1], 72', 's_load_dwordx2 s[20:21], s[0:1], 104', 's_mov_b32 s33, s2')
    a.e('v_lshrrev_b32 v1, 2, v0', 'v_and_b32 v2, 3, v0', 'v_lshlrev_b32 v3, 1, v1')
    a.e('s_mov_b32 s22, 6144', 'v_mul_lo_u32 v4, v1, s22', 'v_lshl_add_u32 v4, v2, 4, v4', 's_lshl_b32 s23, s33, 6', 'v_add_u32 v4, s23, v4')
    a.e('s_waitcnt lgkmcnt(0)')
    srd(a, 8, 4, 5, 1024); srd(a, 12, 6, 7, 512*6144)
    for i in range(8): a.e(f'buffer_load_ushort v{8+i}, v3, s[8:11], 0 offen offset:{i*128}')
    a.e('s_mov_b32 s24, 0')
    for i in range(8):
        a.e(f'buffer_load_dwordx4 v[{16+4*i}:{19+4*i}], v4, s[12:15], s24 offen nt')
        if i < 7: a.e(f's_add_u32 s24, s24, {64*6144}')
    srd(a, 16, 20, 21, WS_MODQ + 4096)
    for j in range(8): a.e(f'v_mov_b32 v{48+j}, 0')
    a.e('v_mul_u32_u24 v7, 144, v1', 'v_lshl_add_u32 v7, v2, 5, v7')
    a.e('s_waitcnt vmcnt(8)')
    a.e(f's_mov_b32 s25, {f32hex(-math.log2(math.e))}')
    for i in range(8): a.e(f'v_lshlrev_b32 v{8+i}, 16, v{8+i}')
    for i in range(8): a.e(f'v_mul_f32 v{56+i}, s25, v{8+i}')
    for i in range(8): a.e(f'v_exp_f32 v{56+i}, v{56+i}')
    a.e('s_nop 0')
    for i in range(8): a.e(f'v_add_f32 v{56+i}, 1.0, v{56+i}')
    for i in range(8): a.e(f'v_rcp_f32 v{56+i}, v{56+i}')
    a.e('s_nop 0')
    for i in range(8): a.e(f'v_mul_f32 v{8+i}, v{8+i}, v{56+i}')
    for i in range(8): round_bf16(a, f'v{8+i}', f'v{8+i}')
    for i in range(8):
        a.e(f's_waitcnt vmcnt({7-i})')
        for d in range(4):
            w = 16+4*i+d
            a.e(f'v_lshlrev_b32 v5, 16, v{w}', f'v_and_b32 v6, 0xffff0000, v{w}', f'v_fmac_f32 v{48+2*d}, v5, v{8+i}', f'v_fmac_f32 v{49+2*d}, v6, v{8+i}')
    a.e('ds_write_b128 v7, v[48:51]', 'ds_write_b128 v7, v[52:55] offset:16')
    a.e('v_and_b32 v6, 31, v0', 'v_lshrrev_b32 v7, 5, v0', 'v_mul_u32_u24 v5, 1152, v7', 'v_lshl_add_u32 v5, v6, 2, v5')
    a.e('s_waitcnt lgkmcnt(0)', 's_barrier')
    for i in range(8): a.e(f'ds_read_b32 v{16+i}, v5 offset:{144*i}')
    a.e('v_lshlrev_b32 v5, 2, v0', 's_waitcnt lgkmcnt(0)')
    for i in range(1, 8): a.e(f'v_add_f32 v16, v16, v{16+i}')
    a.e('ds_write_b32 v5, v16 offset:9216', 's_waitcnt lgkmcnt(0)', 's_barrier')
    a.e('v_cmp_gt_u32 vcc, 32, v0', 's_and_saveexec_b64 s[26:27], vcc', f's_cbranch_execz {L}_end')
    for i in range(8): a.e(f'ds_read_b32 v{16+i}, v5 offset:{9216+128*i}')
    a.e('s_lshr_b32 s28, s33, 4', 's_cmp_eq_u32 s28, 1', 's_cselect_b32 s29, 1.0, 0', 's_cmp_eq_u32 s28, 4', 's_cselect_b32 s29, 1.0, s29')
    a.e('s_lshl_b32 s23, s33, 7', 'v_add_u32 v5, s23, v5')
    a.e('s_waitcnt lgkmcnt(0)')
    for i in range(1, 8): a.e(f'v_add_f32 v16, v16, v{16+i}')
    round_bf16(a, 'v16', 'v16')
    a.e('v_add_f32 v16, s29, v16'); round_bf16(a, 'v16', 'v16')
    a.e('buffer_store_dword v16, v5, s[16:19], 0 offen')
    a.e('s_cmp_ge_u32 s28, 2', f's_cbranch_scc1 {L}_fin')
    a.e(f'v_mul_f32 v16, {f32hex(QSCALE)}, v16', 'v_xor_b32 v5, 2048, v5', f's_mov_b32 s23, {WS_MODQ}', 'buffer_store_dword v16, v5, s[16:19], s23 offen')
    a.e(f'{L}_fin:')
    if opt.get('endwait', 0): a.e('s_waitcnt vmcnt(0)')
    tl_end(a, wait=False); a.e(f'{L}_end:', 's_endpgm')
    return dict(label=L, grid=352, block=256, lds=10240, vgpr=64, accum=64)
```

```python
from asmlib import *
from gen_pre import *
import gen_fuse as gf
import re

S_ = [16, 48]; P_ = [80, 96]; CI = 112; VT = 128
KA = 144; VA = 148; DK = 156; DV = 160; LV = 162; ONES = 172; LM = 176; Q = 192
WA = 176; DW = 180; HV = 181
AO = 0; AK = 192; AV = 224
DELTA = 100.0
MF = 'v_mfma_f32_16x16x32_bf16'
NT = {'kv': '', 'wq': ''}
PF = 136

class Sched:
    def __init__(self, a, age=8):
        self.a = a
        self.pend = []
        self.t = 0; self.age = age
    @staticmethod
    def regs(tok):
        m = re.match(r'([av])\[(\d+):(\d+)\]', tok)
        if m: return {(m.group(1), i) for i in range(int(m.group(2)), int(m.group(3))+1)}
        m = re.match(r'([av])(\d+)$', tok)
        if m: return {(m.group(1), int(m.group(2)))}
        return set()
    def need(self, ins):
        ops = [t.strip() for t in ins.split(None, 1)[1].split(',')]
        rs = set()
        for t in ops[1:3]: rs |= self.regs(t.split()[0])
        last = -1
        for i, p in enumerate(self.pend):
            if p[0] & rs: last = i
        if last < 0: return None
        while last + 1 < len(self.pend) and self.pend[last+1][1] <= self.t - self.age: last += 1
        return len(self.pend) - 1 - last
    def wait(self, n):
        n = min(n, 15)
        self.a.e(f's_waitcnt lgkmcnt({n})')
        self.pend = self.pend[len(self.pend)-n:] if n else []
    def emit_filler(self, ins):
        if ins.startswith('WAITDS '):
            n = self.need('x d, ' + ins[7:])
            if n is not None: self.wait(n)
            return
        self.a.e(ins)
        if ins.startswith('ds_read') or ins.startswith('ds_bpermute'):
            self.pend.append((self.regs(ins.split(None, 1)[1].split(',')[0].strip()), self.t))
        elif ins.startswith('ds_'):
            self.pend.append((set(), self.t))
        elif ins.startswith('s_waitcnt') and 'lgkmcnt(0)' in ins:
            self.pend = []
    def run(self, mf, gaps, nextmf=None):
        n0 = self.need(mf[0]) if mf else None
        if n0 is not None: self.wait(n0)
        for g, m in enumerate(mf):
            self.a.e(m); self.t += 1
            nxt = mf[g+1] if g+1 < len(mf) else nextmf
            if nxt is not None:
                n = self.need(nxt)
                if n is not None: self.wait(n)
            for f in gaps[g]: self.emit_filler(f)
            if nxt is not None:
                n = self.need(nxt)
                if n is not None: self.wait(n)

def qk_mfmas(Sw, czero=False, order='kqt'):
    it = [(kb, qb, t) for kb in range(2) for qb in range(4) for t in range(4)] if order == 'kqt' else \
         [(kb, qb, t) for qb in range(4) for kb in range(2) for t in range(4)]
    r = []
    for kb, qb, t in it:
        d = Sw + 8*qb + 4*kb
        c = (('0' if czero else V(CI+4*qb, 4)) if t == 0 else V(d, 4))
        r.append(f'{MF} {V(d,4)}, {A(AK+16*kb+4*t,4)}, {V(Q+16*qb+4*t,4)}, {c}')
    return r

def pv_mfmas(Pr, XQ, first=False):
    r = []
    for db in range(8):
        for qb in range(4):
            o = AO + 16*db + 4*qb
            r.append(f'{MF} {A(o,4)}, {V(Pr+4*qb,4)}, {A(AV+4*db,4)}, {"0" if first else A(o,4)}')
    for qb in XQ:
        r.append(f'{MF} {V(LM+4*qb,4)}, {V(Pr+4*qb,4)}, {V(ONES,4)}, {"0" if first else V(LM+4*qb,4)}')
    return r

def vreads(base_reg, off):
    return [f'ds_read_b64_tr_b16 {A(AV+4*db+2*u,2)}, {V(base_reg+db)} offset:{off+4096*u}' for db in range(8) for u in range(2)]
def kreads(off):
    return [f'ds_read_b128 {A(AK+4*f,4)}, {V(KA+(f&3))} offset:{off+4096*(f>>2)}' for f in range(8)]

def sm_items(Sr, Pw, XQ):
    exps = [f'v_exp_f32 {V(Sr+e)}, {V(Sr+e)}' for e in range(32)]
    items = []
    for e in range(32):
        qb = e >> 3
        if qb not in XQ:
            l = LV + 2*qb + (e & 1)
            items.append((e, f'v_add_f32 {V(l)}, {V(l)}, {V(Sr+e)}'))
        if e & 1: items.append((e, f'v_cvt_pk_bf16_f32 {V(Pw+e//2)}, {V(Sr+e-1)}, {V(Sr+e)}'))
    return exps, items

def dma_group(isV, grp, m0s, soff):
    srd_ = 's[12:15]' if isV else 's[8:11]'
    st = f's_mov_b32 m0, {m0s}' if grp == 0 else f's_add_u32 m0, {m0s}, 4096'
    r = []
    for j in range(4):
        vo = DV + (j & 1) if isV else DK + j
        r.append(f'buffer_load_dwordx4 {V(vo)}, {srd_}, {soff} offen offset:{j*1024}{NT["kv"]} lds')
    return st, r

def normal_slot(sc, opt, s, dmas, kread=True, first_pv=False, late_v=None, salu=(), extra_v=()):
    XQ = opt['XQ']
    par = s & 1
    mf = qk_mfmas(S_[par ^ 1]) + pv_mfmas(P_[par ^ 1], XQ, first_pv)
    N = len(mf)
    gaps = [[] for _ in range(N)]; cap = [0 if (g < 64 and g % 2 == 0) else 2 for g in range(N)]
    pre = [[] for _ in range(N)]
    exps, items = sm_items(S_[par], P_[par], XQ)
    for e in range(32): gaps[2*e].append(exps[e])
    for n, (sal, ins) in enumerate(dmas):
        g = opt['dpos'][n]
        for k, x in enumerate(sal): pre[g-1-k].append(x)
        gaps[g].append(ins); cap[g] -= opt['dcost']
    if opt.get('nodma'):
        gaps = [[x for x in gp if not x.startswith('buffer_load')] for gp in gaps]
    for k, x in enumerate(salu): pre[40 + 2*k].append(x)
    LAT = opt.get('dslat', 10)
    ds = []
    for i, r in enumerate(vreads(VA, ((s-1) % 8)*8192)): ds.append((0, 32 + 4*(i >> 1) - LAT, r))
    if kread:
        for f, r in enumerate(kreads(((s+2) % 8)*8192)): ds.append((16 if f < 4 else 32, N - LAT if (f < 4 or (s % 4) == 3) else N - 1, r))
    if late_v is not None:
        for i, r in enumerate(late_v): ds.append((min(36 + 4*(i >> 1), N-1), N - 1, r))
    va = [(2*e + 1, N - 1, t) for e, t in items]
    for i, t in enumerate(extra_v): va.append((4*i + 1, N - 1, t))
    va.sort(key=lambda x: x[0])
    maxds = opt.get('maxds', 1)
    for g in range(N):
        nds = 0
        while cap[g] > 0:
            rd = [x for x in ds if x[0] <= g]
            rv = [x for x in va if x[0] <= g]
            pick = None
            if rd:
                rd.sort(key=lambda x: x[1])
                urgent = rd[0][1] <= g + 2*sum(1 for x in rd if x[1] <= rd[0][1] + 4)
                if nds < maxds or urgent or not rv: pick = ('d', rd[0])
            if pick is None and rv: pick = ('v', rv[0])
            if pick is None: break
            if pick[0] == 'd':
                ds.remove(pick[1]); gaps[g].insert(nds, pick[1][2]); nds += 1
            else:
                va.remove(pick[1]); gaps[g].append(pick[1][2])
            cap[g] -= 1
    gaps[N-1] = [x[2] for x in ds] + gaps[N-1] + [x[2] for x in va]
    if opt.get('verbose'): print('slot', s, 'overflow', len(ds), len(va), 'free', sum(cap))
    sc.run(mf, [pre[g] + gaps[g] for g in range(N)], nextmf=(qk_mfmas(S_[par])[0] if kread else None))

def packed(sc, mf, ds_at, exps, items, extra=None):
    N = len(mf)
    gaps = [[] for _ in range(N)]
    for g, r in ds_at: gaps[g].append(r)
    q = list(items); ne = len(exps)
    e = 0
    for g in range(N):
        k = 0
        while q and q[0][0] < e and k < 2:
            gaps[g].append(q.pop(0)[1]); k += 1
        if e < ne: gaps[g].append(exps[e]); e += 1
    assert e == ne
    if q: gaps[N-1] += ['s_nop 0'] + [x[1] for x in q]
    if extra:
        for g, x in extra: gaps[g].append(x)
    sc.run(mf, gaps)

def epoch_dmas(E, opt, mode='full'):
    p = E & 1
    r = []
    for isV in (0, 1):
        for grp in (0, 1):
            st, ins = dma_group(isV, grp, f's{30+2*isV+p}', f's{34+2*isV+grp}')
            for j, x in enumerate(ins):
                sal = [st] if j == 0 else []
                r.append([sal, x])
    return r

def stamp(a, opt, idx):
    if opt.get('stamps'):
        a.e(f's_memtime s[{80+2*idx}:{81+2*idx}]')

def gen_attn(a, opt=None):
    opt = dict(opt or {})
    opt.setdefault('XQ', [0, 2]); opt.setdefault('kpos', [33, 35, 37, 39, 41, 43, 45, 47])
    opt.setdefault('dpos', [5, 15, 25, 35, 45, 55, 61, 51]); opt.setdefault('dcost', 2); opt.setdefault('dsplit', [6, 5, 5, 0])
    XQ = opt['XQ']
    assert opt['dsplit'][3] == 0 and opt['dpos'][:max(opt['dsplit'])] == sorted(opt['dpos'][:max(opt['dsplit'])])
    NT['kv'] = ' nt' if opt.get('ntkv', 1) else ''; NT['wq'] = ' nt' if opt.get('ntwq', 1) else ''
    L = 'attn_kernel'
    kernel_head(a, L)
    a.e('s_cmp_ge_u32 s2, 256', f's_cbranch_scc1 {L}_end')
    tl_start(a)
    stamp(a, opt, 0)
    if opt.get('stamps'): a.e('s_memrealtime s[92:93]')
    a.e('s_load_dwordx4 s[4:7], s[0:1], 8', 's_load_dwordx2 s[40:41], s[0:1], 24', 's_load_dwordx2 s[42:43], s[0:1], 104')
    fuse = opt.get('fuse', 1)
    if fuse:
        a.e('s_load_dwordx2 s[80:81], s[0:1], 0', 's_load_dwordx2 s[82:83], s[0:1], 88')
    a.e('s_load_dwordx2 s[64:65], s[0:1], 32', 's_load_dwordx2 s[68:69], s[0:1], 48', 's_load_dwordx2 s[72:73], s[0:1], 56', 's_load_dwordx2 s[76:77], s[0:1], 64')
    a.e('v_lshrrev_b32 v1, 6, v0', 'v_and_b32 v2, 63, v0', 'v_readfirstlane_b32 s28, v1')
    if opt.get('map', 8) == 4:
        a.e('s_and_b32 s44, s2, 7', 's_lshl_b32 s44, s44, 2', 's_lshr_b32 s45, s2, 3', 's_and_b32 s46, s45, 3', 's_add_u32 s44, s44, s46')
        a.e('s_lshr_b32 s45, s45, 2')
    else:
        a.e('s_bfe_u32 s44, s2, 0x20001', 's_lshl_b32 s44, s44, 3', 's_bfe_u32 s46, s2, 0x30003', 's_add_u32 s44, s44, s46')
        a.e('s_and_b32 s45, s2, 1', 's_lshl_b32 s45, s45, 2', 's_lshr_b32 s46, s2, 6', 's_add_u32 s45, s45, s46')
    a.e('s_lshl_b32 s45, s45, 2', 's_add_u32 s45, s45, s28')
    C0, S0q, C1, S1q = 144, 148, 152, 160
    WA = 164; DW = 168; HV = 169; CSA = 170; TM = 8; RING = 176
    a.e('v_and_b32 v3, 15, v2', 'v_lshrrev_b32 v4, 4, v2')
    a.e('v_lshlrev_b32 v5, 2, v4', 'v_xor_b32 v5, v5, v3', 'v_lshlrev_b32 v5, 4, v5', f'v_lshl_add_u32 {V(DW)}, v4, 13, v5')
    a.e(f'v_lshlrev_b32 {V(HV)}, 4, v2')
    a.e('s_lshl_b32 s48, s28, 13', 's_lshl_b32 s49, s28, 10')
    a.e('s_waitcnt lgkmcnt(0)')
    srd(a, 24, 42, 43, 4096, add=WS_MODQ)
    a.e('s_add_u32 m0, s49, 147456')
    a.e('s_lshl_b32 s46, s44, 8'); srd(a, 16, 40, 41, 0, add='s46'); a.e('s_sub_u32 s18, 4194304, s46')
    vm = []
    def vmwait(tags, extra=''):
        last = max([i for i, t in enumerate(vm) if t in tags], default=-1)
        if last < 0: return [f's_waitcnt{extra}'] if extra else []
        n = len(vm) - 1 - last
        del vm[:last+1]
        return [f's_waitcnt vmcnt({n}){extra}']
    a.e(f'buffer_load_dwordx4 {V(HV)}, s[24:27], s49 offen lds'); vm.append(('w', 0))
    a.e('s_lshl_b32 s46, s45, 16', f's_add_u32 s46, s46, {WS_H}'); srd(a, 20, 42, 43, 65536, add='s46')
    def wq(s0, n):
        r = []
        for i in range(2*n):
            sal = []
            if i == 0: sal += [f's_mul_i32 s57, s28, {8*n*8192}', f's_mul_i32 s58, s28, {8*n*256}']
            if i % 4 == 0: sal.append(f's_add_u32 m0, s58, {16384 + s0*8192 + 4096*(i//4)}')
            sal.append(f's_add_u32 s50, s57, {s0*32*8192 + 32768*i - 1024*(i & 3)}')
            r.append([sal, f'buffer_load_dwordx4 {V(DW)}, s[16:19], s50 offen offset:{1024*(i&3)}{NT["wq"]} lds', ('w', s0)])
        return r
    HR = lambda s: RING + 16*(s % 5)
    def hl(s):
        return [[[f's_mov_b32 s51, {qb*16384 + (s & ~3)*1024}'], f'buffer_load_dwordx4 {V(HR(s)+4*qb,4)}, {V(HV)}, s[20:23], s51 offen offset:{1024*(s & 3)}', ('h', s)] for qb in range(4)]
    def emit_list(lst):
        for sal, ins, tag in lst:
            a.e(sal, ins); vm.append(tag)
    up3 = opt.get('up3', 0)
    emit_list(wq(0, 1) + hl(0) + wq(1, 1) + hl(1) + wq(2, 2) + hl(2) + (hl(3) if up3 else []))
    a.e('s_lshl_b32 s46, s44, 19'); srd(a, 8, 4, 5, 524288, add='s46'); srd(a, 12, 6, 7, 524288, add='s46')
    for j in range(4):
        a.e(f'v_add_u32 v6, {4*j}, v4', 'v_xor_b32 v6, v6, v3', 'v_lshlrev_b32 v6, 4, v6', f'v_lshl_add_u32 {V(DK+j)}, v4, 8, v6')
    a.e('v_and_b32 v1, 3, v2', 'v_bfe_u32 v6, v2, 2, 2', 'v_lshl_add_u32 v7, v4, 3, v6', 'v_lshlrev_b32 v7, 8, v7', 'v_add_u32 v7, 0x4000, v7', 'v_lshlrev_b32 v6, 2, v6')
    for tp in range(4):
        a.e(f'v_add_u32 v5, {4*tp}, v1', 'v_xor_b32 v5, v5, v6', f'v_lshl_add_u32 {V(WA+tp)}, v5, 4, v7')
        if opt.get('fakewa'): a.e(f'v_lshlrev_b32 {V(WA+tp)}, 3, v2', f'v_add_u32 {V(WA+tp)}, {16384+512*tp}, {V(WA+tp)}')
    a.e(f'v_lshlrev_b32 v5, 5, v4', f'v_add_u32 {V(CSA)}, 147456, v5')
    for p in range(2):
        a.e(f's_add_u32 s53, s28, {6+4*p}', 's_and_b32 s53, s53, 7', f's_lshl_b32 s{30+p}, s53, 13')
        a.e(f's_add_u32 s53, s28, {3+4*p}', 's_and_b32 s53, s53, 7', 's_lshl_b32 s53, s53, 13', f's_add_u32 s{32+p}, s53, 65536')
    a.e(f's_add_u32 s34, s48, {6*8192}', 's_add_u32 s35, s34, 4096', f's_add_u32 s36, s48, {3*8192}', 's_add_u32 s37, s36, 4096')
    a.e('s_mov_b32 s39, 0')
    for i, size in enumerate((4194304, 1835008, 1835008, 1835008)): a.e(f's_mov_b32 s{66+4*i}, {size}', f's_mov_b32 s{67+4*i}, 0x20000')
    sc = Sched(a)
    QA = lambda qb, j: 16 + 32*qb + 4*j
    AR = lambda n: AK + 4*(n % 16)
    def a_reads(n):
        s_, j = divmod(n, 8)
        return [f'ds_read_b64_tr_b16 {A(AR(n)+2*v,2)}, {V(WA+(j>>1))} offset:{(s_ % 4)*8192+v*1024+(j&1)*8}' for v in range(2)]
    def cs_reads(s_, h):
        return [f'ds_read_b128 {V((C0, C1)[h],4)}, {V(CSA)} offset:{128*s_+16*h}', f'ds_read_b128 {V((S0q, S1q)[h],4)}, {V(CSA)} offset:{2048+128*s_+16*h}']
    def xform(s_, h):
        r = []; k = 0
        c, sh = (C0, C1)[h], (S0q, S1q)[h]
        for qb in range(4):
            for d in range(2):
                reg = HR(s_) + 4*qb + 2*h + d; t = TM + 2*(k % 4); k += 1
                r.append(f'v_fma_mix_f32 {V(t)}, {V(reg)}, {V(c+2*d)}, {V(sh+2*d)} op_sel_hi:[1,0,0]')
                r.append(f'v_fma_mix_f32 {V(t+1)}, {V(reg)}, {V(c+2*d+1)}, {V(sh+2*d+1)} op_sel:[1,0,0] op_sel_hi:[1,0,0]')
                if opt.get('fakefma'): r[-2:] = [x.replace('v_fma_mix_f32', 'v_fma_f32').split(' op_sel')[0] for x in r[-2:]]
                r.append(f'v_cvt_pk_bf16_f32 {V(reg)}, {V(t)}, {V(t+1)}')
        if opt.get('noxf'): r = ['s_nop 0' for x in r]
        return r
    D = opt.get('qdist', 6)
    a.e(vmwait({('w', 0)}), 's_barrier')
    stamp(a, opt, 1)
    if fuse: gf.mark2(a, 13)
    for h in range(2):
        for r in cs_reads(0, h): sc.emit_filler(r)
    for n in range(D):
        for r in a_reads(n): sc.emit_filler(r)
    a.e(vmwait({('h', 0)}))
    sc.emit_filler(f'WAITDS {V(C0,4)}, {V(S0q,4)}'); a.e(xform(0, 0))
    for r in cs_reads(1, 0): sc.emit_filler(r)
    sc.emit_filler(f'WAITDS {V(C1,4)}, {V(S1q,4)}'); a.e(xform(0, 1), 's_nop 1')
    def kdma(step_expr_setup, isV, base_s, n, m0base):
        pass
    k01 = [[[f's_lshl_b32 s52, s28, 12', 's_mov_b32 m0, s52'] if j == 0 else [], f'buffer_load_dwordx4 {V(DK+j)}, s[8:11], s52 offen offset:{1024*j}{NT["kv"]} lds', ('k', 0)] for j in range(4)]
    k25 = []
    for grp in range(2):
        st, ins = dma_group(0, 0, f's{54+grp}', f's{54+grp}')
        k25 += [[[f's_add_u32 s{54+grp}, s48, {2*8192 + 4096*grp}', st] if j == 0 else [], x, ('k', 2)] for j, x in enumerate(ins)]
    v02 = []
    for i in range(6):
        sal = []
        if i == 0: sal = ['s_mul_i32 s54, s28, 6144', 's_add_u32 m0, s54, 65536']
        if i == 4: sal = ['s_add_u32 s54, s54, 4096', 's_add_u32 m0, s54, 65536']
        v02.append([sal, f'buffer_load_dwordx4 {V(DV+(i&1))}, s[12:15], s54 offen offset:{1024*(i&3)}{NT["kv"]} lds', ('v', 0)])
    w47, w8b, wcf = wq(4, 4), wq(8, 4), wq(12, 4)
    plan = {0: hl(3) + w47[:4], 1: w47[4:] + hl(4), 2: hl(5) + hl(6), 3: hl(7) + k01, 4: hl(8) + w8b[:4], 5: w8b[4:] + hl(9), 6: hl(10) + wcf[:4],
            7: hl(11) + wcf[4:], 8: hl(12) + k25[:4], 9: hl(13) + k25[4:], 10: hl(14), 11: hl(15), 12: [], 13: [], 14: [], 15: v02}
    if up3: plan[0] = hl(4) + w47[:4]; plan[1] = w47[4:] + hl(5); plan[2] = hl(6)
    if opt.get('novm'):
        for k_ in plan: plan[k_] = [[x[0], 's_nop 0', x[2]] for x in plan[k_]]
    groups = [1, 2, 4, 8, 12]
    late = []
    for j in range(2):
        late += [f'v_add_u32 v6, {4*j}, v4', 'v_lshlrev_b32 v6, 1, v6', 'v_xor_b32 v6, v6, v3', 'v_lshlrev_b32 v6, 4, v6', f'v_lshl_add_u32 {V(DV+j)}, v4, 8, v6']
    late += ['v_xor_b32 v5, v3, v4', 'v_lshlrev_b32 v5, 4, v5', f'v_lshl_add_u32 {V(KA)}, v3, 8, v5'] + [f'v_xor_b32 {V(KA+t)}, {t*64}, {V(KA)}' for t in range(1, 4)]
    late2 = ['v_lshrrev_b32 v6, 2, v2', 'v_lshlrev_b32 v7, 8, v6', 'v_and_b32 v6, 7, v6', 'v_lshl_add_u32 v7, v1, 3, v7', 'v_add_u32 v7, 0x10000, v7']
    for db in range(8): late2 += [f'v_xor_b32 v5, {db}, v6', f'v_lshl_add_u32 {V(VA+db)}, v5, 5, v7']
    for s_ in range(16):
        mf = []; gaps = [[] for _ in range(32)]; pre = [[] for _ in range(32)]
        for j in range(8):
            for qb in range(4):
                c = '0' if s_ == 0 else V(QA(qb, j), 4)
                mf.append(f'{MF} {V(QA(qb,j),4)}, {A(AR(8*s_+j),4)}, {V(HR(s_)+4*qb,4)}, {c}')
        vq = list(plan[s_])
        valu = []
        if s_ < 15:
            valu = xform(s_+1, 0) + xform(s_+1, 1)
        else:
            valu = late + late2
        vi = 0
        for g in range(32):
            j, ph = divmod(g, 4)
            n = 8*s_ + j + D
            if ph < 2:
                if n < 128:
                    if ph == 0 and n % 8 == 0:
                        if n // 8 in groups:
                            gaps[g-1 if g else 0] += vmwait({('w', n // 8)}) + ['s_barrier']
                        if (n // 8) % 4 == 0:
                            gaps[g-1] += [f'v_add_u32 {V(WA+tp)}, 0x8000, {V(WA+tp)}' for tp in range(4)]
                    gaps[g].append(a_reads(n)[ph])
                elif s_ == 15 and g >= 16:
                    gaps[g].append(kreads(0)[(g-16)//4*2 + ph])
            elif ph == 2:
                if s_ < 15 and g in (2, 6): gaps[g].append(cs_reads(s_+1, 1)[g // 4])
                elif s_ < 14 and g in (18, 22): gaps[g].append(cs_reads(s_+2, 0)[(g-18) // 4])
            elif vq and not (s_ == 15 and g < 8):
                sal, ins, tag = vq.pop(0)
                pre[g-1] += sal
                gaps[g].append(ins); vm.append(tag)
            if s_ < 15:
                if g == 0: gaps[g] += vmwait({('h', s_+1)}) + [f'WAITDS {V(C0,4)}, {V(S0q,4)}']
                if vi == 24 and g >= 15: gaps[g].append(f'WAITDS {V(C1,4)}, {V(S1q,4)}')
                lim = 24 if g < 15 else 48
                k = (1 if ph == 3 else 2) if g < 30 else 0
                while k and vi < lim:
                    gaps[g].append(valu[vi]); vi += 1; k -= 1
            else:
                k = 2 if ph != 3 else 1
                while k and vi < len(valu):
                    gaps[g].append(valu[vi]); vi += 1; k -= 1
        assert not vq and vi == len(valu), (s_, vi, len(valu))
        drop = opt.get('qdrop', [])
        gaps = [[x for x in gp if not any(x.startswith(p) for p in drop)] for gp in gaps]
        sc.run(mf, [pre[g] + gaps[g] for g in range(32)])
    stamp(a, opt, 2)
    if fuse: gf.mark2(a, 14)
    for i in range(4): a.e(f'v_mov_b32 {V(ONES+i)}, 0x3f803f80')
    for i in range(8): a.e(f'v_mov_b32 {V(LV+i)}, 0')
    a.e('s_lshl_b32 s46, s45, 19', 's_lshl_b32 s47, s44, 14', 's_add_u32 s46, s46, s47', f's_add_u32 s46, s46, {WS_O}'); srd(a, 24, 42, 43, 16384, add='s46')
    def cvtq(qb): return [f'v_cvt_pk_bf16_f32 {V(Q+16*qb+2*j+h)}, {V(QA(qb,j)+2*h)}, {V(QA(qb,j)+2*h+1)}' for j in range(8) for h in range(2)]
    a.e(cvtq(0), 's_nop 1')
    mf = qk_mfmas(S_[0], czero=True, order='qkt')
    gaps = [[] for _ in mf]
    for qb in range(1, 4):
        cv = cvtq(qb)
        for i, x in enumerate(cv): gaps[8*(qb-1) + min(i//2, 6) if i < 14 else 8*(qb-1)+6].append(x)
        gaps[8*(qb-1)+7].append('s_nop 0')
    sc.run(mf, gaps)
    a.e('s_nop 3')
    for r in kreads(8192): sc.emit_filler(r)
    S0 = S_[0]
    for qb in range(4):
        b = S0 + 8*qb
        a.e(f'v_max3_f32 {V(8+qb)}, {V(b)}, {V(b+1)}, {V(b+2)}', f'v_max3_f32 {V(12+qb)}, {V(b+3)}, {V(b+4)}, {V(b+5)}')
    for qb in range(4):
        b = S0 + 8*qb
        a.e(f'v_max3_f32 {V(8+qb)}, {V(8+qb)}, {V(b+6)}, {V(b+7)}')
    for qb in range(4): a.e(f'v_max_f32 {V(8+qb)}, {V(8+qb)}, {V(12+qb)}')
    for perm in ('32', '16'):
        for qb in range(4): a.e(f'v_mov_b32 {V(12+qb)}, {V(8+qb)}')
        a.e('s_nop 0')
        for qb in range(4): a.e(f'v_permlane{perm}_swap_b32 {V(8+qb)}, {V(12+qb)}')
        a.e('s_nop 0')
        for qb in range(4): a.e(f'v_max_f32 {V(8+qb)}, {V(8+qb)}, {V(12+qb)}')
    for qb in range(4): a.e(f'v_sub_f32 {V(CI+4*qb)}, {f32hex(-opt.get("delta", DELTA))}, {V(8+qb)}')
    for qb in range(4):
        for i in range(1, 4): a.e(f'v_mov_b32 {V(CI+4*qb+i)}, {V(CI+4*qb)}')
    for e in range(32): a.e(f'v_add_f32 {V(S0+e)}, {V(S0+e)}, {V(CI+4*(e>>3))}')
    for db in range(8): a.e(f'v_subrev_u32 {V(VT+db)}, 0x10000, {V(VA+db)}')
    if opt.get('pf', 1):
        a.e('s_lshr_b32 s53, s2, 3', 's_lshl_b32 s53, s53, 2', 's_add_u32 s53, s53, s28', 's_bfe_u32 s56, s2, 0x20001')
        a.e('s_lshl_b32 s54, s53, 13', 's_lshl_b32 s55, s56, 20', 's_add_u32 s54, s54, s55', 'v_lshlrev_b32 v5, 7, v2', f'v_add_u32 {V(PF)}, s54, v5')
        a.e('v_and_b32 v5, 31, v2', 'v_min_u32 v5, 27, v5', 'v_mul_u32_u24 v6, 37, v5', 'v_lshrrev_b32 v6, 8, v6', 'v_mul_u32_u24 v7, 7, v6', 'v_sub_u32 v5, v5, v7',
            'v_mul_u32_u24 v6, 3584, v6', 'v_lshl_add_u32 v6, v5, 7, v6', 'v_lshrrev_b32 v5, 5, v2', 'v_lshl_add_u32 v6, v5, 6, v6',
            's_mul_i32 s54, s53, 14336', 's_mul_i32 s55, s56, 896', 's_add_u32 s54, s54, s55', f'v_add_u32 {V(PF+1)}, s54, v6')
        a.e('v_min_u32 v5, 55, v2', 'v_lshrrev_b32 v6, 2, v5', 'v_and_b32 v5, 3, v5', 'v_lshlrev_b32 v6, 10, v6', 'v_lshl_add_u32 v6, v5, 7, v6',
            's_mul_i32 s54, s53, 14336', 's_and_b32 s55, s2, 1', 's_lshl_b32 s55, s55, 9', 's_add_u32 s54, s54, s55', f'v_add_u32 {V(PF+2)}, s54, v6')
    if fuse: a.e(gf.flag_setup()); gf.unpark(a)
    if opt.get('tlb', 0):
        G = opt.get('tlbshift', 21)
        srd(a, 20, 42, 43, 40 << 20); a.e(f'v_lshlrev_b32 {V(PF+4)}, {G}, v2', 's_mov_b32 s86, 2097152', 's_mov_b32 s87, 0x20000', 's_mov_b32 s84, s82', 's_mov_b32 s85, s83')
    if opt.get('touch', 0):
        srd(a, 20, 42, 43, 24 << 20, add=WS_O)
        a.e('s_lshl_b32 s29, s2, 2', 's_add_u32 s29, s29, s28', 's_lshl_b32 s29, s29, 12', f'v_lshlrev_b32 {V(PF+4)}, 6, v2', f'v_add_u32 {V(PF+4)}, s29, {V(PF+4)}')
    a.e('s_waitcnt vmcnt(0) lgkmcnt(0)', 's_barrier'); sc.pend = []
    stamp(a, opt, 3)
    def adv():
        return ['s_add_u32 s34, s34, 32768', 's_add_u32 s35, s35, 32768', 's_add_u32 s36, s36, 32768', 's_add_u32 s37, s37, 32768']
    def epoch(E, kind):
        d = epoch_dmas(E, opt)
        if kind == 'e14':
            d = d[8:]
        if kind == 'e15': d = []
        ov, os_ = gf.o_setup() if fuse else ([], [])
        oad = [[x[0], x[1]] for st in range(4) for x in gf.o_dma_a(st)] if fuse else []
        npf = 0
        if kind == 'e14' and opt.get('pf', 1):
            for srd_, vo, off in ((64, PF, 0), (64, PF, 64), (68, PF+1, 0), (72, PF+1, 0), (76, PF+2, 0), (76, PF+2, 64)):
                if off and not opt.get('pf64', 1): continue
                d.append([[], f'buffer_load_dword {V(PF+3)}, {V(vo)}, s[{srd_}:{srd_+3}], 0 offen offset:{off}'])
                npf += 1
        split = list(opt['dsplit'])
        tch = []
        if kind == 'e14' and opt.get('tlb', 0):
            d.append([[], f'buffer_load_dword {V(PF+3)}, {V(PF+4)}, s[20:23], 0 offen']); d.append([[], f'buffer_load_dword {V(PF+3)}, {V(PF+4)}, s[84:87], 0 offen']); npf += 2
        if opt.get('touch', 0) and E == 2:
            d.append([[], f'buffer_load_dword {V(PF+3)}, {V(PF+4)}, s[20:23], 0 offen']); split[2] += 1; npf = 1
            tch = [f'v_add_u32 {V(PF+4)}, 0x400000, {V(PF+4)}']
        for sl in range(4):
            s = 4*E + sl
            n = split[sl]
            dm = d[:n]; d = d[n:]
            if kind == 'e14' and sl == 0:
                a.e('s_cmp_eq_u32 s28, 3', f's_cbranch_scc1 {L}_e14d', 's_cmp_eq_u32 s28, 2', f's_cbranch_scc1 {L}_e14v')
                for sal, ins in epoch_dmas(E, opt)[:8]: a.e(sal, 's_nop 0' if sal else [], ins)
                a.e(f's_branch {L}_e14d', f'{L}_e14v:', f's_mov_b32 s54, {63*8192}', f's_mov_b32 s55, {63*8192+4096}', 's_mov_b32 s56, 0')
                for grp in range(2):
                    st, ins = dma_group(1, grp, 's56', f's{54+grp}'); a.e(st, 's_nop 0', ins)
                a.e(f'{L}_e14d:')
            if s == 0:
                exps, items = sm_items(S_[0], P_[0], XQ)
                mf = qk_mfmas(S_[1])
                kr = kreads(2*8192)
                ds_at = [(17+2*i, kr[i]) for i in range(4)]
                extra = []
                for n_, (sal, ins) in enumerate(dm):
                    extra += [(2+2*n_, x) for x in sal] + [(3+2*n_, ins)]
                packed(sc, mf, ds_at, exps, items, extra)
                for r in kr[4:]: sc.emit_filler(r)
            elif s == 59:
                normal_slot(sc, opt, s, dm, salu=adv(), extra_v=ov[:12])
            elif s == 60:
                a.e(os_)
                normal_slot(sc, opt, s, dm, extra_v=ov[12:])
            elif s == 61:
                normal_slot(sc, opt, s, oad[:6])
            elif s == 62:
                normal_slot(sc, opt, s, oad[6:10], kread=False, late_v=vreads(VA, (62 % 8)*8192))
            elif s == 63:
                exps, items = sm_items(S_[1], P_[1], XQ)
                mf = pv_mfmas(P_[0], XQ)
                vr = vreads(VT, 0)
                ds_at = [(min(4*(i >> 1) + 4 + (i & 1), len(mf)-1), vr[i]) for i in range(16)]
                extra = []
                for n_, (sal, ins) in enumerate(oad[10:]):
                    extra += [(2+5*n_, x) for x in sal] + [(3+5*n_, ins)]
                packed(sc, mf, ds_at, exps, items, extra)
            else:
                normal_slot(sc, opt, s, dm, first_pv=(s == 1), salu=(adv() + (['s_add_u32 s38, s38, 1', 's_cmp_lt_u32 s38, 6'] if E == 3 else []) if sl == 3 else ()))
        assert not d
        a.e(tch)
        if kind != 'e15':
            if not opt.get('nobar'): a.e(f's_waitcnt vmcnt({npf}) lgkmcnt(0)', 's_barrier')
            else: a.e('s_waitcnt lgkmcnt(0)')
            sc.pend = []
    epoch(0, 'n'); epoch(1, 'n')
    a.e('s_mov_b32 s38, 0', '.p2align 6', f'{L}_loop:')
    epoch(2, 'n'); epoch(3, 'n')
    a.e(f's_cbranch_scc1 {L}_loop')
    epoch(14, 'e14'); epoch(15, 'e15')
    a.e('s_nop 1')
    mf = pv_mfmas(P_[1], XQ); mf = mf[32:] + mf[:32]
    gaps = [[] for _ in mf]
    VQ = [qb for qb in range(4) if qb not in XQ]
    assert len(VQ) == 2
    gaps[0].append('v_lshlrev_b32 v5, 4, v4')
    for n_, qb in enumerate(VQ):
        l = V(LV + 2*qb); t = V(6 + n_)
        ch = [(1, f'v_add_f32 {l}, {l}, {V(LV+2*qb+1)}'), (2, f'v_mov_b32 {t}, {l}'), (4, f'v_permlane32_swap_b32 {l}, {t}'), (5, f'v_add_f32 {l}, {l}, {t}'),
              (6, f'v_mov_b32 {t}, {l}'), (8, f'v_permlane16_swap_b32 {l}, {t}'), (9, f'v_add_f32 {l}, {l}, {t}')]
        for g, x in ch: gaps[g].append(x)
        for i in range(4): gaps[11 + 2*n_ + i//2].append(f'ds_bpermute_b32 {V(LM+4*qb+i)}, v5, {l} offset:{4*i}')
    rc = [4*qb + i for qb in XQ for i in range(4)] + [4*qb + i for qb in VQ for i in range(4)]
    g = 15
    gaps[3] += ['v_lshlrev_b32 v9, 2, v4', 'v_xor_b32 v9, v9, v2']; gaps[7] += ['v_lshlrev_b32 v9, 4, v9', 'v_mov_b32 v8, 0']
    for n_, r in enumerate(rc):
        if n_ == 8: gaps[g].append(f'WAITDS {V(LM+4*VQ[0],4)}, {V(LM+4*VQ[1],4)}')
        gaps[g] += [f'v_add_f32 v8, v8, {V(LM+r)}', f'v_rcp_f32 {V(LM+r)}, {V(LM+r)}']; g += 1
    sc.run(mf, gaps)
    stamp(a, opt, 4)
    if fuse: gf.mark(a, 15)
    a.e(f's_branch {L}_norm2', f'{L}_norm:')
    a.e(f'v_add_f32 v8, {V(LM)}, {V(LM+1)}')
    for i in range(2, 16): a.e(f'v_add_f32 v8, v8, {V(LM+i)}')
    for i in range(16): a.e(f'v_rcp_f32 {V(LM+i)}, {V(LM+i)}')
    a.e('v_lshlrev_b32 v9, 2, v4', 'v_xor_b32 v9, v9, v2', 'v_lshlrev_b32 v9, 4, v9', f'{L}_norm2:', 'v_mov_b32 v6, v9')
    W = 96
    T = 16
    cnt = 0
    for j in range(4):
        for qb in range(4):
            b = T + 8*(cnt % 8); pk = 80 + 4*(cnt % 4); cnt += 1
            for u in range(2):
                for i in range(4): a.e(f'v_accvgpr_read_b32 {V(b+4*u+i)}, {A(AO+16*(2*j+u)+4*qb+i)}')
            for i in range(4):
                w = W + 4*qb + i
                a.e(f'v_maximum3_f32 {V(w)}, abs({V(b+i)}), abs({V(b+4+i)}), {"0" if j == 0 else V(w)}')
            for u in range(2):
                for i in range(0, 4, 2): a.e(f'v_pk_mul_f32 {V(b+4*u+i,2)}, {V(b+4*u+i,2)}, {V(LM+4*qb+i,2)}')
            for h in range(4): a.e(f'v_cvt_pk_bf16_f32 {V(pk+h)}, {V(b+2*h)}, {V(b+2*h+1)}')
            off = (j*4+qb)*1024
            a.e(f's_mov_b32 s54, {off & ~4095}', f'buffer_store_dwordx4 {V(pk,4)}, v6, s[24:27], s54 offen offset:{off & 4095}{opt.get("wt_a", " sc1")}')
    a.e(f'v_minimum3_f32 v9, {V(W)}, {V(W+1)}, {V(W+15)}', f'v_maximum3_f32 v10, {V(W)}, {V(W+1)}, {V(W+15)}')
    for i in range(2, 15, 2): a.e(f'v_minimum3_f32 v9, v9, {V(W+i)}, {V(W+i+1)}', f'v_maximum3_f32 v10, v10, {V(W+i)}, {V(W+i+1)}')
    a.e(f's_mov_b32 s54, {f32hex(2.0**100)}', f's_mov_b32 s55, {f32hex(2.0**-120)}', f's_mov_b32 s60, 0x7f000000')
    a.e('v_cmp_nle_f32 s[56:57], v8, s54', 'v_cmp_nge_f32 s[58:59], v9, s55', 'v_cmp_nle_f32 s[62:63], v10, s60', 's_nop 1',
        's_or_b64 s[56:57], s[56:57], s[58:59]', 's_or_b64 s[56:57], s[56:57], s[62:63]', 's_cmp_eq_u64 s[56:57], 0')
    if opt.get('force_fb'): a.e('s_cmp_eq_u32 s2, 1000')
    a.e(f's_cbranch_scc1 {L}_fin', 's_cmp_eq_u32 s39, 1', f's_cbranch_scc1 {L}_fin')
    a.e('s_mov_b32 s39, 1', 's_mov_b32 s48, 40960', 's_cmp_eq_u32 s28, 1', 's_cselect_b32 s48, 65536, s48', 's_cmp_eq_u32 s28, 2', 's_cselect_b32 s48, 139264, s48',
        's_cmp_eq_u32 s28, 3', 's_cselect_b32 s48, 147456, s48', 's_waitcnt vmcnt(0)')
    MR = CI; LR = CI + 4; AL = CI + 8; AR_ = 96
    for i in range(128): a.e(f'v_accvgpr_write_b32 {A(i)}, 0')
    for qb in range(4): a.e(f'v_mov_b32 {V(MR+qb)}, 0xff7fffff', f'v_mov_b32 {V(LR+qb)}, 0')
    for db in range(8): a.e(f'v_add_u32 {V(VT+db)}, s48, {V(VT+db)}')
    a.e('v_lshlrev_b32 v7, 8, v3', 'v_lshl_add_u32 v7, v4, 4, v7')
    a.e('s_mov_b32 s54, 0', f'{L}_fb:', 's_add_u32 s55, s54, 4096')
    for f in range(8): a.e(f'buffer_load_dwordx4 {A(AK+4*f,4)}, v7, s[8:11], s{54+(f>>2)} offen offset:{64*(f&3)}')
    for grp in range(2):
        st, ins = dma_group(1, grp, 's48', f's{54+grp}'); a.e(st, 's_nop 0', ins)
    a.e('s_waitcnt vmcnt(0)')
    a.e(vreads(VT, 0))
    a.e(qk_mfmas(S0, czero=True), 's_nop 7', 's_nop 3')
    for qb in range(4):
        b = S0 + 8*qb; m = V(MR+qb); al = V(AL+qb)
        a.e(f'v_max3_f32 v8, {V(b)}, {V(b+1)}, {V(b+2)}', f'v_max3_f32 v8, v8, {V(b+3)}, {V(b+4)}', f'v_max3_f32 v8, v8, {V(b+5)}, {V(b+6)}', f'v_max3_f32 v8, v8, {V(b+7)}, {m}')
        for perm in ('32', '16'):
            a.e('v_mov_b32 v9, v8', 's_nop 1', f'v_permlane{perm}_swap_b32 v8, v9', 's_nop 1', 'v_max_f32 v8, v8, v9')
        a.e(f'v_sub_f32 {al}, {m}, v8', f'v_exp_f32 {al}, {al}', f'v_mov_b32 {m}, v8')
        for e in range(8): a.e(f'v_sub_f32 {V(b+e)}, {V(b+e)}, v8')
        for e in range(8): a.e(f'v_exp_f32 {V(b+e)}, {V(b+e)}')
        a.e(f'v_mul_f32 {V(LR+qb)}, {V(LR+qb)}, {al}')
        for e in range(8): a.e(f'v_add_f32 {V(LR+qb)}, {V(LR+qb)}, {V(b+e)}')
        for h in range(4): a.e(f'v_cvt_pk_bf16_f32 {V(P_[0]+4*qb+h)}, {V(b+2*h)}, {V(b+2*h+1)}')
        for i in range(4): a.e(f'ds_bpermute_b32 {V(AR_+4*qb+i)}, v5, {al} offset:{4*i}')
    a.e('s_waitcnt lgkmcnt(0)')
    for db in range(8):
        for qb in range(4):
            for i in range(4):
                o = AO + 16*db + 4*qb + i
                a.e(f'v_accvgpr_read_b32 v8, {A(o)}', f'v_mul_f32 v8, v8, {V(AR_+4*qb+i)}', f'v_accvgpr_write_b32 {A(o)}, v8')
    a.e('s_nop 1')
    a.e(pv_mfmas(P_[0], []), 's_nop 7', 's_nop 3')
    a.e('s_add_u32 s54, s54, 8192', 's_cmp_lt_u32 s54, 524288', f's_cbranch_scc1 {L}_fb')
    for qb in range(4):
        xlane_sum(a, V(LR+qb), 'v6')
        for i in range(4): a.e(f'ds_bpermute_b32 {V(LM+4*qb+i)}, v5, {V(LR+qb)} offset:{4*i}')
    a.e('s_waitcnt lgkmcnt(0)', f's_branch {L}_norm')
    a.e(f'{L}_fin:')
    if fuse: gf.fused_post(a, L, opt, Sched)
    if opt.get('stamps'):
        a.e('s_waitcnt vmcnt(0)')
        stamp(a, opt, 5); a.e('s_memrealtime s[98:99]', 's_waitcnt lgkmcnt(0)')
        srd(a, 20, 42, 43, 1 << 20, add=(58 << 20))
        a.e('s_lshl_b32 s54, s2, 2', 's_add_u32 s54, s54, s28', 's_lshl_b32 s54, s54, 5', 'v_mov_b32 v7, s54')
        for i in range(1, 6): a.e(f's_sub_u32 s55, s{80+2*i}, s80', f'v_mov_b32 v{8+i}, s55')
        a.e('v_mov_b32 v8, s92', 's_sub_u32 s55, s98, s92', 'v_mov_b32 v14, s55', 'v_mov_b32 v15, s39')
        a.e('v_cmp_eq_u32 vcc, 0, v2', 's_and_saveexec_b64 s[56:57], vcc')
        a.e('buffer_store_dwordx4 v[8:11], v7, s[20:23], 0 offen', 'buffer_store_dwordx4 v[12:15], v7, s[20:23], 0 offen offset:16')
    tl_end(a); a.e(f'{L}_end:', 's_endpgm')
    return dict(label=L, grid=256, block=256, lds=163840, vgpr=512, accum=256)
```

```python
from asmlib import *
from gen_pre import *
MF = 'v_mfma_f32_16x16x32_bf16'
FLA = 141; FLB = 142; DIAG = 143
SC = ' sc1'

class VM:
    def __init__(self): self.q = []; self.seen = set()
    def add(self, tag): self.q.append(tag); self.seen.add(tag)
    def wait(self, tags, extra=''):
        last = max([i for i, t in enumerate(self.q) if t in tags], default=-1)
        if last < 0: return [f's_waitcnt{extra}'] if extra else []
        n = len(self.q) - 1 - last
        del self.q[:last+1]
        assert n < 64
        return [f's_waitcnt vmcnt({n}){extra}']
    def clear(self): self.q = []

def mark(a, i):
    if TL['on']: a.e('s_memrealtime s[98:99]', 's_waitcnt lgkmcnt(0)', f'v_writelane_b32 {V(DIAG)}, s98, {i}')

def mark2(a, i):
    if TL['on']: a.e(f's_memrealtime s[{88 + 2*(i-13)}:{89 + 2*(i-13)}]')
def unpark(a):
    if TL['on']: a.e('s_waitcnt lgkmcnt(0)', f'v_writelane_b32 {V(DIAG)}, s94, 0', f'v_writelane_b32 {V(DIAG)}, s88, 13', f'v_writelane_b32 {V(DIAG)}, s90, 14')

def flag_setup():
    r = ['s_and_b32 s53, s2, 0xc7', 'v_and_b32 v5, 7, v2', 'v_lshlrev_b32 v5, 3, v5', 'v_add_u32 v5, s53, v5', f'v_lshlrev_b32 {V(FLA)}, 6, v5',
         's_and_b32 s53, s2, 0xe1', 'v_and_b32 v5, 3, v2', 'v_lshlrev_b32 v5, 3, v5', 'v_bfe_u32 v6, v2, 2, 2', 'v_lshl_add_u32 v5, v6, 1, v5', 'v_add_u32 v5, s53, v5', f'v_lshlrev_b32 {V(FLB)}, 6, v5']
    return r

SYNC = {'mode': 'cnt'}
def signal(a, L, k, waitlist):
    a.e(waitlist, 's_barrier')
    if SYNC['mode'] in ('flag', 'sflag'):
        a.e(f's_and_b32 s3, s2, {0xc7 if k == 0 else 0xe1}', 's_lshl_b32 s3, s3, 6', f's_add_u32 s3, s3, {WS_FLAG + k*16384}')
        srd(a, 60, 42, 43, 16384, add=WS_FLAG + k*16384)
        a.e('s_cmp_lg_u32 s28, 0', f's_cbranch_scc1 {L}_sg{k}', 's_lshl_b32 s53, s2, 6', 's_mov_b64 exec, 1', 'v_mov_b32 v5, s53', 'v_mov_b32 v6, 1',
            f'buffer_store_dword v6, v5, s[60:63], 0 offen{SC}', 's_mov_b64 exec, -1', f'{L}_sg{k}:')
    else:
        a.e(f's_and_b32 s3, s2, {0xc7 if k == 0 else 0xe1}', 's_lshl_b32 s3, s3, 6', f's_add_u32 s3, s3, {WS_FLAG + k*16384}')
        a.e('s_cmp_lg_u32 s28, 0', f's_cbranch_scc1 {L}_sg{k}')
        srd(a, 60, 42, 43, 4, add='s3')
        a.e('s_mov_b64 exec, 1', 'v_mov_b32 v5, 0', 'v_mov_b32 v6, 1', f'buffer_atomic_add v6, v5, s[60:63], 0 offen{SC}', 's_mov_b64 exec, -1', f'{L}_sg{k}:')

def poll(a, L, k, grp, vm=None):
    if SYNC['mode'] == 'flag':
        a.e('s_mov_b32 s53, 0', f'{L}_pl{k}:', f'buffer_load_dword v5, {V(grp)}, s[60:63], 0 offen{SC}', 's_add_u32 s53, s53, 1', 's_waitcnt vmcnt(0)',
            'v_cmp_eq_u32 vcc, 1, v5', 's_cmp_gt_u32 s53, 200000', f's_cbranch_scc1 {L}_pd{k}', 's_cmp_eq_u64 vcc, -1', f's_cbranch_scc0 {L}_pl{k}', f'{L}_pd{k}:')
        if vm: vm.clear()
    elif SYNC['mode'] == 'sflag':
        regs = [60, 61, 62, 63, 84, 85, 86, 87, 88, 89, 90, 91, 92, 93, 100, 101]
        offs = [8*i*64 for i in range(8)] if k == 0 else [(2*x + 8*y)*64 for x in range(4) for y in range(4)]
        if SYNC.get('one'): a.e('s_cmp_lg_u32 s28, 3', f's_cbranch_scc1 {L}_pd{k}')
        a.e('s_mov_b32 s53, 0', f'{L}_pl{k}:')
        for r, o in zip(regs, offs): a.e(f's_load_dword s{r}, s[42:43], s3 offset:{o} glc')
        a.e('s_add_u32 s53, s53, 1', 's_cmp_gt_u32 s53, 200000', f's_cbranch_scc1 {L}_pd{k}', 's_waitcnt lgkmcnt(0)')
        for r in regs[1:len(offs)]: a.e(f's_and_b32 s60, s60, s{r}')
        a.e('s_cmp_eq_u32 s60, 1', f's_cbranch_scc0 {L}_pl{k}', f'{L}_pd{k}:')
        if SYNC.get('one'): a.e('s_barrier')
    else:
        if SYNC.get('one'): a.e('s_cmp_lg_u32 s28, 3', f's_cbranch_scc1 {L}_pd{k}')
        a.e('s_mov_b32 s53, 0', f'{L}_pl{k}:', 's_load_dword s60, s[42:43], s3 glc', 's_add_u32 s53, s53, 1', 's_cmp_gt_u32 s53, 200000', f's_cbranch_scc1 {L}_pd{k}',
            's_waitcnt lgkmcnt(0)', f's_cmp_ge_u32 s60, {8 if k == 0 else 16}', f's_cbranch_scc0 {L}_pl{k}', f'{L}_pd{k}:')
        if SYNC.get('one'): a.e('s_barrier')

OA = [8192, 24576, 73728, 122880]; OB = [40960, 57344, 90112, 106496]
ODA = 156
def o_setup():
    r = []
    for i in range(4):
        r += [f'v_add_u32 v5, {4*(i&1)}, v4', 'v_lshlrev_b32 v5, 1, v5', 'v_xor_b32 v5, v5, v3', 'v_lshlrev_b32 v5, 4, v5', 'v_lshl_add_u32 v5, v4, 10, v5',
              f'v_add_u32 {V(ODA+i)}, {(16*(i&1) + 8*(i>>1) - i)*1024}, v5']
    s = ['s_lshr_b32 s47, s28, 1', 's_and_b32 s49, s28, 1', 's_lshl_b32 s50, s47, 15', 's_lshl_b32 s51, s49, 12', 's_add_u32 s50, s50, s51',
         's_bfe_u32 s51, s2, 0x20001', 's_lshl_b32 s51, s51, 20', 's_add_u32 s50, s50, s51', 's_bfe_u32 s51, s2, 0x20003', 's_lshl_b32 s51, s51, 8', 's_add_u32 s50, s50, s51',
         's_add_u32 s16, s64, s50', 's_addc_u32 s17, s65, 0', 's_sub_u32 s18, 4194304, s50', 's_mov_b32 s19, 0x20000', 's_lshl_b32 s30, s28, 12']
    return r, s
def o_dma_a(st):
    return [[[f's_add_u32 m0, s30, {OA[st % 4]}', f's_mov_b32 s34, {st*65536}'] if i == 0 else [], f'buffer_load_dwordx4 {V(ODA+i)}, s[16:19], s34 offen offset:{1024*i} lds', ('oa', st)] for i in range(4)]

def phase_o(a, L, opt, Sched):
    ACC = 64; FA = [0, 32]; FB = [64, 96]; DB = 12; RA = 16; RB = 24
    vm = VM()
    a.e('s_lshr_b32 s47, s28, 1', 's_and_b32 s48, s28, 1', 's_bfe_u32 s44, s2, 0x20001', 's_and_b32 s45, s2, 1', 's_lshl_b32 s45, s45, 3', 's_lshr_b32 s46, s2, 5', 's_add_u32 s45, s45, s46', 's_bfe_u32 s46, s2, 0x20003')
    a.e(f'v_lshlrev_b32 {V(DB)}, 4, v2')
    a.e('v_lshrrev_b32 v5, 2, v2', 'v_and_b32 v6, 3, v2', 'v_lshlrev_b32 v7, 8, v5', 'v_lshl_add_u32 v7, v6, 3, v7', 'v_and_b32 v5, 7, v5', 's_lshl_b32 s49, s48, 2')
    for nb in range(4): a.e(f's_add_u32 s50, s49, {nb}', 'v_xor_b32 v8, s50, v5', f'v_lshl_add_u32 {V(RA+nb)}, v8, 5, v7', f'v_add_u32 {V(RA+4+nb)}, {OA[2]}, {V(RA+nb)}')
    a.e('v_bfe_u32 v5, v2, 2, 2', 'v_lshrrev_b32 v7, 5, v2', 'v_lshl_add_u32 v5, v7, 3, v5', 'v_lshlrev_b32 v7, 2, v6', 'v_xor_b32 v5, v5, v7', 'v_lshl_add_u32 v5, v6, 4, v5')
    a.e('v_and_b32 v7, 1, v4', 'v_lshlrev_b32 v7, 3, v7', 'v_lshl_add_u32 v5, v5, 4, v7', 's_lshl_b32 s49, s47, 13', f's_add_u32 s49, s49, {OB[0]}')
    a.e(f'v_add_u32 {V(RB)}, s49, v5', 'v_xor_b32 v5, 64, v5', f'v_add_u32 {V(RB+1)}, s49, v5', f'v_add_u32 {V(RB+2)}, {OB[2]-OB[0]}, {V(RB)}', f'v_add_u32 {V(RB+3)}, {OB[2]-OB[0]}, {V(RB+1)}')
    a.e('s_lshl_b32 s49, s45, 1', 's_add_u32 s49, s49, s47', 's_lshl_b32 s50, s49, 19', 's_lshl_b32 s51, s44, 17', 's_add_u32 s50, s50, s51',
        's_lshl_b32 s51, s48, 12', 's_add_u32 s50, s50, s51', f's_add_u32 s50, s50, {WS_O}'); srd(a, 12, 42, 43, 131072, add='s50')
    a.e('s_lshl_b32 s49, s49, 16', 's_lshl_b32 s50, s44, 21', 's_add_u32 s49, s49, s50', 's_lshl_b32 s50, s46, 12', 's_add_u32 s49, s49, s50',
        's_lshl_b32 s50, s48, 11', 's_add_u32 s49, s49, s50', f's_add_u32 s49, s49, {WS_PART}'); srd(a, 8, 42, 43, 65536, add='s49')
    r_setup(a)
    signal(a, L, 0, ['s_waitcnt vmcnt(0)']); mark(a, 1)
    poll(a, L, 0, FLA); mark(a, 2)
    def dma_b(st):
        return [[[f's_add_u32 m0, s30, {OB[st % 4]}', f's_mov_b32 s35, {st*8192}'] if i == 0 else [], f'buffer_load_dwordx4 {V(DB)}, s[12:15], s35 offen offset:{1024*i}{SC} lds', ('ob', st)] for i in range(4)]
    for st in range(4):
        for sal, ins, tag in dma_b(st): a.e(sal, ins); vm.add(tag)
    def reads(st):
        p = st & 1; sl = st % 4
        ra = [f'ds_read_b64_tr_b16 {A(FA[p]+8*x+4*tt+2*v,2)}, {V(RA+(4 if sl >= 2 else 0)+x)} offset:{OA[sl] - (OA[2] if sl >= 2 else 0)+tt*8192+v*4096}' for x in range(4) for tt in range(2) for v in range(2)]
        rb = [f'ds_read_b64_tr_b16 {A(FB[p]+8*x+4*tt+2*u,2)}, {V(RB+2*(sl >> 1)+u)} offset:{(sl & 1)*16384+tt*4096+x*1024}' for x in range(4) for tt in range(2) for u in range(2)]
        return ra[:4] + rb + ra[4:]
    sc = Sched(a, age=6)
    a.e(vm.wait({('ob', 0)}), 's_barrier')
    for r in reads(0): sc.emit_filler(r)
    rl = r_loads()
    gs0, gv, gs1 = g_setup()
    gq = [x for st_ in range(opt.get('g_pre0', 3)) for x in g_dma(st_)]
    for st in range(16):
        p = st & 1
        a.e(vm.wait({('oa', st+1), ('ob', st+1)}, ' lgkmcnt(0)'), 's_barrier'); sc.pend = []
        if st == 12: a.e(gs0)
        if st == 15: a.e(gs1)
        mf = [f'{MF} {V(ACC+16*nb+4*qb,4)}, {A(FA[p]+8*nb+4*tt,4)}, {A(FB[p]+8*qb+4*tt,4)}, {"0" if (st == 0 and tt == 0) else V(ACC+16*nb+4*qb,4)}' for nb in range(4) for qb in range(4) for tt in range(2)]
        gaps = [[] for _ in mf]; pre = [[] for _ in mf]
        rd = reads(st+1) if st < 15 else []
        d = (dma_b(st+4) + o_dma_a(st+4)) if st + 4 < 16 else rl[8*(st-12):8*(st-12)+8]
        ri = 0
        for g in range(32):
            if g % 4 == 2 and d:
                sal, ins, tag = d.pop(0)
                pre[g-1] += sal; gaps[g].append(ins); vm.add(tag)
            else:
                k = 2
                while k and ri < len(rd):
                    gaps[g].append(rd[ri]); ri += 1; k -= 1
        assert not d
        if 12 <= st < 15:
            for i, x in enumerate(gv[19*(st-12):19*(st-11)]): gaps[22 + i//2].append(x)
        if st == 15:
            for g in range(2, 20, 4):
                sal, ins, tag = gq.pop(0)
                pre[g-1] += sal; gaps[g].append(ins); vm.add(tag)
            n = 0
            for qb in range(4):
                t = 32 + 4*qb
                ins = []
                for u in range(2):
                    b = ACC + 16*u + 4*qb
                    ins += [f'v_cvt_pk_bf16_f32 {V(t+2*u)}, {V(b)}, {V(b+1)}', f'v_cvt_pk_bf16_f32 {V(t+2*u+1)}, {V(b+2)}, {V(b+3)}']
                g = 20 + 3*qb
                gaps[g] += ins[:2]; gaps[g+1] += ins[2:]; pre[g+1].append(f's_mov_b32 s50, {qb*16384}')
                gaps[g+2].append(f'buffer_store_dwordx4 {V(t,4)}, {V(DB)}, s[8:11], s50 offen{SC}'); vm.add(('st', 0))
        sc.run(mf, [pre[g] + gaps[g] for g in range(32)])
    mark(a, 3)
    a.e('s_nop 1')
    for qb in range(4):
        t = 48 + 4*qb
        for u in range(2):
            b = ACC + 16*(2+u) + 4*qb
            a.e(f'v_cvt_pk_bf16_f32 {V(t+2*u)}, {V(b)}, {V(b+1)}', f'v_cvt_pk_bf16_f32 {V(t+2*u+1)}, {V(b+2)}, {V(b+3)}')
        a.e(f's_mov_b32 s50, {qb*16384}', f'buffer_store_dwordx4 {V(t,4)}, {V(DB)}, s[8:11], s50 offen offset:1024{SC}'); vm.add(('st', 0))
    for sal, ins, tag in gq: a.e(sal, ins); vm.add(tag)
    return vm

RX = 144; RGA = 160; RCB = 176; RSB = 192; RO = 152
RSTAT = 159744
def r_setup(a):
    a.e('s_lshl_b32 s29, s45, 4', 's_lshl_b32 s50, s44, 2', 's_add_u32 s29, s29, s50', 's_add_u32 s29, s29, s46')
    a.e('v_and_b32 v5, 7, v2', 'v_bfe_u32 v6, v2, 3, 2', 'v_lshrrev_b32 v7, 5, v2', 's_lshl_b32 s50, s28, 2', 'v_add_u32 v7, s50, v7')
    a.e(f'v_lshlrev_b32 {V(RO)}, 10, v7', f'v_lshl_add_u32 {V(RO)}, v5, 4, {V(RO)}', f'v_lshl_add_u32 {V(RO)}, v6, 8, {V(RO)}')
    a.e(f'v_lshlrev_b32 {V(RO+1)}, 10, v5', f'v_lshl_add_u32 {V(RO+1)}, v7, 6, {V(RO+1)}', f'v_lshl_add_u32 {V(RO+1)}, v6, 3, {V(RO+1)}')
    a.e(f'v_lshlrev_b32 {V(RO+2)}, 7, v7', f'v_lshl_add_u32 {V(RO+2)}, v6, 4, {V(RO+2)}')
    a.e(f'v_lshlrev_b32 {V(RO+3)}, 3, v5', f'v_add_u32 {V(RO+3)}, {RSTAT}, {V(RO+3)}')
    srd(a, 20, 80, 81, 2097152); srd(a, 24, 42, 43, 12288)
    a.e('s_lshl_b32 s31, s29, 13', 's_lshr_b32 s50, s29, 1', 's_lshl_b32 s50, s50, 14', 's_and_b32 s51, s29, 1', 's_lshl_b32 s51, s51, 7', 's_add_u32 s29, s50, s51')
def r_loads():
    r = [[[], f'buffer_load_dwordx2 {V(RX+4*i+2*v,2)}, {V(RO+1)}, s[20:23], s31 offen offset:{128*i+32*v}', ('r', 0)] for i in range(2) for v in range(2)]
    for part, reg in ((2, RGA), (4, RCB), (3, RSB)):
        for i in range(2):
            for v in range(2):
                r.append([[f's_mov_b32 s36, {part*2048}'] if (i == 0 and v == 0) else [], f'buffer_load_dwordx4 {V(reg+8*i+4*v,4)}, {V(RO+2)}, s[24:27], s36 offen offset:{256*i+64*v}', ('r', 0)])
    return r

def phase_r(a, L, opt, vm):
    PT = 16; F = 48
    n0 = opt.get('g_pre0', 3); n1 = opt.get('g_pre1', 4)
    srd(a, 12, 42, 43, 8388608, add=WS_PART); srd(a, 20, 42, 43, 4194304, add=WS_X1)
    signal(a, L, 1, vm.wait({('st', 0)})); mark(a, 4)
    for r in range(8): a.e(f'v_lshlrev_b32 {V(64+2*r)}, 16, {V(RX+r)}', f'v_and_b32 {V(65+2*r)}, 0xffff0000, {V(RX+r)}')
    poll(a, L, 1, FLB, vm); mark(a, 5)
    for ks in range(4):
        a.e(f's_add_u32 s50, s29, {ks << 21}')
        for i in range(2): a.e(f'buffer_load_dwordx4 {V(PT+8*ks+4*i,4)}, {V(RO)}, s[12:15], s50 offen offset:{2048*i}{SC}'); vm.add(('p', ks))
    for st in range(n0, n1):
        for sal, ins, tag in g_dma(st): a.e(sal, ins); vm.add(tag)
    for ks in range(4):
        a.e(vm.wait({('p', ks)}))
        for r in range(8):
            src = V(PT+8*ks+r)
            if ks == 0: a.e(f'v_lshlrev_b32 {V(F+2*r)}, 16, {src}', f'v_and_b32 {V(F+2*r+1)}, 0xffff0000, {src}')
            else: a.e(f'v_lshlrev_b32 v10, 16, {src}', f'v_and_b32 v11, 0xffff0000, {src}', f'v_add_f32 {V(F+2*r)}, {V(F+2*r)}, v10', f'v_add_f32 {V(F+2*r+1)}, {V(F+2*r+1)}, v11')
    for e in range(16): a.e(f'v_fmac_f32 {V(64+e)}, {V(F+e)}, {V(RGA+e)}')
    for r in range(8): a.e(f'v_cvt_pk_bf16_f32 {V(RX+r)}, {V(64+2*r)}, {V(65+2*r)}')
    for i in range(2): a.e(f'buffer_store_dwordx4 {V(RX+4*i,4)}, {V(RO)}, s[20:23], s29 offen offset:{2048*i}{SC}'); vm.add(('st', 1))
    F = 64
    a.e(f'v_add_f32 v10, {V(F)}, {V(F+1)}', f'v_mul_f32 v14, {V(F)}, {V(F)}', f'v_add_f32 v11, {V(F+2)}, {V(F+3)}', f'v_mul_f32 v15, {V(F+1)}, {V(F+1)}')
    for e in range(2, 16, 2):
        if e >= 4: a.e(f'v_add_f32 v10, v10, {V(F+e)}', f'v_add_f32 v11, v11, {V(F+e+1)}')
        a.e(f'v_fmac_f32 v14, {V(F+e)}, {V(F+e)}', f'v_fmac_f32 v15, {V(F+e+1)}, {V(F+e+1)}')
    a.e('v_add_f32 v10, v10, v11', 'v_add_f32 v11, v14, v15')
    for perm in ('32', '16'):
        a.e('v_mov_b32 v14, v10', 'v_mov_b32 v15, v11', 's_nop 0', f'v_permlane{perm}_swap_b32 v10, v14', f'v_permlane{perm}_swap_b32 v11, v15', 'v_add_f32 v10, v10, v14', 'v_add_f32 v11, v11, v15')
    a.e('s_lshl_b32 s50, s28, 6', f'v_add_u32 v13, s50, {V(RO+3)}')
    a.e('v_add_f32_dpp v10, v10, v10 row_ror:8 row_mask:0xf bank_mask:0xf', 's_nop 0', 'v_add_f32_dpp v11, v11, v11 row_ror:8 row_mask:0xf bank_mask:0xf')
    a.e('ds_write_b64 v13, v[10:11]', 's_waitcnt lgkmcnt(0)', 's_barrier')
    for i in range(4): a.e(f'ds_read_b64 v[{24+2*i}:{25+2*i}], {V(RO+3)} offset:{64*i}')
    a.e('s_waitcnt lgkmcnt(0)', 'v_pk_add_f32 v[24:25], v[24:25], v[26:27]', 'v_pk_add_f32 v[28:29], v[28:29], v[30:31]', 'v_pk_add_f32 v[24:25], v[24:25], v[28:29]')
    a.e(f'v_mul_f32 v24, {f32hex(1/512)}, v24', f'v_mov_b32 v26, {f32hex(1e-5)}', f'v_fmac_f32 v26, {f32hex(1/512)}, v25', 'v_fma_f32 v26, -v24, v24, v26',
        f'v_max_f32 v26, {f32hex(1e-5)}, v26', 'v_rsq_f32 v25, v26', f's_add_u32 s50, s29, {WS_H2 - WS_X1}')
    for e in range(16): a.e(f'v_sub_f32 {V(F+e)}, {V(F+e)}, v24')
    for e in range(16): a.e(f'v_mul_f32 {V(RCB+e)}, {V(RCB+e)}, v25')
    for e in range(16): a.e(f'v_fma_f32 {V(F+e)}, {V(F+e)}, {V(RCB+e)}, {V(RSB+e)}')
    for r in range(8): a.e(f'v_cvt_pk_bf16_f32 {V(PT+r)}, {V(F+2*r)}, {V(F+2*r+1)}')
    for i in range(2): a.e(f'buffer_store_dwordx4 {V(PT+4*i,4)}, {V(RO)}, s[20:23], s50 offen offset:{2048*i}{SC}'); vm.add(('st', 1))
    return vm

GR = 5; GSTG = 28672; GDA = 208
def g_setup():
    s0 = ['s_lshl_b32 s52, s44, 2', 's_add_u32 s52, s52, s46', 's_and_b32 s47, s28, 1', 's_mul_i32 s47, s47, 448', 's_mov_b32 s48, 4682', 's_mov_b32 s49, 3584']
    v = ['v_add_u32 v5, s47, v2']
    for i in range(7):
        v += [f'v_add_u32 v6, {64*i}, v5', 'v_mul_lo_u32 v7, v6, s48', 'v_lshrrev_b32 v7, 16, v7', 'v_mul_u32_u24 v8, 14, v7', 'v_sub_u32 v8, v6, v8',
              'v_mul_lo_u32 v9, v7, s49', 'v_lshl_add_u32 v9, v8, 4, v9', f'v_subrev_u32 {V(GDA+i)}, {1024*(i & 3)}, v9']
    b = Asm()
    b.e('s_cmp_lt_u32 s28, 2', 's_cselect_b32 s54, s68, s72', 's_cselect_b32 s55, s69, s73', 's_mul_i32 s56, s52, 224')
    srd(b, 16, 54, 55, 0, add='s56'); b.e(f's_sub_u32 s18, {512*3584}, s56')
    b.e('s_lshr_b32 s56, s28, 1', 's_mul_i32 s56, s56, 14336', 's_and_b32 s54, s28, 1', 's_mul_i32 s54, s54, 7168', 's_add_u32 s30, s56, s54')
    return s0, v, b.o
def g_dma(st):
    base = (st % GR) * GSTG
    return [[([f's_add_u32 m0, s30, {base + 4096*(i//4)}', f's_mov_b32 s34, {st*64*3584}'] if i % 4 == 0 else []),
             f'buffer_load_dwordx4 {V(GDA+i)}, s[16:19], s34 offen offset:{1024*(i&3)} lds', ('ga', st)] for i in range(7)]

def phase_g(a, L, opt, vm, Sched):
    ACC = 16; RA = 8; FA = 128; BD = 0
    n1 = opt.get('g_pre1', 4)
    a.e('v_lshrrev_b32 v5, 2, v2', 'v_mul_u32_u24 v5, 224, v5', 'v_and_b32 v6, 3, v2', f'v_lshl_add_u32 {V(RA)}, v6, 3, v5', 'v_lshlrev_b32 v7, 4, v2')
    for i in range(1, GR): a.e(f'v_add_u32 {V(RA+i)}, {i*GSTG}, {V(RA)}')
    a.e('s_lshl_b32 s47, s45, 2', 's_add_u32 s47, s47, s28', 's_lshl_b32 s48, s47, 15', f's_add_u32 s48, s48, {WS_H2}'); srd(a, 12, 42, 43, 32768, add='s48')
    a.e(f's_mul_i32 s47, s47, {112*1024}', 's_mul_i32 s48, s52, 7168', 's_add_u32 s47, s47, s48', f's_add_u32 s47, s47, {WS_HH}'); srd(a, 8, 42, 43, 7168, add='s47')
    signal(a, L, 2, vm.wait({('st', 1)})); mark(a, 6)
    def rd(n):
        ks, b = divmod(n, 14); st, tt = divmod(ks, 2)
        off = (b // 7)*14336 + tt*7168 + (b % 7)*32
        return [f'ds_read_b64_tr_b16 {A(FA+4*(n % 8)+2*v,2)}, {V(RA + st % GR)} offset:{off+3584*v}' for v in range(2)]
    D = opt.get('g_dist', 5)
    sc = Sched(a, age=6)
    d_setup(a)
    for n in range(D):
        for r in rd(n): sc.emit_filler(r)
    poll(a, L, 2, FLB, vm); mark(a, 7)
    def bl(ks):
        return [[[f's_mov_b32 s36, {qb*16384 + (ks & ~3)*1024}'], f'buffer_load_dwordx4 {A(BD+8*ks+4*qb,4)}, v7, s[12:15], s36 offen offset:{(ks & 3)*1024}{SC}', ('gb', ks)] for qb in range(2)]
    UP = opt.get('g_up', 6)
    for ks in range(UP):
        for sal, ins, tag in bl(ks): a.e(sal, ins); vm.add(tag)
    q = []
    for ks in range(UP, 16): q += bl(ks)
    for st in range(n1, GR): q = q[:4] + g_dma(st) + q[4:]
    NF = 16*14
    mf = []; gaps = []; pre = []
    a.e(vm.wait({('gb', 0)}))
    for n in range(NF):
        ks, b = divmod(n, 14)
        for qb in range(2):
            acc = V(ACC+8*b+4*qb, 4)
            mf.append(f'{MF} {acc}, {A(FA+4*(n % 8),4)}, {A(BD+8*ks+4*qb,4)}, {"0" if ks == 0 else acc}')
            gaps.append([]); pre.append([])
        nn = n + D
        if nn < NF:
            if nn % 28 == 0:
                s2 = nn // 28
                assert ('ga', s2) in vm.seen and not any(x[2] == ('ga', s2) for x in q)
                w = vm.wait({('ga', s2)})
                if s2 >= n1 or s2 + GR - 2 < 8: gaps[2*n-1] += w + ['s_barrier']
                if n1 <= s2 + GR - 2 < 8 and s2 + GR - 2 >= GR: q += g_dma(s2 + GR - 2)
            r = rd(nn)
            gaps[2*n].append(r[0]); gaps[2*n+1].append(r[1])
        if q and n % 2 == 0:
            sal, ins, tag = q.pop(0)
            pre[2*n] += sal; gaps[2*n+1].append(ins); vm.add(tag)
        if b == 13 and ks < 15:
            assert not any(x[2] == ('gb', ks+1) for x in q)
            gaps[2*n+1] += vm.wait({('gb', ks+1)})
    assert not q
    sc.run(mf, [pre[g] + gaps[g] for g in range(len(mf))])
    mark(a, 8)
    a.e('s_barrier')
    for b in range(7):
        t = ACC + 8*b
        for i in range(0, 8, 2): a.e(f'v_pk_mul_f32 {V(t+i,2)}, {V(t+i,2)}, {V(t+56+i,2)}')
        for i in range(4): a.e(f'v_cvt_pk_bf16_f32 {V(t+i)}, {V(t+2*i)}, {V(t+2*i+1)}')
        a.e(f's_mov_b32 s48, {(b*1024) & ~4095}', f'buffer_store_dwordx4 {V(t,4)}, v7, s[8:11], s48 offen offset:{(b*1024) & 4095}{SC}'); vm.add(('st', 2))
    return vm

DR = 9; DE = 128; DDA = 133; DRA = 137
def d_setup(a):
    E = DE
    a.e('s_lshl_b32 s54, s45, 1', 's_and_b32 s50, s44, 1', 's_add_u32 s54, s54, s50', 's_lshr_b32 s55, s44, 1', 's_lshl_b32 s55, s55, 2', 's_add_u32 s55, s55, s46')
    a.e('v_lshrrev_b32 v5, 3, v2', 'v_lshlrev_b32 v13, 1, v4', 'v_and_b32 v6, 7, v2', 'v_xor_b32 v13, v13, v6', 'v_lshlrev_b32 v13, 4, v13', 'v_lshl_add_u32 v13, v5, 10, v13')
    for i in range(4): a.e(f'v_add_u32 {V(DDA+i)}, {7*i*1024}, v13')
    a.e('s_lshl_b32 s50, s55, 7', f's_mul_i32 s51, s28, {14*32*1024}', 's_add_u32 s50, s50, s51')
    srd(a, 24, 76, 77, 0, add='s50'); a.e(f's_sub_u32 s26, {1792*1024}, s50', f's_mul_i32 s31, s28, {DR*4096}')
    a.e(f'v_and_b32 {V(E)}, 1, v6', f'v_lshlrev_b32 {V(E)}, 9, {V(E)}', f'v_lshl_add_u32 {V(E)}, v5, 4, {V(E)}', 'v_bfe_u32 v13, v6, 1, 1', f'v_lshl_add_u32 {V(E)}, v13, 3, {V(E)}', 'v_lshrrev_b32 v13, 2, v6', f'v_lshl_add_u32 {V(E)}, v13, 10, {V(E)}')
    a.e(f'v_lshlrev_b32 {V(E+1)}, 5, v6', f'v_lshlrev_b32 {V(E+2)}, 10, v5', f'v_lshl_add_u32 {V(E+2)}, v6, 4, {V(E+2)}')
    a.e(f'v_mul_u32_u24 {V(E+3)}, 272, v5', f'v_lshl_add_u32 {V(E+3)}, v6, 5, {V(E+3)}', 's_mul_i32 s47, s28, 4352', f'v_add_u32 {V(E+3)}, s47, {V(E+3)}')
    a.e(f'v_mul_u32_u24 {V(E+4)}, 272, v3', f'v_lshl_add_u32 {V(E+4)}, v4, 4, {V(E+4)}', 's_mul_i32 s47, s28, 17408', f'v_add_u32 {V(E+4)}, s47, {V(E+4)}')
    a.e('v_lshrrev_b32 v5, 2, v2', 'v_and_b32 v6, 3, v2', 'v_lshlrev_b32 v13, 7, v5', 'v_lshl_add_u32 v13, v6, 3, v13', 'v_add_u32 v13, s31, v13', 'v_bfe_u32 v5, v5, 1, 2')
    for nb in range(4): a.e(f'v_xor_b32 v6, {nb}, v5', f'v_lshl_add_u32 {V(DRA+nb)}, v6, 5, v13')
    a.e('s_lshl_b32 s47, s54, 2', 's_add_u32 s47, s47, s28', 's_lshl_b32 s49, s47, 14', 's_lshl_b32 s50, s55, 7', 's_add_u32 s56, s50, s49', 's_lshl_b32 s51, s55, 11', 's_add_u32 s57, s51, s49')
    a.e('s_lshl_b32 s58, s55, 8', f's_add_u32 s58, s58, {5*2048}')
    a.e(f's_mul_i32 s48, s54, {2*112*1024}', f's_mul_i32 s49, s28, {28*1024}', 's_add_u32 s48, s48, s49', f's_add_u32 s59, s48, {WS_HH}')
def d_dma(s):
    return [[([f's_add_u32 m0, s31, {(s % DR)*4096}', f's_mov_b32 s35, {s*32768}'] if i == 0 else []),
             f'buffer_load_dwordx4 {V(DDA+i)}, s[24:27], s35 offen offset:{1024*i} lds', ('da', s)] for i in range(4)]

def phase_d(a, L, opt, vm, Sched):
    NS = 14
    ACC = 0; FA = [64, 80]; XR = 96; GV = 104; RA = DRA; E = DE
    BR = lambda s: (16 + 16*s) if s < 7 else (144 + 16*(s-7))
    n0 = opt.get('d_pre0', 8); n0a = opt.get('d_pre0a', 3)
    for s in range(n0a):
        for sal, ins, tag in d_dma(s): a.e(sal, ins); vm.add(tag)
    srd(a, 12, 42, 43, 2*112*1024, add='s59')
    signal(a, L, 3, vm.wait({('st', 2)})); mark(a, 9)
    for s in range(n0a, n0):
        for sal, ins, tag in d_dma(s): a.e(sal, ins); vm.add(tag)
    srd(a, 16, 42, 43, 12288); srd(a, 8, 82, 83, 2097152)
    for p in range(2):
        for e in range(2): a.e(f'buffer_load_dwordx2 {A(XR+4*p+2*e,2)}, {V(E)}, s[20:23], s57 offen offset:{128*p+256*e}{SC}'); vm.add(('e', 0))
    for h in range(2): a.e(f'buffer_load_dwordx4 {A(GV+4*h,4)}, {V(E+1)}, s[16:19], s58 offen offset:{16*h}'); vm.add(('e', 0))
    poll(a, L, 3, FLB, vm); mark(a, 10)
    dma2 = d_dma
    def bload(s):
        return [[[f's_mov_b32 s36, {qp*112*1024 + 2048*s}'] if u == 0 else [], f'buffer_load_dwordx4 {V(BR(s)+8*qp+4*u,4)}, v7, s[12:15], s36 offen offset:{1024*u}{SC}', ('db', s)] for qp in range(2) for u in range(2)]
    def reads(s): return [f'ds_read_b64_tr_b16 {A(FA[s & 1]+4*x+2*v,2)}, {V(RA+x)} offset:{(s % DR)*4096+2048*v}' for x in range(4) for v in range(2)]
    def swaps(s): return [f'v_swap_b32 {V(BR(s)+8*qp+2+i)}, {V(BR(s)+8*qp+4+i)}' for qp in range(2) for i in range(2)]
    sc = Sched(a, age=6)
    PRE = opt.get('d_pre', 4)
    for s in range(PRE):
        for sal, ins, tag in bload(s): a.e(sal, ins); vm.add(tag)
        if s == 0:
            a.e(vm.wait({('da', 0)}))
            for r in reads(0): sc.emit_filler(r)
    a.e(vm.wait({('db', 0)}), swaps(0))
    nb_ = PRE; na_ = n0
    for s in range(NS):
        mf = [f'{MF} {A(ACC+16*nb+4*qb,4)}, {A(FA[s & 1]+4*nb,4)}, {V(BR(s)+4*qb,4)}, {"0" if s == 0 else A(ACC+16*nb+4*qb,4)}' for nb in range(4) for qb in range(4)]
        gaps = [[] for _ in mf]
        a.e('s_waitcnt lgkmcnt(0)'); sc.pend = []
        iss = []
        if nb_ < NS: iss += bload(nb_); nb_ += 1
        if na_ < NS and na_ <= s + DR and na_ <= nb_ + 1: iss += dma2(na_); na_ += 1
        elif nb_ < NS: iss += bload(nb_); nb_ += 1
        for g, (sal, ins, tag) in enumerate(iss[:7]):
            gaps[g] += sal + [ins]; vm.add(tag)
        if s + 1 < NS:
            assert ('da', s+1) in vm.seen and ('db', s+1) in vm.seen and not any(x[2][1] == s+1 for x in iss[7:])
            gaps[7] += vm.wait({('da', s+1), ('db', s+1)})
            for i, r in enumerate(reads(s+1)): gaps[7 + i//2].append(r)
            for i, x in enumerate(swaps(s+1)): gaps[11 + i//2].append(x)
        for i, (sal, ins, tag) in enumerate(iss[7:]):
            gaps[13] += sal + [ins]; vm.add(tag)
        sc.run(mf, gaps)
    assert nb_ == NS and na_ == NS, (nb_, na_)
    mark(a, 11)
    PT = 32
    a.e('s_nop 3', 's_barrier')
    for nb in range(4):
        for qb in range(4):
            a.e(f'ds_write_b128 {V(E+4)}, {A(ACC+16*nb+4*qb,4)} offset:{qb*16*272 + nb*64}')
    for i in range(8): a.e(f'v_accvgpr_read_b32 {V(112+i)}, {A(XR+i)}', f'v_accvgpr_read_b32 {V(120+i)}, {A(GV+i)}')
    for i in range(8): a.e(f'v_lshlrev_b32 {V(96+2*i)}, 16, {V(112+i)}', f'v_and_b32 {V(97+2*i)}, 0xffff0000, {V(112+i)}')
    a.e('s_waitcnt lgkmcnt(0)', 's_barrier')
    for p in range(2):
        for pw in range(4):
            for h in range(2): a.e(f'ds_read_b128 {V(PT+32*p+8*pw+4*h,4)}, {V(E+3)} offset:{pw*17408 + p*8*272 + h*16}')
    for p in range(2):
        b = PT + 32*p
        a.e(f's_waitcnt lgkmcnt({12-8*p})')
        for i in range(0, 8, 2): a.e(f'v_pk_add_f32 {V(b+i,2)}, {V(b+i,2)}, {V(b+8+i,2)}')
        a.e(f's_waitcnt lgkmcnt({8-8*p})')
        for i in range(0, 8, 2): a.e(f'v_pk_add_f32 {V(b+16+i,2)}, {V(b+16+i,2)}, {V(b+24+i,2)}')
        for i in range(0, 8, 2): a.e(f'v_pk_add_f32 {V(b+i,2)}, {V(b+i,2)}, {V(b+16+i,2)}')
        for i in range(0, 8, 2): a.e(f'v_pk_fma_f32 {V(96+8*p+i,2)}, {V(b+i,2)}, {V(120+i,2)}, {V(96+8*p+i,2)}')
        for i in range(4): a.e(f'v_cvt_pk_bf16_f32 {V(b+i)}, {V(96+8*p+2*i)}, {V(97+8*p+2*i)}')
        if p: a.e('s_add_u32 s56, s56, 8192')
        a.e(f'buffer_store_dwordx4 {V(b,4)}, {V(E+2)}, s[8:11], s56 offen{opt.get("wt_d", "")}')

def fused_post(a, L, opt, Sched):
    SYNC['mode'] = opt.get('sync', 'sflag'); SYNC['one'] = opt.get('one', 1)
    vm = phase_o(a, L, opt, Sched)
    vm = phase_r(a, L, opt, vm)
    vm = phase_g(a, L, opt, vm, Sched)
    phase_d(a, L, opt, vm, Sched)
    if TL['on']:
        a.e('s_waitcnt vmcnt(0)'); mark(a, 12)
        srd(a, 8, 42, 43, 1 << 20, add=(58 << 20))
        a.e('s_lshl_b32 s54, s2, 2', 's_add_u32 s54, s54, s28', 's_lshl_b32 s54, s54, 6', 'v_lshlrev_b32 v5, 2, v2', 's_mov_b64 exec, 0xffff')
        a.e(f'buffer_store_dword {V(DIAG)}, v5, s[8:11], s54 offen', 's_mov_b64 exec, -1')
```

```python
from asmlib import *
import struct, math
def f32hex(x): return hex(struct.unpack('<I', struct.pack('<f', x))[0])

WS_MOD = 0
WS_MODQ = 16384
WS_H   = 1 << 20
WS_O   = 4 << 20
WS_PART = 20 << 20
WS_X1  = 28 << 20
WS_H2  = 30 << 20
WS_HH  = 32 << 20
WS_FLAG = 65536
WS_ST  = 40 << 20
QSCALE = math.log2(math.e) / math.sqrt(128.0)

def round_bf16(a, dst, src):
    a.e(f'v_cvt_pk_bf16_f32 {dst}, {src}, {src}', f'v_and_b32 {dst}, 0xffff0000, {dst}')

def code_prefetch(a, L, nwg_per_xcd, dst):
    a.e('s_getpc_b64 s[30:31]', f'{L}_pc:', f's_sub_u32 s30, s30, {L}_pc - code_begin', 's_subb_u32 s31, s31, 0')
    a.e('s_lshr_b32 s32, s2, 3', 's_lshl_b32 s32, s32, 14', f'v_lshlrev_b32 {dst}, 6, v0', f'v_add_u32 {dst}, s32, {dst}',
        f'v_min_u32 {dst}, code_end - code_begin - 4, {dst}', f'global_load_dword {dst}, {dst}, s[30:31]')

def gen_mod(a, opt=None):
    opt = opt or {}
    L = 'mod_kernel'
    a.e('.text', 'code_begin:')
    kernel_head(a, L)
    a.e('s_cmp_ge_u32 s2, 96', f's_cbranch_scc1 {L}_end')
    tl_start(a)
    if opt.get('cpf', 1): code_prefetch(a, L, 12, 'v63')
    a.e('s_load_dwordx4 s[4:7], s[0:1], 72')
    a.e('s_load_dwordx2 s[20:21], s[0:1], 104')
    a.e('v_lshrrev_b32 v1, 2, v0')
    a.e('v_and_b32 v2, 3, v0')
    a.e('v_lshlrev_b32 v3, 1, v1')
    a.e('s_mov_b32 s22, 6144', 'v_mul_lo_u32 v4, v1, s22', 'v_lshl_add_u32 v4, v2, 4, v4')
    a.e('s_lshl_b32 s23, s2, 6')
    a.e('v_add_u32 v4, s23, v4')
    a.e('s_waitcnt lgkmcnt(0)')
    srd(a, 8, 4, 5, 1024); srd(a, 12, 6, 7, 512*6144); srd(a, 16, 20, 21, 12288)
    for i in range(8): a.e(f'buffer_load_ushort v{8+i}, v3, s[8:11], 0 offen offset:{i*128}')
    a.e('s_mov_b32 s24, 0')
    for i in range(8):
        a.e(f'buffer_load_dwordx4 v[{16+4*i}:{19+4*i}], v4, s[12:15], s24 offen nt')
        if i < 7: a.e(f's_add_u32 s24, s24, {64*6144}')
    for j in range(8): a.e(f'v_mov_b32 v{48+j}, 0')
    a.e('s_waitcnt vmcnt(8)')
    a.e(f's_mov_b32 s25, {f32hex(-math.log2(math.e))}')
    for i in range(8): a.e(f'v_lshlrev_b32 v{8+i}, 16, v{8+i}')
    for i in range(8): a.e(f'v_mul_f32 v{64+i}, s25, v{8+i}')
    for i in range(8): a.e(f'v_exp_f32 v{64+i}, v{64+i}')
    a.e('s_nop 0')
    for i in range(8): a.e(f'v_add_f32 v{64+i}, 1.0, v{64+i}')
    for i in range(8): a.e(f'v_rcp_f32 v{64+i}, v{64+i}')
    a.e('s_nop 0')
    for i in range(8): a.e(f'v_mul_f32 v{8+i}, v{8+i}, v{64+i}')
    for i in range(8): round_bf16(a, f'v{8+i}', f'v{8+i}')
    for i in range(8):
        a.e(f's_waitcnt vmcnt({7-i})')
        for d in range(4):
            w = 16+4*i+d
            a.e(f'v_lshlrev_b32 v5, 16, v{w}', f'v_and_b32 v6, 0xffff0000, v{w}',
                f'v_fmac_f32 v{48+2*d}, v5, v{8+i}', f'v_fmac_f32 v{49+2*d}, v6, v{8+i}')
    a.e('v_mul_u32_u24 v5, 144, v1', 'v_lshl_add_u32 v5, v2, 5, v5')
    a.e('ds_write_b128 v5, v[48:51]', 'ds_write_b128 v5, v[52:55] offset:16', 's_waitcnt lgkmcnt(0)', 's_barrier')
    a.e('v_and_b32 v6, 31, v0', 'v_lshrrev_b32 v7, 5, v0', 'v_mul_u32_u24 v5, 1152, v7', 'v_lshl_add_u32 v5, v6, 2, v5')
    for i in range(8): a.e(f'ds_read_b32 v{16+i}, v5 offset:{144*i}')
    a.e('s_waitcnt lgkmcnt(0)')
    for i in range(1, 8): a.e(f'v_add_f32 v16, v16, v{16+i}')
    a.e('v_lshlrev_b32 v5, 2, v0', 'ds_write_b32 v5, v16 offset:9216', 's_waitcnt lgkmcnt(0)', 's_barrier')
    a.e('v_cmp_gt_u32 vcc, 32, v0', 's_and_saveexec_b64 s[26:27], vcc', f's_cbranch_execz {L}_end')
    for i in range(8): a.e(f'ds_read_b32 v{16+i}, v5 offset:{9216+128*i}')
    a.e('s_waitcnt lgkmcnt(0)')
    for i in range(1, 8): a.e(f'v_add_f32 v16, v16, v{16+i}')
    round_bf16(a, 'v16', 'v16')
    a.e('s_lshr_b32 s28, s2, 4', 's_cmp_eq_u32 s28, 1', 's_cselect_b32 s29, 1, 0', 's_cmp_eq_u32 s28, 4', 's_cselect_b32 s29, 1, s29', 's_cmp_eq_u32 s29, 0', f's_cbranch_scc1 {L}_st')
    a.e('v_add_f32 v16, 1.0, v16'); round_bf16(a, 'v16', 'v16')
    a.e(f'{L}_st:', 's_lshl_b32 s23, s2, 7', 'v_add_u32 v5, s23, v5', 'buffer_store_dword v16, v5, s[16:19], 0 offen', 's_waitcnt vmcnt(0)')
    tl_end(a); a.e(f'{L}_end:', 's_endpgm')
    return dict(label=L, grid=96, block=256, lds=10240, vgpr=72, accum=72)

def xlane_sum(a, v, t):
    a.e(f'v_mov_b32 {t}, {v}', 's_nop 1', f'v_permlane32_swap_b32 {v}, {t}', 's_nop 1', f'v_add_f32 {v}, {v}, {t}',
        f'v_mov_b32 {t}, {v}', 's_nop 1', f'v_permlane16_swap_b32 {v}, {t}', 's_nop 1', f'v_add_f32 {v}, {v}, {t}')

def gen_ln(a, L, src, shift_part, scale_part, dst_off, outscale):
    kernel_head(a, L)
    a.e('s_cmp_ge_u32 s2, 128', f's_cbranch_scc1 {L}_end')
    tl_start(a)
    a.e('s_load_dwordx2 s[4:5], s[0:1], 0', 's_load_dwordx2 s[20:21], s[0:1], 104')
    a.e('v_and_b32 v1, 63, v0', 'v_lshrrev_b32 v2, 6, v0', 'v_and_b32 v3, 15, v0', 'v_bfe_u32 v4, v0, 4, 2')
    a.e('s_lshl_b32 s22, s2, 14', 'v_lshlrev_b32 v5, 12, v2', 'v_lshl_add_u32 v5, v1, 4, v5', 'v_add_u32 v5, s22, v5')
    if src == 'x':
        a.e('v_lshlrev_b32 v6, 10, v3', 'v_lshl_add_u32 v6, v2, 8, v6', 'v_lshl_add_u32 v6, v4, 4, v6', 'v_add_u32 v6, s22, v6')
    a.e('v_lshlrev_b32 v7, 9, v2', 'v_lshl_add_u32 v7, v4, 5, v7')
    a.e('s_waitcnt lgkmcnt(0)')
    if src == 'x': srd(a, 8, 4, 5, 2097152)
    else: srd(a, 8, 20, 21, 2097152, add=src)
    srd(a, 12, 20, 21, 12288); srd(a, 16, 20, 21, 2097152, add=dst_off)
    for j in range(4):
        if src == 'x': a.e(f'buffer_load_dwordx4 v[{16+4*j}:{19+4*j}], v6, s[8:11], 0 offen offset:{64*j}')
        else: a.e(f'buffer_load_dwordx4 v[{16+4*j}:{19+4*j}], v5, s[8:11], 0 offen offset:{1024*j}')
    a.e(f's_mov_b32 s23, {scale_part*2048}', f's_mov_b32 s24, {shift_part*2048}')
    for j in range(4):
        for hh in range(2):
            a.e(f'buffer_load_dwordx4 v[{64+8*j+4*hh}:{67+8*j+4*hh}], v7, s[12:15], s23 offen offset:{128*j+16*hh}')
            a.e(f'buffer_load_dwordx4 v[{96+8*j+4*hh}:{99+8*j+4*hh}], v7, s[12:15], s24 offen offset:{128*j+16*hh}')
    a.e('s_waitcnt vmcnt(16)')
    for i in range(16):
        a.e(f'v_lshlrev_b32 v{32+2*i}, 16, v{16+i}', f'v_and_b32 v{33+2*i}, 0xffff0000, v{16+i}')
    a.e('v_add_f32 v8, v32, v33')
    for i in range(2, 32): a.e(f'v_add_f32 v8, v8, v{32+i}')
    xlane_sum(a, 'v8', 'v9')
    a.e('v_lshlrev_b32 v10, 2, v3', 'v_lshl_add_u32 v11, v2, 6, v10', 'ds_write_b32 v11, v8', 's_waitcnt lgkmcnt(0)', 's_barrier')
    for i in range(4): a.e(f'ds_read_b32 v{12+i}, v10 offset:{64*i}')
    a.e('s_waitcnt lgkmcnt(0)', 'v_add_f32 v12, v12, v13', 'v_add_f32 v14, v14, v15', 'v_add_f32 v12, v12, v14')
    a.e(f'v_mul_f32 v12, {f32hex(1/512)}, v12')
    for i in range(32): a.e(f'v_sub_f32 v{32+i}, v{32+i}, v12')
    a.e('v_mul_f32 v8, v32, v32')
    for i in range(1, 32): a.e(f'v_fmac_f32 v8, v{32+i}, v{32+i}')
    xlane_sum(a, 'v8', 'v9')
    a.e('ds_write_b32 v11, v8 offset:256', 's_waitcnt lgkmcnt(0)', 's_barrier')
    for i in range(4): a.e(f'ds_read_b32 v{12+i}, v10 offset:{256+64*i}')
    a.e('s_waitcnt lgkmcnt(0)', 'v_add_f32 v12, v12, v13', 'v_add_f32 v14, v14, v15', 'v_add_f32 v12, v12, v14')
    a.e(f'v_mov_b32 v13, {f32hex(1e-5)}', f'v_fmac_f32 v13, {f32hex(1/512)}, v12', 'v_rsq_f32 v13, v13', 's_nop 0')
    a.e('s_waitcnt vmcnt(0)')
    for i in range(32): a.e(f'v_mul_f32 v{32+i}, v{32+i}, v13')
    for i in range(32): a.e(f'v_fma_f32 v{32+i}, v{32+i}, v{64+i}, v{96+i}')
    if outscale != 1.0:
        a.e(f's_mov_b32 s25, {f32hex(outscale)}')
        for i in range(32): a.e(f'v_mul_f32 v{32+i}, s25, v{32+i}')
    for i in range(16): a.e(f'v_cvt_pk_bf16_f32 v{16+i}, v{32+2*i}, v{33+2*i}')
    for j in range(4): a.e(f'buffer_store_dwordx4 v[{16+4*j}:{19+4*j}], v5, s[16:19], 0 offen offset:{1024*j}')
    a.e('s_waitcnt vmcnt(0)'); tl_end(a); a.e(f'{L}_end:', 's_endpgm')
    return dict(label=L, grid=128, block=256, lds=512, vgpr=128, accum=128)

def lane8_sum(a, v, t):
    xlane_sum(a, v, t)
    a.e('s_nop 1', f'v_add_f32_dpp {v}, {v}, {v} row_ror:8 row_mask:0xf bank_mask:0xf')

def gen_pre(a, opt):
    L = 'pre_kernel'
    a.e('.text', 'code_begin:')
    kernel_head(a, L)
    a.e('s_cmp_ge_u32 s2, 224', f's_cbranch_scc1 {L}_end')
    tl_start(a)
    a.e('s_cmp_lt_u32 s2, 96', f's_cbranch_scc1 {L}_mod')
    a.e('s_load_dwordx2 s[4:5], s[0:1], 0', 's_load_dwordx2 s[38:39], s[0:1], 24', 's_load_dwordx2 s[20:21], s[0:1], 104')
    a.e('s_sub_u32 s33, s2, 96')
    a.e('v_and_b32 v1, 63, v0', 'v_lshrrev_b32 v2, 6, v0', 'v_and_b32 v3, 15, v0', 'v_bfe_u32 v4, v0, 4, 2')
    a.e('s_and_b32 s22, s33, 1', 's_lshl_b32 s22, s22, 6', 's_bfe_u32 s23, s33, 0x20001', 's_lshl_b32 s24, s23, 4', 's_add_u32 s22, s22, s24', 's_lshr_b32 s25, s33, 3', 's_add_u32 s22, s22, s25')
    a.e('s_lshl_b32 s26, s22, 14', 'v_lshlrev_b32 v7, 10, v3', 'v_lshl_add_u32 v7, v2, 7, v7', 'v_lshl_add_u32 v7, v4, 4, v7')
    a.e('s_waitcnt lgkmcnt(0)'); tl_mark(a, 0)
    srd(a, 8, 4, 5, 2097152)
    for i in range(2): a.e(f'buffer_load_dwordx4 v[{16+4*i}:{19+4*i}], v7, s[8:11], s26 offen offset:{64*i}{opt.get("xnt", "")}')
    a.e('v_lshlrev_b32 v7, 11, v2', 'v_lshl_add_u32 v7, v1, 4, v7')
    srd(a, 16, 20, 21, 2097152, add=WS_H); srd(a, 44, 20, 21, 65536, add=WS_FLAG); srd(a, 12, 38, 39, 4194304)
    a.e('v_lshlrev_b32 v12, 2, v3', 'v_lshl_add_u32 v13, v2, 6, v12')
    a.e('v_and_b32 v14, 3, v2', 'v_lshlrev_b32 v14, 14, v14', 'v_lshrrev_b32 v15, 2, v2', 'v_lshl_add_u32 v14, v15, 6, v14', 'v_mov_b32 v15, 0', 's_lshl_b32 s28, s33, 7')
    a.e('s_mov_b64 exec, 1', 'buffer_store_dword v15, v14, s[44:47], s28 offen sc1', 's_mov_b64 exec, -1')
    a.e('v_lshrrev_b32 v8, 5, v0', 'v_lshlrev_b32 v8, 13, v8', 'v_and_b32 v9, 31, v0', 'v_lshl_add_u32 v8, v9, 6, v8', 's_lshl_b32 s27, s25, 17', 's_lshl_b32 s29, s23, 11', 's_add_u32 s27, s27, s29')
    a.e('s_waitcnt vmcnt(1)'); tl_mark(a, 1)
    fl = ' nt' if opt.get('pfnt', 1) else ''
    for k in range(opt.get('l2pf', 0)):
        a.e(f'buffer_load_dword v10, v8, s[12:15], s27 offen{fl}', 's_add_u32 s27, s27, 0x200000')
    if opt.get('cpf', 1):
        a.e('s_getpc_b64 s[30:31]', f'{L}_pc:', f's_sub_u32 s30, s30, {L}_pc - code_begin', 's_subb_u32 s31, s31, 0')
        a.e('s_lshl_b32 s32, s25, 15', 'v_lshlrev_b32 v11, 6, v0', 'v_add_u32 v11, s32, v11', 'v_min_u32 v11, code_end - code_begin - 4, v11', 'global_load_dword v11, v11, s[30:31]')
    for i in range(8): a.e(f'v_lshlrev_b32 v{32+2*i}, 16, v{16+i}', f'v_and_b32 v{33+2*i}, 0xffff0000, v{16+i}')
    a.e('v_add_f32 v8, v32, v33', 'v_add_f32 v9, v34, v35')
    for i in range(4, 16, 2): a.e(f'v_add_f32 v8, v8, v{32+i}', f'v_add_f32 v9, v9, v{33+i}')
    a.e('v_add_f32 v8, v8, v9')
    def across(off):
        xlane_sum(a, 'v8', 'v9')
        a.e(f'ds_write_b32 v13, v8 offset:{off}', 's_waitcnt lgkmcnt(0)', 's_barrier')
        for i in range(8): a.e(f'ds_read_b32 v{24+i}, v12 offset:{off+64*i}')
        a.e('s_waitcnt lgkmcnt(0)', 'v_add_f32 v24, v24, v25', 'v_add_f32 v26, v26, v27', 'v_add_f32 v28, v28, v29', 'v_add_f32 v30, v30, v31',
            'v_add_f32 v24, v24, v26', 'v_add_f32 v28, v28, v30', 'v_add_f32 v24, v24, v28')
    across(0)
    a.e(f'v_mul_f32 v24, {f32hex(1/512)}, v24')
    for i in range(16): a.e(f'v_sub_f32 v{32+i}, v{32+i}, v24')
    a.e('v_mul_f32 v8, v32, v32', 'v_mul_f32 v9, v33, v33')
    for i in range(2, 16, 2): a.e(f'v_fmac_f32 v8, v{32+i}, v{32+i}', f'v_fmac_f32 v9, v{33+i}, v{33+i}')
    a.e('v_add_f32 v8, v8, v9')
    across(512)
    a.e(f'v_mov_b32 v25, {f32hex(1e-5)}', f'v_fmac_f32 v25, {f32hex(1/512)}, v24', 'v_rsq_f32 v25, v25', 's_nop 0')
    for i in range(16): a.e(f'v_mul_f32 v{32+i}, v{32+i}, v25')
    for i in range(8): a.e(f'v_cvt_pk_f16_f32 v{16+i}, v{32+2*i}, v{33+2*i}')
    for i in range(2): a.e(f'buffer_store_dwordx4 v[{16+4*i}:{19+4*i}], v7, s[16:19], s26 offen offset:{1024*i}{opt.get("wt_p", " sc1")}')
    a.e(f's_branch {L}_fin')
    a.e(f'{L}_mod:')
    a.e('s_load_dwordx4 s[4:7], s[0:1], 72', 's_load_dwordx2 s[20:21], s[0:1], 104')
    a.e('v_lshrrev_b32 v1, 2, v0', 'v_and_b32 v2, 3, v0', 'v_lshlrev_b32 v3, 1, v1')
    a.e('s_mov_b32 s22, 6144', 'v_mul_lo_u32 v4, v1, s22', 'v_lshl_add_u32 v4, v2, 4, v4', 's_lshl_b32 s23, s2, 6', 'v_add_u32 v4, s23, v4')
    a.e('s_waitcnt lgkmcnt(0)'); tl_mark(a, 0)
    srd(a, 8, 4, 5, 1024); srd(a, 12, 6, 7, 512*6144)
    a.e('s_mov_b32 s24, 0')
    for i in range(4):
        a.e(f'buffer_load_dwordx4 v[{16+4*i}:{19+4*i}], v4, s[12:15], s24 offen{opt.get("mnt", " nt")}')
        if i < 3: a.e(f's_add_u32 s24, s24, {128*6144}')
    for i in range(4): a.e(f'buffer_load_ushort v{8+i}, v3, s[8:11], 0 offen offset:{i*256}')
    srd(a, 16, 20, 21, WS_MODQ + 4096)
    if opt.get('tlb', 0): a.e('buffer_load_dword v60, v3, s[16:19], 0 offen')
    a.e('v_mul_u32_u24 v7, 144, v1', 'v_lshl_add_u32 v7, v2, 5, v7')
    a.e('v_and_b32 v6, 31, v0', 'v_lshrrev_b32 v5, 5, v0', 'v_mul_u32_u24 v5, 1152, v5', 'v_lshl_add_u32 v12, v6, 2, v5', 'v_lshlrev_b32 v13, 2, v0')
    a.e(f's_mov_b32 s25, {f32hex(-math.log2(math.e))}')
    a.e('s_lshr_b32 s28, s2, 4', 's_cmp_eq_u32 s28, 1', 's_cselect_b32 s29, 1.0, 0', 's_cmp_eq_u32 s28, 4', 's_cselect_b32 s29, 1.0, s29', 's_lshl_b32 s23, s2, 7')
    a.e(f's_waitcnt vmcnt({1 if opt.get("tlb", 0) else 0})'); tl_mark(a, 1)
    for i in range(4): a.e(f'v_lshlrev_b32 v{8+i}, 16, v{8+i}')
    for i in range(4): a.e(f'v_mul_f32 v{56+i}, s25, v{8+i}')
    for i in range(4): a.e(f'v_exp_f32 v{56+i}, v{56+i}')
    a.e('s_nop 0')
    for i in range(4): a.e(f'v_add_f32 v{56+i}, 1.0, v{56+i}')
    for i in range(4): a.e(f'v_rcp_f32 v{56+i}, v{56+i}')
    a.e('s_nop 0')
    for i in range(4): a.e(f'v_mul_f32 v{8+i}, v{8+i}, v{56+i}')
    for i in range(4): round_bf16(a, f'v{8+i}', f'v{8+i}')
    for i in range(4):
        for d in range(4):
            w = 16+4*i+d
            a.e(f'v_lshlrev_b32 v5, 16, v{w}', f'v_and_b32 v6, 0xffff0000, v{w}')
            if i == 0: a.e(f'v_mul_f32 v{48+2*d}, v5, v8', f'v_mul_f32 v{49+2*d}, v6, v8')
            else: a.e(f'v_fmac_f32 v{48+2*d}, v5, v{8+i}', f'v_fmac_f32 v{49+2*d}, v6, v{8+i}')
    a.e('ds_write_b128 v7, v[48:51]', 'ds_write_b128 v7, v[52:55] offset:16', 's_waitcnt lgkmcnt(0)', 's_barrier')
    for i in range(8): a.e(f'ds_read_b32 v{16+i}, v12 offset:{144*i}')
    a.e('s_waitcnt lgkmcnt(0)', 'v_add_f32 v16, v16, v17', 'v_add_f32 v18, v18, v19', 'v_add_f32 v20, v20, v21', 'v_add_f32 v22, v22, v23', 'v_add_f32 v16, v16, v18', 'v_add_f32 v20, v20, v22', 'v_add_f32 v16, v16, v20')
    a.e('ds_write_b32 v13, v16 offset:18432', 's_waitcnt lgkmcnt(0)', 's_barrier')
    tl_mark(a, 2)
    a.e('v_cmp_gt_u32 vcc, 32, v0', 's_and_saveexec_b64 s[26:27], vcc', f's_cbranch_execz {L}_end')
    for i in range(16): a.e(f'ds_read_b32 v{16+i}, v13 offset:{18432+128*i}')
    a.e('v_add_u32 v5, s23, v13', 's_waitcnt lgkmcnt(0)')
    for st in (8, 4, 2, 1):
        for i in range(st): a.e(f'v_add_f32 v{16+i}, v{16+i}, v{16+st+i}')
    round_bf16(a, 'v16', 'v16')
    a.e('v_add_f32 v16, s29, v16'); round_bf16(a, 'v16', 'v16')
    a.e('buffer_store_dword v16, v5, s[16:19], 0 offen sc1')
    a.e('s_cmp_ge_u32 s28, 2', f's_cbranch_scc1 {L}_fin')
    a.e(f'v_mul_f32 v17, {f32hex(QSCALE)}, v16', 'v_xor_b32 v5, 2048, v5', f's_mov_b32 s23, {WS_MODQ}', 'buffer_store_dword v17, v5, s[16:19], s23 offen sc1')
    a.e(f'{L}_fin:')
    tl_end(a, wait=False); a.e(f'{L}_end:', 's_endpgm')
    return dict(label=L, grid=224, block=512, lds=20480, vgpr=64, accum=64)
```

```python
from asmlib import *
from gen_pre import *
import gen_fuse as gf
import re

S_ = [16, 48]; P_ = [80, 96]; CI = 112; VT = 128
KA = 144; VA = 148; DK = 156; DV = 160; LV = 162; ONES = 172; LM = 176; Q = 192
WA = 176; DW = 180; HV = 181
AO = 0; AK = 192; AV = 224
DELTA = 100.0
MF = 'v_mfma_f32_16x16x32_bf16'
NT = {'kv': '', 'wq': ''}
PF = 136

class Sched:
    def __init__(self, a, age=8):
        self.a = a
        self.pend = []
        self.t = 0; self.age = age
    @staticmethod
    def regs(tok):
        m = re.match(r'([av])\[(\d+):(\d+)\]', tok)
        if m: return {(m.group(1), i) for i in range(int(m.group(2)), int(m.group(3))+1)}
        m = re.match(r'([av])(\d+)$', tok)
        if m: return {(m.group(1), int(m.group(2)))}
        return set()
    def need(self, ins):
        ops = [t.strip() for t in ins.split(None, 1)[1].split(',')]
        rs = set()
        for t in ops[1:3]: rs |= self.regs(t.split()[0])
        last = -1
        for i, p in enumerate(self.pend):
            if p[0] & rs: last = i
        if last < 0: return None
        while last + 1 < len(self.pend) and self.pend[last+1][1] <= self.t - self.age: last += 1
        return len(self.pend) - 1 - last
    def wait(self, n):
        n = min(n, 15)
        self.a.e(f's_waitcnt lgkmcnt({n})')
        self.pend = self.pend[len(self.pend)-n:] if n else []
    def emit_filler(self, ins):
        if ins.startswith('WAITDS '):
            n = self.need('x d, ' + ins[7:])
            if n is not None: self.wait(n)
            return
        self.a.e(ins)
        if ins.startswith('ds_read') or ins.startswith('ds_bpermute'):
            self.pend.append((self.regs(ins.split(None, 1)[1].split(',')[0].strip()), self.t))
        elif ins.startswith('ds_'):
            self.pend.append((set(), self.t))
        elif ins.startswith('s_waitcnt') and 'lgkmcnt(0)' in ins:
            self.pend = []
    def run(self, mf, gaps, nextmf=None):
        n0 = self.need(mf[0]) if mf else None
        if n0 is not None: self.wait(n0)
        for g, m in enumerate(mf):
            self.a.e(m); self.t += 1
            nxt = mf[g+1] if g+1 < len(mf) else nextmf
            if nxt is not None:
                n = self.need(nxt)
                if n is not None: self.wait(n)
            for f in gaps[g]: self.emit_filler(f)
            if nxt is not None:
                n = self.need(nxt)
                if n is not None: self.wait(n)

def qk_mfmas(Sw, czero=False, order='kqt'):
    it = [(kb, qb, t) for kb in range(2) for qb in range(4) for t in range(4)] if order == 'kqt' else \
         [(kb, qb, t) for qb in range(4) for kb in range(2) for t in range(4)]
    r = []
    for kb, qb, t in it:
        d = Sw + 8*qb + 4*kb
        c = (('0' if czero else V(CI+4*qb, 4)) if t == 0 else V(d, 4))
        r.append(f'{MF} {V(d,4)}, {A(AK+16*kb+4*t,4)}, {V(Q+16*qb+4*t,4)}, {c}')
    return r

def pv_mfmas(Pr, XQ, first=False):
    r = []
    for db in range(8):
        for qb in range(4):
            o = AO + 16*db + 4*qb
            r.append(f'{MF} {A(o,4)}, {V(Pr+4*qb,4)}, {A(AV+4*db,4)}, {"0" if first else A(o,4)}')
    for qb in XQ:
        r.append(f'{MF} {V(LM+4*qb,4)}, {V(Pr+4*qb,4)}, {V(ONES,4)}, {"0" if first else V(LM+4*qb,4)}')
    return r

def vreads(base_reg, off):
    return [f'ds_read_b64_tr_b16 {A(AV+4*db+2*u,2)}, {V(base_reg+db)} offset:{off+4096*u}' for db in range(8) for u in range(2)]
def kreads(off):
    return [f'ds_read_b128 {A(AK+4*f,4)}, {V(KA+(f&3))} offset:{off+4096*(f>>2)}' for f in range(8)]

def sm_items(Sr, Pw, XQ):
    exps = [f'v_exp_f32 {V(Sr+e)}, {V(Sr+e)}' for e in range(32)]
    items = []
    for e in range(32):
        qb = e >> 3
        if qb not in XQ:
            l = LV + 2*qb + (e & 1)
            items.append((e, f'v_add_f32 {V(l)}, {V(l)}, {V(Sr+e)}'))
        if e & 1: items.append((e, f'v_cvt_pk_bf16_f32 {V(Pw+e//2)}, {V(Sr+e-1)}, {V(Sr+e)}'))
    return exps, items

def dma_group(isV, grp, m0s, soff):
    srd_ = 's[12:15]' if isV else 's[8:11]'
    st = f's_mov_b32 m0, {m0s}' if grp == 0 else f's_add_u32 m0, {m0s}, 4096'
    r = []
    for j in range(4):
        vo = DV + (j & 1) if isV else DK + j
        r.append(f'buffer_load_dwordx4 {V(vo)}, {srd_}, {soff} offen offset:{j*1024}{NT["kv"]} lds')
    return st, r

def normal_slot(sc, opt, s, dmas, kread=True, first_pv=False, late_v=None, salu=(), extra_v=()):
    XQ = opt['XQ']
    par = s & 1
    mf = qk_mfmas(S_[par ^ 1]) + pv_mfmas(P_[par ^ 1], XQ, first_pv)
    N = len(mf)
    gaps = [[] for _ in range(N)]; cap = [0 if (g < 64 and g % 2 == 0) else 2 for g in range(N)]
    pre = [[] for _ in range(N)]
    exps, items = sm_items(S_[par], P_[par], XQ)
    for e in range(32): gaps[2*e].append(exps[e])
    for n, (sal, ins) in enumerate(dmas):
        g = opt['dpos'][n]
        for k, x in enumerate(sal): pre[g-1-k].append(x)
        gaps[g].append(ins); cap[g] -= opt['dcost']
    if opt.get('nodma'):
        gaps = [[x for x in gp if not x.startswith('buffer_load')] for gp in gaps]
    for k, x in enumerate(salu): pre[40 + 2*k].append(x)
    LAT = opt.get('dslat', 10)
    ds = []
    for i, r in enumerate(vreads(VA, ((s-1) % 8)*8192)): ds.append((0, 32 + 4*(i >> 1) - LAT, r))
    if kread:
        for f, r in enumerate(kreads(((s+2) % 8)*8192)): ds.append((16 if f < 4 else 32, N - LAT if (f < 4 or (s % 4) == 3) else N - 1, r))
    if late_v is not None:
        for i, r in enumerate(late_v): ds.append((min(36 + 4*(i >> 1), N-1), N - 1, r))
    va = [(2*e + 1, N - 1, t) for e, t in items]
    for i, t in enumerate(extra_v): va.append((4*i + 1, N - 1, t))
    va.sort(key=lambda x: x[0])
    maxds = opt.get('maxds', 1)
    for g in range(N):
        nds = 0
        while cap[g] > 0:
            rd = [x for x in ds if x[0] <= g]
            rv = [x for x in va if x[0] <= g]
            pick = None
            if rd:
                rd.sort(key=lambda x: x[1])
                urgent = rd[0][1] <= g + 2*sum(1 for x in rd if x[1] <= rd[0][1] + 4)
                if nds < maxds or urgent or not rv: pick = ('d', rd[0])
            if pick is None and rv: pick = ('v', rv[0])
            if pick is None: break
            if pick[0] == 'd':
                ds.remove(pick[1]); gaps[g].insert(nds, pick[1][2]); nds += 1
            else:
                va.remove(pick[1]); gaps[g].append(pick[1][2])
            cap[g] -= 1
    gaps[N-1] = [x[2] for x in ds] + gaps[N-1] + [x[2] for x in va]
    if opt.get('verbose'): print('slot', s, 'overflow', len(ds), len(va), 'free', sum(cap))
    sc.run(mf, [pre[g] + gaps[g] for g in range(N)], nextmf=(qk_mfmas(S_[par])[0] if kread else None))

def packed(sc, mf, ds_at, exps, items, extra=None):
    N = len(mf)
    gaps = [[] for _ in range(N)]
    for g, r in ds_at: gaps[g].append(r)
    q = list(items); ne = len(exps)
    e = 0
    for g in range(N):
        k = 0
        while q and q[0][0] < e and k < 2:
            gaps[g].append(q.pop(0)[1]); k += 1
        if e < ne: gaps[g].append(exps[e]); e += 1
    assert e == ne
    if q: gaps[N-1] += ['s_nop 0'] + [x[1] for x in q]
    if extra:
        for g, x in extra: gaps[g].append(x)
    sc.run(mf, gaps)

def epoch_dmas(E, opt, mode='full'):
    p = E & 1
    r = []
    for isV in (0, 1):
        for grp in (0, 1):
            st, ins = dma_group(isV, grp, f's{30+2*isV+p}', f's{34+2*isV+grp}')
            for j, x in enumerate(ins):
                sal = [st] if j == 0 else []
                r.append([sal, x])
    return r

def stamp(a, opt, idx):
    if opt.get('stamps'):
        a.e(f's_memtime s[{80+2*idx}:{81+2*idx}]')

def gen_attn(a, opt=None):
    opt = dict(opt or {})
    opt.setdefault('XQ', [0, 2]); opt.setdefault('kpos', [33, 35, 37, 39, 41, 43, 45, 47])
    opt.setdefault('dpos', [5, 15, 25, 35, 45, 55, 61, 51]); opt.setdefault('dcost', 2); opt.setdefault('dsplit', [6, 5, 5, 0])
    XQ = opt['XQ']
    assert opt['dsplit'][3] == 0 and opt['dpos'][:max(opt['dsplit'])] == sorted(opt['dpos'][:max(opt['dsplit'])])
    NT['kv'] = ' nt' if opt.get('ntkv', 1) else ''; NT['wq'] = ' nt' if opt.get('ntwq', 0) else ''
    L = 'attn_kernel'
    kernel_head(a, L)
    a.e('s_cmp_ge_u32 s2, 256', f's_cbranch_scc1 {L}_end')
    tl_start(a)
    stamp(a, opt, 0)
    if opt.get('stamps'): a.e('s_memrealtime s[92:93]')
    a.e('s_load_dwordx4 s[4:7], s[0:1], 8', 's_load_dwordx2 s[40:41], s[0:1], 24', 's_load_dwordx2 s[42:43], s[0:1], 104')
    fuse = opt.get('fuse', 1)
    if fuse:
        a.e('s_load_dwordx2 s[80:81], s[0:1], 0', 's_load_dwordx2 s[82:83], s[0:1], 88')
    a.e('s_load_dwordx2 s[64:65], s[0:1], 32', 's_load_dwordx2 s[68:69], s[0:1], 48', 's_load_dwordx2 s[72:73], s[0:1], 56', 's_load_dwordx2 s[76:77], s[0:1], 64')
    a.e('v_lshrrev_b32 v1, 6, v0', 'v_and_b32 v2, 63, v0', 'v_readfirstlane_b32 s28, v1')
    if opt.get('map', 8) == 4:
        a.e('s_and_b32 s44, s2, 7', 's_lshl_b32 s44, s44, 2', 's_lshr_b32 s45, s2, 3', 's_and_b32 s46, s45, 3', 's_add_u32 s44, s44, s46')
        a.e('s_lshr_b32 s45, s45, 2')
    else:
        a.e('s_bfe_u32 s44, s2, 0x20001', 's_lshl_b32 s44, s44, 3', 's_bfe_u32 s46, s2, 0x30003', 's_add_u32 s44, s44, s46')
        a.e('s_and_b32 s45, s2, 1', 's_lshl_b32 s45, s45, 2', 's_lshr_b32 s46, s2, 6', 's_add_u32 s45, s45, s46')
    a.e('s_lshl_b32 s45, s45, 2', 's_add_u32 s45, s45, s28')
    CU = [(144, 148), (152, 160), (164, 168)]
    WA = 172; DW = 0; HV = 14; CSA = 15; TM = 8; RING = 176
    MF32 = 'v_mfma_f32_32x32x16_bf16'
    a.e('v_and_b32 v3, 15, v2', 'v_lshrrev_b32 v4, 4, v2')
    a.e('v_lshlrev_b32 v5, 2, v4', 'v_xor_b32 v5, v5, v3', 'v_lshlrev_b32 v5, 4, v5', f'v_lshl_add_u32 {V(DW)}, v4, 13, v5')
    a.e(f'v_lshlrev_b32 {V(HV)}, 4, v2')
    a.e('s_lshl_b32 s48, s28, 13', 's_lshl_b32 s49, s28, 10')
    a.e('s_waitcnt lgkmcnt(0)')
    srd(a, 24, 42, 43, 4096, add=WS_MODQ)
    a.e('s_add_u32 m0, s49, 147456')
    a.e('s_lshl_b32 s46, s44, 8'); srd(a, 16, 40, 41, 0, add='s46'); a.e('s_sub_u32 s18, 4194304, s46')
    vm = []
    def vmwait(tags, extra=''):
        last = max([i for i, t in enumerate(vm) if t in tags], default=-1)
        if last < 0: return [f's_waitcnt{extra}'] if extra else []
        n = len(vm) - 1 - last
        del vm[:last+1]
        return [f's_waitcnt vmcnt({n}){extra}']
    a.e(f'buffer_load_dwordx4 {V(HV)}, s[24:27], s49 offen lds'); vm.append(('w', 0))
    a.e('s_lshl_b32 s46, s45, 16', f's_add_u32 s46, s46, {WS_H}'); srd(a, 20, 42, 43, 65536, add='s46')
    def wq(s0, n):
        r = []
        for i in range(2*n):
            sal = []
            if i == 0: sal += [f's_mul_i32 s57, s28, {8*n*8192}', f's_mul_i32 s58, s28, {8*n*256}']
            if i % 4 == 0: sal.append(f's_add_u32 m0, s58, {16384 + s0*8192 + 4096*(i//4)}')
            sal.append(f's_add_u32 s50, s57, {s0*32*8192 + 32768*i - 1024*(i & 3)}')
            r.append([sal, f'buffer_load_dwordx4 {V(DW)}, s[16:19], s50 offen offset:{1024*(i&3)}{NT["wq"]} lds', ('w', s0)])
        return r
    HR = lambda ks: RING + 8*(ks % 10)
    def hl(s):
        return [[[f's_mov_b32 s51, {qq*32768 + ((2*s) & ~3)*1024}'], f'buffer_load_dwordx4 {V(HR(ks)+4*qq,4)}, {V(HV)}, s[20:23], s51 offen offset:{1024*(ks & 3)}', ('h', ks)]
                for ks in (2*s, 2*s+1) for qq in range(2)]
    def emit_list(lst):
        for sal, ins, tag in lst:
            a.e(sal, ins); vm.append(tag)
    emit_list(wq(0, 1) + hl(0) + wq(1, 1) + hl(1) + wq(2, 2) + hl(2))
    a.e('s_lshl_b32 s46, s44, 19'); srd(a, 8, 4, 5, 524288, add='s46'); srd(a, 12, 6, 7, 524288, add='s46')
    for j in range(4):
        a.e(f'v_add_u32 v6, {4*j}, v4', 'v_xor_b32 v6, v6, v3', 'v_lshlrev_b32 v6, 4, v6', f'v_lshl_add_u32 {V(DK+j)}, v4, 8, v6')
    a.e('v_and_b32 v1, 3, v2', 'v_bfe_u32 v6, v2, 2, 2', 'v_lshrrev_b32 v7, 5, v2', 'v_lshlrev_b32 v8, 5, v7', f'v_add_u32 {V(CSA)}, 147456, v8',
        'v_lshl_add_u32 v7, v7, 3, v6', 'v_lshlrev_b32 v7, 8, v7', 'v_and_b32 v8, 1, v4', 'v_lshl_add_u32 v7, v8, 3, v7', 'v_add_u32 v7, 0x4000, v7', 'v_lshlrev_b32 v6, 2, v6',
        'v_and_b32 v8, 1, v1', 'v_lshlrev_b32 v8, 1, v8', 'v_lshrrev_b32 v9, 1, v1', 'v_add_u32 v8, v8, v9')
    for db in range(4):
        a.e(f'v_add_u32 v5, {4*db}, v8', 'v_xor_b32 v5, v5, v6', f'v_lshl_add_u32 {V(WA+db)}, v5, 4, v7')
    for j in range(2):
        a.e(f'v_add_u32 v5, {4*j}, v4', 'v_lshlrev_b32 v5, 1, v5', 'v_xor_b32 v5, v5, v3', 'v_lshlrev_b32 v5, 4, v5', f'v_lshl_add_u32 {V(6+j)}, v4, 8, v5')
    for p in range(2):
        a.e(f's_add_u32 s53, s28, {6+4*p}', 's_and_b32 s53, s53, 7', f's_lshl_b32 s{30+p}, s53, 13')
        a.e(f's_add_u32 s53, s28, {3+4*p}', 's_and_b32 s53, s53, 7', 's_lshl_b32 s53, s53, 13', f's_add_u32 s{32+p}, s53, 65536')
    a.e(f's_add_u32 s34, s48, {6*8192}', 's_add_u32 s35, s34, 4096', f's_add_u32 s36, s48, {3*8192}', 's_add_u32 s37, s36, 4096')
    a.e('s_mov_b32 s39, 0')
    for i, size in enumerate((4194304, 1835008, 1835008, 1835008)): a.e(f's_mov_b32 s{66+4*i}, {size}', f's_mov_b32 s{67+4*i}, 0x20000')
    sc = Sched(a, age=4)
    QA = lambda qq, db: 16 + 64*qq + 16*db
    AR = lambda n: AK + 4*(n % 16)
    def a_reads(n):
        ks, db = divmod(n, 4)
        return [f'ds_read_b64_tr_b16 {A(AR(n)+2*v,2)}, {V(WA+db)} offset:{(ks % 8)*4096+v*1024}' for v in range(2)]
    def cs_reads(u):
        c, sh = CU[u % 3]
        return [f'ds_read_b128 {V(c,4)}, {V(CSA)} offset:{64*(u >> 1)+16*(u & 1)}', f'ds_read_b128 {V(sh,4)}, {V(CSA)} offset:{2048+64*(u >> 1)+16*(u & 1)}']
    xk = [0]
    def xform(u):
        r = [f'WAITDS {V(CU[u % 3][0],4)}, {V(CU[u % 3][1],4)}']
        c, sh = CU[u % 3]; ks, h = divmod(u, 2)
        for qq in range(2):
            for d in range(2):
                reg = HR(ks) + 4*qq + 2*h + d; t = TM + 2*(xk[0] % 3); xk[0] += 1
                r.append(f'v_fma_mix_f32 {V(t)}, {V(reg)}, {V(c+2*d)}, {V(sh+2*d)} op_sel_hi:[1,0,0]')
                r.append(f'v_fma_mix_f32 {V(t+1)}, {V(reg)}, {V(c+2*d+1)}, {V(sh+2*d+1)} op_sel:[1,0,0] op_sel_hi:[1,0,0]')
                r.append(f'v_cvt_pk_bf16_f32 {V(reg)}, {V(t)}, {V(t+1)}')
        return r
    D = opt.get('qdist', 6)
    a.e(vmwait({('w', 0)}), 's_barrier')
    stamp(a, opt, 1)
    if fuse: gf.mark2(a, 13)
    for u in range(3):
        for r in cs_reads(u): sc.emit_filler(r)
    for n in range(D):
        for r in a_reads(n): sc.emit_filler(r)
    a.e(vmwait({('h', 0)}))
    for x in xform(0): sc.emit_filler(x)
    for r in cs_reads(3): sc.emit_filler(r)
    for x in xform(1): sc.emit_filler(x)
    a.e('s_nop 1')
    k01 = [[[f's_lshl_b32 s52, s28, 12', 's_mov_b32 m0, s52'] if j == 0 else [], f'buffer_load_dwordx4 {V(DK+j)}, s[8:11], s52 offen offset:{1024*j}{NT["kv"]} lds', ('k', 0)] for j in range(4)]
    k25 = []
    for grp in range(2):
        st, ins = dma_group(0, 0, f's{54+grp}', f's{54+grp}')
        k25 += [[[f's_add_u32 s{54+grp}, s48, {2*8192 + 4096*grp}', st] if j == 0 else [], x, ('k', 2)] for j, x in enumerate(ins)]
    v02 = []
    for i in range(6):
        sal = []
        if i == 0: sal = ['s_mul_i32 s54, s28, 6144', 's_add_u32 m0, s54, 65536']
        if i == 4: sal = ['s_add_u32 s54, s54, 4096', 's_add_u32 m0, s54, 65536']
        v02.append([sal, f'buffer_load_dwordx4 {V(6+(i&1))}, s[12:15], s54 offen offset:{1024*(i&3)}{NT["kv"]} lds', ('v', 0)])
    w47, w8b, wcf = wq(4, 4), wq(8, 4), wq(12, 4)
    plan = {0: hl(3) + w47[:4], 1: hl(4) + w47[4:], 2: hl(5) + hl(6), 3: hl(7) + w8b[:4], 4: hl(8) + w8b[4:], 5: hl(9) + k01, 6: hl(10) + wcf[:4],
            7: hl(11) + wcf[4:], 8: hl(12) + k25[:4], 9: hl(13) + k25[4:], 10: hl(14), 11: hl(15), 12: v02, 13: [], 14: [], 15: []}
    groups = [1, 2, 4, 8, 12]
    late = []
    late += [f'v_mov_b32 {V(DV)}, v6', f'v_mov_b32 {V(DV+1)}, v7']
    late += ['v_xor_b32 v5, v3, v4', 'v_lshlrev_b32 v5, 4, v5', f'v_lshl_add_u32 {V(KA)}, v3, 8, v5'] + [f'v_xor_b32 {V(KA+t)}, {t*64}, {V(KA)}' for t in range(1, 4)]
    late2 = ['v_lshrrev_b32 v6, 2, v2', 'v_lshlrev_b32 v7, 8, v6', 'v_and_b32 v6, 7, v6', 'v_lshl_add_u32 v7, v1, 3, v7', 'v_add_u32 v7, 0x10000, v7']
    for db in range(8): late2 += [f'v_xor_b32 v5, {db}, v6', f'v_lshl_add_u32 {V(VA+db)}, v5, 5, v7']
    vq = []
    for ks in range(32):
        mf = [f'{MF32} {V(QA(qq,db),16)}, {A(AR(4*ks+db),4)}, {V(HR(ks)+4*qq,4)}, {"0" if ks == 0 else V(QA(qq,db),16)}' for db in range(4) for qq in range(2)]
        gaps = [[] for _ in range(8)]; pre = [[] for _ in range(8)]; post = [[] for _ in range(8)]
        if ks % 2 == 0: vq += plan[ks // 2]
        for db in range(4):
            n = 4*ks + db + D
            if n < 128:
                if n % 8 == 0 and n // 8 in groups:
                    post[2*db-1] += ['VMW', ('w', n // 8)]
                if n % 32 == 0: post[2*db-1] += [f'v_add_u32 {V(WA+x)}, 0x8000, {V(WA+x)}' for x in range(4)]
                r = a_reads(n); gaps[2*db].append(r[0]); gaps[2*db+1].append(r[1])
        if ks < 31:
            va = [xform(2*ks+2), xform(2*ks+3)]
            for h in range(2):
                u = 2*ks + 4 + h
                if u < 64:
                    r = cs_reads(u); gaps[4*h].append(r[0]); gaps[4*h+1].append(r[1])
        oddk = ks & 1
        for g in range(8):
            if vq and g % 2 == oddk:
                sal, ins, tag = vq.pop(0)
                if g == 0: pre[0] += sal + (['s_nop 0'] if sal and 'm0' in sal[-1] else [])
                else: pre[g-1] += sal
                gaps[g].append(('VM', ins, tag))
            if ks < 31:
                h, q = divmod(g, 4)
                if g == 0: gaps[g].append(('VMW', ('h', ks+1)))
                x = va[h]
                lo, hi = [(0, 4), (4, 7), (7, 10), (10, 13)][q] if h == 0 else [(0, 5), (5, 9), (9, 13), (13, 13)][q]
                gaps[g] += x[lo:hi]
        if ks == 31:
            la = late + late2
            for i, x in enumerate(la): gaps[min(i // 5, 7)].append(x)
            for i, r in enumerate(kreads(0)): gaps[4 + i // 2].insert(0, r)
        out = []
        for g in range(8):
            o = list(pre[g])
            for x in gaps[g]:
                if isinstance(x, tuple) and x[0] == 'VM': o.append(x[1]); vm.append(x[2])
                elif isinstance(x, tuple): o += vmwait({x[1]})
                else: o.append(x)
            p = post[g]
            if p and p[0] == 'VMW': o += vmwait({p[1]}) + ['s_barrier']; p = p[2:]
            out.append(o + p)
        sc.run(mf, out)
    assert not vq
    sc.age = 8
    stamp(a, opt, 2)
    if fuse: gf.mark2(a, 14)
    for i in range(4): a.e(f'v_mov_b32 {V(ONES+i)}, 0x3f803f80')
    for i in range(8): a.e(f'v_mov_b32 {V(LV+i)}, 0')
    a.e('s_lshl_b32 s46, s45, 19', 's_lshl_b32 s47, s44, 14', 's_add_u32 s46, s46, s47', f's_add_u32 s46, s46, {WS_O}'); srd(a, 24, 42, 43, 16384, add='s46')
    def cvtq(qq):
        r = []; sw = []
        for t in range(4):
            for j in range(4):
                for h in range(2): r.append(f'v_cvt_pk_bf16_f32 {V(Q+16*(2*qq+(j&1))+4*t+2*(j>>1)+h)}, {V(QA(qq,t)+4*j+2*h)}, {V(QA(qq,t)+4*j+2*h+1)}')
            r += sw
            sw = [f'v_permlane16_swap_b32 {V(Q+32*qq+4*t+f)}, {V(Q+32*qq+16+4*t+f)}' for f in range(4)]
        return r + ['s_nop 0', 's_nop 0'] + sw
    a.e(cvtq(0), 's_nop 1')
    mf = qk_mfmas(S_[0], czero=True, order='qkt')
    gaps = [[] for _ in mf]
    cv = cvtq(1)
    for i, x in enumerate(cv): gaps[min(i*15//len(cv), 14)].append(x)
    gaps[15].append('s_nop 0')
    sc.run(mf, gaps)
    a.e('s_nop 3')
    for r in kreads(8192): sc.emit_filler(r)
    S0 = S_[0]
    for qb in range(4):
        b = S0 + 8*qb
        a.e(f'v_max3_f32 {V(8+qb)}, {V(b)}, {V(b+1)}, {V(b+2)}', f'v_max3_f32 {V(12+qb)}, {V(b+3)}, {V(b+4)}, {V(b+5)}')
    for qb in range(4):
        b = S0 + 8*qb
        a.e(f'v_max3_f32 {V(8+qb)}, {V(8+qb)}, {V(b+6)}, {V(b+7)}')
    for qb in range(4): a.e(f'v_max_f32 {V(8+qb)}, {V(8+qb)}, {V(12+qb)}')
    for perm in ('32', '16'):
        for qb in range(4): a.e(f'v_mov_b32 {V(12+qb)}, {V(8+qb)}')
        a.e('s_nop 0')
        for qb in range(4): a.e(f'v_permlane{perm}_swap_b32 {V(8+qb)}, {V(12+qb)}')
        a.e('s_nop 0')
        for qb in range(4): a.e(f'v_max_f32 {V(8+qb)}, {V(8+qb)}, {V(12+qb)}')
    for qb in range(4): a.e(f'v_sub_f32 {V(CI+4*qb)}, {f32hex(-opt.get("delta", DELTA))}, {V(8+qb)}')
    for qb in range(4):
        for i in range(1, 4): a.e(f'v_mov_b32 {V(CI+4*qb+i)}, {V(CI+4*qb)}')
    for e in range(32): a.e(f'v_add_f32 {V(S0+e)}, {V(S0+e)}, {V(CI+4*(e>>3))}')
    for db in range(8): a.e(f'v_subrev_u32 {V(VT+db)}, 0x10000, {V(VA+db)}')
    if opt.get('pf', 1):
        a.e('s_lshr_b32 s53, s2, 3', 's_lshl_b32 s53, s53, 2', 's_add_u32 s53, s53, s28', 's_bfe_u32 s56, s2, 0x20001')
        a.e('s_lshl_b32 s54, s53, 13', 's_lshl_b32 s55, s56, 20', 's_add_u32 s54, s54, s55', 'v_lshlrev_b32 v5, 7, v2', f'v_add_u32 {V(PF)}, s54, v5')
        a.e('v_and_b32 v5, 31, v2', 'v_min_u32 v5, 27, v5', 'v_mul_u32_u24 v6, 37, v5', 'v_lshrrev_b32 v6, 8, v6', 'v_mul_u32_u24 v7, 7, v6', 'v_sub_u32 v5, v5, v7',
            'v_mul_u32_u24 v6, 3584, v6', 'v_lshl_add_u32 v6, v5, 7, v6', 'v_lshrrev_b32 v5, 5, v2', 'v_lshl_add_u32 v6, v5, 6, v6',
            's_mul_i32 s54, s53, 14336', 's_mul_i32 s55, s56, 896', 's_add_u32 s54, s54, s55', f'v_add_u32 {V(PF+1)}, s54, v6')
        a.e('v_min_u32 v5, 55, v2', 'v_lshrrev_b32 v6, 2, v5', 'v_and_b32 v5, 3, v5', 'v_lshlrev_b32 v6, 10, v6', 'v_lshl_add_u32 v6, v5, 7, v6',
            's_mul_i32 s54, s53, 14336', 's_and_b32 s55, s2, 1', 's_lshl_b32 s55, s55, 9', 's_add_u32 s54, s54, s55', f'v_add_u32 {V(PF+2)}, s54, v6')
    if fuse: a.e(gf.flag_setup()); gf.unpark(a)
    if opt.get('tlb', 0):
        G = opt.get('tlbshift', 21)
        srd(a, 20, 42, 43, 40 << 20); a.e(f'v_lshlrev_b32 {V(PF+4)}, {G}, v2', 's_mov_b32 s86, 2097152', 's_mov_b32 s87, 0x20000', 's_mov_b32 s84, s82', 's_mov_b32 s85, s83')
    if opt.get('touch', 0):
        srd(a, 20, 42, 43, 24 << 20, add=WS_O)
        a.e('s_lshl_b32 s29, s2, 2', 's_add_u32 s29, s29, s28', 's_lshl_b32 s29, s29, 12', f'v_lshlrev_b32 {V(PF+4)}, 6, v2', f'v_add_u32 {V(PF+4)}, s29, {V(PF+4)}')
    a.e('s_waitcnt vmcnt(0) lgkmcnt(0)', 's_barrier'); sc.pend = []
    stamp(a, opt, 3)
    def adv():
        return ['s_add_u32 s34, s34, 32768', 's_add_u32 s35, s35, 32768', 's_add_u32 s36, s36, 32768', 's_add_u32 s37, s37, 32768']
    def epoch(E, kind):
        d = epoch_dmas(E, opt)
        if kind == 'e14':
            d = d[8:]
        if kind == 'e15': d = []
        ov, os_ = gf.o_setup() if fuse else ([], [])
        oad = [[x[0], x[1]] for st in range(4) for x in gf.o_dma_a(st)] if fuse else []
        npf = 0
        if kind == 'e14' and opt.get('pf', 1):
            for srd_, vo, off in ((64, PF, 0), (64, PF, 64), (68, PF+1, 0), (72, PF+1, 0), (76, PF+2, 0), (76, PF+2, 64)):
                if off and not opt.get('pf64', 1): continue
                d.append([[], f'buffer_load_dword {V(PF+3)}, {V(vo)}, s[{srd_}:{srd_+3}], 0 offen offset:{off}'])
                npf += 1
        split = list(opt['dsplit'])
        tch = []
        if kind == 'e14' and opt.get('tlb', 0):
            d.append([[], f'buffer_load_dword {V(PF+3)}, {V(PF+4)}, s[20:23], 0 offen']); d.append([[], f'buffer_load_dword {V(PF+3)}, {V(PF+4)}, s[84:87], 0 offen']); npf += 2
        if opt.get('touch', 0) and E == 2:
            d.append([[], f'buffer_load_dword {V(PF+3)}, {V(PF+4)}, s[20:23], 0 offen']); split[2] += 1; npf = 1
            tch = [f'v_add_u32 {V(PF+4)}, 0x400000, {V(PF+4)}']
        for sl in range(4):
            s = 4*E + sl
            n = split[sl]
            dm = d[:n]; d = d[n:]
            if kind == 'e14' and sl == 0:
                a.e('s_cmp_eq_u32 s28, 3', f's_cbranch_scc1 {L}_e14d', 's_cmp_eq_u32 s28, 2', f's_cbranch_scc1 {L}_e14v')
                for sal, ins in epoch_dmas(E, opt)[:8]: a.e(sal, 's_nop 0' if sal else [], ins)
                a.e(f's_branch {L}_e14d', f'{L}_e14v:', f's_mov_b32 s54, {63*8192}', f's_mov_b32 s55, {63*8192+4096}', 's_mov_b32 s56, 0')
                for grp in range(2):
                    st, ins = dma_group(1, grp, 's56', f's{54+grp}'); a.e(st, 's_nop 0', ins)
                a.e(f'{L}_e14d:')
            if s == 0:
                exps, items = sm_items(S_[0], P_[0], XQ)
                mf = qk_mfmas(S_[1])
                kr = kreads(2*8192)
                ds_at = [(17+2*i, kr[i]) for i in range(4)]
                extra = []
                for n_, (sal, ins) in enumerate(dm):
                    extra += [(2+2*n_, x) for x in sal] + [(3+2*n_, ins)]
                packed(sc, mf, ds_at, exps, items, extra)
                for r in kr[4:]: sc.emit_filler(r)
            elif s == 59:
                normal_slot(sc, opt, s, dm, salu=adv(), extra_v=ov[:12])
            elif s == 60:
                a.e(os_)
                normal_slot(sc, opt, s, dm, extra_v=ov[12:])
            elif s == 61:
                normal_slot(sc, opt, s, oad[:6])
            elif s == 62:
                normal_slot(sc, opt, s, oad[6:10], kread=False, late_v=vreads(VA, (62 % 8)*8192))
            elif s == 63:
                exps, items = sm_items(S_[1], P_[1], XQ)
                mf = pv_mfmas(P_[0], XQ)
                vr = vreads(VT, 0)
                ds_at = [(min(4*(i >> 1) + 4 + (i & 1), len(mf)-1), vr[i]) for i in range(16)]
                extra = []
                for n_, (sal, ins) in enumerate(oad[10:]):
                    extra += [(2+5*n_, x) for x in sal] + [(3+5*n_, ins)]
                packed(sc, mf, ds_at, exps, items, extra)
            else:
                normal_slot(sc, opt, s, dm, first_pv=(s == 1), salu=(adv() + (['s_add_u32 s38, s38, 1', 's_cmp_lt_u32 s38, 6'] if E == 3 else []) if sl == 3 else ()))
        assert not d
        a.e(tch)
        if kind != 'e15':
            if not opt.get('nobar'): a.e(f's_waitcnt vmcnt({npf}) lgkmcnt(0)', 's_barrier')
            else: a.e('s_waitcnt lgkmcnt(0)')
            sc.pend = []
    epoch(0, 'n'); epoch(1, 'n')
    a.e('s_mov_b32 s38, 0', '.p2align 6', f'{L}_loop:')
    epoch(2, 'n'); epoch(3, 'n')
    a.e(f's_cbranch_scc1 {L}_loop')
    epoch(14, 'e14'); epoch(15, 'e15')
    a.e('s_nop 1')
    mf = pv_mfmas(P_[1], XQ); mf = mf[32:] + mf[:32]
    gaps = [[] for _ in mf]
    VQ = [qb for qb in range(4) if qb not in XQ]
    assert len(VQ) == 2
    gaps[0].append('v_lshlrev_b32 v5, 4, v4')
    for n_, qb in enumerate(VQ):
        l = V(LV + 2*qb); t = V(6 + n_)
        ch = [(1, f'v_add_f32 {l}, {l}, {V(LV+2*qb+1)}'), (2, f'v_mov_b32 {t}, {l}'), (4, f'v_permlane32_swap_b32 {l}, {t}'), (5, f'v_add_f32 {l}, {l}, {t}'),
              (6, f'v_mov_b32 {t}, {l}'), (8, f'v_permlane16_swap_b32 {l}, {t}'), (9, f'v_add_f32 {l}, {l}, {t}')]
        for g, x in ch: gaps[g].append(x)
        for i in range(4): gaps[11 + 2*n_ + i//2].append(f'ds_bpermute_b32 {V(LM+4*qb+i)}, v5, {l} offset:{4*i}')
    rc = [4*qb + i for qb in XQ for i in range(4)] + [4*qb + i for qb in VQ for i in range(4)]
    g = 15
    gaps[3] += ['v_lshlrev_b32 v9, 2, v4', 'v_xor_b32 v9, v9, v2']; gaps[7] += ['v_lshlrev_b32 v9, 4, v9', 'v_mov_b32 v8, 0']
    for n_, r in enumerate(rc):
        if n_ == 8: gaps[g].append(f'WAITDS {V(LM+4*VQ[0],4)}, {V(LM+4*VQ[1],4)}')
        gaps[g] += [f'v_add_f32 v8, v8, {V(LM+r)}', f'v_rcp_f32 {V(LM+r)}, {V(LM+r)}']; g += 1
    sc.run(mf, gaps)
    stamp(a, opt, 4)
    if fuse: gf.mark(a, 15)
    a.e(f's_branch {L}_norm2', f'{L}_norm:')
    a.e(f'v_add_f32 v8, {V(LM)}, {V(LM+1)}')
    for i in range(2, 16): a.e(f'v_add_f32 v8, v8, {V(LM+i)}')
    for i in range(16): a.e(f'v_rcp_f32 {V(LM+i)}, {V(LM+i)}')
    a.e('v_lshlrev_b32 v9, 2, v4', 'v_xor_b32 v9, v9, v2', 'v_lshlrev_b32 v9, 4, v9', f'{L}_norm2:', 'v_mov_b32 v6, v9')
    W = 96
    T = 16
    cnt = 0
    for j in range(4):
        for qb in range(4):
            b = T + 8*(cnt % 8); pk = 80 + 4*(cnt % 4); cnt += 1
            for u in range(2):
                for i in range(4): a.e(f'v_accvgpr_read_b32 {V(b+4*u+i)}, {A(AO+16*(2*j+u)+4*qb+i)}')
            for i in range(4):
                w = W + 4*qb + i
                a.e(f'v_maximum3_f32 {V(w)}, abs({V(b+i)}), abs({V(b+4+i)}), {"0" if j == 0 else V(w)}')
            for u in range(2):
                for i in range(0, 4, 2): a.e(f'v_pk_mul_f32 {V(b+4*u+i,2)}, {V(b+4*u+i,2)}, {V(LM+4*qb+i,2)}')
            for h in range(4): a.e(f'v_cvt_pk_bf16_f32 {V(pk+h)}, {V(b+2*h)}, {V(b+2*h+1)}')
            off = (j*4+qb)*1024
            a.e(f's_mov_b32 s54, {off & ~4095}', f'buffer_store_dwordx4 {V(pk,4)}, v6, s[24:27], s54 offen offset:{off & 4095}{opt.get("wt_a", " sc1")}')
    a.e(f'v_minimum3_f32 v9, {V(W)}, {V(W+1)}, {V(W+15)}', f'v_maximum3_f32 v10, {V(W)}, {V(W+1)}, {V(W+15)}')
    for i in range(2, 15, 2): a.e(f'v_minimum3_f32 v9, v9, {V(W+i)}, {V(W+i+1)}', f'v_maximum3_f32 v10, v10, {V(W+i)}, {V(W+i+1)}')
    a.e(f's_mov_b32 s54, {f32hex(2.0**100)}', f's_mov_b32 s55, {f32hex(2.0**-120)}', f's_mov_b32 s60, 0x7f000000')
    a.e('v_cmp_nle_f32 s[56:57], v8, s54', 'v_cmp_nge_f32 s[58:59], v9, s55', 'v_cmp_nle_f32 s[62:63], v10, s60', 's_nop 1',
        's_or_b64 s[56:57], s[56:57], s[58:59]', 's_or_b64 s[56:57], s[56:57], s[62:63]', 's_cmp_eq_u64 s[56:57], 0')
    if opt.get('force_fb'): a.e('s_cmp_eq_u32 s2, 1000')
    a.e(f's_cbranch_scc1 {L}_fin', 's_cmp_eq_u32 s39, 1', f's_cbranch_scc1 {L}_fin')
    a.e('s_mov_b32 s39, 1', 's_mov_b32 s48, 40960', 's_cmp_eq_u32 s28, 1', 's_cselect_b32 s48, 65536, s48', 's_cmp_eq_u32 s28, 2', 's_cselect_b32 s48, 139264, s48',
        's_cmp_eq_u32 s28, 3', 's_cselect_b32 s48, 147456, s48', 's_waitcnt vmcnt(0)')
    MR = CI; LR = CI + 4; AL = CI + 8; AR_ = 96
    for i in range(128): a.e(f'v_accvgpr_write_b32 {A(i)}, 0')
    for qb in range(4): a.e(f'v_mov_b32 {V(MR+qb)}, 0xff7fffff', f'v_mov_b32 {V(LR+qb)}, 0')
    for db in range(8): a.e(f'v_add_u32 {V(VT+db)}, s48, {V(VT+db)}')
    a.e('v_lshlrev_b32 v7, 8, v3', 'v_lshl_add_u32 v7, v4, 4, v7')
    a.e('s_mov_b32 s54, 0', f'{L}_fb:', 's_add_u32 s55, s54, 4096')
    for f in range(8): a.e(f'buffer_load_dwordx4 {A(AK+4*f,4)}, v7, s[8:11], s{54+(f>>2)} offen offset:{64*(f&3)}')
    for grp in range(2):
        st, ins = dma_group(1, grp, 's48', f's{54+grp}'); a.e(st, 's_nop 0', ins)
    a.e('s_waitcnt vmcnt(0)')
    a.e(vreads(VT, 0))
    a.e(qk_mfmas(S0, czero=True), 's_nop 7', 's_nop 3')
    for qb in range(4):
        b = S0 + 8*qb; m = V(MR+qb); al = V(AL+qb)
        a.e(f'v_max3_f32 v8, {V(b)}, {V(b+1)}, {V(b+2)}', f'v_max3_f32 v8, v8, {V(b+3)}, {V(b+4)}', f'v_max3_f32 v8, v8, {V(b+5)}, {V(b+6)}', f'v_max3_f32 v8, v8, {V(b+7)}, {m}')
        for perm in ('32', '16'):
            a.e('v_mov_b32 v9, v8', 's_nop 1', f'v_permlane{perm}_swap_b32 v8, v9', 's_nop 1', 'v_max_f32 v8, v8, v9')
        a.e(f'v_sub_f32 {al}, {m}, v8', f'v_exp_f32 {al}, {al}', f'v_mov_b32 {m}, v8')
        for e in range(8): a.e(f'v_sub_f32 {V(b+e)}, {V(b+e)}, v8')
        for e in range(8): a.e(f'v_exp_f32 {V(b+e)}, {V(b+e)}')
        a.e(f'v_mul_f32 {V(LR+qb)}, {V(LR+qb)}, {al}')
        for e in range(8): a.e(f'v_add_f32 {V(LR+qb)}, {V(LR+qb)}, {V(b+e)}')
        for h in range(4): a.e(f'v_cvt_pk_bf16_f32 {V(P_[0]+4*qb+h)}, {V(b+2*h)}, {V(b+2*h+1)}')
        for i in range(4): a.e(f'ds_bpermute_b32 {V(AR_+4*qb+i)}, v5, {al} offset:{4*i}')
    a.e('s_waitcnt lgkmcnt(0)')
    for db in range(8):
        for qb in range(4):
            for i in range(4):
                o = AO + 16*db + 4*qb + i
                a.e(f'v_accvgpr_read_b32 v8, {A(o)}', f'v_mul_f32 v8, v8, {V(AR_+4*qb+i)}', f'v_accvgpr_write_b32 {A(o)}, v8')
    a.e('s_nop 1')
    a.e(pv_mfmas(P_[0], []), 's_nop 7', 's_nop 3')
    a.e('s_add_u32 s54, s54, 8192', 's_cmp_lt_u32 s54, 524288', f's_cbranch_scc1 {L}_fb')
    for qb in range(4):
        xlane_sum(a, V(LR+qb), 'v6')
        for i in range(4): a.e(f'ds_bpermute_b32 {V(LM+4*qb+i)}, v5, {V(LR+qb)} offset:{4*i}')
    a.e('s_waitcnt lgkmcnt(0)', f's_branch {L}_norm')
    a.e(f'{L}_fin:')
    if fuse: gf.fused_post(a, L, opt, Sched)
    if opt.get('stamps'):
        a.e('s_waitcnt vmcnt(0)')
        stamp(a, opt, 5); a.e('s_memrealtime s[98:99]', 's_waitcnt lgkmcnt(0)')
        srd(a, 20, 42, 43, 1 << 20, add=(58 << 20))
        a.e('s_lshl_b32 s54, s2, 2', 's_add_u32 s54, s54, s28', 's_lshl_b32 s54, s54, 5', 'v_mov_b32 v7, s54')
        for i in range(1, 6): a.e(f's_sub_u32 s55, s{80+2*i}, s80', f'v_mov_b32 v{8+i}, s55')
        a.e('v_mov_b32 v8, s92', 's_sub_u32 s55, s98, s92', 'v_mov_b32 v14, s55', 'v_mov_b32 v15, s39')
        a.e('v_cmp_eq_u32 vcc, 0, v2', 's_and_saveexec_b64 s[56:57], vcc')
        a.e('buffer_store_dwordx4 v[8:11], v7, s[20:23], 0 offen', 'buffer_store_dwordx4 v[12:15], v7, s[20:23], 0 offen offset:16')
    tl_end(a); a.e(f'{L}_end:', 's_endpgm')
    return dict(label=L, grid=256, block=256, lds=163840, vgpr=512, accum=256)
```

```python
from asmlib import *
from gen_pre import *
MF = 'v_mfma_f32_16x16x32_bf16'
FLA = 141; FLB = 142; DIAG = 143
SC = ' sc1'

class VM:
    def __init__(self): self.q = []; self.seen = set()
    def add(self, tag): self.q.append(tag); self.seen.add(tag)
    def wait(self, tags, extra=''):
        last = max([i for i, t in enumerate(self.q) if t in tags], default=-1)
        if last < 0: return [f's_waitcnt{extra}'] if extra else []
        n = len(self.q) - 1 - last
        del self.q[:last+1]
        assert n < 64
        return [f's_waitcnt vmcnt({n}){extra}']
    def clear(self): self.q = []

def mark(a, i):
    if TL['on']: a.e('s_memrealtime s[98:99]', 's_waitcnt lgkmcnt(0)', f'v_writelane_b32 {V(DIAG)}, s98, {i}')

def mark2(a, i):
    if TL['on']: a.e(f's_memrealtime s[{88 + 2*(i-13)}:{89 + 2*(i-13)}]')
def unpark(a):
    if TL['on']: a.e('s_waitcnt lgkmcnt(0)', f'v_writelane_b32 {V(DIAG)}, s94, 0', f'v_writelane_b32 {V(DIAG)}, s88, 13', f'v_writelane_b32 {V(DIAG)}, s90, 14')

def flag_setup():
    r = ['s_and_b32 s53, s2, 0xc7', 'v_and_b32 v5, 7, v2', 'v_lshlrev_b32 v5, 3, v5', 'v_add_u32 v5, s53, v5', f'v_lshlrev_b32 {V(FLA)}, 6, v5',
         's_and_b32 s53, s2, 0xe1', 'v_and_b32 v5, 3, v2', 'v_lshlrev_b32 v5, 3, v5', 'v_bfe_u32 v6, v2, 2, 2', 'v_lshl_add_u32 v5, v6, 1, v5', 'v_add_u32 v5, s53, v5', f'v_lshlrev_b32 {V(FLB)}, 6, v5']
    return r

SYNC = {'mode': 'cnt'}
def signal(a, L, k, waitlist):
    a.e(waitlist, 's_barrier')
    if SYNC['mode'] in ('flag', 'sflag'):
        a.e(f's_and_b32 s3, s2, {0xc7 if k == 0 else 0xe1}', 's_lshl_b32 s3, s3, 6', f's_add_u32 s3, s3, {WS_FLAG + k*16384}')
        srd(a, 60, 42, 43, 16384, add=WS_FLAG + k*16384)
        a.e('s_cmp_lg_u32 s28, 0', f's_cbranch_scc1 {L}_sg{k}', 's_lshl_b32 s53, s2, 6', 's_mov_b64 exec, 1', 'v_mov_b32 v5, s53', 'v_mov_b32 v6, 1',
            f'buffer_store_dword v6, v5, s[60:63], 0 offen{SC}', 's_mov_b64 exec, -1', f'{L}_sg{k}:')
    else:
        a.e(f's_and_b32 s3, s2, {0xc7 if k == 0 else 0xe1}', 's_lshl_b32 s3, s3, 6', f's_add_u32 s3, s3, {WS_FLAG + k*16384}')
        a.e('s_cmp_lg_u32 s28, 0', f's_cbranch_scc1 {L}_sg{k}')
        srd(a, 60, 42, 43, 4, add='s3')
        a.e('s_mov_b64 exec, 1', 'v_mov_b32 v5, 0', 'v_mov_b32 v6, 1', f'buffer_atomic_add v6, v5, s[60:63], 0 offen{SC}', 's_mov_b64 exec, -1', f'{L}_sg{k}:')

def poll(a, L, k, grp, vm=None):
    if SYNC['mode'] == 'flag':
        a.e('s_mov_b32 s53, 0', f'{L}_pl{k}:', f'buffer_load_dword v5, {V(grp)}, s[60:63], 0 offen{SC}', 's_add_u32 s53, s53, 1', 's_waitcnt vmcnt(0)',
            'v_cmp_eq_u32 vcc, 1, v5', 's_cmp_gt_u32 s53, 200000', f's_cbranch_scc1 {L}_pd{k}', 's_cmp_eq_u64 vcc, -1', f's_cbranch_scc0 {L}_pl{k}', f'{L}_pd{k}:')
        if vm: vm.clear()
    elif SYNC['mode'] == 'sflag':
        regs = [60, 61, 62, 63, 84, 85, 86, 87, 88, 89, 90, 91, 92, 93, 100, 101]
        offs = [8*i*64 for i in range(8)] if k == 0 else [(2*x + 8*y)*64 for x in range(4) for y in range(4)]
        if SYNC.get('one'): a.e('s_cmp_lg_u32 s28, 3', f's_cbranch_scc1 {L}_pd{k}')
        a.e('s_mov_b32 s53, 0', f'{L}_pl{k}:')
        for r, o in zip(regs, offs): a.e(f's_load_dword s{r}, s[42:43], s3 offset:{o} glc')
        a.e('s_add_u32 s53, s53, 1', 's_cmp_gt_u32 s53, 200000', f's_cbranch_scc1 {L}_pd{k}', 's_waitcnt lgkmcnt(0)')
        for r in regs[1:len(offs)]: a.e(f's_and_b32 s60, s60, s{r}')
        a.e('s_cmp_eq_u32 s60, 1', f's_cbranch_scc0 {L}_pl{k}', f'{L}_pd{k}:')
        if SYNC.get('one'): a.e('s_barrier')
    else:
        if SYNC.get('one'): a.e('s_cmp_lg_u32 s28, 3', f's_cbranch_scc1 {L}_pd{k}')
        a.e('s_mov_b32 s53, 0', f'{L}_pl{k}:', 's_load_dword s60, s[42:43], s3 glc', 's_add_u32 s53, s53, 1', 's_cmp_gt_u32 s53, 200000', f's_cbranch_scc1 {L}_pd{k}',
            's_waitcnt lgkmcnt(0)', f's_cmp_ge_u32 s60, {8 if k == 0 else 16}', f's_cbranch_scc0 {L}_pl{k}', f'{L}_pd{k}:')
        if SYNC.get('one'): a.e('s_barrier')

OA = [8192, 24576, 73728, 122880]; OB = [40960, 57344, 90112, 106496]
ODA = 156
def o_setup():
    r = []
    for i in range(4):
        r += [f'v_add_u32 v5, {4*(i&1)}, v4', 'v_lshlrev_b32 v5, 1, v5', 'v_xor_b32 v5, v5, v3', 'v_lshlrev_b32 v5, 4, v5', 'v_lshl_add_u32 v5, v4, 10, v5',
              f'v_add_u32 {V(ODA+i)}, {(16*(i&1) + 8*(i>>1) - i)*1024}, v5']
    s = ['s_lshr_b32 s47, s28, 1', 's_and_b32 s49, s28, 1', 's_lshl_b32 s50, s47, 15', 's_lshl_b32 s51, s49, 12', 's_add_u32 s50, s50, s51',
         's_bfe_u32 s51, s2, 0x20001', 's_lshl_b32 s51, s51, 20', 's_add_u32 s50, s50, s51', 's_bfe_u32 s51, s2, 0x20003', 's_lshl_b32 s51, s51, 8', 's_add_u32 s50, s50, s51',
         's_add_u32 s16, s64, s50', 's_addc_u32 s17, s65, 0', 's_sub_u32 s18, 4194304, s50', 's_mov_b32 s19, 0x20000', 's_lshl_b32 s30, s28, 12']
    return r, s
def o_dma_a(st):
    return [[[f's_add_u32 m0, s30, {OA[st % 4]}', f's_mov_b32 s34, {st*65536}'] if i == 0 else [], f'buffer_load_dwordx4 {V(ODA+i)}, s[16:19], s34 offen offset:{1024*i} lds', ('oa', st)] for i in range(4)]

def phase_o(a, L, opt, Sched):
    ACC = 64; FA = [0, 32]; FB = [64, 96]; DB = 12; RA = 16; RB = 24
    vm = VM()
    a.e('s_lshr_b32 s47, s28, 1', 's_and_b32 s48, s28, 1', 's_bfe_u32 s44, s2, 0x20001', 's_and_b32 s45, s2, 1', 's_lshl_b32 s45, s45, 3', 's_lshr_b32 s46, s2, 5', 's_add_u32 s45, s45, s46', 's_bfe_u32 s46, s2, 0x20003')
    a.e(f'v_lshlrev_b32 {V(DB)}, 4, v2')
    a.e('v_lshrrev_b32 v5, 2, v2', 'v_and_b32 v6, 3, v2', 'v_lshlrev_b32 v7, 8, v5', 'v_lshl_add_u32 v7, v6, 3, v7', 'v_and_b32 v5, 7, v5', 's_lshl_b32 s49, s48, 2')
    for nb in range(4): a.e(f's_add_u32 s50, s49, {nb}', 'v_xor_b32 v8, s50, v5', f'v_lshl_add_u32 {V(RA+nb)}, v8, 5, v7', f'v_add_u32 {V(RA+4+nb)}, {OA[2]}, {V(RA+nb)}')
    a.e('v_bfe_u32 v5, v2, 2, 2', 'v_lshrrev_b32 v7, 5, v2', 'v_lshl_add_u32 v5, v7, 3, v5', 'v_lshlrev_b32 v7, 2, v6', 'v_xor_b32 v5, v5, v7', 'v_lshl_add_u32 v5, v6, 4, v5')
    a.e('v_and_b32 v7, 1, v4', 'v_lshlrev_b32 v7, 3, v7', 'v_lshl_add_u32 v5, v5, 4, v7', 's_lshl_b32 s49, s47, 13', f's_add_u32 s49, s49, {OB[0]}')
    a.e(f'v_add_u32 {V(RB)}, s49, v5', 'v_xor_b32 v5, 64, v5', f'v_add_u32 {V(RB+1)}, s49, v5', f'v_add_u32 {V(RB+2)}, {OB[2]-OB[0]}, {V(RB)}', f'v_add_u32 {V(RB+3)}, {OB[2]-OB[0]}, {V(RB+1)}')
    a.e('s_lshl_b32 s49, s45, 1', 's_add_u32 s49, s49, s47', 's_lshl_b32 s50, s49, 19', 's_lshl_b32 s51, s44, 17', 's_add_u32 s50, s50, s51',
        's_lshl_b32 s51, s48, 12', 's_add_u32 s50, s50, s51', f's_add_u32 s50, s50, {WS_O}'); srd(a, 12, 42, 43, 131072, add='s50')
    a.e('s_lshl_b32 s49, s49, 16', 's_lshl_b32 s50, s44, 21', 's_add_u32 s49, s49, s50', 's_lshl_b32 s50, s46, 12', 's_add_u32 s49, s49, s50',
        's_lshl_b32 s50, s48, 11', 's_add_u32 s49, s49, s50', f's_add_u32 s49, s49, {WS_PART}'); srd(a, 8, 42, 43, 65536, add='s49')
    a.e('s_lshl_b32 s49, s45, 1', 's_lshr_b32 s50, s46, 1', 's_add_u32 s49, s49, s50', 's_lshl_b32 s49, s49, 19', 's_lshl_b32 s50, s44, 17', 's_add_u32 s49, s49, s50',
        's_and_b32 s50, s46, 1', 's_lshl_b32 s50, s50, 12', 's_add_u32 s49, s49, s50', f's_add_u32 s49, s49, {WS_O}'); srd(a, 4, 42, 43, 131072 - 4096, add='s49')
    a.e('s_lshl_b32 s50, s28, 13', 'v_lshlrev_b32 v13, 6, v2', 'v_add_u32 v13, s50, v13')
    r_setup(a)
    signal(a, L, 0, ['s_waitcnt vmcnt(0)']); mark(a, 1)
    poll(a, L, 0, FLA); mark(a, 2)
    def dma_b(st):
        return [[[f's_add_u32 m0, s30, {OB[st % 4]}', f's_mov_b32 s35, {st*8192}'] if i == 0 else [], f'buffer_load_dwordx4 {V(DB)}, s[12:15], s35 offen offset:{1024*i}{SC} lds', ('ob', st)] for i in range(4)]
    for st in range(4):
        for sal, ins, tag in dma_b(st): a.e(sal, ins); vm.add(tag)
    def reads(st):
        p = st & 1; sl = st % 4
        ra = [f'ds_read_b64_tr_b16 {A(FA[p]+8*x+4*tt+2*v,2)}, {V(RA+(4 if sl >= 2 else 0)+x)} offset:{OA[sl] - (OA[2] if sl >= 2 else 0)+tt*8192+v*4096}' for x in range(4) for tt in range(2) for v in range(2)]
        rb = [f'ds_read_b64_tr_b16 {A(FB[p]+8*x+4*tt+2*u,2)}, {V(RB+2*(sl >> 1)+u)} offset:{(sl & 1)*16384+tt*4096+x*1024}' for x in range(4) for tt in range(2) for u in range(2)]
        return ra[:4] + rb + ra[4:]
    sc = Sched(a, age=6)
    a.e(vm.wait({('ob', 0)}), 's_barrier')
    for r in reads(0): sc.emit_filler(r)
    NV = opt.get('o_var', 1)
    import copy
    vm0 = copy.deepcopy(vm); pend0 = list(sc.pend)
    for var in range(NV):
        PH = 2 if NV == 1 else (var if NV == 4 else 1 + 2*var)
        if var < NV - 1: a.e(f's_cmp_ge_u32 s28, {(var+1)*4//NV}', f's_cbranch_scc1 {L}_ov{var+1}')
        vm = copy.deepcopy(vm0); sc.pend = list(pend0)
        rl = r_loads()
        gs0, gv, gs1 = g_setup()
        gq = [x for st_ in range(opt.get('g_pre0', 3)) for x in g_dma(st_)]
        for st in range(16):
            p = st & 1
            a.e(vm.wait({('oa', st+1), ('ob', st+1)}, ' lgkmcnt(0)'), 's_barrier'); sc.pend = []
            if st == 12: a.e(gs0)
            if st == 15: a.e(gs1)
            mf = [f'{MF} {V(ACC+16*nb+4*qb,4)}, {A(FA[p]+8*nb+4*tt,4)}, {A(FB[p]+8*qb+4*tt,4)}, {"0" if (st == 0 and tt == 0) else V(ACC+16*nb+4*qb,4)}' for nb in range(4) for qb in range(4) for tt in range(2)]
            gaps = [[] for _ in mf]; pre = [[] for _ in mf]
            rd = reads(st+1) if st < 15 else []
            d = (dma_b(st+4) + o_dma_a(st+4)) if st + 4 < 16 else rl[8*(st-12):8*(st-12)+8]
            ri = 0
            for g in range(32):
                if g % 4 == PH and d:
                    sal, ins, tag = d.pop(0)
                    if g: pre[g-1] += sal
                    else: pre[0] += sal
                    gaps[g].append(ins); vm.add(tag)
                else:
                    k = 2
                    while k and ri < len(rd):
                        gaps[g].append(rd[ri]); ri += 1; k -= 1
            assert not d
            T0 = opt.get('o_touch', 0)
            if T0 and st % 4 == 0 and st + T0 < 16:
                g = opt.get('o_tg', 28)
                pre[g-1].append(f's_mov_b32 s37, {(st+T0)*8192}'); gaps[g].append(f'buffer_load_dword v14, v13, s[4:7], s37 offen{SC}')
                allv = [x for gp in gaps[:g] for x in gp if x.startswith('buffer')]
                vm.q.insert(len(vm.q) - (8 - len(allv)), ('touch', st))
            if 12 <= st < 15:
                for i, x in enumerate(gv[19*(st-12):19*(st-11)]): gaps[22 + i//2].append(x)
            if st == 15:
                for g in range(2, 20, 4):
                    sal, ins, tag = gq.pop(0)
                    pre[g-1] += sal; gaps[g].append(ins); vm.add(tag)
                n = 0
                for qb in range(4):
                    t = 32 + 4*qb
                    ins = []
                    for u in range(2):
                        b = ACC + 16*u + 4*qb
                        ins += [f'v_cvt_pk_bf16_f32 {V(t+2*u)}, {V(b)}, {V(b+1)}', f'v_cvt_pk_bf16_f32 {V(t+2*u+1)}, {V(b+2)}, {V(b+3)}']
                    g = 20 + 3*qb
                    gaps[g] += ins[:2]; gaps[g+1] += ins[2:]; pre[g+1].append(f's_mov_b32 s50, {qb*16384}')
                    gaps[g+2].append(f'buffer_store_dwordx4 {V(t,4)}, {V(DB)}, s[8:11], s50 offen{SC}'); vm.add(('st', 0))
            sc.run(mf, [pre[g] + gaps[g] for g in range(32)])
        if var < NV - 1: a.e(f's_branch {L}_ovend', f'{L}_ov{var+1}:')
    a.e(f'{L}_ovend:')
    mark(a, 3)
    a.e('s_nop 1')
    for qb in range(4):
        t = 48 + 4*qb
        for u in range(2):
            b = ACC + 16*(2+u) + 4*qb
            a.e(f'v_cvt_pk_bf16_f32 {V(t+2*u)}, {V(b)}, {V(b+1)}', f'v_cvt_pk_bf16_f32 {V(t+2*u+1)}, {V(b+2)}, {V(b+3)}')
        a.e(f's_mov_b32 s50, {qb*16384}', f'buffer_store_dwordx4 {V(t,4)}, {V(DB)}, s[8:11], s50 offen offset:1024{SC}'); vm.add(('st', 0))
    for sal, ins, tag in gq: a.e(sal, ins); vm.add(tag)
    return vm

RX = 144; RGA = 160; RCB = 176; RSB = 192; RO = 152
RSTAT = 159744
def r_setup(a):
    a.e('s_lshl_b32 s29, s45, 4', 's_lshl_b32 s50, s44, 2', 's_add_u32 s29, s29, s50', 's_add_u32 s29, s29, s46')
    a.e('v_and_b32 v5, 7, v2', 'v_bfe_u32 v6, v2, 3, 2', 'v_lshrrev_b32 v7, 5, v2', 's_lshl_b32 s50, s28, 2', 'v_add_u32 v7, s50, v7')
    a.e(f'v_lshlrev_b32 {V(RO)}, 10, v7', f'v_lshl_add_u32 {V(RO)}, v5, 4, {V(RO)}', f'v_lshl_add_u32 {V(RO)}, v6, 8, {V(RO)}')
    a.e(f'v_lshlrev_b32 {V(RO+1)}, 10, v5', f'v_lshl_add_u32 {V(RO+1)}, v7, 6, {V(RO+1)}', f'v_lshl_add_u32 {V(RO+1)}, v6, 3, {V(RO+1)}')
    a.e(f'v_lshlrev_b32 {V(RO+2)}, 7, v7', f'v_lshl_add_u32 {V(RO+2)}, v6, 4, {V(RO+2)}')
    a.e(f'v_lshlrev_b32 {V(RO+3)}, 3, v5', f'v_add_u32 {V(RO+3)}, {RSTAT}, {V(RO+3)}')
    srd(a, 20, 80, 81, 2097152); srd(a, 24, 42, 43, 12288)
    a.e('s_lshl_b32 s31, s29, 13', 's_lshr_b32 s50, s29, 1', 's_lshl_b32 s50, s50, 14', 's_and_b32 s51, s29, 1', 's_lshl_b32 s51, s51, 7', 's_add_u32 s29, s50, s51')
def r_loads():
    r = [[[], f'buffer_load_dwordx2 {V(RX+4*i+2*v,2)}, {V(RO+1)}, s[20:23], s31 offen offset:{128*i+32*v}', ('r', 0)] for i in range(2) for v in range(2)]
    for part, reg in ((2, RGA), (4, RCB), (3, RSB)):
        for i in range(2):
            for v in range(2):
                r.append([[f's_mov_b32 s36, {part*2048}'] if (i == 0 and v == 0) else [], f'buffer_load_dwordx4 {V(reg+8*i+4*v,4)}, {V(RO+2)}, s[24:27], s36 offen offset:{256*i+64*v}', ('r', 0)])
    return r

def phase_r(a, L, opt, vm):
    PT = 16; F = 48
    n0 = opt.get('g_pre0', 3); n1 = opt.get('g_pre1', 4)
    srd(a, 12, 42, 43, 8388608, add=WS_PART); srd(a, 20, 42, 43, 4194304, add=WS_X1)
    signal(a, L, 1, vm.wait({('st', 0)})); mark(a, 4)
    for r in range(8): a.e(f'v_lshlrev_b32 {V(64+2*r)}, 16, {V(RX+r)}', f'v_and_b32 {V(65+2*r)}, 0xffff0000, {V(RX+r)}')
    poll(a, L, 1, FLB, vm); mark(a, 5)
    for ks in range(4):
        a.e(f's_add_u32 s50, s29, {ks << 21}')
        for i in range(2): a.e(f'buffer_load_dwordx4 {V(PT+8*ks+4*i,4)}, {V(RO)}, s[12:15], s50 offen offset:{2048*i}{SC}'); vm.add(('p', ks))
    for st in range(n0, n1):
        for sal, ins, tag in g_dma(st): a.e(sal, ins); vm.add(tag)
    for ks in range(4):
        a.e(vm.wait({('p', ks)}))
        for r in range(8):
            src = V(PT+8*ks+r)
            if ks == 0: a.e(f'v_lshlrev_b32 {V(F+2*r)}, 16, {src}', f'v_and_b32 {V(F+2*r+1)}, 0xffff0000, {src}')
            else: a.e(f'v_lshlrev_b32 v10, 16, {src}', f'v_and_b32 v11, 0xffff0000, {src}', f'v_add_f32 {V(F+2*r)}, {V(F+2*r)}, v10', f'v_add_f32 {V(F+2*r+1)}, {V(F+2*r+1)}, v11')
    for e in range(16): a.e(f'v_fmac_f32 {V(64+e)}, {V(F+e)}, {V(RGA+e)}')
    for r in range(8): a.e(f'v_cvt_pk_bf16_f32 {V(RX+r)}, {V(64+2*r)}, {V(65+2*r)}')
    for i in range(2): a.e(f'buffer_store_dwordx4 {V(RX+4*i,4)}, {V(RO)}, s[20:23], s29 offen offset:{2048*i}{SC}'); vm.add(('st', 1))
    F = 64
    a.e(f'v_add_f32 v10, {V(F)}, {V(F+1)}', f'v_mul_f32 v14, {V(F)}, {V(F)}', f'v_add_f32 v11, {V(F+2)}, {V(F+3)}', f'v_mul_f32 v15, {V(F+1)}, {V(F+1)}')
    for e in range(2, 16, 2):
        if e >= 4: a.e(f'v_add_f32 v10, v10, {V(F+e)}', f'v_add_f32 v11, v11, {V(F+e+1)}')
        a.e(f'v_fmac_f32 v14, {V(F+e)}, {V(F+e)}', f'v_fmac_f32 v15, {V(F+e+1)}, {V(F+e+1)}')
    a.e('v_add_f32 v10, v10, v11', 'v_add_f32 v11, v14, v15')
    for perm in ('32', '16'):
        a.e('v_mov_b32 v14, v10', 'v_mov_b32 v15, v11', 's_nop 0', f'v_permlane{perm}_swap_b32 v10, v14', f'v_permlane{perm}_swap_b32 v11, v15', 'v_add_f32 v10, v10, v14', 'v_add_f32 v11, v11, v15')
    a.e('s_lshl_b32 s50, s28, 6', f'v_add_u32 v13, s50, {V(RO+3)}')
    a.e('v_add_f32_dpp v10, v10, v10 row_ror:8 row_mask:0xf bank_mask:0xf', 's_nop 0', 'v_add_f32_dpp v11, v11, v11 row_ror:8 row_mask:0xf bank_mask:0xf')
    a.e('ds_write_b64 v13, v[10:11]', 's_waitcnt lgkmcnt(0)', 's_barrier')
    for i in range(4): a.e(f'ds_read_b64 v[{24+2*i}:{25+2*i}], {V(RO+3)} offset:{64*i}')
    a.e('s_waitcnt lgkmcnt(0)', 'v_pk_add_f32 v[24:25], v[24:25], v[26:27]', 'v_pk_add_f32 v[28:29], v[28:29], v[30:31]', 'v_pk_add_f32 v[24:25], v[24:25], v[28:29]')
    a.e(f'v_mul_f32 v24, {f32hex(1/512)}, v24', f'v_mov_b32 v26, {f32hex(1e-5)}', f'v_fmac_f32 v26, {f32hex(1/512)}, v25', 'v_fma_f32 v26, -v24, v24, v26',
        f'v_max_f32 v26, {f32hex(1e-5)}, v26', 'v_rsq_f32 v25, v26', f's_add_u32 s50, s29, {WS_H2 - WS_X1}')
    for e in range(16): a.e(f'v_sub_f32 {V(F+e)}, {V(F+e)}, v24')
    for e in range(16): a.e(f'v_mul_f32 {V(RCB+e)}, {V(RCB+e)}, v25')
    for e in range(16): a.e(f'v_fma_f32 {V(F+e)}, {V(F+e)}, {V(RCB+e)}, {V(RSB+e)}')
    for r in range(8): a.e(f'v_cvt_pk_bf16_f32 {V(PT+r)}, {V(F+2*r)}, {V(F+2*r+1)}')
    for i in range(2): a.e(f'buffer_store_dwordx4 {V(PT+4*i,4)}, {V(RO)}, s[20:23], s50 offen offset:{2048*i}{SC}'); vm.add(('st', 1))
    return vm

GR = 5; GSTG = 28672; GDA = 208
def g_setup():
    s0 = ['s_lshl_b32 s52, s44, 2', 's_add_u32 s52, s52, s46', 's_and_b32 s47, s28, 1', 's_mul_i32 s47, s47, 448', 's_mov_b32 s48, 4682', 's_mov_b32 s49, 3584']
    v = ['v_add_u32 v5, s47, v2']
    for i in range(7):
        v += [f'v_add_u32 v6, {64*i}, v5', 'v_mul_lo_u32 v7, v6, s48', 'v_lshrrev_b32 v7, 16, v7', 'v_mul_u32_u24 v8, 14, v7', 'v_sub_u32 v8, v6, v8',
              'v_mul_lo_u32 v9, v7, s49', 'v_lshl_add_u32 v9, v8, 4, v9', f'v_subrev_u32 {V(GDA+i)}, {1024*(i & 3)}, v9']
    b = Asm()
    b.e('s_cmp_lt_u32 s28, 2', 's_cselect_b32 s54, s68, s72', 's_cselect_b32 s55, s69, s73', 's_mul_i32 s56, s52, 224')
    srd(b, 16, 54, 55, 0, add='s56'); b.e(f's_sub_u32 s18, {512*3584}, s56')
    b.e('s_lshr_b32 s56, s28, 1', 's_mul_i32 s56, s56, 14336', 's_and_b32 s54, s28, 1', 's_mul_i32 s54, s54, 7168', 's_add_u32 s30, s56, s54')
    return s0, v, b.o
def g_dma(st):
    base = (st % GR) * GSTG
    return [[([f's_add_u32 m0, s30, {base + 4096*(i//4)}', f's_mov_b32 s34, {st*64*3584}'] if i % 4 == 0 else []),
             f'buffer_load_dwordx4 {V(GDA+i)}, s[16:19], s34 offen offset:{1024*(i&3)} lds', ('ga', st)] for i in range(7)]

def phase_g(a, L, opt, vm, Sched):
    ACC = 16; RA = 8; FA = 128; BD = 0
    n1 = opt.get('g_pre1', 4)
    a.e('v_lshrrev_b32 v5, 2, v2', 'v_mul_u32_u24 v5, 224, v5', 'v_and_b32 v6, 3, v2', f'v_lshl_add_u32 {V(RA)}, v6, 3, v5', 'v_lshlrev_b32 v7, 4, v2')
    for i in range(1, GR): a.e(f'v_add_u32 {V(RA+i)}, {i*GSTG}, {V(RA)}')
    a.e('s_lshl_b32 s47, s45, 2', 's_add_u32 s47, s47, s28', 's_lshl_b32 s48, s47, 15', f's_add_u32 s48, s48, {WS_H2}'); srd(a, 12, 42, 43, 32768, add='s48')
    a.e(f's_mul_i32 s47, s47, {112*1024}', 's_mul_i32 s48, s52, 7168', 's_add_u32 s47, s47, s48', f's_add_u32 s47, s47, {WS_HH}'); srd(a, 8, 42, 43, 7168, add='s47')
    signal(a, L, 2, vm.wait({('st', 1)})); mark(a, 6)
    def rd(n):
        ks, b = divmod(n, 14); st, tt = divmod(ks, 2)
        off = (b // 7)*14336 + tt*7168 + (b % 7)*32
        return [f'ds_read_b64_tr_b16 {A(FA+4*(n % 8)+2*v,2)}, {V(RA + st % GR)} offset:{off+3584*v}' for v in range(2)]
    D = opt.get('g_dist', 5)
    sc = Sched(a, age=6)
    d_setup(a)
    for n in range(D):
        for r in rd(n): sc.emit_filler(r)
    poll(a, L, 2, FLB, vm); mark(a, 7)
    def bl(ks):
        return [[[f's_mov_b32 s36, {qb*16384 + (ks & ~3)*1024}'], f'buffer_load_dwordx4 {A(BD+8*ks+4*qb,4)}, v7, s[12:15], s36 offen offset:{(ks & 3)*1024}{SC}', ('gb', ks)] for qb in range(2)]
    UP = opt.get('g_up', 6)
    for ks in range(UP):
        for sal, ins, tag in bl(ks): a.e(sal, ins); vm.add(tag)
    q = []
    for ks in range(UP, 16): q += bl(ks)
    for st in range(n1, GR): q = q[:4] + g_dma(st) + q[4:]
    NF = 16*14
    mf = []; gaps = []; pre = []
    a.e(vm.wait({('gb', 0)}))
    for n in range(NF):
        ks, b = divmod(n, 14)
        for qb in range(2):
            acc = V(ACC+8*b+4*qb, 4)
            mf.append(f'{MF} {acc}, {A(FA+4*(n % 8),4)}, {A(BD+8*ks+4*qb,4)}, {"0" if ks == 0 else acc}')
            gaps.append([]); pre.append([])
        nn = n + D
        if nn < NF:
            if nn % 28 == 0:
                s2 = nn // 28
                assert ('ga', s2) in vm.seen and not any(x[2] == ('ga', s2) for x in q)
                w = vm.wait({('ga', s2)})
                if s2 >= n1 or s2 + GR - 2 < 8: gaps[2*n-1] += w + ['s_barrier']
                if n1 <= s2 + GR - 2 < 8 and s2 + GR - 2 >= GR: q += g_dma(s2 + GR - 2)
            r = rd(nn)
            gaps[2*n].append(r[0]); gaps[2*n+1].append(r[1])
        if q and n % 2 == 0:
            sal, ins, tag = q.pop(0)
            pre[2*n] += sal; gaps[2*n+1].append(ins); vm.add(tag)
        if b == 13 and ks < 15:
            assert not any(x[2] == ('gb', ks+1) for x in q)
            gaps[2*n+1] += vm.wait({('gb', ks+1)})
    assert not q
    sc.run(mf, [pre[g] + gaps[g] for g in range(len(mf))])
    mark(a, 8)
    a.e('s_barrier')
    for b in range(7):
        t = ACC + 8*b
        for i in range(0, 8, 2): a.e(f'v_pk_mul_f32 {V(t+i,2)}, {V(t+i,2)}, {V(t+56+i,2)}')
        for i in range(4): a.e(f'v_cvt_pk_bf16_f32 {V(t+i)}, {V(t+2*i)}, {V(t+2*i+1)}')
        a.e(f's_mov_b32 s48, {(b*1024) & ~4095}', f'buffer_store_dwordx4 {V(t,4)}, v7, s[8:11], s48 offen offset:{(b*1024) & 4095}{SC}'); vm.add(('st', 2))
    return vm

DR = 9; DE = 128; DDA = 133; DRA = 137
def d_setup(a):
    E = DE
    a.e('s_lshl_b32 s54, s45, 1', 's_and_b32 s50, s44, 1', 's_add_u32 s54, s54, s50', 's_lshr_b32 s55, s44, 1', 's_lshl_b32 s55, s55, 2', 's_add_u32 s55, s55, s46')
    a.e('v_lshrrev_b32 v5, 3, v2', 'v_lshlrev_b32 v13, 1, v4', 'v_and_b32 v6, 7, v2', 'v_xor_b32 v13, v13, v6', 'v_lshlrev_b32 v13, 4, v13', 'v_lshl_add_u32 v13, v5, 10, v13')
    for i in range(4): a.e(f'v_add_u32 {V(DDA+i)}, {7*i*1024}, v13')
    a.e('s_lshl_b32 s50, s55, 7', f's_mul_i32 s51, s28, {14*32*1024}', 's_add_u32 s50, s50, s51')
    srd(a, 24, 76, 77, 0, add='s50'); a.e(f's_sub_u32 s26, {1792*1024}, s50', f's_mul_i32 s31, s28, {DR*4096}')
    a.e(f'v_and_b32 {V(E)}, 1, v6', f'v_lshlrev_b32 {V(E)}, 9, {V(E)}', f'v_lshl_add_u32 {V(E)}, v5, 4, {V(E)}', 'v_bfe_u32 v13, v6, 1, 1', f'v_lshl_add_u32 {V(E)}, v13, 3, {V(E)}', 'v_lshrrev_b32 v13, 2, v6', f'v_lshl_add_u32 {V(E)}, v13, 10, {V(E)}')
    a.e(f'v_lshlrev_b32 {V(E+1)}, 5, v6', f'v_lshlrev_b32 {V(E+2)}, 10, v5', f'v_lshl_add_u32 {V(E+2)}, v6, 4, {V(E+2)}')
    a.e(f'v_mul_u32_u24 {V(E+3)}, 272, v5', f'v_lshl_add_u32 {V(E+3)}, v6, 5, {V(E+3)}', 's_mul_i32 s47, s28, 4352', f'v_add_u32 {V(E+3)}, s47, {V(E+3)}')
    a.e(f'v_mul_u32_u24 {V(E+4)}, 272, v3', f'v_lshl_add_u32 {V(E+4)}, v4, 4, {V(E+4)}', 's_mul_i32 s47, s28, 17408', f'v_add_u32 {V(E+4)}, s47, {V(E+4)}')
    a.e('v_lshrrev_b32 v5, 2, v2', 'v_and_b32 v6, 3, v2', 'v_lshlrev_b32 v13, 7, v5', 'v_lshl_add_u32 v13, v6, 3, v13', 'v_add_u32 v13, s31, v13', 'v_bfe_u32 v5, v5, 1, 2')
    for nb in range(4): a.e(f'v_xor_b32 v6, {nb}, v5', f'v_lshl_add_u32 {V(DRA+nb)}, v6, 5, v13')
    a.e('s_lshl_b32 s47, s54, 2', 's_add_u32 s47, s47, s28', 's_lshl_b32 s49, s47, 14', 's_lshl_b32 s50, s55, 7', 's_add_u32 s56, s50, s49', 's_lshl_b32 s51, s55, 11', 's_add_u32 s57, s51, s49')
    a.e('s_lshl_b32 s58, s55, 8', f's_add_u32 s58, s58, {5*2048}')
    a.e(f's_mul_i32 s48, s54, {2*112*1024}', f's_mul_i32 s49, s28, {28*1024}', 's_add_u32 s48, s48, s49', f's_add_u32 s59, s48, {WS_HH}')
def d_dma(s):
    return [[([f's_add_u32 m0, s31, {(s % DR)*4096}', f's_mov_b32 s35, {s*32768}'] if i == 0 else []),
             f'buffer_load_dwordx4 {V(DDA+i)}, s[24:27], s35 offen offset:{1024*i} lds', ('da', s)] for i in range(4)]

def phase_d(a, L, opt, vm, Sched):
    NS = 14
    ACC = 0; FA = [64, 80]; XR = 96; GV = 104; RA = DRA; E = DE
    BR = lambda s: (16 + 16*s) if s < 7 else (144 + 16*(s-7))
    n0 = opt.get('d_pre0', 8); n0a = opt.get('d_pre0a', 3)
    for s in range(n0a):
        for sal, ins, tag in d_dma(s): a.e(sal, ins); vm.add(tag)
    srd(a, 12, 42, 43, 2*112*1024, add='s59')
    signal(a, L, 3, vm.wait({('st', 2)})); mark(a, 9)
    for s in range(n0a, n0):
        for sal, ins, tag in d_dma(s): a.e(sal, ins); vm.add(tag)
    srd(a, 16, 42, 43, 12288); srd(a, 8, 82, 83, 2097152)
    for p in range(2):
        for e in range(2): a.e(f'buffer_load_dwordx2 {A(XR+4*p+2*e,2)}, {V(E)}, s[20:23], s57 offen offset:{128*p+256*e}{SC}'); vm.add(('e', 0))
    for h in range(2): a.e(f'buffer_load_dwordx4 {A(GV+4*h,4)}, {V(E+1)}, s[16:19], s58 offen offset:{16*h}'); vm.add(('e', 0))
    poll(a, L, 3, FLB, vm); mark(a, 10)
    dma2 = d_dma
    def bload(s):
        return [[[f's_mov_b32 s36, {qp*112*1024 + 2048*s}'] if u == 0 else [], f'buffer_load_dwordx4 {V(BR(s)+8*qp+4*u,4)}, v7, s[12:15], s36 offen offset:{1024*u}{SC}', ('db', s)] for qp in range(2) for u in range(2)]
    def reads(s): return [f'ds_read_b64_tr_b16 {A(FA[s & 1]+4*x+2*v,2)}, {V(RA+x)} offset:{(s % DR)*4096+2048*v}' for x in range(4) for v in range(2)]
    def swaps(s): return [f'v_swap_b32 {V(BR(s)+8*qp+2+i)}, {V(BR(s)+8*qp+4+i)}' for qp in range(2) for i in range(2)]
    sc = Sched(a, age=6)
    PRE = opt.get('d_pre', 4)
    for s in range(PRE):
        for sal, ins, tag in bload(s): a.e(sal, ins); vm.add(tag)
        if s == 0:
            a.e(vm.wait({('da', 0)}))
            for r in reads(0): sc.emit_filler(r)
    a.e(vm.wait({('db', 0)}), swaps(0))
    nb_ = PRE; na_ = n0
    for s in range(NS):
        mf = [f'{MF} {A(ACC+16*nb+4*qb,4)}, {A(FA[s & 1]+4*nb,4)}, {V(BR(s)+4*qb,4)}, {"0" if s == 0 else A(ACC+16*nb+4*qb,4)}' for nb in range(4) for qb in range(4)]
        gaps = [[] for _ in mf]
        a.e('s_waitcnt lgkmcnt(0)'); sc.pend = []
        iss = []
        if nb_ < NS: iss += bload(nb_); nb_ += 1
        if na_ < NS and na_ <= s + DR and na_ <= nb_ + 1: iss += dma2(na_); na_ += 1
        elif nb_ < NS: iss += bload(nb_); nb_ += 1
        for g, (sal, ins, tag) in enumerate(iss[:7]):
            gaps[g] += sal + [ins]; vm.add(tag)
        if s + 1 < NS:
            assert ('da', s+1) in vm.seen and ('db', s+1) in vm.seen and not any(x[2][1] == s+1 for x in iss[7:])
            gaps[7] += vm.wait({('da', s+1), ('db', s+1)})
            for i, r in enumerate(reads(s+1)): gaps[7 + i//2].append(r)
            for i, x in enumerate(swaps(s+1)): gaps[11 + i//2].append(x)
        for i, (sal, ins, tag) in enumerate(iss[7:]):
            gaps[13] += sal + [ins]; vm.add(tag)
        sc.run(mf, gaps)
    assert nb_ == NS and na_ == NS, (nb_, na_)
    mark(a, 11)
    PT = 32
    a.e('s_nop 3', 's_barrier')
    for nb in range(4):
        for qb in range(4):
            a.e(f'ds_write_b128 {V(E+4)}, {A(ACC+16*nb+4*qb,4)} offset:{qb*16*272 + nb*64}')
    for i in range(8): a.e(f'v_accvgpr_read_b32 {V(112+i)}, {A(XR+i)}', f'v_accvgpr_read_b32 {V(120+i)}, {A(GV+i)}')
    for i in range(8): a.e(f'v_lshlrev_b32 {V(96+2*i)}, 16, {V(112+i)}', f'v_and_b32 {V(97+2*i)}, 0xffff0000, {V(112+i)}')
    a.e('s_waitcnt lgkmcnt(0)', 's_barrier')
    for p in range(2):
        for pw in range(4):
            for h in range(2): a.e(f'ds_read_b128 {V(PT+32*p+8*pw+4*h,4)}, {V(E+3)} offset:{pw*17408 + p*8*272 + h*16}')
    for p in range(2):
        b = PT + 32*p
        a.e(f's_waitcnt lgkmcnt({12-8*p})')
        for i in range(0, 8, 2): a.e(f'v_pk_add_f32 {V(b+i,2)}, {V(b+i,2)}, {V(b+8+i,2)}')
        a.e(f's_waitcnt lgkmcnt({8-8*p})')
        for i in range(0, 8, 2): a.e(f'v_pk_add_f32 {V(b+16+i,2)}, {V(b+16+i,2)}, {V(b+24+i,2)}')
        for i in range(0, 8, 2): a.e(f'v_pk_add_f32 {V(b+i,2)}, {V(b+i,2)}, {V(b+16+i,2)}')
        for i in range(0, 8, 2): a.e(f'v_pk_fma_f32 {V(96+8*p+i,2)}, {V(b+i,2)}, {V(120+i,2)}, {V(96+8*p+i,2)}')
        for i in range(4): a.e(f'v_cvt_pk_bf16_f32 {V(b+i)}, {V(96+8*p+2*i)}, {V(97+8*p+2*i)}')
        if p: a.e('s_add_u32 s56, s56, 8192')
        a.e(f'buffer_store_dwordx4 {V(b,4)}, {V(E+2)}, s[8:11], s56 offen{opt.get("wt_d", "")}')

def fused_post(a, L, opt, Sched):
    SYNC['mode'] = opt.get('sync', 'sflag'); SYNC['one'] = opt.get('one', 1)
    vm = phase_o(a, L, opt, Sched)
    vm = phase_r(a, L, opt, vm)
    vm = phase_g(a, L, opt, vm, Sched)
    phase_d(a, L, opt, vm, Sched)
    if TL['on']:
        a.e('s_waitcnt vmcnt(0)'); mark(a, 12)
        srd(a, 8, 42, 43, 1 << 20, add=(58 << 20))
        a.e('s_lshl_b32 s54, s2, 2', 's_add_u32 s54, s54, s28', 's_lshl_b32 s54, s54, 6', 'v_lshlrev_b32 v5, 2, v2', 's_mov_b64 exec, 0xffff')
        a.e(f'buffer_store_dword {V(DIAG)}, v5, s[8:11], s54 offen', 's_mov_b64 exec, -1')
```

```python
from asmlib import *
import struct, math
def f32hex(x): return hex(struct.unpack('<I', struct.pack('<f', x))[0])

WS_MOD = 0
WS_MODQ = 16384
WS_H   = 1 << 20
WS_O   = 4 << 20
WS_PART = 20 << 20
WS_X1  = 28 << 20
WS_H2  = 30 << 20
WS_HH  = 32 << 20
WS_FLAG = 65536
WS_ST  = 40 << 20
QSCALE = math.log2(math.e) / math.sqrt(128.0)

def round_bf16(a, dst, src):
    a.e(f'v_cvt_pk_bf16_f32 {dst}, {src}, {src}', f'v_and_b32 {dst}, 0xffff0000, {dst}')

def code_prefetch(a, L, nwg_per_xcd, dst):
    a.e('s_getpc_b64 s[30:31]', f'{L}_pc:', f's_sub_u32 s30, s30, {L}_pc - code_begin', 's_subb_u32 s31, s31, 0')
    a.e('s_lshr_b32 s32, s2, 3', 's_lshl_b32 s32, s32, 14', f'v_lshlrev_b32 {dst}, 6, v0', f'v_add_u32 {dst}, s32, {dst}',
        f'v_min_u32 {dst}, code_end - code_begin - 4, {dst}', f'global_load_dword {dst}, {dst}, s[30:31]')

def gen_mod(a, opt=None):
    opt = opt or {}
    L = 'mod_kernel'
    a.e('.text', 'code_begin:')
    kernel_head(a, L)
    a.e('s_cmp_ge_u32 s2, 96', f's_cbranch_scc1 {L}_end')
    tl_start(a)
    if opt.get('cpf', 1): code_prefetch(a, L, 12, 'v63')
    a.e('s_load_dwordx4 s[4:7], s[0:1], 72')
    a.e('s_load_dwordx2 s[20:21], s[0:1], 104')
    a.e('v_lshrrev_b32 v1, 2, v0')
    a.e('v_and_b32 v2, 3, v0')
    a.e('v_lshlrev_b32 v3, 1, v1')
    a.e('s_mov_b32 s22, 6144', 'v_mul_lo_u32 v4, v1, s22', 'v_lshl_add_u32 v4, v2, 4, v4')
    a.e('s_lshl_b32 s23, s2, 6')
    a.e('v_add_u32 v4, s23, v4')
    a.e('s_waitcnt lgkmcnt(0)')
    srd(a, 8, 4, 5, 1024); srd(a, 12, 6, 7, 512*6144); srd(a, 16, 20, 21, 12288)
    for i in range(8): a.e(f'buffer_load_ushort v{8+i}, v3, s[8:11], 0 offen offset:{i*128}')
    a.e('s_mov_b32 s24, 0')
    for i in range(8):
        a.e(f'buffer_load_dwordx4 v[{16+4*i}:{19+4*i}], v4, s[12:15], s24 offen nt')
        if i < 7: a.e(f's_add_u32 s24, s24, {64*6144}')
    for j in range(8): a.e(f'v_mov_b32 v{48+j}, 0')
    a.e('s_waitcnt vmcnt(8)')
    a.e(f's_mov_b32 s25, {f32hex(-math.log2(math.e))}')
    for i in range(8): a.e(f'v_lshlrev_b32 v{8+i}, 16, v{8+i}')
    for i in range(8): a.e(f'v_mul_f32 v{64+i}, s25, v{8+i}')
    for i in range(8): a.e(f'v_exp_f32 v{64+i}, v{64+i}')
    a.e('s_nop 0')
    for i in range(8): a.e(f'v_add_f32 v{64+i}, 1.0, v{64+i}')
    for i in range(8): a.e(f'v_rcp_f32 v{64+i}, v{64+i}')
    a.e('s_nop 0')
    for i in range(8): a.e(f'v_mul_f32 v{8+i}, v{8+i}, v{64+i}')
    for i in range(8): round_bf16(a, f'v{8+i}', f'v{8+i}')
    for i in range(8):
        a.e(f's_waitcnt vmcnt({7-i})')
        for d in range(4):
            w = 16+4*i+d
            a.e(f'v_lshlrev_b32 v5, 16, v{w}', f'v_and_b32 v6, 0xffff0000, v{w}',
                f'v_fmac_f32 v{48+2*d}, v5, v{8+i}', f'v_fmac_f32 v{49+2*d}, v6, v{8+i}')
    a.e('v_mul_u32_u24 v5, 144, v1', 'v_lshl_add_u32 v5, v2, 5, v5')
    a.e('ds_write_b128 v5, v[48:51]', 'ds_write_b128 v5, v[52:55] offset:16', 's_waitcnt lgkmcnt(0)', 's_barrier')
    a.e('v_and_b32 v6, 31, v0', 'v_lshrrev_b32 v7, 5, v0', 'v_mul_u32_u24 v5, 1152, v7', 'v_lshl_add_u32 v5, v6, 2, v5')
    for i in range(8): a.e(f'ds_read_b32 v{16+i}, v5 offset:{144*i}')
    a.e('s_waitcnt lgkmcnt(0)')
    for i in range(1, 8): a.e(f'v_add_f32 v16, v16, v{16+i}')
    a.e('v_lshlrev_b32 v5, 2, v0', 'ds_write_b32 v5, v16 offset:9216', 's_waitcnt lgkmcnt(0)', 's_barrier')
    a.e('v_cmp_gt_u32 vcc, 32, v0', 's_and_saveexec_b64 s[26:27], vcc', f's_cbranch_execz {L}_end')
    for i in range(8): a.e(f'ds_read_b32 v{16+i}, v5 offset:{9216+128*i}')
    a.e('s_waitcnt lgkmcnt(0)')
    for i in range(1, 8): a.e(f'v_add_f32 v16, v16, v{16+i}')
    round_bf16(a, 'v16', 'v16')
    a.e('s_lshr_b32 s28, s2, 4', 's_cmp_eq_u32 s28, 1', 's_cselect_b32 s29, 1, 0', 's_cmp_eq_u32 s28, 4', 's_cselect_b32 s29, 1, s29', 's_cmp_eq_u32 s29, 0', f's_cbranch_scc1 {L}_st')
    a.e('v_add_f32 v16, 1.0, v16'); round_bf16(a, 'v16', 'v16')
    a.e(f'{L}_st:', 's_lshl_b32 s23, s2, 7', 'v_add_u32 v5, s23, v5', 'buffer_store_dword v16, v5, s[16:19], 0 offen', 's_waitcnt vmcnt(0)')
    tl_end(a); a.e(f'{L}_end:', 's_endpgm')
    return dict(label=L, grid=96, block=256, lds=10240, vgpr=72, accum=72)

def xlane_sum(a, v, t):
    a.e(f'v_mov_b32 {t}, {v}', 's_nop 1', f'v_permlane32_swap_b32 {v}, {t}', 's_nop 1', f'v_add_f32 {v}, {v}, {t}',
        f'v_mov_b32 {t}, {v}', 's_nop 1', f'v_permlane16_swap_b32 {v}, {t}', 's_nop 1', f'v_add_f32 {v}, {v}, {t}')

def gen_ln(a, L, src, shift_part, scale_part, dst_off, outscale):
    kernel_head(a, L)
    a.e('s_cmp_ge_u32 s2, 128', f's_cbranch_scc1 {L}_end')
    tl_start(a)
    a.e('s_load_dwordx2 s[4:5], s[0:1], 0', 's_load_dwordx2 s[20:21], s[0:1], 104')
    a.e('v_and_b32 v1, 63, v0', 'v_lshrrev_b32 v2, 6, v0', 'v_and_b32 v3, 15, v0', 'v_bfe_u32 v4, v0, 4, 2')
    a.e('s_lshl_b32 s22, s2, 14', 'v_lshlrev_b32 v5, 12, v2', 'v_lshl_add_u32 v5, v1, 4, v5', 'v_add_u32 v5, s22, v5')
    if src == 'x':
        a.e('v_lshlrev_b32 v6, 10, v3', 'v_lshl_add_u32 v6, v2, 8, v6', 'v_lshl_add_u32 v6, v4, 4, v6', 'v_add_u32 v6, s22, v6')
    a.e('v_lshlrev_b32 v7, 9, v2', 'v_lshl_add_u32 v7, v4, 5, v7')
    a.e('s_waitcnt lgkmcnt(0)')
    if src == 'x': srd(a, 8, 4, 5, 2097152)
    else: srd(a, 8, 20, 21, 2097152, add=src)
    srd(a, 12, 20, 21, 12288); srd(a, 16, 20, 21, 2097152, add=dst_off)
    for j in range(4):
        if src == 'x': a.e(f'buffer_load_dwordx4 v[{16+4*j}:{19+4*j}], v6, s[8:11], 0 offen offset:{64*j}')
        else: a.e(f'buffer_load_dwordx4 v[{16+4*j}:{19+4*j}], v5, s[8:11], 0 offen offset:{1024*j}')
    a.e(f's_mov_b32 s23, {scale_part*2048}', f's_mov_b32 s24, {shift_part*2048}')
    for j in range(4):
        for hh in range(2):
            a.e(f'buffer_load_dwordx4 v[{64+8*j+4*hh}:{67+8*j+4*hh}], v7, s[12:15], s23 offen offset:{128*j+16*hh}')
            a.e(f'buffer_load_dwordx4 v[{96+8*j+4*hh}:{99+8*j+4*hh}], v7, s[12:15], s24 offen offset:{128*j+16*hh}')
    a.e('s_waitcnt vmcnt(16)')
    for i in range(16):
        a.e(f'v_lshlrev_b32 v{32+2*i}, 16, v{16+i}', f'v_and_b32 v{33+2*i}, 0xffff0000, v{16+i}')
    a.e('v_add_f32 v8, v32, v33')
    for i in range(2, 32): a.e(f'v_add_f32 v8, v8, v{32+i}')
    xlane_sum(a, 'v8', 'v9')
    a.e('v_lshlrev_b32 v10, 2, v3', 'v_lshl_add_u32 v11, v2, 6, v10', 'ds_write_b32 v11, v8', 's_waitcnt lgkmcnt(0)', 's_barrier')
    for i in range(4): a.e(f'ds_read_b32 v{12+i}, v10 offset:{64*i}')
    a.e('s_waitcnt lgkmcnt(0)', 'v_add_f32 v12, v12, v13', 'v_add_f32 v14, v14, v15', 'v_add_f32 v12, v12, v14')
    a.e(f'v_mul_f32 v12, {f32hex(1/512)}, v12')
    for i in range(32): a.e(f'v_sub_f32 v{32+i}, v{32+i}, v12')
    a.e('v_mul_f32 v8, v32, v32')
    for i in range(1, 32): a.e(f'v_fmac_f32 v8, v{32+i}, v{32+i}')
    xlane_sum(a, 'v8', 'v9')
    a.e('ds_write_b32 v11, v8 offset:256', 's_waitcnt lgkmcnt(0)', 's_barrier')
    for i in range(4): a.e(f'ds_read_b32 v{12+i}, v10 offset:{256+64*i}')
    a.e('s_waitcnt lgkmcnt(0)', 'v_add_f32 v12, v12, v13', 'v_add_f32 v14, v14, v15', 'v_add_f32 v12, v12, v14')
    a.e(f'v_mov_b32 v13, {f32hex(1e-5)}', f'v_fmac_f32 v13, {f32hex(1/512)}, v12', 'v_rsq_f32 v13, v13', 's_nop 0')
    a.e('s_waitcnt vmcnt(0)')
    for i in range(32): a.e(f'v_mul_f32 v{32+i}, v{32+i}, v13')
    for i in range(32): a.e(f'v_fma_f32 v{32+i}, v{32+i}, v{64+i}, v{96+i}')
    if outscale != 1.0:
        a.e(f's_mov_b32 s25, {f32hex(outscale)}')
        for i in range(32): a.e(f'v_mul_f32 v{32+i}, s25, v{32+i}')
    for i in range(16): a.e(f'v_cvt_pk_bf16_f32 v{16+i}, v{32+2*i}, v{33+2*i}')
    for j in range(4): a.e(f'buffer_store_dwordx4 v[{16+4*j}:{19+4*j}], v5, s[16:19], 0 offen offset:{1024*j}')
    a.e('s_waitcnt vmcnt(0)'); tl_end(a); a.e(f'{L}_end:', 's_endpgm')
    return dict(label=L, grid=128, block=256, lds=512, vgpr=128, accum=128)

def lane8_sum(a, v, t):
    xlane_sum(a, v, t)
    a.e('s_nop 1', f'v_add_f32_dpp {v}, {v}, {v} row_ror:8 row_mask:0xf bank_mask:0xf')

def gen_pre(a, opt):
    L = 'pre_kernel'
    a.e('.text', 'code_begin:')
    kernel_head(a, L)
    a.e('s_cmp_ge_u32 s2, 224', f's_cbranch_scc1 {L}_end')
    tl_start(a)
    a.e('s_cmp_lt_u32 s2, 96', f's_cbranch_scc1 {L}_mod')
    a.e('s_load_dwordx2 s[4:5], s[0:1], 0', 's_load_dwordx2 s[38:39], s[0:1], 24', 's_load_dwordx2 s[20:21], s[0:1], 104')
    a.e('s_sub_u32 s33, s2, 96')
    a.e('v_and_b32 v1, 63, v0', 'v_lshrrev_b32 v2, 6, v0', 'v_and_b32 v3, 15, v0', 'v_bfe_u32 v4, v0, 4, 2')
    a.e('s_and_b32 s22, s33, 1', 's_lshl_b32 s22, s22, 6', 's_bfe_u32 s23, s33, 0x20001', 's_lshl_b32 s24, s23, 4', 's_add_u32 s22, s22, s24', 's_lshr_b32 s25, s33, 3', 's_add_u32 s22, s22, s25')
    a.e('s_lshl_b32 s26, s22, 14', 'v_lshlrev_b32 v7, 10, v3', 'v_lshl_add_u32 v7, v2, 7, v7', 'v_lshl_add_u32 v7, v4, 4, v7')
    a.e('s_waitcnt lgkmcnt(0)'); tl_mark(a, 0)
    srd(a, 8, 4, 5, 2097152)
    for i in range(2): a.e(f'buffer_load_dwordx4 v[{16+4*i}:{19+4*i}], v7, s[8:11], s26 offen offset:{64*i}{opt.get("xnt", "")}')
    a.e('v_lshlrev_b32 v7, 12, v2', 'v_lshl_add_u32 v7, v3, 4, v7', 'v_lshrrev_b32 v8, 1, v4', 'v_lshl_add_u32 v7, v8, 10, v7', 'v_and_b32 v8, 1, v4', 'v_lshl_add_u32 v7, v8, 9, v7')
    a.e('s_lshr_b32 s34, s22, 1', 's_lshl_b32 s34, s34, 15', 's_and_b32 s35, s22, 1', 's_lshl_b32 s35, s35, 8', 's_add_u32 s34, s34, s35')
    srd(a, 16, 20, 21, 2097152, add=WS_H); srd(a, 44, 20, 21, 65536, add=WS_FLAG); srd(a, 12, 38, 39, 4194304)
    a.e('v_lshlrev_b32 v12, 2, v3', 'v_lshl_add_u32 v13, v2, 6, v12')
    a.e('v_and_b32 v14, 3, v2', 'v_lshlrev_b32 v14, 14, v14', 'v_lshrrev_b32 v15, 2, v2', 'v_lshl_add_u32 v14, v15, 6, v14', 'v_mov_b32 v15, 0', 's_lshl_b32 s28, s33, 7')
    a.e('s_mov_b64 exec, 1', 'buffer_store_dword v15, v14, s[44:47], s28 offen sc1', 's_mov_b64 exec, -1')
    a.e('v_lshrrev_b32 v8, 5, v0', 'v_lshlrev_b32 v8, 13, v8', 'v_and_b32 v9, 31, v0', 'v_lshl_add_u32 v8, v9, 6, v8', 's_lshl_b32 s27, s25, 17', 's_lshl_b32 s29, s23, 11', 's_add_u32 s27, s27, s29')
    a.e('s_waitcnt vmcnt(1)'); tl_mark(a, 1)
    fl = ' nt' if opt.get('pfnt', 0) else ''
    for k in range(opt.get('l2pf', 2)):
        a.e(f'buffer_load_dword v10, v8, s[12:15], s27 offen{fl}', 's_add_u32 s27, s27, 0x200000')
    if opt.get('cpf', 1):
        a.e('s_getpc_b64 s[30:31]', f'{L}_pc:', f's_sub_u32 s30, s30, {L}_pc - code_begin', 's_subb_u32 s31, s31, 0')
        a.e('s_lshl_b32 s32, s25, 15', 'v_lshlrev_b32 v11, 6, v0', 'v_add_u32 v11, s32, v11', 'v_min_u32 v11, code_end - code_begin - 4, v11', 'global_load_dword v11, v11, s[30:31]')
    for i in range(8): a.e(f'v_lshlrev_b32 v{32+2*i}, 16, v{16+i}', f'v_and_b32 v{33+2*i}, 0xffff0000, v{16+i}')
    a.e('v_add_f32 v8, v32, v33', 'v_add_f32 v9, v34, v35')
    for i in range(4, 16, 2): a.e(f'v_add_f32 v8, v8, v{32+i}', f'v_add_f32 v9, v9, v{33+i}')
    a.e('v_add_f32 v8, v8, v9')
    def across(off):
        xlane_sum(a, 'v8', 'v9')
        a.e(f'ds_write_b32 v13, v8 offset:{off}', 's_waitcnt lgkmcnt(0)', 's_barrier')
        for i in range(8): a.e(f'ds_read_b32 v{24+i}, v12 offset:{off+64*i}')
        a.e('s_waitcnt lgkmcnt(0)', 'v_add_f32 v24, v24, v25', 'v_add_f32 v26, v26, v27', 'v_add_f32 v28, v28, v29', 'v_add_f32 v30, v30, v31',
            'v_add_f32 v24, v24, v26', 'v_add_f32 v28, v28, v30', 'v_add_f32 v24, v24, v28')
    across(0)
    a.e(f'v_mul_f32 v24, {f32hex(1/512)}, v24')
    for i in range(16): a.e(f'v_sub_f32 v{32+i}, v{32+i}, v24')
    a.e('v_mul_f32 v8, v32, v32', 'v_mul_f32 v9, v33, v33')
    for i in range(2, 16, 2): a.e(f'v_fmac_f32 v8, v{32+i}, v{32+i}', f'v_fmac_f32 v9, v{33+i}, v{33+i}')
    a.e('v_add_f32 v8, v8, v9')
    across(512)
    a.e(f'v_mov_b32 v25, {f32hex(1e-5)}', f'v_fmac_f32 v25, {f32hex(1/512)}, v24', 'v_rsq_f32 v25, v25', 's_nop 0')
    for i in range(16): a.e(f'v_mul_f32 v{32+i}, v{32+i}, v25')
    for i in range(8): a.e(f'v_cvt_pk_f16_f32 v{16+i}, v{32+2*i}, v{33+2*i}')
    for i in range(2): a.e(f'buffer_store_dwordx4 v[{16+4*i}:{19+4*i}], v7, s[16:19], s34 offen offset:{2048*i}{opt.get("wt_p", " sc1")}')
    a.e(f's_branch {L}_fin')
    a.e(f'{L}_mod:')
    a.e('s_load_dwordx4 s[4:7], s[0:1], 72', 's_load_dwordx2 s[20:21], s[0:1], 104')
    a.e('v_lshrrev_b32 v1, 2, v0', 'v_and_b32 v2, 3, v0', 'v_lshlrev_b32 v3, 1, v1')
    a.e('s_mov_b32 s22, 6144', 'v_mul_lo_u32 v4, v1, s22', 'v_lshl_add_u32 v4, v2, 4, v4', 's_lshl_b32 s23, s2, 6', 'v_add_u32 v4, s23, v4')
    a.e('s_waitcnt lgkmcnt(0)'); tl_mark(a, 0)
    srd(a, 8, 4, 5, 1024); srd(a, 12, 6, 7, 512*6144)
    for i in range(4): a.e(f'buffer_load_ushort v{8+i}, v3, s[8:11], 0 offen offset:{i*256}')
    a.e('s_mov_b32 s24, 0')
    for i in range(4):
        a.e(f'buffer_load_dwordx4 v[{16+4*i}:{19+4*i}], v4, s[12:15], s24 offen{opt.get("mnt", "")}')
        if i < 3: a.e(f's_add_u32 s24, s24, {128*6144}')
    srd(a, 16, 20, 21, WS_MODQ + 4096)
    a.e('v_lshrrev_b32 v7, 6, v0', 'v_lshlrev_b32 v7, 7, v7', 'v_lshl_add_u32 v7, v2, 5, v7', 'v_bfe_u32 v5, v0, 4, 1', 'v_lshl_add_u32 v7, v5, 3, v7', 'v_bfe_u32 v5, v0, 5, 1', 'v_lshl_add_u32 v7, v5, 4, v7')
    a.e('v_lshlrev_b32 v13, 2, v0')
    a.e(f's_mov_b32 s25, {f32hex(-math.log2(math.e))}')
    a.e('s_lshr_b32 s28, s2, 4', 's_cmp_eq_u32 s28, 1', 's_cselect_b32 s29, 1.0, 0', 's_cmp_eq_u32 s28, 4', 's_cselect_b32 s29, 1.0, s29', 's_lshl_b32 s23, s2, 7')
    a.e('s_waitcnt vmcnt(4)')
    for i in range(4): a.e(f'v_lshlrev_b32 v{8+i}, 16, v{8+i}')
    for i in range(4): a.e(f'v_mul_f32 v{56+i}, s25, v{8+i}')
    for i in range(4): a.e(f'v_exp_f32 v{56+i}, v{56+i}')
    a.e('s_nop 0')
    for i in range(4): a.e(f'v_add_f32 v{56+i}, 1.0, v{56+i}')
    for i in range(4): a.e(f'v_rcp_f32 v{56+i}, v{56+i}')
    a.e('s_nop 0')
    for i in range(4): a.e(f'v_mul_f32 v{8+i}, v{8+i}, v{56+i}')
    for i in range(4): round_bf16(a, f'v{8+i}', f'v{8+i}')
    for i in range(4):
        a.e(f's_waitcnt vmcnt({3-i})')
        if i == 3: tl_mark(a, 1)
        for d in range(4):
            w = 16+4*i+d
            a.e(f'v_lshlrev_b32 v5, 16, v{w}', f'v_and_b32 v6, 0xffff0000, v{w}')
            if i == 0: a.e(f'v_mul_f32 v{48+2*d}, v5, v8', f'v_mul_f32 v{49+2*d}, v6, v8')
            else: a.e(f'v_fmac_f32 v{48+2*d}, v5, v{8+i}', f'v_fmac_f32 v{49+2*d}, v6, v{8+i}')
    a.e('s_nop 1')
    for i in range(4): a.e(f'v_permlane32_swap_b32 v{48+i}, v{52+i}')
    for i in range(4): a.e(f'v_add_f32 v{48+i}, v{48+i}, v{52+i}')
    a.e('s_nop 0')
    for i in range(2): a.e(f'v_permlane16_swap_b32 v{48+i}, v{50+i}')
    for i in range(2): a.e(f'v_add_f32 v{48+i}, v{48+i}, v{50+i}')
    for r in (4, 8):
        a.e('s_nop 1')
        for i in range(2): a.e(f'v_add_f32_dpp v{48+i}, v{48+i}, v{48+i} row_ror:{r} row_mask:0xf bank_mask:0xf')
    a.e('ds_write_b64 v7, v[48:49]', 's_waitcnt lgkmcnt(0)', 's_barrier')
    tl_mark(a, 2)
    a.e('v_cmp_gt_u32 vcc, 32, v0', 's_and_saveexec_b64 s[26:27], vcc', f's_cbranch_execz {L}_end')
    for i in range(8): a.e(f'ds_read_b32 v{16+i}, v13 offset:{128*i}')
    a.e('v_add_u32 v5, s23, v13', 's_waitcnt lgkmcnt(0)')
    for st in (4, 2, 1):
        for i in range(st): a.e(f'v_add_f32 v{16+i}, v{16+i}, v{16+st+i}')
    round_bf16(a, 'v16', 'v16')
    a.e('v_add_f32 v16, s29, v16'); round_bf16(a, 'v16', 'v16')
    a.e('buffer_store_dword v16, v5, s[16:19], 0 offen sc1')
    a.e('s_cmp_ge_u32 s28, 2', f's_cbranch_scc1 {L}_fin')
    a.e(f'v_mul_f32 v17, {f32hex(QSCALE)}, v16', 'v_xor_b32 v5, 2048, v5', f's_mov_b32 s23, {WS_MODQ}', 'buffer_store_dword v17, v5, s[16:19], s23 offen sc1')
    a.e(f'{L}_fin:')
    tl_end(a, wait=False); a.e(f'{L}_end:', 's_endpgm')
    return dict(label=L, grid=224, block=512, lds=1024, vgpr=64, accum=64)
```

```python
from asmlib import *
from gen_pre import *
import gen_fuse as gf
import re

S_ = [16, 48]; P_ = [80, 96]; CI = 112; VT = 128
KA = 144; VA = 148; DK = 156; DV = 160; LV = 162; ONES = 172; LM = 176; Q = 192
WA = 176; DW = 180; HV = 181
AO = 0; AK = 192; AV = 224
DELTA = 100.0
MF = 'v_mfma_f32_16x16x32_bf16'
NT = {'kv': '', 'wq': ''}
PF = 136

class Sched:
    def __init__(self, a, age=8):
        self.a = a
        self.pend = []
        self.t = 0; self.age = age
    @staticmethod
    def regs(tok):
        m = re.match(r'([av])\[(\d+):(\d+)\]', tok)
        if m: return {(m.group(1), i) for i in range(int(m.group(2)), int(m.group(3))+1)}
        m = re.match(r'([av])(\d+)$', tok)
        if m: return {(m.group(1), int(m.group(2)))}
        return set()
    def need(self, ins):
        ops = [t.strip() for t in ins.split(None, 1)[1].split(',')]
        rs = set()
        for t in ops[1:3]: rs |= self.regs(t.split()[0])
        last = -1
        for i, p in enumerate(self.pend):
            if p[0] & rs: last = i
        if last < 0: return None
        while last + 1 < len(self.pend) and self.pend[last+1][1] <= self.t - self.age: last += 1
        return len(self.pend) - 1 - last
    def wait(self, n):
        n = min(n, 15)
        self.a.e(f's_waitcnt lgkmcnt({n})')
        self.pend = self.pend[len(self.pend)-n:] if n else []
    def emit_filler(self, ins):
        if ins.startswith('WAITDS '):
            n = self.need('x d, ' + ins[7:])
            if n is not None: self.wait(n)
            return
        self.a.e(ins)
        if ins.startswith('ds_read') or ins.startswith('ds_bpermute'):
            self.pend.append((self.regs(ins.split(None, 1)[1].split(',')[0].strip()), self.t))
        elif ins.startswith('ds_'):
            self.pend.append((set(), self.t))
        elif ins.startswith('s_waitcnt') and 'lgkmcnt(0)' in ins:
            self.pend = []
    def run(self, mf, gaps, nextmf=None):
        n0 = self.need(mf[0]) if mf else None
        if n0 is not None: self.wait(n0)
        for g, m in enumerate(mf):
            self.a.e(m); self.t += 1
            nxt = mf[g+1] if g+1 < len(mf) else nextmf
            if nxt is not None:
                n = self.need(nxt)
                if n is not None: self.wait(n)
            for f in gaps[g]: self.emit_filler(f)
            if nxt is not None:
                n = self.need(nxt)
                if n is not None: self.wait(n)

def qk_mfmas(Sw, czero=False, order='kqt'):
    it = [(kb, qb, t) for kb in range(2) for qb in range(4) for t in range(4)] if order == 'kqt' else \
         [(kb, qb, t) for qb in range(4) for kb in range(2) for t in range(4)]
    r = []
    for kb, qb, t in it:
        d = Sw + 8*qb + 4*kb
        c = (('0' if czero else V(CI+4*qb, 4)) if t == 0 else V(d, 4))
        r.append(f'{MF} {V(d,4)}, {A(AK+16*kb+4*t,4)}, {V(Q+16*qb+4*t,4)}, {c}')
    return r

def pv_mfmas(Pr, XQ, first=False):
    r = []
    for db in range(8):
        for qb in range(4):
            o = AO + 16*db + 4*qb
            r.append(f'{MF} {A(o,4)}, {V(Pr+4*qb,4)}, {A(AV+4*db,4)}, {"0" if first else A(o,4)}')
    for qb in XQ:
        r.append(f'{MF} {V(LM+4*qb,4)}, {V(Pr+4*qb,4)}, {V(ONES,4)}, {"0" if first else V(LM+4*qb,4)}')
    return r

def vreads(base_reg, off):
    return [f'ds_read_b64_tr_b16 {A(AV+4*db+2*u,2)}, {V(base_reg+db)} offset:{off+4096*u}' for db in range(8) for u in range(2)]
def kreads(off):
    return [f'ds_read_b128 {A(AK+4*f,4)}, {V(KA+(f&3))} offset:{off+4096*(f>>2)}' for f in range(8)]

def sm_items(Sr, Pw, XQ):
    exps = [f'v_exp_f32 {V(Sr+e)}, {V(Sr+e)}' for e in range(32)]
    items = []
    for e in range(32):
        qb = e >> 3
        if qb not in XQ:
            l = LV + 2*qb + (e & 1)
            items.append((e, f'v_add_f32 {V(l)}, {V(l)}, {V(Sr+e)}'))
        if e & 1: items.append((e, f'v_cvt_pk_bf16_f32 {V(Pw+e//2)}, {V(Sr+e-1)}, {V(Sr+e)}'))
    return exps, items

def dma_group(isV, grp, m0s, soff):
    srd_ = 's[12:15]' if isV else 's[8:11]'
    st = f's_mov_b32 m0, {m0s}' if grp == 0 else f's_add_u32 m0, {m0s}, 4096'
    r = []
    for j in range(4):
        vo = DV + (j & 1) if isV else DK + j
        r.append(f'buffer_load_dwordx4 {V(vo)}, {srd_}, {soff} offen offset:{j*1024}{NT["kv"]} lds')
    return st, r

def normal_slot(sc, opt, s, dmas, kread=True, first_pv=False, late_v=None, salu=(), extra_v=()):
    XQ = opt['XQ']
    par = s & 1
    mf = qk_mfmas(S_[par ^ 1]) + pv_mfmas(P_[par ^ 1], XQ, first_pv)
    N = len(mf)
    gaps = [[] for _ in range(N)]; cap = [0 if (g < 64 and g % 2 == 0) else 2 for g in range(N)]
    pre = [[] for _ in range(N)]
    exps, items = sm_items(S_[par], P_[par], XQ)
    for e in range(32): gaps[2*e].append(exps[e])
    for n, (sal, ins) in enumerate(dmas):
        g = opt['dpos'][n]
        for k, x in enumerate(sal): pre[g-1-k].append(x)
        gaps[g].append(ins); cap[g] -= opt['dcost']
    if opt.get('nodma'):
        gaps = [[x for x in gp if not x.startswith('buffer_load')] for gp in gaps]
    for k, x in enumerate(salu): pre[40 + 2*k].append(x)
    LAT = opt.get('dslat', 10)
    ds = []
    for i, r in enumerate(vreads(VA, ((s-1) % 8)*8192)): ds.append((0, 32 + 4*(i >> 1) - LAT, r))
    if kread:
        for f, r in enumerate(kreads(((s+2) % 8)*8192)): ds.append((16 if f < 4 else 32, N - LAT if (f < 4 or (s % 4) == 3) else N - 1, r))
    if late_v is not None:
        for i, r in enumerate(late_v): ds.append((min(36 + 4*(i >> 1), N-1), N - 1, r))
    va = [(2*e + 1, N - 1, t) for e, t in items]
    for i, t in enumerate(extra_v): va.append((4*i + 1, N - 1, t))
    va.sort(key=lambda x: x[0])
    maxds = opt.get('maxds', 1)
    for g in range(N):
        nds = 0
        while cap[g] > 0:
            rd = [x for x in ds if x[0] <= g]
            rv = [x for x in va if x[0] <= g]
            pick = None
            if rd:
                rd.sort(key=lambda x: x[1])
                urgent = rd[0][1] <= g + 2*sum(1 for x in rd if x[1] <= rd[0][1] + 4)
                if nds < maxds or urgent or not rv: pick = ('d', rd[0])
            if pick is None and rv: pick = ('v', rv[0])
            if pick is None: break
            if pick[0] == 'd':
                ds.remove(pick[1]); gaps[g].insert(nds, pick[1][2]); nds += 1
            else:
                va.remove(pick[1]); gaps[g].append(pick[1][2])
            cap[g] -= 1
    gaps[N-1] = [x[2] for x in ds] + gaps[N-1] + [x[2] for x in va]
    if opt.get('verbose'): print('slot', s, 'overflow', len(ds), len(va), 'free', sum(cap))
    sc.run(mf, [pre[g] + gaps[g] for g in range(N)], nextmf=(qk_mfmas(S_[par])[0] if kread else None))

def packed(sc, mf, ds_at, exps, items, extra=None):
    N = len(mf)
    gaps = [[] for _ in range(N)]
    for g, r in ds_at: gaps[g].append(r)
    q = list(items); ne = len(exps)
    e = 0
    for g in range(N):
        k = 0
        while q and q[0][0] < e and k < 2:
            gaps[g].append(q.pop(0)[1]); k += 1
        if e < ne: gaps[g].append(exps[e]); e += 1
    assert e == ne
    if q: gaps[N-1] += ['s_nop 0'] + [x[1] for x in q]
    if extra:
        for g, x in extra: gaps[g].append(x)
    sc.run(mf, gaps)

def epoch_dmas(E, opt, mode='full'):
    p = E & 1
    r = []
    for isV in (0, 1):
        for grp in (0, 1):
            st, ins = dma_group(isV, grp, f's{30+2*isV+p}', f's{34+2*isV+grp}')
            for j, x in enumerate(ins):
                sal = [st] if j == 0 else []
                r.append([sal, x])
    return r

def stamp(a, opt, idx):
    if opt.get('stamps'):
        a.e(f's_memtime s[{80+2*idx}:{81+2*idx}]')

def gen_attn(a, opt=None):
    opt = dict(opt or {})
    opt.setdefault('XQ', [0, 2]); opt.setdefault('kpos', [33, 35, 37, 39, 41, 43, 45, 47])
    opt.setdefault('dpos', [5, 15, 25, 35, 45, 55, 61, 51]); opt.setdefault('dcost', 2); opt.setdefault('dsplit', [6, 5, 5, 0])
    XQ = opt['XQ']
    assert opt['dsplit'][3] == 0 and opt['dpos'][:max(opt['dsplit'])] == sorted(opt['dpos'][:max(opt['dsplit'])])
    NT['kv'] = ' nt' if opt.get('ntkv', 1) else ''; NT['wq'] = ' nt' if opt.get('ntwq', 0) else ''
    single = opt.get('single', 1)
    L = 'attn_kernel' if not single else NAME + '_kernel'
    if single: a.e('.text', 'code_begin:')
    kernel_head(a, L)
    a.e('s_cmp_ge_u32 s2, 256', f's_cbranch_scc1 {L}_end')
    tl_start(a)
    stamp(a, opt, 0)
    if opt.get('stamps'): a.e('s_memrealtime s[92:93]')
    a.e('s_load_dwordx4 s[4:7], s[0:1], 8', 's_load_dwordx2 s[40:41], s[0:1], 24', 's_load_dwordx2 s[42:43], s[0:1], 104')
    fuse = opt.get('fuse', 1)
    if fuse:
        a.e('s_load_dwordx2 s[80:81], s[0:1], 0', 's_load_dwordx2 s[82:83], s[0:1], 88')
    if single: a.e('s_load_dwordx4 s[56:59], s[0:1], 72', 's_load_dwordx2 s[60:61], s[0:1], 96', 's_memrealtime s[86:87]')
    a.e('s_load_dwordx2 s[64:65], s[0:1], 32', 's_load_dwordx2 s[68:69], s[0:1], 48', 's_load_dwordx2 s[72:73], s[0:1], 56', 's_load_dwordx2 s[76:77], s[0:1], 64')
    a.e('v_lshrrev_b32 v1, 6, v0', 'v_and_b32 v2, 63, v0', 'v_readfirstlane_b32 s28, v1')
    if opt.get('map', 8) == 4:
        a.e('s_and_b32 s44, s2, 7', 's_lshl_b32 s44, s44, 2', 's_lshr_b32 s45, s2, 3', 's_and_b32 s46, s45, 3', 's_add_u32 s44, s44, s46')
        a.e('s_lshr_b32 s45, s45, 2')
    else:
        a.e('s_bfe_u32 s44, s2, 0x20001', 's_lshl_b32 s44, s44, 3', 's_bfe_u32 s46, s2, 0x30003', 's_add_u32 s44, s44, s46')
        a.e('s_and_b32 s45, s2, 1', 's_lshl_b32 s45, s45, 2', 's_lshr_b32 s46, s2, 6', 's_add_u32 s45, s45, s46')
    a.e('s_lshl_b32 s45, s45, 2', 's_add_u32 s45, s45, s28')
    CU = [(144, 148), (152, 160), (164, 168)]
    WA = 172; DW = 0; HV = 14; CSA = 15; TM = 8; RING = 176
    MF32 = 'v_mfma_f32_32x32x16_bf16'
    a.e('v_and_b32 v3, 15, v2', 'v_lshrrev_b32 v4, 4, v2')
    a.e('v_lshlrev_b32 v5, 2, v4', 'v_xor_b32 v5, v5, v3', 'v_lshlrev_b32 v5, 4, v5', f'v_lshl_add_u32 {V(DW)}, v4, 13, v5')
    a.e(f'v_lshlrev_b32 {V(HV)}, 4, v2')
    a.e('s_lshl_b32 s48, s28, 13', 's_lshl_b32 s49, s28, 10')
    a.e('s_waitcnt lgkmcnt(0)')
    a.e('s_lshl_b32 s46, s44, 8'); srd(a, 16, 40, 41, 0, add='s46'); a.e('s_sub_u32 s18, 4194304, s46')
    vm = []
    def vmwait(tags, extra=''):
        last = max([i for i, t in enumerate(vm) if t[:2] in tags], default=-1)
        if last < 0: return [f's_waitcnt{extra}'] if extra else []
        n = sum(1 for t in vm[last+1:] if len(t) == 2)
        del vm[:last+1]
        return [f's_waitcnt vmcnt({n}){extra}']
    HS = ' sc1' if single else ''
    def modq():
        srd(a, 24, 42, 43, 4096, add=WS_MODQ)
        a.e('s_add_u32 m0, s49, 147456', 's_nop 0', f'buffer_load_dwordx4 {V(HV)}, s[24:27], s49 offen{HS} lds'); vm.append(('w', 0))
    if not single: modq()
    a.e('s_lshl_b32 s46, s45, 16', f's_add_u32 s46, s46, {WS_H}'); srd(a, 20, 42, 43, 65536, add='s46')
    def wq(s0, n):
        r = []
        for i in range(2*n):
            sal = []
            if i == 0: sal += [f's_mul_i32 s57, s28, {8*n*8192}', f's_mul_i32 s58, s28, {8*n*256}']
            if i % 4 == 0: sal.append(f's_add_u32 m0, s58, {16384 + s0*8192 + 4096*(i//4)}')
            sal.append(f's_add_u32 s50, s57, {s0*32*8192 + 32768*i - 1024*(i & 3)}')
            r.append([sal, f'buffer_load_dwordx4 {V(DW)}, s[16:19], s50 offen offset:{1024*(i&3)}{NT["wq"]} lds', ('w', s0)])
        return r
    HR = lambda ks: RING + 8*(ks % 10)
    def hl(s):
        return [[[f's_mov_b32 s51, {qq*32768 + ((2*s) & ~3)*1024}'], f'buffer_load_dwordx4 {V(HR(ks)+4*qq,4)}, {V(HV)}, s[20:23], s51 offen offset:{1024*(ks & 3)}{HS}', ('h', ks)]
                for ks in (2*s, 2*s+1) for qq in range(2)]
    def emit_list(lst):
        for sal, ins, tag in lst:
            a.e(sal, ins); vm.append(tag)
    def setup():
        for j in range(4):
            a.e(f'v_add_u32 v6, {4*j}, v4', 'v_xor_b32 v6, v6, v3', 'v_lshlrev_b32 v6, 4, v6', f'v_lshl_add_u32 {V(DK+j)}, v4, 8, v6')
        a.e('v_and_b32 v1, 3, v2', 'v_bfe_u32 v6, v2, 2, 2', 'v_lshrrev_b32 v7, 5, v2', 'v_lshlrev_b32 v8, 5, v7', f'v_add_u32 {V(CSA)}, 147456, v8',
            'v_lshl_add_u32 v7, v7, 3, v6', 'v_lshlrev_b32 v7, 8, v7', 'v_and_b32 v8, 1, v4', 'v_lshl_add_u32 v7, v8, 3, v7', 'v_add_u32 v7, 0x4000, v7', 'v_lshlrev_b32 v6, 2, v6',
            'v_and_b32 v8, 1, v1', 'v_lshlrev_b32 v8, 1, v8', 'v_lshrrev_b32 v9, 1, v1', 'v_add_u32 v8, v8, v9')
        for db in range(4):
            a.e(f'v_add_u32 v5, {4*db}, v8', 'v_xor_b32 v5, v5, v6', f'v_lshl_add_u32 {V(WA+db)}, v5, 4, v7')
        for j in range(2):
            a.e(f'v_add_u32 v5, {4*j}, v4', 'v_lshlrev_b32 v5, 1, v5', 'v_xor_b32 v5, v5, v3', 'v_lshlrev_b32 v5, 4, v5', f'v_lshl_add_u32 {V(6+j)}, v4, 8, v5')
        for p in range(2):
            a.e(f's_add_u32 s53, s28, {6+4*p}', 's_and_b32 s53, s53, 7', f's_lshl_b32 s{30+p}, s53, 13')
            a.e(f's_add_u32 s53, s28, {3+4*p}', 's_and_b32 s53, s53, 7', 's_lshl_b32 s53, s53, 13', f's_add_u32 s{32+p}, s53, 65536')
        a.e(f's_add_u32 s34, s48, {6*8192}', 's_add_u32 s35, s34, 4096', f's_add_u32 s36, s48, {3*8192}', 's_add_u32 s37, s36, 4096')
        for i, size in enumerate((4194304, 1835008, 1835008, 1835008)): a.e(f's_mov_b32 s{66+4*i}, {size}', f's_mov_b32 s{67+4*i}, 0x20000')
    def kvsrd(): a.e('s_lshl_b32 s46, s44, 19'); srd(a, 8, 4, 5, 524288, add='s46'); srd(a, 12, 6, 7, 524288, add='s46')
    if single:
        gf.phase_front(a, L, opt, wq, emit_list, vm, setup, HV)
        emit_list(hl(0) + hl(1) + hl(2)); gf.front_late(a, L, wq, vm, opt); kvsrd()
        a.e(vmwait({('m', 0)})); gf.front_table(a, HV)
    else:
        emit_list(wq(0, 1) + hl(0) + wq(1, 1) + hl(1) + wq(2, 2) + hl(2)); kvsrd(); setup(); a.e('s_mov_b32 s39, 1')
    sc = Sched(a, age=4)
    QA = lambda qq, db: 16 + 64*qq + 16*db
    AR = lambda n: AK + 4*(n % 16)
    def a_reads(n):
        ks, db = divmod(n, 4)
        return [f'ds_read_b64_tr_b16 {A(AR(n)+2*v,2)}, {V(WA+db)} offset:{(ks % 8)*4096+v*1024}' for v in range(2)]
    def cs_reads(u):
        c, sh = CU[u % 3]
        return [f'ds_read_b128 {V(c,4)}, {V(CSA)} offset:{64*(u >> 1)+16*(u & 1)}', f'ds_read_b128 {V(sh,4)}, {V(CSA)} offset:{2048+64*(u >> 1)+16*(u & 1)}']
    xk = [0]
    def xform(u):
        r = [f'WAITDS {V(CU[u % 3][0],4)}, {V(CU[u % 3][1],4)}']
        c, sh = CU[u % 3]; ks, h = divmod(u, 2)
        for qq in range(2):
            for d in range(2):
                reg = HR(ks) + 4*qq + 2*h + d; t = TM + 2*(xk[0] % 3); xk[0] += 1
                r.append(f'v_fma_mix_f32 {V(t)}, {V(reg)}, {V(c+2*d)}, {V(sh+2*d)} op_sel_hi:[1,0,0]')
                r.append(f'v_fma_mix_f32 {V(t+1)}, {V(reg)}, {V(c+2*d+1)}, {V(sh+2*d+1)} op_sel:[1,0,0] op_sel_hi:[1,0,0]')
                r.append(f'v_cvt_pk_bf16_f32 {V(reg)}, {V(t)}, {V(t+1)}')
        return r
    D = opt.get('qdist', 6)
    a.e(vmwait({('w', 0)}), 's_barrier')
    stamp(a, opt, 1)
    if fuse: gf.mark2(a, 13)
    for u in range(3):
        for r in cs_reads(u): sc.emit_filler(r)
    for n in range(D):
        for r in a_reads(n): sc.emit_filler(r)
    a.e(vmwait({('h', 0)}))
    for x in xform(0): sc.emit_filler(x)
    for r in cs_reads(3): sc.emit_filler(r)
    for x in xform(1): sc.emit_filler(x)
    a.e('s_nop 1')
    k01 = [[[f's_lshl_b32 s52, s28, 12', 's_mov_b32 m0, s52'] if j == 0 else [], f'buffer_load_dwordx4 {V(DK+j)}, s[8:11], s52 offen offset:{1024*j}{NT["kv"]} lds', ('k', 0)] for j in range(4)]
    k25 = []
    for grp in range(2):
        st, ins = dma_group(0, 0, f's{54+grp}', f's{54+grp}')
        k25 += [[[f's_add_u32 s{54+grp}, s48, {2*8192 + 4096*grp}', st] if j == 0 else [], x, ('k', 2)] for j, x in enumerate(ins)]
    v02 = []
    for i in range(6):
        sal = []
        if i == 0: sal = ['s_mul_i32 s54, s28, 6144', 's_add_u32 m0, s54, 65536']
        if i == 4: sal = ['s_add_u32 s54, s54, 4096', 's_add_u32 m0, s54, 65536']
        v02.append([sal, f'buffer_load_dwordx4 {V(6+(i&1))}, s[12:15], s54 offen offset:{1024*(i&3)}{NT["kv"]} lds', ('v', 0)])
    w47, w8b, wcf = wq(4, 4), wq(8, 4), wq(12, 4)
    plan = {0: hl(3) + w47[:4], 1: hl(4) + w47[4:], 2: hl(5) + hl(6), 3: hl(7) + w8b[:4], 4: hl(8) + w8b[4:], 5: hl(9) + k01, 6: hl(10) + wcf[:4],
            7: hl(11) + wcf[4:], 8: hl(12) + k25[:4], 9: hl(13) + k25[4:], 10: hl(14), 11: hl(15), 12: v02, 13: [], 14: [], 15: []}
    groups = [1, 2, 4, 8, 12]
    if single:
        plan.update({0: hl(3) + w8b[:4], 1: hl(4) + w8b[4:], 3: hl(7) + k01, 4: hl(8) + wcf[:4], 5: hl(9) + wcf[4:], 6: hl(10), 7: hl(11)})
        groups = [4, 8, 12]
    late = []
    late += [f'v_mov_b32 {V(DV)}, v6', f'v_mov_b32 {V(DV+1)}, v7']
    late += ['v_xor_b32 v5, v3, v4', 'v_lshlrev_b32 v5, 4, v5', f'v_lshl_add_u32 {V(KA)}, v3, 8, v5'] + [f'v_xor_b32 {V(KA+t)}, {t*64}, {V(KA)}' for t in range(1, 4)]
    late2 = ['v_lshrrev_b32 v6, 2, v2', 'v_lshlrev_b32 v7, 8, v6', 'v_and_b32 v6, 7, v6', 'v_lshl_add_u32 v7, v1, 3, v7', 'v_add_u32 v7, 0x10000, v7']
    for db in range(8): late2 += [f'v_xor_b32 v5, {db}, v6', f'v_lshl_add_u32 {V(VA+db)}, v5, 5, v7']
    vq = []
    for ks in range(32):
        mf = [f'{MF32} {V(QA(qq,db),16)}, {A(AR(4*ks+db),4)}, {V(HR(ks)+4*qq,4)}, {"0" if ks == 0 else V(QA(qq,db),16)}' for db in range(4) for qq in range(2)]
        gaps = [[] for _ in range(8)]; pre = [[] for _ in range(8)]; post = [[] for _ in range(8)]
        if ks % 2 == 0: vq += plan[ks // 2]
        for db in range(4):
            n = 4*ks + db + D
            if n < 128:
                if n % 8 == 0 and n // 8 in groups:
                    post[2*db-1] += ['VMW', ('w', n // 8)]
                if n % 32 == 0: post[2*db-1] += [f'v_add_u32 {V(WA+x)}, 0x8000, {V(WA+x)}' for x in range(4)]
                r = a_reads(n); gaps[2*db].append(r[0]); gaps[2*db+1].append(r[1])
        if ks < 31:
            va = [xform(2*ks+2), xform(2*ks+3)]
            for h in range(2):
                u = 2*ks + 4 + h
                if u < 64:
                    r = cs_reads(u); gaps[4*h].append(r[0]); gaps[4*h+1].append(r[1])
        oddk = ks & 1
        for g in range(8):
            if vq and g % 2 == oddk:
                sal, ins, tag = vq.pop(0)
                if g == 0: pre[0] += sal + (['s_nop 0'] if sal and 'm0' in sal[-1] else [])
                else: pre[g-1] += sal
                gaps[g].append(('VM', ins, tag))
            if ks < 31:
                h, q = divmod(g, 4)
                if g == 0: gaps[g].append(('VMW', ('h', ks+1)))
                x = va[h]
                lo, hi = [(0, 4), (4, 7), (7, 10), (10, 13)][q] if h == 0 else [(0, 5), (5, 9), (9, 13), (13, 13)][q]
                gaps[g] += x[lo:hi]
        if ks == 31:
            la = late + late2
            for i, x in enumerate(la): gaps[min(i // 5, 7)].append(x)
            for i, r in enumerate(kreads(0)): gaps[4 + i // 2].insert(0, r)
        out = []
        for g in range(8):
            o = list(pre[g])
            for x in gaps[g]:
                if isinstance(x, tuple) and x[0] == 'VM': o.append(x[1]); vm.append(x[2])
                elif isinstance(x, tuple): o += vmwait({x[1]})
                else: o.append(x)
            p = post[g]
            if p and p[0] == 'VMW': o += vmwait({p[1]}) + ['s_barrier']; p = p[2:]
            out.append(o + p)
        sc.run(mf, out)
    assert not vq
    sc.age = 8
    stamp(a, opt, 2)
    if fuse: gf.mark2(a, 14)
    def cvtq(qq):
        r = []; sw = []
        for t in range(4):
            for j in range(4):
                for h in range(2): r.append(f'v_cvt_pk_bf16_f32 {V(Q+16*(2*qq+(j&1))+4*t+2*(j>>1)+h)}, {V(QA(qq,t)+4*j+2*h)}, {V(QA(qq,t)+4*j+2*h+1)}')
            r += sw
            sw = [f'v_permlane16_swap_b32 {V(Q+32*qq+4*t+f)}, {V(Q+32*qq+16+4*t+f)}' for f in range(4)]
        return r + ['s_nop 0', 's_nop 0'] + sw
    a.e('s_nop 1', cvtq(0), 's_nop 1')
    S0 = S_[0]
    def maxchain(qbs):
        st = [[f'v_max3_f32 {V(8+qb)}, {V(S0+8*qb)}, {V(S0+8*qb+1)}, {V(S0+8*qb+2)}' for qb in qbs],
              [f'v_max3_f32 {V(12+qb)}, {V(S0+8*qb+3)}, {V(S0+8*qb+4)}, {V(S0+8*qb+5)}' for qb in qbs],
              [f'v_max3_f32 {V(8+qb)}, {V(8+qb)}, {V(S0+8*qb+6)}, {V(S0+8*qb+7)}' for qb in qbs],
              [f'v_max_f32 {V(8+qb)}, {V(8+qb)}, {V(12+qb)}' for qb in qbs]]
        for perm in ('32', '16'):
            st += [[f'v_mov_b32 {V(12+qb)}, {V(8+qb)}' for qb in qbs], ['s_nop 0'], [f'v_permlane{perm}_swap_b32 {V(8+qb)}, {V(12+qb)}' for qb in qbs],
                   [f'v_max_f32 {V(8+qb)}, {V(8+qb)}, {V(12+qb)}' for qb in qbs]]
        return st
    mf = qk_mfmas(S_[0], czero=True, order='qkt')
    gaps = [[] for _ in mf]; pre = [[] for _ in mf]
    cv = cvtq(1)
    for i, x in enumerate(cv): gaps[min(i*15//len(cv), 14)].append(x)
    gaps[15].append('s_nop 0')
    ini = [f'v_mov_b32 {V(ONES+i)}, 0x3f803f80' for i in range(4)] + [f'v_mov_b32 {V(LV+i)}, 0' for i in range(8) if (i >> 1) not in XQ]
    for i, x in enumerate(ini): gaps[16 + i//2].append(x)
    for i, x in enumerate(maxchain([0, 1])): gaps[20 + i] += x
    b_ = Asm()
    b_.e('s_lshl_b32 s46, s45, 19', 's_lshl_b32 s47, s44, 14', 's_add_u32 s46, s46, s47', f's_add_u32 s46, s46, {WS_O}')
    b_.e('s_lshr_b32 s53, s2, 3', 's_lshl_b32 s53, s53, 2', 's_add_u32 s53, s53, s28', 's_bfe_u32 s56, s2, 0x20001', 's_lshl_b32 s54, s53, 13', 's_lshl_b32 s55, s56, 20', 's_add_u32 s84, s54, s55',
         's_mul_i32 s54, s53, 14336', 's_mul_i32 s55, s56, 896', 's_add_u32 s85, s54, s55', 's_and_b32 s55, s2, 1', 's_lshl_b32 s55, s55, 9', 's_add_u32 s86, s54, s55')
    for i, x in enumerate(b_.o): pre[i].append(x)
    pre[20] += ['s_add_u32 s24, s42, s46', 's_addc_u32 s25, s43, 0']; pre[21].append('s_mov_b32 s26, 16384'); pre[22].append('s_mov_b32 s27, 0x20000')
    sc.run(mf, [pre[g] + gaps[g] for g in range(32)])
    for r in kreads(8192): sc.emit_filler(r)
    for qb in range(2): a.e(f'v_sub_f32 {V(CI+4*qb)}, {f32hex(-opt.get("delta", DELTA))}, {V(8+qb)}')
    for st_ in maxchain([2, 3]): a.e(st_ if st_ != ['s_nop 0'] else 's_nop 1')
    for qb in range(2, 4): a.e(f'v_sub_f32 {V(CI+4*qb)}, {f32hex(-opt.get("delta", DELTA))}, {V(8+qb)}')
    for qb in range(4):
        for i in range(1, 4): a.e(f'v_mov_b32 {V(CI+4*qb+i)}, {V(CI+4*qb)}')
    for e in range(0, 32, 2): a.e(f'v_pk_add_f32 {V(S0+e,2)}, {V(S0+e,2)}, {V(CI+4*(e>>3),2)}')
    lateA = [f'v_subrev_u32 {V(VT+db)}, 0x10000, {V(VA+db)}' for db in range(8)] + ['v_lshlrev_b32 v5, 7, v2', f'v_add_u32 {V(PF)}, s84, v5']
    lateB = ['v_and_b32 v5, 31, v2', 'v_min_u32 v5, 27, v5', 'v_mul_u32_u24 v6, 37, v5', 'v_lshrrev_b32 v6, 8, v6', 'v_mul_u32_u24 v7, 7, v6', 'v_sub_u32 v5, v5, v7',
             'v_mul_u32_u24 v6, 3584, v6', 'v_lshl_add_u32 v6, v5, 7, v6', 'v_lshrrev_b32 v5, 5, v2', 'v_lshl_add_u32 v6, v5, 6, v6', f'v_add_u32 {V(PF+1)}, s85, v6']
    if single:
        lateA += ['v_lshlrev_b32 v140, 6, v2', 'v_add_u32 v140, 4096, v140']
        srd(a, 20, 42, 43, 16384, add=WS_FLAG + 4*16384)
    lateC = ['v_min_u32 v5, 55, v2', 'v_lshrrev_b32 v6, 2, v5', 'v_and_b32 v5, 3, v5', 'v_lshlrev_b32 v6, 10, v6', 'v_lshl_add_u32 v6, v5, 7, v6', f'v_add_u32 {V(PF+2)}, s86, v6']
    if fuse:
        if opt.get('sync', 'sflag') == 'flag': a.e(gf.flag_setup())
        gf.unpark(a)
    if opt.get('tlb', 0):
        G = opt.get('tlbshift', 21)
        srd(a, 20, 42, 43, 40 << 20); a.e(f'v_lshlrev_b32 {V(PF+4)}, {G}, v2', 's_mov_b32 s86, 2097152', 's_mov_b32 s87, 0x20000', 's_mov_b32 s84, s82', 's_mov_b32 s85, s83')
    if opt.get('touch', 0):
        srd(a, 20, 42, 43, 24 << 20, add=WS_O)
        a.e('s_lshl_b32 s29, s2, 2', 's_add_u32 s29, s29, s28', 's_lshl_b32 s29, s29, 12', f'v_lshlrev_b32 {V(PF+4)}, 6, v2', f'v_add_u32 {V(PF+4)}, s29, {V(PF+4)}')
    a.e('s_waitcnt vmcnt(0) lgkmcnt(0)', 's_barrier'); sc.pend = []
    stamp(a, opt, 3)
    def adv():
        return ['s_add_u32 s34, s34, 32768', 's_add_u32 s35, s35, 32768', 's_add_u32 s36, s36, 32768', 's_add_u32 s37, s37, 32768']
    def epoch(E, kind):
        d = epoch_dmas(E, opt)
        if kind == 'e14':
            d = d[8:]
        if kind == 'e15': d = []
        ov, os_ = gf.o_setup() if fuse else ([], [])
        oad = [[x[0], x[1]] for st in range(4) for x in gf.o_dma_a(st)] if fuse else []
        npf = 0
        if kind == 'e14' and single:
            d.insert(0, [[], 'buffer_load_dword v140, v140, s[20:23], 0 offen sc1'])
        if kind == 'e14' and opt.get('pf', 1):
            for srd_, vo, off in ((64, PF, 0), (64, PF, 64), (68, PF+1, 0), (72, PF+1, 0), (76, PF+2, 0), (76, PF+2, 64)):
                if off and not opt.get('pf64', 1): continue
                d.append([[], f'buffer_load_dword {V(PF+3)}, {V(vo)}, s[{srd_}:{srd_+3}], 0 offen offset:{off}'])
                npf += 1
        split = list(opt['dsplit'])
        tch = []
        if kind == 'e14' and opt.get('tlb', 0):
            d.append([[], f'buffer_load_dword {V(PF+3)}, {V(PF+4)}, s[20:23], 0 offen']); d.append([[], f'buffer_load_dword {V(PF+3)}, {V(PF+4)}, s[84:87], 0 offen']); npf += 2
        if opt.get('touch', 0) and E == 2:
            d.append([[], f'buffer_load_dword {V(PF+3)}, {V(PF+4)}, s[20:23], 0 offen']); split[2] += 1; npf = 1
            tch = [f'v_add_u32 {V(PF+4)}, 0x400000, {V(PF+4)}']
        for sl in range(4):
            s = 4*E + sl
            n = split[sl]
            dm = d[:n]; d = d[n:]
            if kind == 'e14' and sl == 0:
                a.e('s_cmp_eq_u32 s28, 3', f's_cbranch_scc1 {L}_e14d', 's_cmp_eq_u32 s28, 2', f's_cbranch_scc1 {L}_e14v')
                for sal, ins in epoch_dmas(E, opt)[:8]: a.e(sal, 's_nop 0' if sal else [], ins)
                a.e(f's_branch {L}_e14d', f'{L}_e14v:', f's_mov_b32 s54, {63*8192}', f's_mov_b32 s55, {63*8192+4096}', 's_mov_b32 s56, 0')
                for grp in range(2):
                    st, ins = dma_group(1, grp, 's56', f's{54+grp}'); a.e(st, 's_nop 0', ins)
                a.e(f'{L}_e14d:')
            if s == 0:
                exps, items = sm_items(S_[0], P_[0], XQ)
                mf = qk_mfmas(S_[1])
                kr = kreads(2*8192)
                ds_at = [(17+2*i, kr[i]) for i in range(4)]
                extra = []
                for n_, (sal, ins) in enumerate(dm):
                    extra += [(2+2*n_, x) for x in sal] + [(3+2*n_, ins)]
                packed(sc, mf, ds_at, exps, items, extra)
                for r in kr[4:]: sc.emit_filler(r)
            elif s in (3, 7):
                normal_slot(sc, opt, s, dm, salu=adv(), extra_v=(lateA + lateC[:2] if s == 3 else lateC[2:] + lateB[:0]) if False else (lateA if s == 3 else lateB))
            elif s == 2:
                normal_slot(sc, opt, s, dm, extra_v=lateC)
            elif s == 59:
                normal_slot(sc, opt, s, dm, salu=adv(), extra_v=ov[:12])
            elif s == 60:
                a.e(os_)
                normal_slot(sc, opt, s, dm, extra_v=ov[12:])
            elif s == 61:
                normal_slot(sc, opt, s, oad[:6])
            elif s == 62:
                normal_slot(sc, opt, s, oad[6:10], kread=False, late_v=vreads(VA, (62 % 8)*8192))
            elif s == 63:
                exps, items = sm_items(S_[1], P_[1], XQ)
                mf = pv_mfmas(P_[0], XQ)
                vr = vreads(VT, 0)
                ds_at = [(min(4*(i >> 1) + 4 + (i & 1), len(mf)-1), vr[i]) for i in range(16)]
                extra = []
                for n_, (sal, ins) in enumerate(oad[10:]):
                    extra += [(2+5*n_, x) for x in sal] + [(3+5*n_, ins)]
                packed(sc, mf, ds_at, exps, items, extra)
            else:
                normal_slot(sc, opt, s, dm, first_pv=(s == 1), salu=(adv() + (['s_add_u32 s38, s38, 1', 's_cmp_lt_u32 s38, 6'] if E == 3 else []) if sl == 3 else ()))
        assert not d
        a.e(tch)
        if kind != 'e15':
            if not opt.get('nobar'): a.e(f's_waitcnt vmcnt({npf}) lgkmcnt(0)', 's_barrier')
            else: a.e('s_waitcnt lgkmcnt(0)')
            sc.pend = []
    epoch(0, 'n'); epoch(1, 'n')
    a.e('s_mov_b32 s38, 0', '.p2align 6', f'{L}_loop:')
    epoch(2, 'n'); epoch(3, 'n')
    a.e(f's_cbranch_scc1 {L}_loop')
    epoch(14, 'e14'); epoch(15, 'e15')
    W = CI
    T = 16
    def unit(j, qb, n, pkmul):
        b = T + 8*(n % 8); pk = 80 + 4*(n % 4)
        r = [f'v_accvgpr_read_b32 {V(b+4*u+i)}, {A(AO+16*(2*j+u)+4*qb+i)}' for u in range(2) for i in range(4)]
        r += [f'v_maximum3_f32 {V(W+4*qb+i)}, abs({V(b+i)}), abs({V(b+4+i)}), {"0" if j == 0 else V(W+4*qb+i)}' for i in range(4)]
        if pkmul: r += [f'v_pk_mul_f32 {V(b+4*u+i,2)}, {V(b+4*u+i,2)}, {V(LM+4*qb+i,2)}' for u in range(2) for i in (0, 2)]
        else: r += [f'v_mul_f32 {V(b+4*u+i)}, {V(b+4*u+i)}, {V(LM+4*qb+i)}' for u in range(2) for i in range(4)]
        r += [f'v_cvt_pk_bf16_f32 {V(pk+h)}, {V(b+2*h)}, {V(b+2*h+1)}' for h in range(4)]
        off = (j*4+qb)*1024
        r += [f's_mov_b32 s54, {off & ~4095}', f'buffer_store_dwordx4 {V(pk,4)}, v9, s[24:27], s54 offen offset:{off & 4095}{opt.get("wt_a", " sc1")}']
        return r
    a.e('s_nop 1')
    VQ = [qb for qb in range(4) if qb not in XQ]
    assert len(VQ) == 2
    allm = pv_mfmas(P_[1], XQ)
    qord = list(XQ) + VQ
    mf = allm[32:] + [allm[4*db+qb] for qb in qord for db in range(8)]
    gaps = [[] for _ in mf]
    gaps[0].append('v_lshlrev_b32 v5, 4, v4')
    for n_, qb in enumerate(VQ):
        l = V(LV + 2*qb); t = V(6 + n_)
        ch = [(1, f'v_add_f32 {l}, {l}, {V(LV+2*qb+1)}'), (2, f'v_mov_b32 {t}, {l}'), (4, f'v_permlane32_swap_b32 {l}, {t}'), (5, f'v_add_f32 {l}, {l}, {t}'),
              (6, f'v_mov_b32 {t}, {l}'), (8, f'v_permlane16_swap_b32 {l}, {t}'), (9, f'v_add_f32 {l}, {l}, {t}')]
        for g, x in ch: gaps[g].append(x)
        for i in range(4): gaps[11 + n_].insert(0, f'ds_bpermute_b32 {V(LM+4*qb+i)}, v5, {l} offset:{4*i}')
    gaps[3] += ['v_lshlrev_b32 v9, 2, v4', 'v_xor_b32 v9, v9, v2']; gaps[7] += ['v_lshlrev_b32 v9, 4, v9', 'v_mov_b32 v8, 0']
    def lwork(qb): return [x for i in range(4) for x in (f'v_add_f32 v8, v8, {V(LM+4*qb+i)}', f'v_rcp_f32 {V(LM+4*qb+i)}, {V(LM+4*qb+i)}')]
    gaps[10] += lwork(qord[0])
    stream = []; n = 0
    NI = opt.get('t_units', 4)
    for j in range(NI): stream += unit(j, qord[0], n, False); n += 1
    stream += lwork(qord[1]) + [f'WAITDS {V(LM+4*VQ[0],4)}, {V(LM+4*VQ[1],4)}'] + lwork(qord[2]) + lwork(qord[3])
    g0 = 14
    per = -(-len(stream) // (len(mf) - g0))
    for i, x in enumerate(stream): gaps[g0 + i // per].append(x)
    sc.run(mf, gaps)
    stamp(a, opt, 4)
    if fuse: gf.mark(a, 15)
    for qb in qord:
        for j in range(NI if qb == qord[0] else 0, 4): a.e(unit(j, qb, n, True)); n += 1
    a.e(f'{L}_chk:')
    a.e(f'v_minimum3_f32 v11, {V(W)}, {V(W+1)}, {V(W+15)}', f'v_maximum3_f32 v10, {V(W)}, {V(W+1)}, {V(W+15)}')
    for i in range(2, 15, 2): a.e(f'v_minimum3_f32 v11, v11, {V(W+i)}, {V(W+i+1)}', f'v_maximum3_f32 v10, v10, {V(W+i)}, {V(W+i+1)}')
    a.e(f's_mov_b32 s54, {f32hex(2.0**100)}', f's_mov_b32 s55, {f32hex(2.0**-120)}', f's_mov_b32 s60, 0x7f000000')
    a.e('v_cmp_nle_f32 s[56:57], v8, s54', 'v_cmp_nge_f32 s[58:59], v11, s55', 'v_cmp_nle_f32 s[62:63], v10, s60', 's_nop 1',
        's_or_b64 s[56:57], s[56:57], s[58:59]', 's_or_b64 s[56:57], s[56:57], s[62:63]', 's_cmp_eq_u64 s[56:57], 0')
    if opt.get('force_fb'): a.e('s_cmp_eq_u32 s2, 1000')
    a.e(f's_cbranch_scc1 {L}_fin')
    a.e('s_mov_b32 s39, 1', 's_mov_b32 s48, 40960', 's_cmp_eq_u32 s28, 1', 's_cselect_b32 s48, 65536, s48', 's_cmp_eq_u32 s28, 2', 's_cselect_b32 s48, 139264, s48',
        's_cmp_eq_u32 s28, 3', 's_cselect_b32 s48, 147456, s48', 's_waitcnt vmcnt(0)')
    MR = CI; LR = CI + 4; AL = CI + 8; AR_ = 96
    for i in range(128): a.e(f'v_accvgpr_write_b32 {A(i)}, 0')
    for qb in range(4): a.e(f'v_mov_b32 {V(MR+qb)}, 0xff7fffff', f'v_mov_b32 {V(LR+qb)}, 0')
    for db in range(8): a.e(f'v_add_u32 {V(VT+db)}, s48, {V(VT+db)}')
    a.e('v_lshlrev_b32 v7, 8, v3', 'v_lshl_add_u32 v7, v4, 4, v7')
    a.e('s_mov_b32 s54, 0', f'{L}_fb:', 's_add_u32 s55, s54, 4096')
    for f in range(8): a.e(f'buffer_load_dwordx4 {A(AK+4*f,4)}, v7, s[8:11], s{54+(f>>2)} offen offset:{64*(f&3)}')
    for grp in range(2):
        st, ins = dma_group(1, grp, 's48', f's{54+grp}'); a.e(st, 's_nop 0', ins)
    a.e('s_waitcnt vmcnt(0)')
    a.e(vreads(VT, 0))
    a.e(qk_mfmas(S0, czero=True), 's_nop 7', 's_nop 3')
    for qb in range(4):
        b = S0 + 8*qb; m = V(MR+qb); al = V(AL+qb)
        a.e(f'v_max3_f32 v8, {V(b)}, {V(b+1)}, {V(b+2)}', f'v_max3_f32 v8, v8, {V(b+3)}, {V(b+4)}', f'v_max3_f32 v8, v8, {V(b+5)}, {V(b+6)}', f'v_max3_f32 v8, v8, {V(b+7)}, {m}')
        for perm in ('32', '16'):
            a.e('v_mov_b32 v9, v8', 's_nop 1', f'v_permlane{perm}_swap_b32 v8, v9', 's_nop 1', 'v_max_f32 v8, v8, v9')
        a.e(f'v_sub_f32 {al}, {m}, v8', f'v_exp_f32 {al}, {al}', f'v_mov_b32 {m}, v8')
        for e in range(8): a.e(f'v_sub_f32 {V(b+e)}, {V(b+e)}, v8')
        for e in range(8): a.e(f'v_exp_f32 {V(b+e)}, {V(b+e)}')
        a.e(f'v_mul_f32 {V(LR+qb)}, {V(LR+qb)}, {al}')
        for e in range(8): a.e(f'v_add_f32 {V(LR+qb)}, {V(LR+qb)}, {V(b+e)}')
        for h in range(4): a.e(f'v_cvt_pk_bf16_f32 {V(P_[0]+4*qb+h)}, {V(b+2*h)}, {V(b+2*h+1)}')
        for i in range(4): a.e(f'ds_bpermute_b32 {V(AR_+4*qb+i)}, v5, {al} offset:{4*i}')
    a.e('s_waitcnt lgkmcnt(0)')
    for db in range(8):
        for qb in range(4):
            for i in range(4):
                o = AO + 16*db + 4*qb + i
                a.e(f'v_accvgpr_read_b32 v8, {A(o)}', f'v_mul_f32 v8, v8, {V(AR_+4*qb+i)}', f'v_accvgpr_write_b32 {A(o)}, v8')
    a.e('s_nop 1')
    a.e(pv_mfmas(P_[0], []), 's_nop 7', 's_nop 3')
    a.e('s_add_u32 s54, s54, 8192', 's_cmp_lt_u32 s54, 524288', f's_cbranch_scc1 {L}_fb')
    for qb in range(4):
        xlane_sum(a, V(LR+qb), 'v6')
        for i in range(4): a.e(f'ds_bpermute_b32 {V(LM+4*qb+i)}, v5, {V(LR+qb)} offset:{4*i}')
    a.e('s_waitcnt lgkmcnt(0)')
    for i in range(16): a.e(f'v_rcp_f32 {V(LM+i)}, {V(LM+i)}')
    a.e('v_lshlrev_b32 v9, 2, v4', 'v_xor_b32 v9, v9, v2', 'v_lshlrev_b32 v9, 4, v9')
    for qb in range(4):
        for j in range(4): a.e(unit(j, qb, 4*qb+j, True))
    a.e(f'{L}_fin:')
    if fuse: gf.fused_post(a, L, opt, Sched)
    if opt.get('stamps'):
        a.e('s_waitcnt vmcnt(0)')
        stamp(a, opt, 5); a.e('s_memrealtime s[98:99]', 's_waitcnt lgkmcnt(0)')
        srd(a, 20, 42, 43, 1 << 20, add=(58 << 20))
        a.e('s_lshl_b32 s54, s2, 2', 's_add_u32 s54, s54, s28', 's_lshl_b32 s54, s54, 5', 'v_mov_b32 v7, s54')
        for i in range(1, 6): a.e(f's_sub_u32 s55, s{80+2*i}, s80', f'v_mov_b32 v{8+i}, s55')
        a.e('v_mov_b32 v8, s92', 's_sub_u32 s55, s98, s92', 'v_mov_b32 v14, s55', 'v_mov_b32 v15, s39')
        a.e('v_cmp_eq_u32 vcc, 0, v2', 's_and_saveexec_b64 s[56:57], vcc')
        a.e('buffer_store_dwordx4 v[8:11], v7, s[20:23], 0 offen', 'buffer_store_dwordx4 v[12:15], v7, s[20:23], 0 offen offset:16')
    tl_end(a); a.e(f'{L}_end:', 's_endpgm')
    return dict(label=L, grid=256, block=256, lds=163840, vgpr=512, accum=256)
```

```python
from asmlib import *
from gen_pre import *
MF = 'v_mfma_f32_16x16x32_bf16'
FLA = 141; FLB = 142; DIAG = 143
SC = ' sc1'

class VM:
    def __init__(self): self.q = []; self.seen = set()
    def add(self, tag): self.q.append(tag); self.seen.add(tag)
    def wait(self, tags, extra=''):
        last = max([i for i, t in enumerate(self.q) if t in tags], default=-1)
        if last < 0: return [f's_waitcnt{extra}'] if extra else []
        n = len(self.q) - 1 - last
        del self.q[:last+1]
        assert n < 64
        return [f's_waitcnt vmcnt({n}){extra}']
    def clear(self): self.q = []

def mark(a, i):
    if TL['on'] or TL.get('dm'): a.e('s_memrealtime s[98:99]', 's_waitcnt lgkmcnt(0)', f'v_writelane_b32 {V(DIAG)}, s98, {i}')

def mark2(a, i):
    park = {13: 88, 14: 90, 16: 92, 17: 84, 18: 86, 19: 100}
    if TL['on'] or (TL.get('dm') and i < 16): a.e(f's_memrealtime s[{park[i]}:{park[i]+1}]')
def unpark0(a):
    if TL['on']: a.e('s_waitcnt lgkmcnt(0)', 's_mov_b32 s93, s84', 's_mov_b32 s101, s86')
def unpark(a):
    if TL['on']: a.e('s_waitcnt lgkmcnt(0)', f'v_writelane_b32 {V(DIAG)}, s92, 16', f'v_writelane_b32 {V(DIAG)}, s93, 17', f'v_writelane_b32 {V(DIAG)}, s101, 18', f'v_writelane_b32 {V(DIAG)}, s100, 19')
    if TL['on'] or TL.get('dm'): a.e('s_waitcnt lgkmcnt(0)', f'v_writelane_b32 {V(DIAG)}, s94, 0', f'v_writelane_b32 {V(DIAG)}, s88, 13', f'v_writelane_b32 {V(DIAG)}, s90, 14')

def flag_setup():
    r = ['s_and_b32 s53, s2, 0xc7', 'v_and_b32 v5, 7, v2', 'v_lshlrev_b32 v5, 3, v5', 'v_add_u32 v5, s53, v5', f'v_lshlrev_b32 {V(FLA)}, 6, v5',
         's_and_b32 s53, s2, 0xe1', 'v_and_b32 v5, 3, v2', 'v_lshlrev_b32 v5, 3, v5', 'v_bfe_u32 v6, v2, 2, 2', 'v_lshl_add_u32 v5, v6, 1, v5', 'v_add_u32 v5, s53, v5', f'v_lshlrev_b32 {V(FLB)}, 6, v5']
    return r

SYNC = {'mode': 'cnt'}
def signal(a, L, k, waitlist):
    a.e(waitlist, 's_barrier')
    if SYNC['mode'] in ('flag', 'sflag'):
        a.e(f's_and_b32 s3, s2, {0xc7 if k == 0 else 0xe1}', 's_lshl_b32 s3, s3, 6', f's_add_u32 s3, s3, {WS_FLAG + k*16384}')
        srd(a, 60, 42, 43, 16384, add=WS_FLAG + k*16384)
        a.e('s_cmp_lg_u32 s28, 0', f's_cbranch_scc1 {L}_sg{k}', 's_lshl_b32 s53, s2, 6', 's_mov_b64 exec, 1', 'v_mov_b32 v5, s53', f'v_mov_b32 v{9 if k == 4 else 6}, s39',
            f'buffer_store_dword v{9 if k == 4 else 6}, v5, s[60:63], 0 offen{SC}', 's_mov_b64 exec, -1', f'{L}_sg{k}:')
    else:
        a.e(f's_and_b32 s3, s2, {0xc7 if k == 0 else 0xe1}', 's_lshl_b32 s3, s3, 6', f's_add_u32 s3, s3, {WS_FLAG + k*16384}')
        a.e('s_cmp_lg_u32 s28, 0', f's_cbranch_scc1 {L}_sg{k}')
        srd(a, 60, 42, 43, 4, add='s3')
        a.e('s_mov_b64 exec, 1', 'v_mov_b32 v5, 0', 'v_mov_b32 v6, 1', f'buffer_atomic_add v6, v5, s[60:63], 0 offen{SC}', 's_mov_b64 exec, -1', f'{L}_sg{k}:')

def poll(a, L, k, grp, vm=None):
    if SYNC['mode'] == 'flag':
        if SYNC.get('one') and k < 4: a.e('s_cmp_lg_u32 s28, 3', f's_cbranch_scc1 {L}_pd{k}')
        a.e('s_mov_b32 s53, 0', f'{L}_pl{k}:', f'buffer_load_dword v5, {V(grp)}, s[60:63], 0 offen{SC}', 's_add_u32 s53, s53, 1', 's_waitcnt vmcnt(0)',
            'v_cmp_eq_u32 vcc, s39, v5', 's_cmp_gt_u32 s53, 200000', f's_cbranch_scc1 {L}_pd{k}', 's_cmp_eq_u64 vcc, -1', f's_cbranch_scc0 {L}_pl{k}', f'{L}_pd{k}:')
        if SYNC.get('one') and k < 4: a.e('s_barrier')
        elif vm: vm.clear()
    elif SYNC['mode'] == 'sflag':
        regs = [60, 61, 62, 63, 84, 85, 86, 87, 88, 89, 90, 91, 92, 93, 100, 101]
        offs = [8*i*64 for i in range(8)] if k == 0 else [(2*x + 8*y)*64 for x in range(4) for y in range(4)]
        if SYNC.get('one'): a.e('s_cmp_lg_u32 s28, 3', f's_cbranch_scc1 {L}_pd{k}')
        a.e('s_mov_b32 s53, 0', f'{L}_pl{k}:')
        for r, o in zip(regs, offs): a.e(f's_load_dword s{r}, s[42:43], s3 offset:{o} glc')
        a.e('s_add_u32 s53, s53, 1', 's_cmp_gt_u32 s53, 200000', f's_cbranch_scc1 {L}_pd{k}', 's_waitcnt lgkmcnt(0)')
        for r in regs[:len(offs)]: a.e(f's_cmp_eq_u32 s{r}, s39', f's_cbranch_scc0 {L}_pl{k}')
        a.e(f'{L}_pd{k}:')
        if SYNC.get('one'): a.e('s_barrier')
    else:
        if SYNC.get('one'): a.e('s_cmp_lg_u32 s28, 3', f's_cbranch_scc1 {L}_pd{k}')
        a.e('s_mov_b32 s53, 0', f'{L}_pl{k}:', 's_load_dword s60, s[42:43], s3 glc', 's_add_u32 s53, s53, 1', 's_cmp_gt_u32 s53, 200000', f's_cbranch_scc1 {L}_pd{k}',
            's_waitcnt lgkmcnt(0)', f's_cmp_ge_u32 s60, {8 if k == 0 else 16}', f's_cbranch_scc0 {L}_pl{k}', f'{L}_pd{k}:')
        if SYNC.get('one'): a.e('s_barrier')

OA = [8192, 24576, 73728, 122880]; OB = [40960, 57344, 90112, 106496]
ODA = 156
def o_setup():
    r = []
    for i in range(4):
        r += [f'v_add_u32 v5, {4*(i&1)}, v4', 'v_lshlrev_b32 v5, 1, v5', 'v_xor_b32 v5, v5, v3', 'v_lshlrev_b32 v5, 4, v5', 'v_lshl_add_u32 v5, v4, 10, v5',
              f'v_add_u32 {V(ODA+i)}, {(16*(i&1) + 8*(i>>1) - i)*1024}, v5']
    s = ['s_lshr_b32 s47, s28, 1', 's_and_b32 s49, s28, 1', 's_lshl_b32 s50, s47, 15', 's_lshl_b32 s51, s49, 12', 's_add_u32 s50, s50, s51',
         's_bfe_u32 s51, s2, 0x20001', 's_lshl_b32 s51, s51, 20', 's_add_u32 s50, s50, s51', 's_bfe_u32 s51, s2, 0x20003', 's_lshl_b32 s51, s51, 8', 's_add_u32 s50, s50, s51',
         's_add_u32 s16, s64, s50', 's_addc_u32 s17, s65, 0', 's_sub_u32 s18, 4194304, s50', 's_mov_b32 s19, 0x20000', 's_lshl_b32 s30, s28, 12']
    return r, s
def o_dma_a(st):
    return [[[f's_add_u32 m0, s30, {OA[st % 4]}', f's_mov_b32 s34, {st*65536}'] if i == 0 else [], f'buffer_load_dwordx4 {V(ODA+i)}, s[16:19], s34 offen offset:{1024*i} lds', ('oa', st)] for i in range(4)]

def phase_o(a, L, opt, Sched):
    ACC = 64; FA = [0, 32]; FB = [64, 96]; DB = 12; RA = 16; RB = 24
    vm = VM()
    a.e('s_lshr_b32 s47, s28, 1', 's_and_b32 s48, s28, 1', 's_bfe_u32 s44, s2, 0x20001', 's_and_b32 s45, s2, 1', 's_lshl_b32 s45, s45, 3', 's_lshr_b32 s46, s2, 5', 's_add_u32 s45, s45, s46', 's_bfe_u32 s46, s2, 0x20003')
    a.e(f'v_lshlrev_b32 {V(DB)}, 4, v2')
    a.e('v_lshrrev_b32 v5, 2, v2', 'v_and_b32 v6, 3, v2', 'v_lshlrev_b32 v7, 8, v5', 'v_lshl_add_u32 v7, v6, 3, v7', 'v_and_b32 v5, 7, v5', 's_lshl_b32 s49, s48, 2')
    for nb in range(4): a.e(f's_add_u32 s50, s49, {nb}', 'v_xor_b32 v8, s50, v5', f'v_lshl_add_u32 {V(RA+nb)}, v8, 5, v7', f'v_add_u32 {V(RA+4+nb)}, {OA[2]}, {V(RA+nb)}')
    a.e('v_bfe_u32 v5, v2, 2, 2', 'v_lshrrev_b32 v7, 5, v2', 'v_lshl_add_u32 v5, v7, 3, v5', 'v_lshlrev_b32 v7, 2, v6', 'v_xor_b32 v5, v5, v7', 'v_lshl_add_u32 v5, v6, 4, v5')
    a.e('v_and_b32 v7, 1, v4', 'v_lshlrev_b32 v7, 3, v7', 'v_lshl_add_u32 v5, v5, 4, v7', 's_lshl_b32 s49, s47, 13', f's_add_u32 s49, s49, {OB[0]}')
    a.e(f'v_add_u32 {V(RB)}, s49, v5', 'v_xor_b32 v5, 64, v5', f'v_add_u32 {V(RB+1)}, s49, v5', f'v_add_u32 {V(RB+2)}, {OB[2]-OB[0]}, {V(RB)}', f'v_add_u32 {V(RB+3)}, {OB[2]-OB[0]}, {V(RB+1)}')
    a.e('s_lshl_b32 s49, s45, 1', 's_add_u32 s49, s49, s47', 's_lshl_b32 s50, s49, 19', 's_lshl_b32 s51, s44, 17', 's_add_u32 s50, s50, s51',
        's_lshl_b32 s51, s48, 12', 's_add_u32 s50, s50, s51', f's_add_u32 s50, s50, {WS_O}'); srd(a, 12, 42, 43, 131072, add='s50')
    a.e('s_lshl_b32 s49, s49, 16', 's_lshl_b32 s50, s44, 21', 's_add_u32 s49, s49, s50', 's_lshl_b32 s50, s46, 12', 's_add_u32 s49, s49, s50',
        's_lshl_b32 s50, s48, 11', 's_add_u32 s49, s49, s50', f's_add_u32 s49, s49, {WS_PART}'); srd(a, 8, 42, 43, 65536, add='s49')
    a.e('s_lshl_b32 s49, s45, 1', 's_lshr_b32 s50, s46, 1', 's_add_u32 s49, s49, s50', 's_lshl_b32 s49, s49, 19', 's_lshl_b32 s50, s44, 17', 's_add_u32 s49, s49, s50',
        's_and_b32 s50, s46, 1', 's_lshl_b32 s50, s50, 12', 's_add_u32 s49, s49, s50', f's_add_u32 s49, s49, {WS_O}'); srd(a, 4, 42, 43, 131072 - 4096, add='s49')
    a.e('s_lshl_b32 s50, s28, 13', 'v_lshlrev_b32 v13, 6, v2', 'v_add_u32 v13, s50, v13')
    r_setup(a)
    if opt.get('single', 1):
        a.e('v_cmp_eq_u32 vcc, s39, v140', 's_mov_b32 s53, 0', 's_nop 0', 's_cmp_eq_u64 vcc, -1', f's_cbranch_scc1 {L}_pmd')
        srd(a, 60, 42, 43, 16384, add=WS_FLAG + 4*16384)
        a.e('v_lshlrev_b32 v6, 6, v2', 'v_add_u32 v6, 4096, v6', f'{L}_pm:', f'buffer_load_dword v5, v6, s[60:63], 0 offen{SC}', 's_add_u32 s53, s53, 1', 's_waitcnt vmcnt(0)',
            'v_cmp_eq_u32 vcc, s39, v5', 's_cmp_gt_u32 s53, 200000', f's_cbranch_scc1 {L}_pmd', 's_cmp_eq_u64 vcc, -1', f's_cbranch_scc0 {L}_pm', f'{L}_pmd:')
    signal(a, L, 0, ['s_waitcnt vmcnt(0)']); mark(a, 1)
    poll(a, L, 0, FLA); mark(a, 2)
    def dma_b(st):
        return [[[f's_add_u32 m0, s30, {OB[st % 4]}', f's_mov_b32 s35, {st*8192}'] if i == 0 else [], f'buffer_load_dwordx4 {V(DB)}, s[12:15], s35 offen offset:{1024*i}{opt.get("o_ld", SC)} lds', ('ob', st)] for i in range(4)]
    for st in range(4):
        for sal, ins, tag in dma_b(st): a.e(sal, ins); vm.add(tag)
    def reads(st):
        p = st & 1; sl = st % 4
        ra = [f'ds_read_b64_tr_b16 {A(FA[p]+8*x+4*tt+2*v,2)}, {V(RA+(4 if sl >= 2 else 0)+x)} offset:{OA[sl] - (OA[2] if sl >= 2 else 0)+tt*8192+v*4096}' for x in range(4) for tt in range(2) for v in range(2)]
        rb = [f'ds_read_b64_tr_b16 {A(FB[p]+8*x+4*tt+2*u,2)}, {V(RB+2*(sl >> 1)+u)} offset:{(sl & 1)*16384+tt*4096+x*1024}' for x in range(4) for tt in range(2) for u in range(2)]
        return ra[:4] + rb + ra[4:]
    sc = Sched(a, age=6)
    a.e(vm.wait({('ob', 0)}), 's_barrier')
    for r in reads(0): sc.emit_filler(r)
    NV = opt.get('o_var', 1)
    import copy
    vm0 = copy.deepcopy(vm); pend0 = list(sc.pend)
    for var in range(NV):
        PH = 2 if NV == 1 else (var if NV == 4 else 1 + 2*var)
        if var < NV - 1: a.e(f's_cmp_ge_u32 s28, {(var+1)*4//NV}', f's_cbranch_scc1 {L}_ov{var+1}')
        vm = copy.deepcopy(vm0); sc.pend = list(pend0)
        rl = r_loads()
        gs0, gv, gs1 = g_setup()
        gq = [x for st_ in range(opt.get('g_pre0', 3)) for x in g_dma(st_)]
        for st in range(16):
            p = st & 1
            a.e(vm.wait({('oa', st+1), ('ob', st+1)}, ' lgkmcnt(0)'), 's_barrier'); sc.pend = []
            if st == 12: a.e(gs0)
            if st == 15: a.e(gs1)
            mf = [f'{MF} {V(ACC+16*nb+4*qb,4)}, {A(FA[p]+8*nb+4*tt,4)}, {A(FB[p]+8*qb+4*tt,4)}, {"0" if (st == 0 and tt == 0) else V(ACC+16*nb+4*qb,4)}' for nb in range(4) for qb in range(4) for tt in range(2)]
            gaps = [[] for _ in mf]; pre = [[] for _ in mf]
            rd = reads(st+1) if st < 15 else []
            d = (dma_b(st+4) + o_dma_a(st+4)) if st + 4 < 16 else rl[8*(st-12):8*(st-12)+8]
            ri = 0
            for g in range(32):
                if g % 4 == PH and d:
                    sal, ins, tag = d.pop(0)
                    if g: pre[g-1] += sal
                    else: pre[0] += sal
                    gaps[g].append(ins); vm.add(tag)
                else:
                    k = 2
                    while k and ri < len(rd):
                        gaps[g].append(rd[ri]); ri += 1; k -= 1
            assert not d
            T0 = opt.get('o_touch', 0)
            if T0 and st % 4 == 0 and st + T0 < 16:
                g = opt.get('o_tg', 28)
                pre[g-1].append(f's_mov_b32 s37, {(st+T0)*8192}'); gaps[g].append(f'buffer_load_dword v14, v13, s[4:7], s37 offen{SC}')
                allv = [x for gp in gaps[:g] for x in gp if x.startswith('buffer')]
                vm.q.insert(len(vm.q) - (8 - len(allv)), ('touch', st))
            if 12 <= st < 15:
                for i, x in enumerate(gv[19*(st-12):19*(st-11)]): gaps[22 + i//2].append(x)
            if st == 15:
                for g in range(2, 20, 4):
                    sal, ins, tag = gq.pop(0)
                    pre[g-1] += sal; gaps[g].append(ins); vm.add(tag)
                n = 0
                for qb in range(4):
                    t = 32 + 4*qb
                    ins = []
                    for u in range(2):
                        b = ACC + 16*u + 4*qb
                        ins += [f'v_cvt_pk_bf16_f32 {V(t+2*u)}, {V(b)}, {V(b+1)}', f'v_cvt_pk_bf16_f32 {V(t+2*u+1)}, {V(b+2)}, {V(b+3)}']
                    g = 20 + 3*qb
                    gaps[g] += ins[:2]; gaps[g+1] += ins[2:]; pre[g+1].append(f's_mov_b32 s50, {qb*16384}')
                    gaps[g+2].append(f'buffer_store_dwordx4 {V(t,4)}, {V(DB)}, s[8:11], s50 offen{SC}'); vm.add(('st', 0))
            sc.run(mf, [pre[g] + gaps[g] for g in range(32)])
        if var < NV - 1: a.e(f's_branch {L}_ovend', f'{L}_ov{var+1}:')
    a.e(f'{L}_ovend:')
    mark(a, 3)
    a.e('s_nop 1')
    for qb in range(4):
        t = 48 + 4*qb
        for u in range(2):
            b = ACC + 16*(2+u) + 4*qb
            a.e(f'v_cvt_pk_bf16_f32 {V(t+2*u)}, {V(b)}, {V(b+1)}', f'v_cvt_pk_bf16_f32 {V(t+2*u+1)}, {V(b+2)}, {V(b+3)}')
        a.e(f's_mov_b32 s50, {qb*16384}', f'buffer_store_dwordx4 {V(t,4)}, {V(DB)}, s[8:11], s50 offen offset:1024{SC}'); vm.add(('st', 0))
    for sal, ins, tag in gq: a.e(sal, ins); vm.add(tag)
    return vm

RX = 144; RGA = 160; RCB = 176; RSB = 192; RO = 152
RSTAT = 159744
def r_setup(a):
    a.e('s_lshl_b32 s29, s45, 4', 's_lshl_b32 s50, s44, 2', 's_add_u32 s29, s29, s50', 's_add_u32 s29, s29, s46')
    a.e('v_and_b32 v5, 7, v2', 'v_bfe_u32 v6, v2, 3, 2', 'v_lshrrev_b32 v7, 5, v2', 's_lshl_b32 s50, s28, 2', 'v_add_u32 v7, s50, v7')
    a.e(f'v_lshlrev_b32 {V(RO)}, 10, v7', f'v_lshl_add_u32 {V(RO)}, v5, 4, {V(RO)}', f'v_lshl_add_u32 {V(RO)}, v6, 8, {V(RO)}')
    a.e(f'v_lshlrev_b32 {V(RO+1)}, 10, v5', f'v_lshl_add_u32 {V(RO+1)}, v7, 6, {V(RO+1)}', f'v_lshl_add_u32 {V(RO+1)}, v6, 3, {V(RO+1)}')
    a.e(f'v_lshlrev_b32 {V(RO+2)}, 7, v7', f'v_lshl_add_u32 {V(RO+2)}, v6, 4, {V(RO+2)}')
    a.e(f'v_lshlrev_b32 {V(RO+3)}, 3, v5', f'v_add_u32 {V(RO+3)}, {RSTAT}, {V(RO+3)}')
    srd(a, 20, 80, 81, 2097152); srd(a, 24, 42, 43, 12288)
    a.e('s_lshl_b32 s31, s29, 13', 's_lshr_b32 s50, s29, 1', 's_lshl_b32 s50, s50, 14', 's_and_b32 s51, s29, 1', 's_lshl_b32 s51, s51, 7', 's_add_u32 s29, s50, s51')
def r_loads():
    r = [[[], f'buffer_load_dwordx2 {V(RX+4*i+2*v,2)}, {V(RO+1)}, s[20:23], s31 offen offset:{128*i+32*v}', ('r', 0)] for i in range(2) for v in range(2)]
    for part, reg in ((2, RGA), (4, RCB), (3, RSB)):
        for i in range(2):
            for v in range(2):
                r.append([[f's_mov_b32 s36, {part*2048}'] if (i == 0 and v == 0) else [], f'buffer_load_dwordx4 {V(reg+8*i+4*v,4)}, {V(RO+2)}, s[24:27], s36 offen offset:{256*i+64*v}{SC}', ('r', 0)])
    return r

def phase_r(a, L, opt, vm):
    PT = 16; F = 48
    n0 = opt.get('g_pre0', 3); n1 = opt.get('g_pre1', 4)
    srd(a, 12, 42, 43, 8388608, add=WS_PART); srd(a, 20, 42, 43, 4194304, add=WS_X1)
    signal(a, L, 1, vm.wait({('st', 0)})); mark(a, 4)
    for r in range(8): a.e(f'v_lshlrev_b32 {V(64+2*r)}, 16, {V(RX+r)}', f'v_and_b32 {V(65+2*r)}, 0xffff0000, {V(RX+r)}')
    poll(a, L, 1, FLB, vm); mark(a, 5)
    for ks in range(4):
        a.e(f's_add_u32 s50, s29, {ks << 21}')
        for i in range(2): a.e(f'buffer_load_dwordx4 {V(PT+8*ks+4*i,4)}, {V(RO)}, s[12:15], s50 offen offset:{2048*i}{SC}'); vm.add(('p', ks))
    for st in range(n0, n1):
        for sal, ins, tag in g_dma(st): a.e(sal, ins); vm.add(tag)
    for ks in range(4):
        a.e(vm.wait({('p', ks)}))
        for r in range(8):
            src = V(PT+8*ks+r)
            if ks == 0: a.e(f'v_lshlrev_b32 {V(F+2*r)}, 16, {src}', f'v_and_b32 {V(F+2*r+1)}, 0xffff0000, {src}')
            else: a.e(f'v_lshlrev_b32 v10, 16, {src}', f'v_and_b32 v11, 0xffff0000, {src}', f'v_add_f32 {V(F+2*r)}, {V(F+2*r)}, v10', f'v_add_f32 {V(F+2*r+1)}, {V(F+2*r+1)}, v11')
    for e in range(16): a.e(f'v_fmac_f32 {V(64+e)}, {V(F+e)}, {V(RGA+e)}')
    for r in range(8): a.e(f'v_cvt_pk_bf16_f32 {V(RX+r)}, {V(64+2*r)}, {V(65+2*r)}')
    for i in range(2): a.e(f'buffer_store_dwordx4 {V(RX+4*i,4)}, {V(RO)}, s[20:23], s29 offen offset:{2048*i}{SC}'); vm.add(('st', 1))
    F = 64
    a.e(f'v_add_f32 v10, {V(F)}, {V(F+1)}', f'v_mul_f32 v14, {V(F)}, {V(F)}', f'v_add_f32 v11, {V(F+2)}, {V(F+3)}', f'v_mul_f32 v15, {V(F+1)}, {V(F+1)}')
    for e in range(2, 16, 2):
        if e >= 4: a.e(f'v_add_f32 v10, v10, {V(F+e)}', f'v_add_f32 v11, v11, {V(F+e+1)}')
        a.e(f'v_fmac_f32 v14, {V(F+e)}, {V(F+e)}', f'v_fmac_f32 v15, {V(F+e+1)}, {V(F+e+1)}')
    a.e('v_add_f32 v10, v10, v11', 'v_add_f32 v11, v14, v15')
    for perm in ('32', '16'):
        a.e('v_mov_b32 v14, v10', 'v_mov_b32 v15, v11', 's_nop 0', f'v_permlane{perm}_swap_b32 v10, v14', f'v_permlane{perm}_swap_b32 v11, v15', 'v_add_f32 v10, v10, v14', 'v_add_f32 v11, v11, v15')
    a.e('s_lshl_b32 s50, s28, 6', f'v_add_u32 v13, s50, {V(RO+3)}')
    a.e('v_add_f32_dpp v10, v10, v10 row_ror:8 row_mask:0xf bank_mask:0xf', 's_nop 0', 'v_add_f32_dpp v11, v11, v11 row_ror:8 row_mask:0xf bank_mask:0xf')
    a.e('ds_write_b64 v13, v[10:11]', 's_waitcnt lgkmcnt(0)', 's_barrier')
    for i in range(4): a.e(f'ds_read_b64 v[{24+2*i}:{25+2*i}], {V(RO+3)} offset:{64*i}')
    a.e('s_waitcnt lgkmcnt(0)', 'v_pk_add_f32 v[24:25], v[24:25], v[26:27]', 'v_pk_add_f32 v[28:29], v[28:29], v[30:31]', 'v_pk_add_f32 v[24:25], v[24:25], v[28:29]')
    a.e(f'v_mul_f32 v24, {f32hex(1/512)}, v24', f'v_mov_b32 v26, {f32hex(1e-5)}', f'v_fmac_f32 v26, {f32hex(1/512)}, v25', 'v_fma_f32 v26, -v24, v24, v26',
        f'v_max_f32 v26, {f32hex(1e-5)}, v26', 'v_rsq_f32 v25, v26', f's_add_u32 s50, s29, {WS_H2 - WS_X1}')
    for e in range(16): a.e(f'v_sub_f32 {V(F+e)}, {V(F+e)}, v24')
    for e in range(16): a.e(f'v_mul_f32 {V(RCB+e)}, {V(RCB+e)}, v25')
    for e in range(16): a.e(f'v_fma_f32 {V(F+e)}, {V(F+e)}, {V(RCB+e)}, {V(RSB+e)}')
    for r in range(8): a.e(f'v_cvt_pk_bf16_f32 {V(PT+r)}, {V(F+2*r)}, {V(F+2*r+1)}')
    for i in range(2): a.e(f'buffer_store_dwordx4 {V(PT+4*i,4)}, {V(RO)}, s[20:23], s50 offen offset:{2048*i}{SC}'); vm.add(('st', 1))
    return vm

GR = 5; GSTG = 28672; GDA = 208
def g_setup():
    s0 = ['s_lshl_b32 s52, s44, 2', 's_add_u32 s52, s52, s46', 's_and_b32 s47, s28, 1', 's_mul_i32 s47, s47, 448', 's_mov_b32 s48, 4682', 's_mov_b32 s49, 3584']
    v = ['v_add_u32 v5, s47, v2']
    for i in range(7):
        v += [f'v_add_u32 v6, {64*i}, v5', 'v_mul_lo_u32 v7, v6, s48', 'v_lshrrev_b32 v7, 16, v7', 'v_mul_u32_u24 v8, 14, v7', 'v_sub_u32 v8, v6, v8',
              'v_mul_lo_u32 v9, v7, s49', 'v_lshl_add_u32 v9, v8, 4, v9', f'v_subrev_u32 {V(GDA+i)}, {1024*(i & 3)}, v9']
    b = Asm()
    b.e('s_cmp_lt_u32 s28, 2', 's_cselect_b32 s54, s68, s72', 's_cselect_b32 s55, s69, s73', 's_mul_i32 s56, s52, 224')
    srd(b, 16, 54, 55, 0, add='s56'); b.e(f's_sub_u32 s18, {512*3584}, s56')
    b.e('s_lshr_b32 s56, s28, 1', 's_mul_i32 s56, s56, 14336', 's_and_b32 s54, s28, 1', 's_mul_i32 s54, s54, 7168', 's_add_u32 s30, s56, s54')
    return s0, v, b.o
def g_dma(st):
    base = (st % GR) * GSTG
    return [[([f's_add_u32 m0, s30, {base + 4096*(i//4)}', f's_mov_b32 s34, {st*64*3584}'] if i % 4 == 0 else []),
             f'buffer_load_dwordx4 {V(GDA+i)}, s[16:19], s34 offen offset:{1024*(i&3)} lds', ('ga', st)] for i in range(7)]

def phase_g(a, L, opt, vm, Sched):
    ACC = 16; RA = 8; FA = 128; BD = 0
    n1 = opt.get('g_pre1', 4)
    a.e('v_lshrrev_b32 v5, 2, v2', 'v_mul_u32_u24 v5, 224, v5', 'v_and_b32 v6, 3, v2', f'v_lshl_add_u32 {V(RA)}, v6, 3, v5', 'v_lshlrev_b32 v7, 4, v2')
    for i in range(1, GR): a.e(f'v_add_u32 {V(RA+i)}, {i*GSTG}, {V(RA)}')
    a.e('s_lshl_b32 s47, s45, 2', 's_add_u32 s47, s47, s28', 's_lshl_b32 s48, s47, 15', f's_add_u32 s48, s48, {WS_H2}'); srd(a, 12, 42, 43, 32768, add='s48')
    a.e(f's_mul_i32 s47, s47, {112*1024}', 's_mul_i32 s48, s52, 7168', 's_add_u32 s47, s47, s48', f's_add_u32 s47, s47, {WS_HH}'); srd(a, 8, 42, 43, 7168, add='s47')
    signal(a, L, 2, vm.wait({('st', 1)})); mark(a, 6)
    def rd(n):
        ks, b = divmod(n, 14); st, tt = divmod(ks, 2)
        off = (b // 7)*14336 + tt*7168 + (b % 7)*32
        return [f'ds_read_b64_tr_b16 {A(FA+4*(n % 8)+2*v,2)}, {V(RA + st % GR)} offset:{off+3584*v}' for v in range(2)]
    D = opt.get('g_dist', 5)
    sc = Sched(a, age=6)
    d_setup(a)
    for n in range(D):
        for r in rd(n): sc.emit_filler(r)
    poll(a, L, 2, FLB, vm); mark(a, 7)
    def bl(ks):
        return [[[f's_mov_b32 s36, {qb*16384 + (ks & ~3)*1024}'], f'buffer_load_dwordx4 {A(BD+8*ks+4*qb,4)}, v7, s[12:15], s36 offen offset:{(ks & 3)*1024}{SC}', ('gb', ks)] for qb in range(2)]
    UP = opt.get('g_up', 6)
    for ks in range(UP):
        for sal, ins, tag in bl(ks): a.e(sal, ins); vm.add(tag)
    q = []
    for ks in range(UP, 16): q += bl(ks)
    for st in range(n1, GR): q = q[:4] + g_dma(st) + q[4:]
    NF = 16*14
    mf = []; gaps = []; pre = []
    a.e(vm.wait({('gb', 0)}))
    for n in range(NF):
        ks, b = divmod(n, 14)
        for qb in range(2):
            acc = V(ACC+8*b+4*qb, 4)
            mf.append(f'{MF} {acc}, {A(FA+4*(n % 8),4)}, {A(BD+8*ks+4*qb,4)}, {"0" if ks == 0 else acc}')
            gaps.append([]); pre.append([])
        nn = n + D
        if nn < NF:
            if nn % 28 == 0:
                s2 = nn // 28
                assert ('ga', s2) in vm.seen and not any(x[2] == ('ga', s2) for x in q)
                w = vm.wait({('ga', s2)})
                if s2 >= n1 or s2 + GR - 2 < 8: gaps[2*n-1] += w + ['s_barrier']
                if n1 <= s2 + GR - 2 < 8 and s2 + GR - 2 >= GR: q += g_dma(s2 + GR - 2)
            r = rd(nn)
            gaps[2*n].append(r[0]); gaps[2*n+1].append(r[1])
        if q and n % 2 == 0:
            sal, ins, tag = q.pop(0)
            pre[2*n] += sal; gaps[2*n+1].append(ins); vm.add(tag)
        if b == 13 and ks < 15:
            assert not any(x[2] == ('gb', ks+1) for x in q)
            gaps[2*n+1] += vm.wait({('gb', ks+1)})
    assert not q
    sc.run(mf, [pre[g] + gaps[g] for g in range(len(mf))])
    mark(a, 8)
    a.e('s_barrier')
    for b in range(7):
        t = ACC + 8*b
        for i in range(0, 8, 2): a.e(f'v_pk_mul_f32 {V(t+i,2)}, {V(t+i,2)}, {V(t+56+i,2)}')
        for i in range(4): a.e(f'v_cvt_pk_bf16_f32 {V(t+i)}, {V(t+2*i)}, {V(t+2*i+1)}')
        a.e(f's_mov_b32 s48, {(b*1024) & ~4095}', f'buffer_store_dwordx4 {V(t,4)}, v7, s[8:11], s48 offen offset:{(b*1024) & 4095}{SC}'); vm.add(('st', 2))
    return vm

DR = 9; DE = 128; DDA = 133; DRA = 137
def d_setup(a):
    E = DE
    a.e('s_lshl_b32 s54, s45, 1', 's_and_b32 s50, s44, 1', 's_add_u32 s54, s54, s50', 's_lshr_b32 s55, s44, 1', 's_lshl_b32 s55, s55, 2', 's_add_u32 s55, s55, s46')
    a.e('v_lshrrev_b32 v5, 3, v2', 'v_lshlrev_b32 v13, 1, v4', 'v_and_b32 v6, 7, v2', 'v_xor_b32 v13, v13, v6', 'v_lshlrev_b32 v13, 4, v13', 'v_lshl_add_u32 v13, v5, 10, v13')
    for i in range(4): a.e(f'v_add_u32 {V(DDA+i)}, {7*i*1024}, v13')
    a.e('s_lshl_b32 s50, s55, 7', f's_mul_i32 s51, s28, {14*32*1024}', 's_add_u32 s50, s50, s51')
    srd(a, 24, 76, 77, 0, add='s50'); a.e(f's_sub_u32 s26, {1792*1024}, s50', f's_mul_i32 s31, s28, {DR*4096}')
    a.e(f'v_and_b32 {V(E)}, 1, v6', f'v_lshlrev_b32 {V(E)}, 9, {V(E)}', f'v_lshl_add_u32 {V(E)}, v5, 4, {V(E)}', 'v_bfe_u32 v13, v6, 1, 1', f'v_lshl_add_u32 {V(E)}, v13, 3, {V(E)}', 'v_lshrrev_b32 v13, 2, v6', f'v_lshl_add_u32 {V(E)}, v13, 10, {V(E)}')
    a.e(f'v_lshlrev_b32 {V(E+1)}, 5, v6', f'v_lshlrev_b32 {V(E+2)}, 10, v5', f'v_lshl_add_u32 {V(E+2)}, v6, 4, {V(E+2)}')
    a.e(f'v_mul_u32_u24 {V(E+3)}, 272, v5', f'v_lshl_add_u32 {V(E+3)}, v6, 5, {V(E+3)}', 's_mul_i32 s47, s28, 4352', f'v_add_u32 {V(E+3)}, s47, {V(E+3)}')
    a.e(f'v_mul_u32_u24 {V(E+4)}, 272, v3', f'v_lshl_add_u32 {V(E+4)}, v4, 4, {V(E+4)}', 's_mul_i32 s47, s28, 17408', f'v_add_u32 {V(E+4)}, s47, {V(E+4)}')
    a.e('v_lshrrev_b32 v5, 2, v2', 'v_and_b32 v6, 3, v2', 'v_lshlrev_b32 v13, 7, v5', 'v_lshl_add_u32 v13, v6, 3, v13', 'v_add_u32 v13, s31, v13', 'v_bfe_u32 v5, v5, 1, 2')
    for nb in range(4): a.e(f'v_xor_b32 v6, {nb}, v5', f'v_lshl_add_u32 {V(DRA+nb)}, v6, 5, v13')
    a.e('s_lshl_b32 s47, s54, 2', 's_add_u32 s47, s47, s28', 's_lshl_b32 s49, s47, 14', 's_lshl_b32 s50, s55, 7', 's_add_u32 s56, s50, s49', 's_lshl_b32 s51, s55, 11', 's_add_u32 s57, s51, s49')
    a.e('s_lshl_b32 s58, s55, 8', f's_add_u32 s58, s58, {5*2048}')
    a.e(f's_mul_i32 s48, s54, {2*112*1024}', f's_mul_i32 s49, s28, {28*1024}', 's_add_u32 s48, s48, s49', f's_add_u32 s59, s48, {WS_HH}')
def d_dma(s):
    return [[([f's_add_u32 m0, s31, {(s % DR)*4096}', f's_mov_b32 s35, {s*32768}'] if i == 0 else []),
             f'buffer_load_dwordx4 {V(DDA+i)}, s[24:27], s35 offen offset:{1024*i} lds', ('da', s)] for i in range(4)]

def phase_d(a, L, opt, vm, Sched):
    NS = 14
    ACC = 0; FA = [64, 80]; XR = 96; GV = 104; RA = DRA; E = DE
    BR = lambda s: (16 + 16*s) if s < 7 else (144 + 16*(s-7))
    n0 = opt.get('d_pre0', 8); n0a = opt.get('d_pre0a', 3)
    for s in range(n0a):
        for sal, ins, tag in d_dma(s): a.e(sal, ins); vm.add(tag)
    srd(a, 12, 42, 43, 2*112*1024, add='s59')
    signal(a, L, 3, vm.wait({('st', 2)})); mark(a, 9)
    for s in range(n0a, n0):
        for sal, ins, tag in d_dma(s): a.e(sal, ins); vm.add(tag)
    srd(a, 16, 42, 43, 12288); srd(a, 8, 82, 83, 2097152)
    for p in range(2):
        for e in range(2): a.e(f'buffer_load_dwordx2 {A(XR+4*p+2*e,2)}, {V(E)}, s[20:23], s57 offen offset:{128*p+256*e}{SC}'); vm.add(('e', 0))
    for h in range(2): a.e(f'buffer_load_dwordx4 {A(GV+4*h,4)}, {V(E+1)}, s[16:19], s58 offen offset:{16*h}{SC}'); vm.add(('e', 0))
    poll(a, L, 3, FLB, vm); mark(a, 10)
    dma2 = d_dma
    def bload(s):
        return [[[f's_mov_b32 s36, {qp*112*1024 + 2048*s}'] if u == 0 else [], f'buffer_load_dwordx4 {V(BR(s)+8*qp+4*u,4)}, v7, s[12:15], s36 offen offset:{1024*u}{SC}', ('db', s)] for qp in range(2) for u in range(2)]
    def reads(s): return [f'ds_read_b64_tr_b16 {A(FA[s & 1]+4*x+2*v,2)}, {V(RA+x)} offset:{(s % DR)*4096+2048*v}' for x in range(4) for v in range(2)]
    def swaps(s): return [f'v_swap_b32 {V(BR(s)+8*qp+2+i)}, {V(BR(s)+8*qp+4+i)}' for qp in range(2) for i in range(2)]
    sc = Sched(a, age=6)
    PRE = opt.get('d_pre', 4)
    for s in range(PRE):
        for sal, ins, tag in bload(s): a.e(sal, ins); vm.add(tag)
        if s == 0:
            a.e(vm.wait({('da', 0)}))
            for r in reads(0): sc.emit_filler(r)
    a.e(vm.wait({('db', 0)}), swaps(0))
    nb_ = PRE; na_ = n0
    for s in range(NS):
        mf = [f'{MF} {A(ACC+16*nb+4*qb,4)}, {A(FA[s & 1]+4*nb,4)}, {V(BR(s)+4*qb,4)}, {"0" if s == 0 else A(ACC+16*nb+4*qb,4)}' for nb in range(4) for qb in range(4)]
        gaps = [[] for _ in mf]
        a.e('s_waitcnt lgkmcnt(0)'); sc.pend = []
        iss = []
        if nb_ < NS: iss += bload(nb_); nb_ += 1
        if na_ < NS and na_ <= s + DR and na_ <= nb_ + 1: iss += dma2(na_); na_ += 1
        elif nb_ < NS: iss += bload(nb_); nb_ += 1
        for g, (sal, ins, tag) in enumerate(iss[:7]):
            gaps[g] += sal + [ins]; vm.add(tag)
        if s + 1 < NS:
            assert ('da', s+1) in vm.seen and ('db', s+1) in vm.seen and not any(x[2][1] == s+1 for x in iss[7:])
            gaps[7] += vm.wait({('da', s+1), ('db', s+1)})
            for i, r in enumerate(reads(s+1)): gaps[7 + i//2].append(r)
            for i, x in enumerate(swaps(s+1)): gaps[11 + i//2].append(x)
        for i, (sal, ins, tag) in enumerate(iss[7:]):
            gaps[13] += sal + [ins]; vm.add(tag)
        sc.run(mf, gaps)
    assert nb_ == NS and na_ == NS, (nb_, na_)
    mark(a, 11)
    PT = 32
    a.e('s_nop 3', 's_barrier')
    for nb in range(4):
        for qb in range(4):
            a.e(f'ds_write_b128 {V(E+4)}, {A(ACC+16*nb+4*qb,4)} offset:{qb*16*272 + nb*64}')
    for i in range(8): a.e(f'v_accvgpr_read_b32 {V(112+i)}, {A(XR+i)}', f'v_accvgpr_read_b32 {V(120+i)}, {A(GV+i)}')
    for i in range(8): a.e(f'v_lshlrev_b32 {V(96+2*i)}, 16, {V(112+i)}', f'v_and_b32 {V(97+2*i)}, 0xffff0000, {V(112+i)}')
    a.e('s_waitcnt lgkmcnt(0)', 's_barrier')
    for p in range(2):
        for pw in range(4):
            for h in range(2): a.e(f'ds_read_b128 {V(PT+32*p+8*pw+4*h,4)}, {V(E+3)} offset:{pw*17408 + p*8*272 + h*16}')
    for p in range(2):
        b = PT + 32*p
        a.e(f's_waitcnt lgkmcnt({12-8*p})')
        for i in range(0, 8, 2): a.e(f'v_pk_add_f32 {V(b+i,2)}, {V(b+i,2)}, {V(b+8+i,2)}')
        a.e(f's_waitcnt lgkmcnt({8-8*p})')
        for i in range(0, 8, 2): a.e(f'v_pk_add_f32 {V(b+16+i,2)}, {V(b+16+i,2)}, {V(b+24+i,2)}')
        for i in range(0, 8, 2): a.e(f'v_pk_add_f32 {V(b+i,2)}, {V(b+i,2)}, {V(b+16+i,2)}')
        for i in range(0, 8, 2): a.e(f'v_pk_fma_f32 {V(96+8*p+i,2)}, {V(b+i,2)}, {V(120+i,2)}, {V(96+8*p+i,2)}')
        for i in range(4): a.e(f'v_cvt_pk_bf16_f32 {V(b+i)}, {V(96+8*p+2*i)}, {V(97+8*p+2*i)}')
        if p: a.e('s_add_u32 s56, s56, 8192')
        a.e(f'buffer_store_dwordx4 {V(b,4)}, {V(E+2)}, s[8:11], s56 offen{opt.get("wt_d", "")}')

def fused_post(a, L, opt, Sched):
    SYNC['mode'] = opt.get('sync', 'sflag'); SYNC['one'] = opt.get('one', 1)
    vm = phase_o(a, L, opt, Sched)
    vm = phase_r(a, L, opt, vm)
    vm = phase_g(a, L, opt, vm, Sched)
    phase_d(a, L, opt, vm, Sched)
    if TL['on']:
        a.e('s_waitcnt vmcnt(0)'); mark(a, 12)
        srd(a, 8, 42, 43, 1 << 20, add=(58 << 20))
        a.e('s_lshl_b32 s54, s2, 2', 's_add_u32 s54, s54, s28', 's_lshl_b32 s54, s54, 7', 'v_lshlrev_b32 v5, 2, v2', 's_mov_b32 exec_hi, 0')
        a.e(f'buffer_store_dword {V(DIAG)}, v5, s[8:11], s54 offen', 's_mov_b64 exec, -1')
    if TL.get('dm'):
        W, x, y, f = TL['dm']
        a.e('s_waitcnt vmcnt(0)'); mark(a, 12)
        a.e(f's_cmp_lg_u32 s2, {W}', f's_cbranch_scc1 {L}_dmx', 's_cmp_lg_u32 s28, 0', f's_cbranch_scc1 {L}_dmx')
        a.e('s_load_dwordx2 s[8:9], s[0:1], 96', 's_waitcnt lgkmcnt(0)', 's_mov_b32 s10, 256', 's_mov_b32 s11, 0x20000', f'v_subrev_u32 v6, s94, {V(DIAG)}', 'v_lshlrev_b32 v5, 2, v2', 's_mov_b64 exec, 0xffff',
            'buffer_store_dword v6, v5, s[8:11], 0 offen', 's_mov_b64 exec, -1')
        if f:
            a.e(f'v_readlane_b32 s92, v6, {x}', f'v_readlane_b32 s93, v6, {y}', 's_nop 3', 's_sub_u32 s92, s93, s92', f's_mul_i32 s92, s92, {f}', 's_min_u32 s92, s92, 100000',
                'spinl:', 's_memrealtime s[96:97]', 's_waitcnt lgkmcnt(0)', 's_sub_u32 s96, s96, s98', 's_cmp_lt_u32 s96, s92', 's_cbranch_scc1 spinl')
        a.e(f'{L}_dmx:')

WS_TAG = 32768
def front_addr(a):
    pass

WS_MODP = 24576
def phase_front(a, L, opt, wq, emit_list, vm, setup, HV):
    import math
    WA_ = wq(0, 4) + (wq(4, 4) if opt.get('w_pre', 16) == 16 else [])
    wn = [0]
    def wdma(lo=0):
        def em(lst):
            for sal, ins, tag in lst: a.e([x.replace('s50', 's56') for x in sal], ins.replace('s50', 's56'))
        em(WA_[lo:8])
        wn[0] += 1
        if opt.get('ghost', 0): a.e('s_cmp_eq_u32 s28, 3', f's_cbranch_scc1 {L}_fw{wn[0]}')
        em(WA_[8:]); a.e(f'{L}_fw{wn[0]}:')
    a.e('s_mov_b32 s62, 256', 's_mov_b32 s63, 0x20000')
    a.e('s_cmp_lg_u32 s2, 255', f's_cbranch_scc1 {L}_f1', 's_cmp_lg_u32 s28, 0', f's_cbranch_scc1 {L}_f1', 's_or_b32 s50, s86, 0x80000000')
    a.e('s_mov_b64 exec, 1', 'v_mov_b32 v12, 0', 'v_mov_b32 v11, s50', f'buffer_store_dword v11, v12, s[60:63], 0 offen{SC}', 's_mov_b64 exec, -1', f'{L}_f1:')
    a.e('s_cmp_lt_u32 s2, 128', f's_cbranch_scc1 {L}_fm0')
    a.e('s_and_b32 s50, s2, 1', 's_lshl_b32 s50, s50, 6', 's_bfe_u32 s51, s2, 0x20001', 's_lshl_b32 s51, s51, 4', 's_add_u32 s50, s50, s51', 's_bfe_u32 s51, s2, 0x40003', 's_add_u32 s47, s50, s51')
    srd(a, 8, 80, 81, 2097152)
    a.e('s_lshl_b32 s50, s47, 14', 's_lshl_b32 s51, s28, 8', 's_add_u32 s50, s50, s51', 'v_lshlrev_b32 v5, 10, v3', 'v_lshl_add_u32 v5, v4, 4, v5')
    for i in range(4): a.e(f'buffer_load_dwordx4 {V(16+4*i,4)}, v5, s[8:11], s50 offen offset:{64*i}')
    a.e(f's_branch {L}_fj0')
    a.e(f'{L}_fm0:')
    srd(a, 8, 56, 57, 1024); srd(a, 12, 58, 59, 512*6144)
    a.e('v_lshrrev_b32 v5, 2, v2', 's_lshl_b32 s50, s28, 4', 'v_add_u32 v5, s50, v5', 's_mov_b32 s51, 6144', 'v_mul_lo_u32 v6, v5, s51', 'v_and_b32 v7, 3, v2', 'v_lshl_add_u32 v6, v7, 4, v6', 'v_lshlrev_b32 v5, 1, v5')
    a.e('s_and_b32 s50, s2, 31', 's_lshr_b32 s51, s2, 5', 's_cmp_lt_u32 s2, 64', f's_cbranch_scc1 {L}_fa0')
    a.e('s_sub_u32 s50, s2, 32', 's_lshl_b32 s52, s50, 6', f's_add_u32 s52, s52, {256*6144}')
    for i in range(4, 8): a.e(f'buffer_load_ushort {V(64+i)}, v5, s[8:11], 0 offen offset:{i*128}')
    for i in range(4, 8): a.e(f'buffer_load_dwordx4 {V(16+4*i,4)}, v6, s[12:15], s52 offen{opt.get("mnt", "")}', f's_add_u32 s52, s52, {64*6144}')
    a.e('s_mov_b32 s51, 0', f'{L}_fa0:')
    a.e('s_mov_b32 s47, s50', 's_lshl_b32 s52, s50, 6', f's_mul_i32 s53, s51, {256*6144}', 's_add_u32 s52, s52, s53', 's_lshl_b32 s53, s51, 9')
    for i in range(4): a.e(f'buffer_load_ushort {V(64+i)}, v5, s[8:11], s53 offen offset:{i*128}')
    for i in range(4): a.e(f'buffer_load_dwordx4 {V(16+4*i,4)}, v6, s[12:15], s52 offen{opt.get("mnt", "")}', f's_add_u32 s52, s52, {64*6144}' if i < 3 else [])
    a.e(f'{L}_fj0:')
    NC = 0
    if opt.get('cpf', 1):
        a.e('s_getpc_b64 s[50:51]', f'{L}_pc:', f's_sub_u32 s50, s50, {L}_pc - code_begin', 's_subb_u32 s51, s51, 0')
        a.e('s_lshr_b32 s52, s2, 3', 's_lshl_b32 s52, s52, 2', 's_add_u32 s52, s52, s28', 's_lshl_b32 s52, s52, 12', 'v_lshlrev_b32 v80, 6, v2', 'v_add_u32 v80, s52, v80',
            'v_min_u32 v80, code_end - code_begin - 4, v80', 'global_load_dword v80, v80, s[50:51]'); NC += 1
    setup()
    def tagload(): a.e('v_mov_b32 v82, 0', f'buffer_load_dword v81, v82, s[60:63], 0 offen{SC}')
    def gettag(n):
        a.e('s_mov_b32 s53, 0', f'{L}_ft{n}:', 's_waitcnt vmcnt(0)', 'v_readfirstlane_b32 s39, v81', 's_add_u32 s53, s53, 1', 's_cmp_gt_u32 s53, 200000', f's_cbranch_scc1 {L}_ftd{n}',
            's_nop 1', 's_cmp_lg_u32 s39, 0', f's_cbranch_scc1 {L}_ftd{n}', f'buffer_load_dword v81, v82, s[60:63], 0 offen{SC}', f's_branch {L}_ft{n}', f'{L}_ftd{n}:')
    def flag():
        srd(a, 52, 42, 43, 16384, add=WS_FLAG + 4*16384)
        a.e('s_lshl_b32 s50, s2, 6', 's_mov_b64 exec, 1', 'v_mov_b32 v5, s50', 'v_mov_b32 v9, s39', f'buffer_store_dword v9, v5, s[52:55], 0 offen{SC}', 's_mov_b64 exec, -1')
    a.e('s_cmp_lt_u32 s2, 128', f's_cbranch_scc1 {L}_fm1')
    a.e('v_lshlrev_b32 v5, 4, v3', 'v_lshrrev_b32 v8, 1, v4', 'v_lshl_add_u32 v5, v8, 10, v5', 'v_and_b32 v8, 1, v4', 'v_lshl_add_u32 v5, v8, 9, v5')
    a.e('s_lshr_b32 s50, s47, 1', 's_lshl_b32 s50, s50, 15', 's_and_b32 s51, s47, 1', 's_lshl_b32 s51, s51, 8', 's_add_u32 s50, s50, s51', 's_lshl_b32 s51, s28, 13', 's_add_u32 s47, s50, s51')
    srd(a, 52, 42, 43, 2097152, add=WS_H)
    a.e('v_lshlrev_b32 v12, 3, v3', 's_lshl_b32 s50, s28, 7', 'v_add_u32 v13, s50, v12')
    a.e(f's_waitcnt vmcnt({NC})'); mark2(a, 17)
    LNW = opt.get('ln_w', 4)
    for sal, ins, tag in WA_[:LNW]: a.e([x.replace('s50', 's56') for x in sal], ins.replace('s50', 's56'))
    for i in range(16): a.e(f'v_lshlrev_b32 {V(32+2*i)}, 16, {V(16+i)}', f'v_and_b32 {V(33+2*i)}, 0xffff0000, {V(16+i)}')
    a.e('v_add_f32 v8, v32, v33', 'v_mul_f32 v9, v32, v32', 'v_add_f32 v10, v34, v35', 'v_mul_f32 v11, v33, v33')
    for e in range(2, 32, 2):
        if e >= 4: a.e(f'v_add_f32 v8, v8, {V(32+e)}', f'v_add_f32 v10, v10, {V(33+e)}')
        a.e(f'v_fmac_f32 v9, {V(32+e)}, {V(32+e)}', f'v_fmac_f32 v11, {V(33+e)}, {V(33+e)}')
    a.e('v_add_f32 v8, v8, v10', 'v_add_f32 v9, v9, v11')
    for perm in ('32', '16'):
        a.e('v_mov_b32 v10, v8', 'v_mov_b32 v11, v9', 's_nop 0', f'v_permlane{perm}_swap_b32 v8, v10', f'v_permlane{perm}_swap_b32 v9, v11', 'v_add_f32 v8, v8, v10', 'v_add_f32 v9, v9, v11')
    tagload()
    a.e('ds_write_b64 v13, v[8:9]', 's_waitcnt lgkmcnt(0)', 's_barrier')
    for i in range(4): a.e(f'ds_read_b64 {V(16+2*i,2)}, v12 offset:{128*i}')
    a.e('s_waitcnt lgkmcnt(0)', 'v_pk_add_f32 v[16:17], v[16:17], v[18:19]', 'v_pk_add_f32 v[20:21], v[20:21], v[22:23]', 'v_pk_add_f32 v[16:17], v[16:17], v[20:21]')
    a.e(f'v_mul_f32 v8, {f32hex(1/512)}, v16', f'v_mov_b32 v9, {f32hex(1e-5)}', f'v_fmac_f32 v9, {f32hex(1/512)}, v17', 'v_fma_f32 v9, -v8, v8, v9', f'v_max_f32 v9, {f32hex(1e-5)}, v9', 'v_rsq_f32 v9, v9', 's_add_u32 s50, s47, 4096')
    a.e('v_mul_f32 v8, v8, v9')
    for e in range(32): a.e(f'v_fma_f32 {V(32+e)}, {V(32+e)}, v9, -v8')
    for i in range(16): a.e(f'v_cvt_pk_f16_f32 {V(16+i)}, {V(32+2*i)}, {V(33+2*i)}')
    for i in range(4): a.e(f'buffer_store_dwordx4 {V(16+4*i,4)}, v5, s[52:55], {"s47" if i < 2 else "s50"} offen offset:{2048*(i & 1)}{SC}')
    mark2(a, 18)
    gettag(0)
    a.e('s_barrier', 's_cmp_lg_u32 s28, 0', f's_cbranch_scc1 {L}_fl1'); flag(); a.e(f'{L}_fl1:')
    wdma(LNW)
    a.e(f's_branch {L}_fj1')
    a.e(f'{L}_fm1:')
    a.e('v_and_b32 v5, 3, v2', 'v_lshlrev_b32 v12, 5, v5', 'v_and_b32 v5, 1, v4', 'v_lshl_add_u32 v12, v5, 3, v12', 'v_lshrrev_b32 v5, 5, v2', 'v_lshl_add_u32 v12, v5, 4, v12', 's_lshl_b32 s50, s28, 7', 'v_add_u32 v12, s50, v12')
    a.e(f's_mov_b32 s50, {f32hex(-math.log2(math.e))}')
    for d in range(8): a.e(f'v_mov_b32 {V(48+d)}, 0')
    def silu(rng):
        for i in rng: a.e(f'v_lshlrev_b32 {V(64+i)}, 16, {V(64+i)}')
        for i in rng: a.e(f'v_mul_f32 {V(72+i)}, s50, {V(64+i)}')
        for i in rng: a.e(f'v_exp_f32 {V(72+i)}, {V(72+i)}')
        a.e('s_nop 0')
        for i in rng: a.e(f'v_add_f32 {V(72+i)}, 1.0, {V(72+i)}')
        for i in rng: a.e(f'v_rcp_f32 {V(72+i)}, {V(72+i)}')
        a.e('s_nop 0')
        for i in rng: a.e(f'v_mul_f32 {V(64+i)}, {V(64+i)}, {V(72+i)}')
        for i in rng: round_bf16(a, V(64+i), V(64+i))
    def fma(i):
        for d in range(4):
            w = 16+4*i+d
            a.e(f'v_lshlrev_b32 v8, 16, {V(w)}', f'v_and_b32 v9, 0xffff0000, {V(w)}', f'v_fmac_f32 {V(48+2*d)}, v8, {V(64+i)}', f'v_fmac_f32 {V(49+2*d)}, v9, {V(64+i)}')
    a.e('s_cmp_lt_u32 s2, 64', f's_cbranch_scc1 {L}_fa1')
    a.e(f's_waitcnt vmcnt({NC+12})'); silu(range(4, 8))
    for i in range(4, 8): a.e(f's_waitcnt vmcnt({NC+8+7-i})'); fma(i)
    a.e(f'{L}_fa1:', f's_waitcnt vmcnt({NC+4})'); silu(range(4))
    for i in range(4):
        a.e(f's_waitcnt vmcnt({NC+3-i})')
        if i == 3: mark2(a, 17); tagload()
        fma(i)
    a.e('s_nop 1')
    for i in range(4): a.e(f'v_permlane32_swap_b32 v{48+i}, v{52+i}')
    for i in range(4): a.e(f'v_add_f32 v{48+i}, v{48+i}, v{52+i}')
    a.e('s_nop 0')
    for i in range(2): a.e(f'v_permlane16_swap_b32 v{48+i}, v{50+i}')
    for i in range(2): a.e(f'v_add_f32 v{48+i}, v{48+i}, v{50+i}')
    for r in (4, 8):
        a.e('s_nop 1')
        for i in range(2): a.e(f'v_add_f32_dpp v{48+i}, v{48+i}, v{48+i} row_ror:{r} row_mask:0xf bank_mask:0xf')
    a.e('ds_write_b64 v12, v[48:49]', 'v_and_b32 v5, 31, v2', 'v_lshlrev_b32 v5, 2, v5', 's_waitcnt lgkmcnt(0)', 's_barrier')
    a.e('s_cmp_eq_u32 s28, 0', f's_cbranch_scc1 {L}_fm2')
    gettag(1); wdma(); a.e(f's_branch {L}_fj1')
    a.e(f'{L}_fm2:')
    for i in range(4): a.e(f'ds_read_b32 {V(16+i)}, v5 offset:{128*i}')
    srd(a, 52, 42, 43, 65536)
    a.e('s_lshl_b32 s50, s47, 7', 'v_add_u32 v5, s50, v5', 's_lshr_b32 s51, s2, 5', 's_lshl_b32 s51, s51, 12', f's_add_u32 s51, s51, {WS_MODP}')
    a.e('s_waitcnt lgkmcnt(0)', 'v_add_f32 v16, v16, v17', 'v_add_f32 v18, v18, v19', 'v_add_f32 v16, v16, v18')
    a.e('s_cmp_lt_u32 s2, 64', f's_cbranch_scc1 {L}_fa2')
    a.e('s_lshr_b32 s50, s47, 4', 's_cmp_eq_u32 s50, 4', 's_cselect_b32 s50, 1.0, 0', 's_mov_b32 s51, 0')
    round_bf16(a, 'v16', 'v16'); a.e('v_add_f32 v16, s50, v16'); round_bf16(a, 'v16', 'v16')
    a.e(f'{L}_fa2:', 's_mov_b32 exec_hi, 0', f'buffer_store_dword v16, v5, s[52:55], s51 offen{SC}', 's_mov_b64 exec, -1')
    mark2(a, 18)
    gettag(2); flag(); wdma()
    a.e(f'{L}_fj1:'); mark2(a, 16)
    a.e('s_lshr_b32 s50, s45, 2', 's_and_b32 s51, s50, 3', 's_lshl_b32 s51, s51, 1', 's_lshr_b32 s50, s50, 2', 's_add_u32 s50, s50, s51', 's_add_u32 s50, s50, 128')
    a.e('v_lshlrev_b32 v8, 3, v3', 'v_add_u32 v8, s50, v8', 'v_lshlrev_b32 v8, 6, v8', 'v_lshlrev_b32 v10, 6, v2')
    srd(a, 52, 42, 43, 16384, add=WS_FLAG + 4*16384); srd(a, 24, 42, 43, 8192, add=WS_MODP)
    a.e('s_cmp_lg_u32 s28, 3', f's_cbranch_scc1 {L}_pd4', 's_mov_b32 s50, 0', f'{L}_pl4:', f'buffer_load_dword v5, v8, s[52:55], 0 offen{SC}', f'buffer_load_dword v9, v10, s[52:55], 0 offen{SC}',
        's_add_u32 s50, s50, 1', 's_waitcnt vmcnt(0)', 'v_cmp_eq_u32 vcc, s39, v5', 'v_cmp_eq_u32 s[56:57], s39, v9', 's_cmp_gt_u32 s50, 200000', f's_cbranch_scc1 {L}_pd4',
        's_and_b64 vcc, vcc, s[56:57]', 's_cmp_eq_u64 vcc, -1', f's_cbranch_scc1 {L}_pd4', f's_sleep {opt.get("psleep", 0)}' if opt.get('psleep', 0) else [], f's_branch {L}_pl4', f'{L}_pd4:')
    a.e('s_waitcnt vmcnt(8)', 's_barrier'); mark2(a, 19); unpark0(a)
    del vm[:]
    for h in range(2): a.e(f's_add_u32 s50, s49, {4096*h}' , f'buffer_load_dwordx4 {V(16+4*h,4)}, {V(HV)}, s[24:27], s50 offen{SC}'); vm.append(('m', 0))

def front_late(a, L, wq, vm, opt):
    if not opt.get('ghost', 0): return
    a.e('s_cmp_lg_u32 s28, 3', f's_cbranch_scc1 {L}_fwl')
    for sal, ins, tag in wq(4, 4): a.e(sal, ins)
    a.e(f'{L}_fwl:')
    vm.append(('w', 4, 'ghost'))

def front_table(a, HV):
    a.e('s_cmp_ge_u32 s28, 2', 's_cselect_b32 s50, 1.0, 0', 's_xor_b32 s51, s49, 2048', 's_add_u32 s51, s51, 147456', f'v_add_u32 v5, s51, {V(HV)}')
    for i in range(4): a.e(f'v_add_f32 {V(16+i)}, {V(16+i)}, {V(20+i)}')
    for i in range(4): round_bf16(a, V(16+i), V(16+i))
    for i in range(4): a.e(f'v_add_f32 {V(16+i)}, s50, {V(16+i)}')
    for i in range(4): round_bf16(a, V(16+i), V(16+i))
    for i in range(4): a.e(f'v_mul_f32 {V(16+i)}, {f32hex(QSCALE)}, {V(16+i)}')
    a.e('ds_write_b128 v5, v[16:19]', 's_waitcnt lgkmcnt(0)')
```

```python
import sys, json
from asmlib import *
from gen_pre import *
from gen_attn import gen_attn
HEAD = open('cdna_kernels/' + NAME + '.s.ref').read().split('; Override launch')[0] if False else ''
def build_text(opt=None, upto=None):
    opt = opt or {}
    body = Asm(); ks = []
    TL['on'] = bool(opt.get('tl')); TL['idx'] = 0; TL['marks'] = opt.get('marks', 0); TL['dbg'] = opt.get('dbg', 0); TL['nk'] = opt.get('nk', 6); TL['spin'] = opt.get('spin'); TL['dm'] = opt.get('dm')
    single = opt.get('attn', {}).get('single', 1)
    if not single: ks.append(gen_pre(body, opt))
    ks.append(gen_attn(body, opt.get('attn')))
    if not opt.get('attn', {}).get('fuse', 1):
        from gen_post import gen_post
        ks += gen_post(body, opt)
    if upto: ks = ks[:upto]
    a = Asm()
    for k in ks: a.e(f'; @launch {"" if single else "kernel=" + k["label"] + " "}grid=({k["grid"]},1,1) block=({k["block"]},1,1) lds={k["lds"]}')
    a.e('.amdgcn_target "amdgcn-amd-amdhsa--gfx950"')
    wt = opt.get('wt', '')
    if wt:
        body.o = [(l + ' ' + wt) if (l.startswith('buffer_store') and 's[84:87]' not in l) else l for l in body.o]
    a.o += body.o
    a.e('code_end:')
    return a, ks, body
def full_text(opt=None):
    a, ks, body = build_text(opt)
    for k in ks: kernel_desc(a, k['label'], k['vgpr'], k['accum'])
    return a.text()
if __name__ == '__main__':
    opt = json.loads(sys.argv[2]) if len(sys.argv) > 2 else {}
    open(sys.argv[1], 'w').write(full_text(opt))
```

```python
from asmlib import *
from gen_pre import *
MF = 'v_mfma_f32_16x16x32_bf16'
FLA = 141; FLB = 142; DIAG = 143
SC = ' sc1'

class VM:
    def __init__(self): self.q = []; self.seen = set()
    def add(self, tag): self.q.append(tag); self.seen.add(tag)
    def wait(self, tags, extra=''):
        last = max([i for i, t in enumerate(self.q) if t in tags], default=-1)
        if last < 0: return [f's_waitcnt{extra}'] if extra else []
        n = len(self.q) - 1 - last
        del self.q[:last+1]
        assert n < 64
        return [f's_waitcnt vmcnt({n}){extra}']
    def clear(self): self.q = []

def mark(a, i):
    if TL['on'] or TL.get('dm'): a.e('s_memrealtime s[98:99]', 's_waitcnt lgkmcnt(0)', f'v_writelane_b32 {V(DIAG)}, s98, {i}')

def mark2(a, i):
    park = {13: 88, 14: 90, 16: 92, 17: 84, 18: 86, 19: 100}
    if TL['on'] or TL.get('dm'): a.e(f's_memrealtime s[{park[i]}:{park[i]+1}]')
def unpark0(a):
    if TL['on'] or TL.get('dm'): a.e('s_waitcnt lgkmcnt(0)', 's_mov_b32 s93, s84', 's_mov_b32 s101, s86')
def unpark(a):
    if TL['on'] or TL.get('dm'): a.e('s_waitcnt lgkmcnt(0)', f'v_writelane_b32 {V(DIAG)}, s92, 16', f'v_writelane_b32 {V(DIAG)}, s93, 17', f'v_writelane_b32 {V(DIAG)}, s101, 18', f'v_writelane_b32 {V(DIAG)}, s100, 19')
    if TL['on'] or TL.get('dm'): a.e('s_waitcnt lgkmcnt(0)', f'v_writelane_b32 {V(DIAG)}, s94, 0', f'v_writelane_b32 {V(DIAG)}, s88, 13', f'v_writelane_b32 {V(DIAG)}, s90, 14')

def flag_setup():
    r = ['s_and_b32 s53, s2, 0xc7', 'v_and_b32 v5, 7, v2', 'v_lshlrev_b32 v5, 3, v5', 'v_add_u32 v5, s53, v5', f'v_lshlrev_b32 {V(FLA)}, 6, v5',
         's_and_b32 s53, s2, 0xe1', 'v_and_b32 v5, 3, v2', 'v_lshlrev_b32 v5, 3, v5', 'v_bfe_u32 v6, v2, 2, 2', 'v_lshl_add_u32 v5, v6, 1, v5', 'v_add_u32 v5, s53, v5', f'v_lshlrev_b32 {V(FLB)}, 6, v5']
    return r

SYNC = {'mode': 'cnt'}
def signal(a, L, k, waitlist):
    a.e(waitlist, 's_barrier')
    if SYNC['mode'] in ('flag', 'sflag'):
        a.e(f's_and_b32 s3, s2, {0xc7 if k == 0 else 0xe1}', 's_lshl_b32 s3, s3, 6', f's_add_u32 s3, s3, {WS_FLAG + k*16384}')
        srd(a, 60, 42, 43, 16384, add=WS_FLAG + k*16384)
        a.e('s_cmp_lg_u32 s28, 0', f's_cbranch_scc1 {L}_sg{k}', 's_lshl_b32 s53, s2, 6', 's_mov_b64 exec, 1', 'v_mov_b32 v5, s53', f'v_mov_b32 v{9 if k == 4 else 6}, s39',
            f'buffer_store_dword v{9 if k == 4 else 6}, v5, s[60:63], 0 offen{SC}', 's_mov_b64 exec, -1', f'{L}_sg{k}:')
    else:
        a.e(f's_and_b32 s3, s2, {0xc7 if k == 0 else 0xe1}', 's_lshl_b32 s3, s3, 6', f's_add_u32 s3, s3, {WS_FLAG + k*16384}')
        a.e('s_cmp_lg_u32 s28, 0', f's_cbranch_scc1 {L}_sg{k}')
        srd(a, 60, 42, 43, 4, add='s3')
        a.e('s_mov_b64 exec, 1', 'v_mov_b32 v5, 0', 'v_mov_b32 v6, 1', f'buffer_atomic_add v6, v5, s[60:63], 0 offen{SC}', 's_mov_b64 exec, -1', f'{L}_sg{k}:')

def poll(a, L, k, grp, vm=None):
    if SYNC['mode'] == 'flag':
        if SYNC.get('one') and k < 4: a.e('s_cmp_lg_u32 s28, 3', f's_cbranch_scc1 {L}_pd{k}')
        a.e('s_mov_b32 s53, 0', f'{L}_pl{k}:', f'buffer_load_dword v5, {V(grp)}, s[60:63], 0 offen{SC}', 's_add_u32 s53, s53, 1', 's_waitcnt vmcnt(0)',
            'v_cmp_eq_u32 vcc, s39, v5', 's_cmp_gt_u32 s53, 200000', f's_cbranch_scc1 {L}_pd{k}', 's_cmp_eq_u64 vcc, -1', f's_cbranch_scc0 {L}_pl{k}', f'{L}_pd{k}:')
        if SYNC.get('one') and k < 4: a.e('s_barrier')
        elif vm: vm.clear()
    elif SYNC['mode'] == 'sflag':
        regs = [60, 61, 62, 63, 84, 85, 86, 87, 88, 89, 90, 91, 92, 93, 100, 101]
        offs = [8*i*64 for i in range(8)] if k == 0 else [(2*x + 8*y)*64 for x in range(4) for y in range(4)]
        if SYNC.get('one'): a.e('s_cmp_lg_u32 s28, 3', f's_cbranch_scc1 {L}_pd{k}')
        a.e('s_mov_b32 s53, 0', f'{L}_pl{k}:')
        for r, o in zip(regs, offs): a.e(f's_load_dword s{r}, s[42:43], s3 offset:{o} glc')
        a.e('s_add_u32 s53, s53, 1', 's_cmp_gt_u32 s53, 200000', f's_cbranch_scc1 {L}_pd{k}', 's_waitcnt lgkmcnt(0)')
        for r in regs[:len(offs)]: a.e(f's_cmp_eq_u32 s{r}, s39', f's_cbranch_scc0 {L}_pl{k}')
        a.e(f'{L}_pd{k}:')
        if SYNC.get('one'): a.e('s_barrier')
    else:
        if SYNC.get('one'): a.e('s_cmp_lg_u32 s28, 3', f's_cbranch_scc1 {L}_pd{k}')
        a.e('s_mov_b32 s53, 0', f'{L}_pl{k}:', 's_load_dword s60, s[42:43], s3 glc', 's_add_u32 s53, s53, 1', 's_cmp_gt_u32 s53, 200000', f's_cbranch_scc1 {L}_pd{k}',
            's_waitcnt lgkmcnt(0)', f's_cmp_ge_u32 s60, {8 if k == 0 else 16}', f's_cbranch_scc0 {L}_pl{k}', f'{L}_pd{k}:')
        if SYNC.get('one'): a.e('s_barrier')

OA = [8192, 24576, 73728, 122880]; OB = [40960, 57344, 90112, 106496]
ODA = 156
def o_setup():
    r = []
    for i in range(4):
        r += [f'v_add_u32 v5, {4*(i&1)}, v4', 'v_lshlrev_b32 v5, 1, v5', 'v_xor_b32 v5, v5, v3', 'v_lshlrev_b32 v5, 4, v5', 'v_lshl_add_u32 v5, v4, 10, v5',
              f'v_add_u32 {V(ODA+i)}, {(16*(i&1) + 8*(i>>1) - i)*1024}, v5']
    s = ['s_lshr_b32 s47, s28, 1', 's_and_b32 s49, s28, 1', 's_lshl_b32 s50, s47, 15', 's_lshl_b32 s51, s49, 12', 's_add_u32 s50, s50, s51',
         's_bfe_u32 s51, s2, 0x20001', 's_lshl_b32 s51, s51, 20', 's_add_u32 s50, s50, s51', 's_bfe_u32 s51, s2, 0x20003', 's_lshl_b32 s51, s51, 8', 's_add_u32 s50, s50, s51',
         's_add_u32 s16, s64, s50', 's_addc_u32 s17, s65, 0', 's_sub_u32 s18, 4194304, s50', 's_mov_b32 s19, 0x20000', 's_lshl_b32 s30, s28, 12']
    return r, s
def o_dma_a(st):
    return [[[f's_add_u32 m0, s30, {OA[st % 4]}', f's_mov_b32 s34, {st*65536}'] if i == 0 else [], f'buffer_load_dwordx4 {V(ODA+i)}, s[16:19], s34 offen offset:{1024*i} lds', ('oa', st)] for i in range(4)]

def phase_o(a, L, opt, Sched):
    ACC = 64; FA = [0, 32]; FB = [64, 96]; DB = 12; RA = 16; RB = 24
    vm = VM()
    a.e('s_lshr_b32 s47, s28, 1', 's_and_b32 s48, s28, 1', 's_bfe_u32 s44, s2, 0x20001', 's_and_b32 s45, s2, 1', 's_lshl_b32 s45, s45, 3', 's_lshr_b32 s46, s2, 5', 's_add_u32 s45, s45, s46', 's_bfe_u32 s46, s2, 0x20003')
    a.e(f'v_lshlrev_b32 {V(DB)}, 4, v2')
    a.e('v_lshrrev_b32 v5, 2, v2', 'v_and_b32 v6, 3, v2', 'v_lshlrev_b32 v7, 8, v5', 'v_lshl_add_u32 v7, v6, 3, v7', 'v_and_b32 v5, 7, v5', 's_lshl_b32 s49, s48, 2')
    for nb in range(4): a.e(f's_add_u32 s50, s49, {nb}', 'v_xor_b32 v8, s50, v5', f'v_lshl_add_u32 {V(RA+nb)}, v8, 5, v7', f'v_add_u32 {V(RA+4+nb)}, {OA[2]}, {V(RA+nb)}')
    a.e('v_bfe_u32 v5, v2, 2, 2', 'v_lshrrev_b32 v7, 5, v2', 'v_lshl_add_u32 v5, v7, 3, v5', 'v_lshlrev_b32 v7, 2, v6', 'v_xor_b32 v5, v5, v7', 'v_lshl_add_u32 v5, v6, 4, v5')
    a.e('v_and_b32 v7, 1, v4', 'v_lshlrev_b32 v7, 3, v7', 'v_lshl_add_u32 v5, v5, 4, v7', 's_lshl_b32 s49, s47, 13', f's_add_u32 s49, s49, {OB[0]}')
    a.e(f'v_add_u32 {V(RB)}, s49, v5', 'v_xor_b32 v5, 64, v5', f'v_add_u32 {V(RB+1)}, s49, v5', f'v_add_u32 {V(RB+2)}, {OB[2]-OB[0]}, {V(RB)}', f'v_add_u32 {V(RB+3)}, {OB[2]-OB[0]}, {V(RB+1)}')
    a.e('s_lshl_b32 s49, s45, 1', 's_add_u32 s49, s49, s47', 's_lshl_b32 s50, s49, 19', 's_lshl_b32 s51, s44, 17', 's_add_u32 s50, s50, s51',
        's_lshl_b32 s51, s48, 12', 's_add_u32 s50, s50, s51', f's_add_u32 s50, s50, {WS_O}'); srd(a, 12, 42, 43, 131072, add='s50')
    a.e('s_lshl_b32 s49, s49, 16', 's_lshl_b32 s50, s44, 21', 's_add_u32 s49, s49, s50', 's_lshl_b32 s50, s46, 12', 's_add_u32 s49, s49, s50',
        's_lshl_b32 s50, s48, 11', 's_add_u32 s49, s49, s50', f's_add_u32 s49, s49, {WS_PART}'); srd(a, 8, 42, 43, 65536, add='s49')
    a.e('s_lshl_b32 s49, s45, 1', 's_lshr_b32 s50, s46, 1', 's_add_u32 s49, s49, s50', 's_lshl_b32 s49, s49, 19', 's_lshl_b32 s50, s44, 17', 's_add_u32 s49, s49, s50',
        's_and_b32 s50, s46, 1', 's_lshl_b32 s50, s50, 12', 's_add_u32 s49, s49, s50', f's_add_u32 s49, s49, {WS_O}'); srd(a, 4, 42, 43, 131072 - 4096, add='s49')
    a.e('s_lshl_b32 s50, s28, 13', 'v_lshlrev_b32 v13, 6, v2', 'v_add_u32 v13, s50, v13')
    r_setup(a)
    if opt.get('single', 1):
        a.e('v_cmp_eq_u32 vcc, s39, v140', 's_mov_b32 s53, 0', 's_nop 0', 's_cmp_eq_u64 vcc, -1', f's_cbranch_scc1 {L}_pmd')
        srd(a, 60, 42, 43, 16384, add=WS_FLAG + 4*16384)
        a.e('v_lshlrev_b32 v6, 6, v2', 'v_add_u32 v6, 4096, v6', f'{L}_pm:', f'buffer_load_dword v5, v6, s[60:63], 0 offen{SC}', 's_add_u32 s53, s53, 1', 's_waitcnt vmcnt(0)',
            'v_cmp_eq_u32 vcc, s39, v5', 's_cmp_gt_u32 s53, 200000', f's_cbranch_scc1 {L}_pmd', 's_cmp_eq_u64 vcc, -1', f's_cbranch_scc0 {L}_pm', f'{L}_pmd:')
    signal(a, L, 0, ['s_waitcnt vmcnt(0)']); mark(a, 1)
    poll(a, L, 0, FLA); mark(a, 2)
    def dma_b(st):
        return [[[f's_add_u32 m0, s30, {OB[st % 4]}', f's_mov_b32 s35, {st*8192}'] if i == 0 else [], f'buffer_load_dwordx4 {V(DB)}, s[12:15], s35 offen offset:{1024*i}{opt.get("o_ld", SC)} lds', ('ob', st)] for i in range(4)]
    for st in range(4):
        for sal, ins, tag in dma_b(st): a.e(sal, ins); vm.add(tag)
    def reads(st):
        p = st & 1; sl = st % 4
        ra = [f'ds_read_b64_tr_b16 {A(FA[p]+8*x+4*tt+2*v,2)}, {V(RA+(4 if sl >= 2 else 0)+x)} offset:{OA[sl] - (OA[2] if sl >= 2 else 0)+tt*8192+v*4096}' for x in range(4) for tt in range(2) for v in range(2)]
        rb = [f'ds_read_b64_tr_b16 {A(FB[p]+8*x+4*tt+2*u,2)}, {V(RB+2*(sl >> 1)+u)} offset:{(sl & 1)*16384+tt*4096+x*1024}' for x in range(4) for tt in range(2) for u in range(2)]
        return ra[:4] + rb + ra[4:]
    sc = Sched(a, age=6)
    a.e(vm.wait({('ob', 0)}), 's_barrier')
    for r in reads(0): sc.emit_filler(r)
    NV = opt.get('o_var', 1)
    import copy
    vm0 = copy.deepcopy(vm); pend0 = list(sc.pend)
    for var in range(NV):
        PH = 2 if NV == 1 else (var if NV == 4 else 1 + 2*var)
        if var < NV - 1: a.e(f's_cmp_ge_u32 s28, {(var+1)*4//NV}', f's_cbranch_scc1 {L}_ov{var+1}')
        vm = copy.deepcopy(vm0); sc.pend = list(pend0)
        rl = r_loads()
        gs0, gv, gs1 = g_setup()
        gq = [x for st_ in range(opt.get('g_pre0', 3)) for x in g_dma(st_)]
        for st in range(16):
            p = st & 1
            a.e(vm.wait({('oa', st+1), ('ob', st+1)}, ' lgkmcnt(0)'), 's_barrier'); sc.pend = []
            if st == 12: a.e(gs0)
            if st == 15: a.e(gs1)
            mf = [f'{MF} {V(ACC+16*nb+4*qb,4)}, {A(FA[p]+8*nb+4*tt,4)}, {A(FB[p]+8*qb+4*tt,4)}, {"0" if (st == 0 and tt == 0) else V(ACC+16*nb+4*qb,4)}' for nb in range(4) for qb in range(4) for tt in range(2)]
            gaps = [[] for _ in mf]; pre = [[] for _ in mf]
            rd = reads(st+1) if st < 15 else []
            d = (dma_b(st+4) + o_dma_a(st+4)) if st + 4 < 16 else rl[8*(st-12):8*(st-12)+8]
            ri = 0
            for g in range(32):
                if g % 4 == PH and d:
                    sal, ins, tag = d.pop(0)
                    if g: pre[g-1] += sal
                    else: pre[0] += sal
                    gaps[g].append(ins); vm.add(tag)
                else:
                    k = 2
                    while k and ri < len(rd):
                        gaps[g].append(rd[ri]); ri += 1; k -= 1
            assert not d
            T0 = opt.get('o_touch', 0)
            if T0 and st % 4 == 0 and st + T0 < 16:
                g = opt.get('o_tg', 28)
                pre[g-1].append(f's_mov_b32 s37, {(st+T0)*8192}'); gaps[g].append(f'buffer_load_dword v14, v13, s[4:7], s37 offen{SC}')
                allv = [x for gp in gaps[:g] for x in gp if x.startswith('buffer')]
                vm.q.insert(len(vm.q) - (8 - len(allv)), ('touch', st))
            if 12 <= st < 15:
                for i, x in enumerate(gv[19*(st-12):19*(st-11)]): gaps[22 + i//2].append(x)
            if st == 15:
                for g in range(2, 20, 4):
                    sal, ins, tag = gq.pop(0)
                    pre[g-1] += sal; gaps[g].append(ins); vm.add(tag)
                n = 0
                for qb in range(4):
                    t = 32 + 4*qb
                    ins = []
                    for u in range(2):
                        b = ACC + 16*u + 4*qb
                        ins += [f'v_cvt_pk_bf16_f32 {V(t+2*u)}, {V(b)}, {V(b+1)}', f'v_cvt_pk_bf16_f32 {V(t+2*u+1)}, {V(b+2)}, {V(b+3)}']
                    g = 20 + 3*qb
                    gaps[g] += ins[:2]; gaps[g+1] += ins[2:]; pre[g+1].append(f's_mov_b32 s50, {qb*16384}')
                    gaps[g+2].append(f'buffer_store_dwordx4 {V(t,4)}, {V(DB)}, s[8:11], s50 offen{SC}'); vm.add(('st', 0))
            sc.run(mf, [pre[g] + gaps[g] for g in range(32)])
        if var < NV - 1: a.e(f's_branch {L}_ovend', f'{L}_ov{var+1}:')
    a.e(f'{L}_ovend:')
    mark(a, 3)
    a.e('s_nop 1')
    for qb in range(4):
        t = 48 + 4*qb
        for u in range(2):
            b = ACC + 16*(2+u) + 4*qb
            a.e(f'v_cvt_pk_bf16_f32 {V(t+2*u)}, {V(b)}, {V(b+1)}', f'v_cvt_pk_bf16_f32 {V(t+2*u+1)}, {V(b+2)}, {V(b+3)}')
        a.e(f's_mov_b32 s50, {qb*16384}', f'buffer_store_dwordx4 {V(t,4)}, {V(DB)}, s[8:11], s50 offen offset:1024{SC}'); vm.add(('st', 0))
    for sal, ins, tag in gq: a.e(sal, ins); vm.add(tag)
    return vm

RX = 144; RGA = 160; RCB = 176; RSB = 192; RO = 152
RSTAT = 159744
def r_setup(a):
    a.e('s_lshl_b32 s29, s45, 4', 's_lshl_b32 s50, s44, 2', 's_add_u32 s29, s29, s50', 's_add_u32 s29, s29, s46')
    a.e('v_and_b32 v5, 7, v2', 'v_bfe_u32 v6, v2, 3, 2', 'v_lshrrev_b32 v7, 5, v2', 's_lshl_b32 s50, s28, 2', 'v_add_u32 v7, s50, v7')
    a.e(f'v_lshlrev_b32 {V(RO)}, 10, v7', f'v_lshl_add_u32 {V(RO)}, v5, 4, {V(RO)}', f'v_lshl_add_u32 {V(RO)}, v6, 8, {V(RO)}')
    a.e(f'v_lshlrev_b32 {V(RO+1)}, 10, v5', f'v_lshl_add_u32 {V(RO+1)}, v7, 6, {V(RO+1)}', f'v_lshl_add_u32 {V(RO+1)}, v6, 3, {V(RO+1)}')
    a.e(f'v_lshlrev_b32 {V(RO+2)}, 7, v7', f'v_lshl_add_u32 {V(RO+2)}, v6, 4, {V(RO+2)}')
    a.e(f'v_lshlrev_b32 {V(RO+3)}, 3, v5', f'v_add_u32 {V(RO+3)}, {RSTAT}, {V(RO+3)}')
    srd(a, 20, 80, 81, 2097152); srd(a, 24, 42, 43, 12288)
    a.e('s_lshl_b32 s31, s29, 13', 's_lshr_b32 s50, s29, 1', 's_lshl_b32 s50, s50, 14', 's_and_b32 s51, s29, 1', 's_lshl_b32 s51, s51, 7', 's_add_u32 s29, s50, s51')
def r_loads():
    r = [[[], f'buffer_load_dwordx2 {V(RX+4*i+2*v,2)}, {V(RO+1)}, s[20:23], s31 offen offset:{128*i+32*v}', ('r', 0)] for i in range(2) for v in range(2)]
    for part, reg in ((2, RGA), (4, RCB), (3, RSB)):
        for i in range(2):
            for v in range(2):
                r.append([[f's_mov_b32 s36, {part*2048}'] if (i == 0 and v == 0) else [], f'buffer_load_dwordx4 {V(reg+8*i+4*v,4)}, {V(RO+2)}, s[24:27], s36 offen offset:{256*i+64*v}{SC}', ('r', 0)])
    return r

def phase_r(a, L, opt, vm):
    PT = 16; F = 48
    n0 = opt.get('g_pre0', 3); n1 = opt.get('g_pre1', 4)
    srd(a, 12, 42, 43, 8388608, add=WS_PART); srd(a, 20, 42, 43, 4194304, add=WS_X1)
    signal(a, L, 1, vm.wait({('st', 0)})); mark(a, 4)
    for r in range(8): a.e(f'v_lshlrev_b32 {V(64+2*r)}, 16, {V(RX+r)}', f'v_and_b32 {V(65+2*r)}, 0xffff0000, {V(RX+r)}')
    poll(a, L, 1, FLB, vm); mark(a, 5)
    for ks in range(4):
        a.e(f's_add_u32 s50, s29, {ks << 21}')
        for i in range(2): a.e(f'buffer_load_dwordx4 {V(PT+8*ks+4*i,4)}, {V(RO)}, s[12:15], s50 offen offset:{2048*i}{SC}'); vm.add(('p', ks))
    for st in range(n0, n1):
        for sal, ins, tag in g_dma(st): a.e(sal, ins); vm.add(tag)
    for ks in range(4):
        a.e(vm.wait({('p', ks)}))
        for r in range(8):
            src = V(PT+8*ks+r)
            if ks == 0: a.e(f'v_lshlrev_b32 {V(F+2*r)}, 16, {src}', f'v_and_b32 {V(F+2*r+1)}, 0xffff0000, {src}')
            else: a.e(f'v_lshlrev_b32 v10, 16, {src}', f'v_and_b32 v11, 0xffff0000, {src}', f'v_add_f32 {V(F+2*r)}, {V(F+2*r)}, v10', f'v_add_f32 {V(F+2*r+1)}, {V(F+2*r+1)}, v11')
    for e in range(16): a.e(f'v_fmac_f32 {V(64+e)}, {V(F+e)}, {V(RGA+e)}')
    for r in range(8): a.e(f'v_cvt_pk_bf16_f32 {V(RX+r)}, {V(64+2*r)}, {V(65+2*r)}')
    for i in range(2): a.e(f'buffer_store_dwordx4 {V(RX+4*i,4)}, {V(RO)}, s[20:23], s29 offen offset:{2048*i}{SC}'); vm.add(('st', 1))
    F = 64
    a.e(f'v_add_f32 v10, {V(F)}, {V(F+1)}', f'v_mul_f32 v14, {V(F)}, {V(F)}', f'v_add_f32 v11, {V(F+2)}, {V(F+3)}', f'v_mul_f32 v15, {V(F+1)}, {V(F+1)}')
    for e in range(2, 16, 2):
        if e >= 4: a.e(f'v_add_f32 v10, v10, {V(F+e)}', f'v_add_f32 v11, v11, {V(F+e+1)}')
        a.e(f'v_fmac_f32 v14, {V(F+e)}, {V(F+e)}', f'v_fmac_f32 v15, {V(F+e+1)}, {V(F+e+1)}')
    a.e('v_add_f32 v10, v10, v11', 'v_add_f32 v11, v14, v15')
    for perm in ('32', '16'):
        a.e('v_mov_b32 v14, v10', 'v_mov_b32 v15, v11', 's_nop 0', f'v_permlane{perm}_swap_b32 v10, v14', f'v_permlane{perm}_swap_b32 v11, v15', 'v_add_f32 v10, v10, v14', 'v_add_f32 v11, v11, v15')
    a.e('s_lshl_b32 s50, s28, 6', f'v_add_u32 v13, s50, {V(RO+3)}')
    a.e('v_add_f32_dpp v10, v10, v10 row_ror:8 row_mask:0xf bank_mask:0xf', 's_nop 0', 'v_add_f32_dpp v11, v11, v11 row_ror:8 row_mask:0xf bank_mask:0xf')
    a.e('ds_write_b64 v13, v[10:11]', 's_waitcnt lgkmcnt(0)', 's_barrier')
    for i in range(4): a.e(f'ds_read_b64 v[{24+2*i}:{25+2*i}], {V(RO+3)} offset:{64*i}')
    a.e('s_waitcnt lgkmcnt(0)', 'v_pk_add_f32 v[24:25], v[24:25], v[26:27]', 'v_pk_add_f32 v[28:29], v[28:29], v[30:31]', 'v_pk_add_f32 v[24:25], v[24:25], v[28:29]')
    a.e(f'v_mul_f32 v24, {f32hex(1/512)}, v24', f'v_mov_b32 v26, {f32hex(1e-5)}', f'v_fmac_f32 v26, {f32hex(1/512)}, v25', 'v_fma_f32 v26, -v24, v24, v26',
        f'v_max_f32 v26, {f32hex(1e-5)}, v26', 'v_rsq_f32 v25, v26', f's_add_u32 s50, s29, {WS_H2 - WS_X1}')
    for e in range(16): a.e(f'v_sub_f32 {V(F+e)}, {V(F+e)}, v24')
    for e in range(16): a.e(f'v_mul_f32 {V(RCB+e)}, {V(RCB+e)}, v25')
    for e in range(16): a.e(f'v_fma_f32 {V(F+e)}, {V(F+e)}, {V(RCB+e)}, {V(RSB+e)}')
    for r in range(8): a.e(f'v_cvt_pk_bf16_f32 {V(PT+r)}, {V(F+2*r)}, {V(F+2*r+1)}')
    for i in range(2): a.e(f'buffer_store_dwordx4 {V(PT+4*i,4)}, {V(RO)}, s[20:23], s50 offen offset:{2048*i}{SC}'); vm.add(('st', 1))
    return vm

GR = 5; GSTG = 28672; GDA = 208
def g_setup():
    s0 = ['s_lshl_b32 s52, s44, 2', 's_add_u32 s52, s52, s46', 's_and_b32 s47, s28, 1', 's_mul_i32 s47, s47, 448', 's_mov_b32 s48, 4682', 's_mov_b32 s49, 3584']
    v = ['v_add_u32 v5, s47, v2']
    for i in range(7):
        v += [f'v_add_u32 v6, {64*i}, v5', 'v_mul_lo_u32 v7, v6, s48', 'v_lshrrev_b32 v7, 16, v7', 'v_mul_u32_u24 v8, 14, v7', 'v_sub_u32 v8, v6, v8',
              'v_mul_lo_u32 v9, v7, s49', 'v_lshl_add_u32 v9, v8, 4, v9', f'v_subrev_u32 {V(GDA+i)}, {1024*(i & 3)}, v9']
    b = Asm()
    b.e('s_cmp_lt_u32 s28, 2', 's_cselect_b32 s54, s68, s72', 's_cselect_b32 s55, s69, s73', 's_mul_i32 s56, s52, 224')
    srd(b, 16, 54, 55, 0, add='s56'); b.e(f's_sub_u32 s18, {512*3584}, s56')
    b.e('s_lshr_b32 s56, s28, 1', 's_mul_i32 s56, s56, 14336', 's_and_b32 s54, s28, 1', 's_mul_i32 s54, s54, 7168', 's_add_u32 s30, s56, s54')
    return s0, v, b.o
def g_dma(st):
    base = (st % GR) * GSTG
    return [[([f's_add_u32 m0, s30, {base + 4096*(i//4)}', f's_mov_b32 s34, {st*64*3584}'] if i % 4 == 0 else []),
             f'buffer_load_dwordx4 {V(GDA+i)}, s[16:19], s34 offen offset:{1024*(i&3)} lds', ('ga', st)] for i in range(7)]

def phase_g(a, L, opt, vm, Sched):
    ACC = 16; RA = 8; FA = 128; BD = 0
    n1 = opt.get('g_pre1', 4)
    a.e('v_lshrrev_b32 v5, 2, v2', 'v_mul_u32_u24 v5, 224, v5', 'v_and_b32 v6, 3, v2', f'v_lshl_add_u32 {V(RA)}, v6, 3, v5', 'v_lshlrev_b32 v7, 4, v2')
    for i in range(1, GR): a.e(f'v_add_u32 {V(RA+i)}, {i*GSTG}, {V(RA)}')
    a.e('s_lshl_b32 s47, s45, 2', 's_add_u32 s47, s47, s28', 's_lshl_b32 s48, s47, 15', f's_add_u32 s48, s48, {WS_H2}'); srd(a, 12, 42, 43, 32768, add='s48')
    a.e(f's_mul_i32 s47, s47, {112*1024}', 's_mul_i32 s48, s52, 7168', 's_add_u32 s47, s47, s48', f's_add_u32 s47, s47, {WS_HH}'); srd(a, 8, 42, 43, 7168, add='s47')
    signal(a, L, 2, vm.wait({('st', 1)})); mark(a, 6)
    def rd(n):
        ks, b = divmod(n, 14); st, tt = divmod(ks, 2)
        off = (b // 7)*14336 + tt*7168 + (b % 7)*32
        return [f'ds_read_b64_tr_b16 {A(FA+4*(n % 8)+2*v,2)}, {V(RA + st % GR)} offset:{off+3584*v}' for v in range(2)]
    D = opt.get('g_dist', 5)
    sc = Sched(a, age=6)
    d_setup(a)
    for n in range(D):
        for r in rd(n): sc.emit_filler(r)
    poll(a, L, 2, FLB, vm); mark(a, 7)
    def bl(ks):
        return [[[f's_mov_b32 s36, {qb*16384 + (ks & ~3)*1024}'], f'buffer_load_dwordx4 {A(BD+8*ks+4*qb,4)}, v7, s[12:15], s36 offen offset:{(ks & 3)*1024}{SC}', ('gb', ks)] for qb in range(2)]
    UP = opt.get('g_up', 6)
    for ks in range(UP):
        for sal, ins, tag in bl(ks): a.e(sal, ins); vm.add(tag)
    q = []
    for ks in range(UP, 16): q += bl(ks)
    for st in range(n1, GR): q = q[:4] + g_dma(st) + q[4:]
    NF = 16*14
    mf = []; gaps = []; pre = []
    a.e(vm.wait({('gb', 0)}))
    for n in range(NF):
        ks, b = divmod(n, 14)
        for qb in range(2):
            acc = V(ACC+8*b+4*qb, 4)
            mf.append(f'{MF} {acc}, {A(FA+4*(n % 8),4)}, {A(BD+8*ks+4*qb,4)}, {"0" if ks == 0 else acc}')
            gaps.append([]); pre.append([])
        nn = n + D
        if nn < NF:
            if nn % 28 == 0:
                s2 = nn // 28
                assert ('ga', s2) in vm.seen and not any(x[2] == ('ga', s2) for x in q)
                w = vm.wait({('ga', s2)})
                if s2 >= n1 or s2 + GR - 2 < 8: gaps[2*n-1] += w + ['s_barrier']
                if n1 <= s2 + GR - 2 < 8 and s2 + GR - 2 >= GR: q += g_dma(s2 + GR - 2)
            r = rd(nn)
            gaps[2*n].append(r[0]); gaps[2*n+1].append(r[1])
        if q and n % 2 == 0:
            sal, ins, tag = q.pop(0)
            pre[2*n] += sal; gaps[2*n+1].append(ins); vm.add(tag)
        if b == 13 and ks < 15:
            assert not any(x[2] == ('gb', ks+1) for x in q)
            gaps[2*n+1] += vm.wait({('gb', ks+1)})
    assert not q
    sc.run(mf, [pre[g] + gaps[g] for g in range(len(mf))])
    mark(a, 8)
    a.e('s_barrier')
    for b in range(7):
        t = ACC + 8*b
        for i in range(0, 8, 2): a.e(f'v_pk_mul_f32 {V(t+i,2)}, {V(t+i,2)}, {V(t+56+i,2)}')
        for i in range(4): a.e(f'v_cvt_pk_bf16_f32 {V(t+i)}, {V(t+2*i)}, {V(t+2*i+1)}')
        a.e(f's_mov_b32 s48, {(b*1024) & ~4095}', f'buffer_store_dwordx4 {V(t,4)}, v7, s[8:11], s48 offen offset:{(b*1024) & 4095}{SC}'); vm.add(('st', 2))
    return vm

DR = 9; DE = 128; DDA = 133; DRA = 137
def d_setup(a):
    E = DE
    a.e('s_lshl_b32 s54, s45, 1', 's_and_b32 s50, s44, 1', 's_add_u32 s54, s54, s50', 's_lshr_b32 s55, s44, 1', 's_lshl_b32 s55, s55, 2', 's_add_u32 s55, s55, s46')
    a.e('v_lshrrev_b32 v5, 3, v2', 'v_lshlrev_b32 v13, 1, v4', 'v_and_b32 v6, 7, v2', 'v_xor_b32 v13, v13, v6', 'v_lshlrev_b32 v13, 4, v13', 'v_lshl_add_u32 v13, v5, 10, v13')
    for i in range(4): a.e(f'v_add_u32 {V(DDA+i)}, {7*i*1024}, v13')
    a.e('s_lshl_b32 s50, s55, 7', f's_mul_i32 s51, s28, {14*32*1024}', 's_add_u32 s50, s50, s51')
    srd(a, 24, 76, 77, 0, add='s50'); a.e(f's_sub_u32 s26, {1792*1024}, s50', f's_mul_i32 s31, s28, {DR*4096}')
    a.e(f'v_and_b32 {V(E)}, 1, v6', f'v_lshlrev_b32 {V(E)}, 9, {V(E)}', f'v_lshl_add_u32 {V(E)}, v5, 4, {V(E)}', 'v_bfe_u32 v13, v6, 1, 1', f'v_lshl_add_u32 {V(E)}, v13, 3, {V(E)}', 'v_lshrrev_b32 v13, 2, v6', f'v_lshl_add_u32 {V(E)}, v13, 10, {V(E)}')
    a.e(f'v_lshlrev_b32 {V(E+1)}, 5, v6', f'v_lshlrev_b32 {V(E+2)}, 10, v5', f'v_lshl_add_u32 {V(E+2)}, v6, 4, {V(E+2)}')
    a.e(f'v_mul_u32_u24 {V(E+3)}, 272, v5', f'v_lshl_add_u32 {V(E+3)}, v6, 5, {V(E+3)}', 's_mul_i32 s47, s28, 4352', f'v_add_u32 {V(E+3)}, s47, {V(E+3)}')
    a.e(f'v_mul_u32_u24 {V(E+4)}, 272, v3', f'v_lshl_add_u32 {V(E+4)}, v4, 4, {V(E+4)}', 's_mul_i32 s47, s28, 17408', f'v_add_u32 {V(E+4)}, s47, {V(E+4)}')
    a.e('v_lshrrev_b32 v5, 2, v2', 'v_and_b32 v6, 3, v2', 'v_lshlrev_b32 v13, 7, v5', 'v_lshl_add_u32 v13, v6, 3, v13', 'v_add_u32 v13, s31, v13', 'v_bfe_u32 v5, v5, 1, 2')
    for nb in range(4): a.e(f'v_xor_b32 v6, {nb}, v5', f'v_lshl_add_u32 {V(DRA+nb)}, v6, 5, v13')
    a.e('s_lshl_b32 s47, s54, 2', 's_add_u32 s47, s47, s28', 's_lshl_b32 s49, s47, 14', 's_lshl_b32 s50, s55, 7', 's_add_u32 s56, s50, s49', 's_lshl_b32 s51, s55, 11', 's_add_u32 s57, s51, s49')
    a.e('s_lshl_b32 s58, s55, 8', f's_add_u32 s58, s58, {5*2048}')
    a.e(f's_mul_i32 s48, s54, {2*112*1024}', f's_mul_i32 s49, s28, {28*1024}', 's_add_u32 s48, s48, s49', f's_add_u32 s59, s48, {WS_HH}')
def d_dma(s):
    return [[([f's_add_u32 m0, s31, {(s % DR)*4096}', f's_mov_b32 s35, {s*32768}'] if i == 0 else []),
             f'buffer_load_dwordx4 {V(DDA+i)}, s[24:27], s35 offen offset:{1024*i} lds', ('da', s)] for i in range(4)]

def phase_d(a, L, opt, vm, Sched):
    NS = 14
    ACC = 0; FA = [64, 80]; XR = 96; GV = 104; RA = DRA; E = DE
    BR = lambda s: (16 + 16*s) if s < 7 else (144 + 16*(s-7))
    n0 = opt.get('d_pre0', 8); n0a = opt.get('d_pre0a', 3)
    for s in range(n0a):
        for sal, ins, tag in d_dma(s): a.e(sal, ins); vm.add(tag)
    srd(a, 12, 42, 43, 2*112*1024, add='s59')
    signal(a, L, 3, vm.wait({('st', 2)})); mark(a, 9)
    for s in range(n0a, n0):
        for sal, ins, tag in d_dma(s): a.e(sal, ins); vm.add(tag)
    srd(a, 16, 42, 43, 12288); srd(a, 8, 82, 83, 2097152)
    for p in range(2):
        for e in range(2): a.e(f'buffer_load_dwordx2 {A(XR+4*p+2*e,2)}, {V(E)}, s[20:23], s57 offen offset:{128*p+256*e}{SC}'); vm.add(('e', 0))
    for h in range(2): a.e(f'buffer_load_dwordx4 {A(GV+4*h,4)}, {V(E+1)}, s[16:19], s58 offen offset:{16*h}{SC}'); vm.add(('e', 0))
    poll(a, L, 3, FLB, vm); mark(a, 10)
    dma2 = d_dma
    def bload(s):
        return [[[f's_mov_b32 s36, {qp*112*1024 + 2048*s}'] if u == 0 else [], f'buffer_load_dwordx4 {V(BR(s)+8*qp+4*u,4)}, v7, s[12:15], s36 offen offset:{1024*u}{SC}', ('db', s)] for qp in range(2) for u in range(2)]
    def reads(s): return [f'ds_read_b64_tr_b16 {A(FA[s & 1]+4*x+2*v,2)}, {V(RA+x)} offset:{(s % DR)*4096+2048*v}' for x in range(4) for v in range(2)]
    def swaps(s): return [f'v_swap_b32 {V(BR(s)+8*qp+2+i)}, {V(BR(s)+8*qp+4+i)}' for qp in range(2) for i in range(2)]
    sc = Sched(a, age=6)
    PRE = opt.get('d_pre', 4)
    for s in range(PRE):
        for sal, ins, tag in bload(s): a.e(sal, ins); vm.add(tag)
        if s == 0:
            a.e(vm.wait({('da', 0)}))
            for r in reads(0): sc.emit_filler(r)
    a.e(vm.wait({('db', 0)}), swaps(0))
    nb_ = PRE; na_ = n0
    for s in range(NS):
        mf = [f'{MF} {A(ACC+16*nb+4*qb,4)}, {A(FA[s & 1]+4*nb,4)}, {V(BR(s)+4*qb,4)}, {"0" if s == 0 else A(ACC+16*nb+4*qb,4)}' for nb in range(4) for qb in range(4)]
        gaps = [[] for _ in mf]
        a.e('s_waitcnt lgkmcnt(0)'); sc.pend = []
        iss = []
        if nb_ < NS: iss += bload(nb_); nb_ += 1
        if na_ < NS and na_ <= s + DR and na_ <= nb_ + 1: iss += dma2(na_); na_ += 1
        elif nb_ < NS: iss += bload(nb_); nb_ += 1
        for g, (sal, ins, tag) in enumerate(iss[:7]):
            gaps[g] += sal + [ins]; vm.add(tag)
        if s + 1 < NS:
            assert ('da', s+1) in vm.seen and ('db', s+1) in vm.seen and not any(x[2][1] == s+1 for x in iss[7:])
            gaps[7] += vm.wait({('da', s+1), ('db', s+1)})
            for i, r in enumerate(reads(s+1)): gaps[7 + i//2].append(r)
            for i, x in enumerate(swaps(s+1)): gaps[11 + i//2].append(x)
        for i, (sal, ins, tag) in enumerate(iss[7:]):
            gaps[13] += sal + [ins]; vm.add(tag)
        sc.run(mf, gaps)
    assert nb_ == NS and na_ == NS, (nb_, na_)
    mark(a, 11)
    PT = 32
    a.e('s_nop 3', 's_barrier')
    for nb in range(4):
        for qb in range(4):
            a.e(f'ds_write_b128 {V(E+4)}, {A(ACC+16*nb+4*qb,4)} offset:{qb*16*272 + nb*64}')
    for i in range(8): a.e(f'v_accvgpr_read_b32 {V(112+i)}, {A(XR+i)}', f'v_accvgpr_read_b32 {V(120+i)}, {A(GV+i)}')
    for i in range(8): a.e(f'v_lshlrev_b32 {V(96+2*i)}, 16, {V(112+i)}', f'v_and_b32 {V(97+2*i)}, 0xffff0000, {V(112+i)}')
    a.e('s_waitcnt lgkmcnt(0)', 's_barrier')
    for p in range(2):
        for pw in range(4):
            for h in range(2): a.e(f'ds_read_b128 {V(PT+32*p+8*pw+4*h,4)}, {V(E+3)} offset:{pw*17408 + p*8*272 + h*16}')
    for p in range(2):
        b = PT + 32*p
        a.e(f's_waitcnt lgkmcnt({12-8*p})')
        for i in range(0, 8, 2): a.e(f'v_pk_add_f32 {V(b+i,2)}, {V(b+i,2)}, {V(b+8+i,2)}')
        a.e(f's_waitcnt lgkmcnt({8-8*p})')
        for i in range(0, 8, 2): a.e(f'v_pk_add_f32 {V(b+16+i,2)}, {V(b+16+i,2)}, {V(b+24+i,2)}')
        for i in range(0, 8, 2): a.e(f'v_pk_add_f32 {V(b+i,2)}, {V(b+i,2)}, {V(b+16+i,2)}')
        for i in range(0, 8, 2): a.e(f'v_pk_fma_f32 {V(96+8*p+i,2)}, {V(b+i,2)}, {V(120+i,2)}, {V(96+8*p+i,2)}')
        for i in range(4): a.e(f'v_cvt_pk_bf16_f32 {V(b+i)}, {V(96+8*p+2*i)}, {V(97+8*p+2*i)}')
        if p: a.e('s_add_u32 s56, s56, 8192')
        a.e(f'buffer_store_dwordx4 {V(b,4)}, {V(E+2)}, s[8:11], s56 offen{opt.get("wt_d", "")}')

def fused_post(a, L, opt, Sched):
    SYNC['mode'] = opt.get('sync', 'sflag'); SYNC['one'] = opt.get('one', 1)
    vm = phase_o(a, L, opt, Sched)
    vm = phase_r(a, L, opt, vm)
    vm = phase_g(a, L, opt, vm, Sched)
    phase_d(a, L, opt, vm, Sched)
    if TL['on']:
        a.e('s_waitcnt vmcnt(0)'); mark(a, 12)
        srd(a, 8, 42, 43, 1 << 20, add=(58 << 20))
        a.e('s_lshl_b32 s54, s2, 2', 's_add_u32 s54, s54, s28', 's_lshl_b32 s54, s54, 7', 'v_lshlrev_b32 v5, 2, v2', 's_mov_b32 exec_hi, 0')
        a.e(f'buffer_store_dword {V(DIAG)}, v5, s[8:11], s54 offen', 's_mov_b64 exec, -1')
    if TL.get('dm'):
        W, x, y, f = TL['dm']
        a.e('s_waitcnt vmcnt(0)'); mark(a, 12)
        a.e(f's_cmp_lg_u32 s2, {W}', f's_cbranch_scc1 {L}_dmx', 's_cmp_lg_u32 s28, 0', f's_cbranch_scc1 {L}_dmx')
        a.e('s_load_dwordx2 s[8:9], s[0:1], 96', 's_waitcnt lgkmcnt(0)', 's_mov_b32 s10, 256', 's_mov_b32 s11, 0x20000', f'v_subrev_u32 v6, s94, {V(DIAG)}', 'v_lshlrev_b32 v5, 2, v2', 'v_subrev_u32 v5, 16, v5',
            'buffer_store_dword v6, v5, s[8:11], 0 offen')
        if f:
            a.e(f'v_readlane_b32 s92, v6, {x}', f'v_readlane_b32 s93, v6, {y}', 's_nop 3', 's_sub_u32 s92, s93, s92', f's_mul_i32 s92, s92, {f}', 's_min_u32 s92, s92, 100000',
                'spinl:', 's_memrealtime s[96:97]', 's_waitcnt lgkmcnt(0)', 's_sub_u32 s96, s96, s98', 's_cmp_lt_u32 s96, s92', 's_cbranch_scc1 spinl')
        a.e(f'{L}_dmx:')

WS_TAG = 32768
def front_addr(a):
    pass

WS_MODP = 24576
def phase_front(a, L, opt, wq, emit_list, vm, setup, HV):
    import math
    WA_ = wq(0, 4) + (wq(4, 4) if opt.get('w_pre', 16) == 16 else [])
    wn = [0]
    def wdma(lo=0):
        def em(lst):
            for sal, ins, tag in lst: a.e([x.replace('s50', 's56') for x in sal], ins.replace('s50', 's56'))
        em(WA_[lo:8])
        wn[0] += 1
        if opt.get('ghost', 0): a.e('s_cmp_eq_u32 s28, 3', f's_cbranch_scc1 {L}_fw{wn[0]}')
        em(WA_[8:]); a.e(f'{L}_fw{wn[0]}:')
    a.e('s_mov_b32 s62, 256', 's_mov_b32 s63, 0x20000')
    a.e('s_cmp_lg_u32 s2, 255', f's_cbranch_scc1 {L}_f1', 's_cmp_lg_u32 s28, 0', f's_cbranch_scc1 {L}_f1', 's_or_b32 s50, s86, 0x80000000')
    a.e('s_mov_b64 exec, 1', 'v_mov_b32 v12, 0', 'v_mov_b32 v11, s50', f'buffer_store_dword v11, v12, s[60:63], 0 offen{SC}', 's_mov_b64 exec, -1', f'{L}_f1:')
    a.e('s_cmp_lt_u32 s2, 128', f's_cbranch_scc1 {L}_fm0')
    a.e('s_and_b32 s50, s2, 1', 's_lshl_b32 s50, s50, 6', 's_bfe_u32 s51, s2, 0x20001', 's_lshl_b32 s51, s51, 4', 's_add_u32 s50, s50, s51', 's_bfe_u32 s51, s2, 0x40003', 's_add_u32 s47, s50, s51')
    srd(a, 8, 80, 81, 2097152)
    a.e('s_lshl_b32 s50, s47, 14', 's_lshl_b32 s51, s28, 8', 's_add_u32 s50, s50, s51', 'v_lshlrev_b32 v5, 10, v3', 'v_lshl_add_u32 v5, v4, 4, v5')
    for i in range(4): a.e(f'buffer_load_dwordx4 {V(16+4*i,4)}, v5, s[8:11], s50 offen offset:{64*i}{opt.get("xnt", "")}')
    a.e(f's_branch {L}_fj0')
    a.e(f'{L}_fm0:')
    srd(a, 8, 56, 57, 1024); srd(a, 12, 58, 59, 512*6144)
    E0 = opt.get('e0', 0)
    if E0:
        a.e('s_cmp_lg_u32 s28, 0', f's_cbranch_scc1 {L}_fe0')
        for sal, ins, tag in WA_[:E0]: a.e(sal, ins)
        a.e(f'{L}_fe0:')
    a.e('v_lshrrev_b32 v5, 2, v2', 's_lshl_b32 s50, s28, 4', 'v_add_u32 v5, s50, v5', 's_mov_b32 s51, 6144', 'v_mul_lo_u32 v6, v5, s51', 'v_and_b32 v7, 3, v2', 'v_lshl_add_u32 v6, v7, 4, v6', 'v_lshlrev_b32 v5, 1, v5')
    a.e('s_and_b32 s50, s2, 31', 's_lshr_b32 s51, s2, 5', 's_cmp_lt_u32 s2, 64', f's_cbranch_scc1 {L}_fa0')
    a.e('s_sub_u32 s50, s2, 32', 's_lshl_b32 s52, s50, 6', f's_add_u32 s52, s52, {256*6144}')
    for i in range(4, 8): a.e(f'buffer_load_ushort {V(64+i)}, v5, s[8:11], 0 offen offset:{i*128}')
    for i in range(4, 8): a.e(f'buffer_load_dwordx4 {V(16+4*i,4)}, v6, s[12:15], s52 offen{opt.get("mnt", "")}', f's_add_u32 s52, s52, {64*6144}')
    a.e('s_mov_b32 s51, 0', f'{L}_fa0:')
    a.e('s_mov_b32 s47, s50', 's_lshl_b32 s52, s50, 6', f's_mul_i32 s53, s51, {256*6144}', 's_add_u32 s52, s52, s53', 's_lshl_b32 s53, s51, 9')
    for i in range(4): a.e(f'buffer_load_ushort {V(64+i)}, v5, s[8:11], s53 offen offset:{i*128}')
    for i in range(4): a.e(f'buffer_load_dwordx4 {V(16+4*i,4)}, v6, s[12:15], s52 offen{opt.get("mnt", "")}', f's_add_u32 s52, s52, {64*6144}' if i < 3 else [])
    a.e(f'{L}_fj0:')
    NC = 0
    if opt.get('cpf', 1):
        a.e('s_getpc_b64 s[50:51]', f'{L}_pc:', f's_sub_u32 s50, s50, {L}_pc - code_begin', 's_subb_u32 s51, s51, 0')
        a.e('s_lshr_b32 s52, s2, 3', 's_lshl_b32 s52, s52, 2', 's_add_u32 s52, s52, s28', 's_lshl_b32 s52, s52, 12', 'v_lshlrev_b32 v80, 6, v2', 'v_add_u32 v80, s52, v80',
            'v_min_u32 v80, code_end - code_begin - 4, v80', 'global_load_dword v80, v80, s[50:51]'); NC += 1
    setup()
    def tagload(): a.e('v_mov_b32 v82, 0', f'buffer_load_dword v81, v82, s[60:63], 0 offen{SC}')
    def gettag(n):
        a.e('s_mov_b32 s53, 0', f'{L}_ft{n}:', 's_waitcnt vmcnt(0)', 'v_readfirstlane_b32 s39, v81', 's_add_u32 s53, s53, 1', 's_cmp_gt_u32 s53, 200000', f's_cbranch_scc1 {L}_ftd{n}',
            's_nop 1', 's_cmp_lg_u32 s39, 0', f's_cbranch_scc1 {L}_ftd{n}', f'buffer_load_dword v81, v82, s[60:63], 0 offen{SC}', f's_branch {L}_ft{n}', f'{L}_ftd{n}:')
    def flag():
        srd(a, 52, 42, 43, 16384, add=WS_FLAG + 4*16384)
        a.e('s_lshl_b32 s50, s2, 6', 's_mov_b64 exec, 1', 'v_mov_b32 v5, s50', 'v_mov_b32 v9, s39', f'buffer_store_dword v9, v5, s[52:55], 0 offen{SC}', 's_mov_b64 exec, -1')
    a.e('s_cmp_lt_u32 s2, 128', f's_cbranch_scc1 {L}_fm1')
    a.e('v_lshlrev_b32 v5, 4, v3', 'v_lshrrev_b32 v8, 1, v4', 'v_lshl_add_u32 v5, v8, 10, v5', 'v_and_b32 v8, 1, v4', 'v_lshl_add_u32 v5, v8, 9, v5')
    a.e('s_lshr_b32 s50, s47, 1', 's_lshl_b32 s50, s50, 15', 's_and_b32 s51, s47, 1', 's_lshl_b32 s51, s51, 8', 's_add_u32 s50, s50, s51', 's_lshl_b32 s51, s28, 13', 's_add_u32 s47, s50, s51')
    srd(a, 52, 42, 43, 2097152, add=WS_H)
    a.e('v_lshlrev_b32 v12, 3, v3', 's_lshl_b32 s50, s28, 7', 'v_add_u32 v13, s50, v12')
    a.e(f's_waitcnt vmcnt({NC})'); mark2(a, 17)
    LNW = opt.get('ln_w', 4)
    for sal, ins, tag in WA_[:LNW]: a.e([x.replace('s50', 's56') for x in sal], ins.replace('s50', 's56'))
    for i in range(16): a.e(f'v_lshlrev_b32 {V(32+2*i)}, 16, {V(16+i)}', f'v_and_b32 {V(33+2*i)}, 0xffff0000, {V(16+i)}')
    a.e('v_add_f32 v8, v32, v33', 'v_mul_f32 v9, v32, v32', 'v_add_f32 v10, v34, v35', 'v_mul_f32 v11, v33, v33')
    for e in range(2, 32, 2):
        if e >= 4: a.e(f'v_add_f32 v8, v8, {V(32+e)}', f'v_add_f32 v10, v10, {V(33+e)}')
        a.e(f'v_fmac_f32 v9, {V(32+e)}, {V(32+e)}', f'v_fmac_f32 v11, {V(33+e)}, {V(33+e)}')
    a.e('v_add_f32 v8, v8, v10', 'v_add_f32 v9, v9, v11')
    for perm in ('32', '16'):
        a.e('v_mov_b32 v10, v8', 'v_mov_b32 v11, v9', 's_nop 0', f'v_permlane{perm}_swap_b32 v8, v10', f'v_permlane{perm}_swap_b32 v9, v11', 'v_add_f32 v8, v8, v10', 'v_add_f32 v9, v9, v11')
    tagload()
    a.e('ds_write_b64 v13, v[8:9]', 's_waitcnt lgkmcnt(0)', 's_barrier')
    for i in range(4): a.e(f'ds_read_b64 {V(16+2*i,2)}, v12 offset:{128*i}')
    a.e('s_waitcnt lgkmcnt(0)', 'v_pk_add_f32 v[16:17], v[16:17], v[18:19]', 'v_pk_add_f32 v[20:21], v[20:21], v[22:23]', 'v_pk_add_f32 v[16:17], v[16:17], v[20:21]')
    a.e(f'v_mul_f32 v8, {f32hex(1/512)}, v16', f'v_mov_b32 v9, {f32hex(1e-5)}', f'v_fmac_f32 v9, {f32hex(1/512)}, v17', 'v_fma_f32 v9, -v8, v8, v9', f'v_max_f32 v9, {f32hex(1e-5)}, v9', 'v_rsq_f32 v9, v9', 's_add_u32 s50, s47, 4096')
    a.e('v_mul_f32 v8, v8, v9')
    for e in range(32): a.e(f'v_fma_f32 {V(32+e)}, {V(32+e)}, v9, -v8')
    for i in range(16): a.e(f'v_cvt_pk_f16_f32 {V(16+i)}, {V(32+2*i)}, {V(33+2*i)}')
    for i in range(4): a.e(f'buffer_store_dwordx4 {V(16+4*i,4)}, v5, s[52:55], {"s47" if i < 2 else "s50"} offen offset:{2048*(i & 1)}{SC}')
    mark2(a, 18)
    gettag(0)
    a.e('s_barrier', 's_cmp_lg_u32 s28, 0', f's_cbranch_scc1 {L}_fl1'); flag(); a.e(f'{L}_fl1:')
    wdma(LNW)
    a.e(f's_branch {L}_fj1')
    a.e(f'{L}_fm1:')
    a.e('v_and_b32 v5, 3, v2', 'v_lshlrev_b32 v12, 5, v5', 'v_and_b32 v5, 1, v4', 'v_lshl_add_u32 v12, v5, 3, v12', 'v_lshrrev_b32 v5, 5, v2', 'v_lshl_add_u32 v12, v5, 4, v12', 's_lshl_b32 s50, s28, 7', 'v_add_u32 v12, s50, v12')
    a.e(f's_mov_b32 s50, {f32hex(-math.log2(math.e))}')
    for d in range(8): a.e(f'v_mov_b32 {V(48+d)}, 0')
    def silu(rng):
        for i in rng: a.e(f'v_lshlrev_b32 {V(64+i)}, 16, {V(64+i)}')
        for i in rng: a.e(f'v_mul_f32 {V(72+i)}, s50, {V(64+i)}')
        for i in rng: a.e(f'v_exp_f32 {V(72+i)}, {V(72+i)}')
        a.e('s_nop 0')
        for i in rng: a.e(f'v_add_f32 {V(72+i)}, 1.0, {V(72+i)}')
        for i in rng: a.e(f'v_rcp_f32 {V(72+i)}, {V(72+i)}')
        a.e('s_nop 0')
        for i in rng: a.e(f'v_mul_f32 {V(64+i)}, {V(64+i)}, {V(72+i)}')
        for i in rng: round_bf16(a, V(64+i), V(64+i))
    def fma(i):
        for d in range(4):
            w = 16+4*i+d
            a.e(f'v_lshlrev_b32 v8, 16, {V(w)}', f'v_and_b32 v9, 0xffff0000, {V(w)}', f'v_fmac_f32 {V(48+2*d)}, v8, {V(64+i)}', f'v_fmac_f32 {V(49+2*d)}, v9, {V(64+i)}')
    a.e('s_cmp_lt_u32 s2, 64', f's_cbranch_scc1 {L}_fa1')
    a.e(f's_waitcnt vmcnt({NC+12})'); silu(range(4, 8))
    for i in range(4, 8): a.e(f's_waitcnt vmcnt({NC+8+7-i})'); fma(i)
    a.e(f'{L}_fa1:', f's_waitcnt vmcnt({NC+4})'); silu(range(4))
    for i in range(4):
        a.e(f's_waitcnt vmcnt({NC+3-i})')
        if i == 3: mark2(a, 17); tagload()
        fma(i)
    a.e('s_nop 1')
    for i in range(4): a.e(f'v_permlane32_swap_b32 v{48+i}, v{52+i}')
    for i in range(4): a.e(f'v_add_f32 v{48+i}, v{48+i}, v{52+i}')
    a.e('s_nop 0')
    for i in range(2): a.e(f'v_permlane16_swap_b32 v{48+i}, v{50+i}')
    for i in range(2): a.e(f'v_add_f32 v{48+i}, v{48+i}, v{50+i}')
    for r in (4, 8):
        a.e('s_nop 1')
        for i in range(2): a.e(f'v_add_f32_dpp v{48+i}, v{48+i}, v{48+i} row_ror:{r} row_mask:0xf bank_mask:0xf')
    a.e('ds_write_b64 v12, v[48:49]', 'v_and_b32 v5, 31, v2', 'v_lshlrev_b32 v5, 2, v5', 's_waitcnt lgkmcnt(0)', 's_barrier')
    a.e('s_cmp_eq_u32 s28, 0', f's_cbranch_scc1 {L}_fm2')
    gettag(1); wdma(); a.e(f's_branch {L}_fj1')
    a.e(f'{L}_fm2:')
    for i in range(4): a.e(f'ds_read_b32 {V(16+i)}, v5 offset:{128*i}')
    srd(a, 52, 42, 43, 65536)
    a.e('s_lshl_b32 s50, s47, 7', 'v_add_u32 v5, s50, v5', 's_lshr_b32 s51, s2, 5', 's_lshl_b32 s51, s51, 12', f's_add_u32 s51, s51, {WS_MODP}')
    a.e('s_waitcnt lgkmcnt(0)', 'v_add_f32 v16, v16, v17', 'v_add_f32 v18, v18, v19', 'v_add_f32 v16, v16, v18')
    a.e('s_cmp_lt_u32 s2, 64', f's_cbranch_scc1 {L}_fa2')
    a.e('s_lshr_b32 s50, s47, 4', 's_cmp_eq_u32 s50, 4', 's_cselect_b32 s50, 1.0, 0', 's_mov_b32 s51, 0')
    round_bf16(a, 'v16', 'v16'); a.e('v_add_f32 v16, s50, v16'); round_bf16(a, 'v16', 'v16')
    a.e(f'{L}_fa2:', 's_mov_b32 exec_hi, 0', f'buffer_store_dword v16, v5, s[52:55], s51 offen{SC}', 's_mov_b64 exec, -1')
    mark2(a, 18)
    gettag(2); flag(); wdma(opt.get('e0', 0))
    a.e(f'{L}_fj1:'); mark2(a, 16)
    a.e('s_lshr_b32 s50, s45, 2', 's_and_b32 s51, s50, 3', 's_lshl_b32 s51, s51, 1', 's_lshr_b32 s50, s50, 2', 's_add_u32 s50, s50, s51', 's_add_u32 s50, s50, 128')
    a.e('v_lshlrev_b32 v8, 3, v3', 'v_add_u32 v8, s50, v8', 'v_lshlrev_b32 v8, 6, v8', 'v_lshlrev_b32 v10, 6, v2')
    srd(a, 52, 42, 43, 16384, add=WS_FLAG + 4*16384); srd(a, 24, 42, 43, 8192, add=WS_MODP)
    a.e('s_cmp_lg_u32 s28, 3', f's_cbranch_scc1 {L}_pd4', 's_mov_b32 s50, 0', f'{L}_pl4:', f'buffer_load_dword v5, v8, s[52:55], 0 offen{SC}', f'buffer_load_dword v9, v10, s[52:55], 0 offen{SC}',
        's_add_u32 s50, s50, 1', 's_waitcnt vmcnt(0)', 'v_cmp_eq_u32 vcc, s39, v5', 'v_cmp_eq_u32 s[56:57], s39, v9', 's_cmp_gt_u32 s50, 200000', f's_cbranch_scc1 {L}_pd4',
        's_and_b64 vcc, vcc, s[56:57]', 's_cmp_eq_u64 vcc, -1', f's_cbranch_scc1 {L}_pd4', f's_sleep {opt.get("psleep", 0)}' if opt.get('psleep', 0) else [], f's_branch {L}_pl4', f'{L}_pd4:')
    a.e('s_waitcnt vmcnt(8)', 's_barrier'); mark2(a, 19); unpark0(a)
    del vm[:]
    for h in range(2): a.e(f's_add_u32 s50, s49, {4096*h}' , f'buffer_load_dwordx4 {V(16+4*h,4)}, {V(HV)}, s[24:27], s50 offen{SC}'); vm.append(('m', 0))

def front_late(a, L, wq, vm, opt):
    if not opt.get('ghost', 0): return
    a.e('s_cmp_lg_u32 s28, 3', f's_cbranch_scc1 {L}_fwl')
    for sal, ins, tag in wq(4, 4): a.e(sal, ins)
    a.e(f'{L}_fwl:')
    vm.append(('w', 4, 'ghost'))

def front_table(a, HV):
    a.e('s_cmp_ge_u32 s28, 2', 's_cselect_b32 s50, 1.0, 0', 's_xor_b32 s51, s49, 2048', 's_add_u32 s51, s51, 147456', f'v_add_u32 v5, s51, {V(HV)}')
    for i in range(4): a.e(f'v_add_f32 {V(16+i)}, {V(16+i)}, {V(20+i)}')
    for i in range(4): round_bf16(a, V(16+i), V(16+i))
    for i in range(4): a.e(f'v_add_f32 {V(16+i)}, s50, {V(16+i)}')
    for i in range(4): round_bf16(a, V(16+i), V(16+i))
    for i in range(4): a.e(f'v_mul_f32 {V(16+i)}, {f32hex(QSCALE)}, {V(16+i)}')
    a.e('ds_write_b128 v5, v[16:19]', 's_waitcnt lgkmcnt(0)')
```

```python
from asmlib import *
from gen_pre import *
import gen_fuse as gf
import re

S_ = [16, 48]; P_ = [80, 96]; CI = 112; VT = 128
KA = 144; VA = 148; DK = 156; DV = 160; LV = 162; ONES = 172; LM = 176; Q = 192
WA = 176; DW = 180; HV = 181
AO = 0; AK = 192; AV = 224
DELTA = 100.0
MF = 'v_mfma_f32_16x16x32_bf16'
NT = {'kv': '', 'wq': ''}
PF = 136

class Sched:
    def __init__(self, a, age=8):
        self.a = a
        self.pend = []
        self.t = 0; self.age = age
    @staticmethod
    def regs(tok):
        m = re.match(r'([av])\[(\d+):(\d+)\]', tok)
        if m: return {(m.group(1), i) for i in range(int(m.group(2)), int(m.group(3))+1)}
        m = re.match(r'([av])(\d+)$', tok)
        if m: return {(m.group(1), int(m.group(2)))}
        return set()
    def need(self, ins):
        ops = [t.strip() for t in ins.split(None, 1)[1].split(',')]
        rs = set()
        for t in ops[1:3]: rs |= self.regs(t.split()[0])
        last = -1
        for i, p in enumerate(self.pend):
            if p[0] & rs: last = i
        if last < 0: return None
        while last + 1 < len(self.pend) and self.pend[last+1][1] <= self.t - self.age: last += 1
        return len(self.pend) - 1 - last
    def wait(self, n):
        n = min(n, 15)
        self.a.e(f's_waitcnt lgkmcnt({n})')
        self.pend = self.pend[len(self.pend)-n:] if n else []
    def emit_filler(self, ins):
        if ins.startswith('WAITDS '):
            n = self.need('x d, ' + ins[7:])
            if n is not None: self.wait(n)
            return
        self.a.e(ins)
        if ins.startswith('ds_read') or ins.startswith('ds_bpermute'):
            self.pend.append((self.regs(ins.split(None, 1)[1].split(',')[0].strip()), self.t))
        elif ins.startswith('ds_'):
            self.pend.append((set(), self.t))
        elif ins.startswith('s_waitcnt') and 'lgkmcnt(0)' in ins:
            self.pend = []
    def run(self, mf, gaps, nextmf=None):
        n0 = self.need(mf[0]) if mf else None
        if n0 is not None: self.wait(n0)
        for g, m in enumerate(mf):
            self.a.e(m); self.t += 1
            nxt = mf[g+1] if g+1 < len(mf) else nextmf
            if nxt is not None:
                n = self.need(nxt)
                if n is not None: self.wait(n)
            for f in gaps[g]: self.emit_filler(f)
            if nxt is not None:
                n = self.need(nxt)
                if n is not None: self.wait(n)

def qk_mfmas(Sw, czero=False, order='kqt'):
    it = [(kb, qb, t) for kb in range(2) for qb in range(4) for t in range(4)] if order == 'kqt' else \
         [(kb, qb, t) for qb in range(4) for kb in range(2) for t in range(4)]
    r = []
    for kb, qb, t in it:
        d = Sw + 8*qb + 4*kb
        c = (('0' if czero else V(CI+4*qb, 4)) if t == 0 else V(d, 4))
        r.append(f'{MF} {V(d,4)}, {A(AK+16*kb+4*t,4)}, {V(Q+16*qb+4*t,4)}, {c}')
    return r

def pv_mfmas(Pr, XQ, first=False):
    r = []
    for db in range(8):
        for qb in range(4):
            o = AO + 16*db + 4*qb
            r.append(f'{MF} {A(o,4)}, {V(Pr+4*qb,4)}, {A(AV+4*db,4)}, {"0" if first else A(o,4)}')
    for qb in XQ:
        r.append(f'{MF} {V(LM+4*qb,4)}, {V(Pr+4*qb,4)}, {V(ONES,4)}, {"0" if first else V(LM+4*qb,4)}')
    return r

def vreads(base_reg, off):
    return [f'ds_read_b64_tr_b16 {A(AV+4*db+2*u,2)}, {V(base_reg+db)} offset:{off+4096*u}' for db in range(8) for u in range(2)]
def kreads(off):
    return [f'ds_read_b128 {A(AK+4*f,4)}, {V(KA+(f&3))} offset:{off+4096*(f>>2)}' for f in range(8)]

def sm_items(Sr, Pw, XQ):
    exps = [f'v_exp_f32 {V(Sr+e)}, {V(Sr+e)}' for e in range(32)]
    items = []
    for e in range(32):
        qb = e >> 3
        if qb not in XQ:
            l = LV + 2*qb + (e & 1)
            items.append((e, f'v_add_f32 {V(l)}, {V(l)}, {V(Sr+e)}'))
        if e & 1: items.append((e, f'v_cvt_pk_bf16_f32 {V(Pw+e//2)}, {V(Sr+e-1)}, {V(Sr+e)}'))
    return exps, items

def dma_group(isV, grp, m0s, soff):
    srd_ = 's[12:15]' if isV else 's[8:11]'
    st = f's_mov_b32 m0, {m0s}' if grp == 0 else f's_add_u32 m0, {m0s}, 4096'
    r = []
    for j in range(4):
        vo = DV + (j & 1) if isV else DK + j
        r.append(f'buffer_load_dwordx4 {V(vo)}, {srd_}, {soff} offen offset:{j*1024}{NT["kv"]} lds')
    return st, r

def normal_slot(sc, opt, s, dmas, kread=True, first_pv=False, late_v=None, salu=(), extra_v=(), salu0=40):
    XQ = opt['XQ']
    par = s & 1
    mf = qk_mfmas(S_[par ^ 1]) + pv_mfmas(P_[par ^ 1], XQ, first_pv)
    N = len(mf)
    gaps = [[] for _ in range(N)]; cap = [0 if (g < 64 and g % 2 == 0) else 2 for g in range(N)]
    pre = [[] for _ in range(N)]
    exps, items = sm_items(S_[par], P_[par], XQ)
    for e in range(32): gaps[2*e].append(exps[e])
    for n, (sal, ins) in enumerate(dmas):
        g = opt['dpos'][n]
        for k, x in enumerate(sal): pre[g-1-k].append(x)
        gaps[g].append(ins); cap[g] -= opt['dcost']
    if opt.get('nodma'):
        gaps = [[x for x in gp if not x.startswith('buffer_load')] for gp in gaps]
    for k, x in enumerate(salu): pre[salu0 + (2 if salu0 == 40 else 1)*k].append(x)
    LAT = opt.get('dslat', 10)
    ds = []
    for i, r in enumerate(vreads(VA, ((s-1) % 8)*8192)): ds.append((0, 32 + 4*(i >> 1) - LAT, r))
    if kread:
        for f, r in enumerate(kreads(((s+2) % 8)*8192)): ds.append((16 if f < 4 else 32, N - LAT if (f < 4 or (s % 4) == 3) else N - 1, r))
    if late_v is not None:
        for i, r in enumerate(late_v): ds.append((min(36 + 4*(i >> 1), N-1), N - 1, r))
    va = [(2*e + 1, N - 1, t) for e, t in items]
    for i, t in enumerate(extra_v): va.append((4*i + 1, N - 1, t))
    va.sort(key=lambda x: x[0])
    maxds = opt.get('maxds', 1)
    for g in range(N):
        nds = 0
        while cap[g] > 0:
            rd = [x for x in ds if x[0] <= g]
            rv = [x for x in va if x[0] <= g]
            pick = None
            if rd:
                rd.sort(key=lambda x: x[1])
                urgent = rd[0][1] <= g + 2*sum(1 for x in rd if x[1] <= rd[0][1] + 4)
                if nds < maxds or urgent or not rv: pick = ('d', rd[0])
            if pick is None and rv: pick = ('v', rv[0])
            if pick is None: break
            if pick[0] == 'd':
                ds.remove(pick[1]); gaps[g].insert(nds, pick[1][2]); nds += 1
            else:
                va.remove(pick[1]); gaps[g].append(pick[1][2])
            cap[g] -= 1
    gaps[N-1] = [x[2] for x in ds] + gaps[N-1] + [x[2] for x in va]
    if opt.get('verbose'): print('slot', s, 'overflow', len(ds), len(va), 'free', sum(cap))
    sc.run(mf, [pre[g] + gaps[g] for g in range(N)], nextmf=(qk_mfmas(S_[par])[0] if kread else None))

def packed(sc, mf, ds_at, exps, items, extra=None):
    N = len(mf)
    gaps = [[] for _ in range(N)]
    for g, r in ds_at: gaps[g].append(r)
    q = list(items); ne = len(exps)
    e = 0
    for g in range(N):
        k = 0
        while q and q[0][0] < e and k < 2:
            gaps[g].append(q.pop(0)[1]); k += 1
        if e < ne: gaps[g].append(exps[e]); e += 1
    assert e == ne
    if q: gaps[N-1] += ['s_nop 0'] + [x[1] for x in q]
    if extra:
        for g, x in extra: gaps[g].append(x)
    sc.run(mf, gaps)

def epoch_dmas(E, opt, mode='full'):
    p = E & 1
    r = []
    for isV in (0, 1):
        for grp in (0, 1):
            st, ins = dma_group(isV, grp, f's{30+2*isV+p}', f's{34+2*isV+grp}')
            for j, x in enumerate(ins):
                sal = [st] if j == 0 else []
                r.append([sal, x])
    return r

def stamp(a, opt, idx):
    if opt.get('stamps'):
        a.e(f's_memtime s[{80+2*idx}:{81+2*idx}]')

def gen_attn(a, opt=None):
    opt = dict(opt or {})
    opt.setdefault('XQ', [0, 2]); opt.setdefault('kpos', [33, 35, 37, 39, 41, 43, 45, 47])
    opt.setdefault('dpos', [5, 15, 25, 35, 45, 55, 61, 51]); opt.setdefault('dcost', 2); opt.setdefault('dsplit', [6, 5, 5, 0])
    XQ = opt['XQ']
    assert opt['dsplit'][3] == 0 and opt['dpos'][:max(opt['dsplit'])] == sorted(opt['dpos'][:max(opt['dsplit'])])
    NT['kv'] = ' nt' if opt.get('ntkv', 1) else ''; NT['wq'] = ' nt' if opt.get('ntwq', 0) else ''
    single = opt.get('single', 1)
    L = 'attn_kernel' if not single else NAME + '_kernel'
    if single: a.e('.text', 'code_begin:')
    kernel_head(a, L)
    a.e('s_cmp_ge_u32 s2, 256', f's_cbranch_scc1 {L}_end')
    tl_start(a)
    stamp(a, opt, 0)
    if opt.get('stamps'): a.e('s_memrealtime s[92:93]')
    a.e('s_load_dwordx4 s[4:7], s[0:1], 8', 's_load_dwordx2 s[40:41], s[0:1], 24', 's_load_dwordx2 s[42:43], s[0:1], 104')
    fuse = opt.get('fuse', 1)
    if fuse:
        a.e('s_load_dwordx2 s[80:81], s[0:1], 0', 's_load_dwordx2 s[82:83], s[0:1], 88')
    if single: a.e('s_load_dwordx4 s[56:59], s[0:1], 72', 's_load_dwordx2 s[60:61], s[0:1], 96', 's_memrealtime s[86:87]')
    a.e('s_load_dwordx2 s[64:65], s[0:1], 32', 's_load_dwordx2 s[68:69], s[0:1], 48', 's_load_dwordx2 s[72:73], s[0:1], 56', 's_load_dwordx2 s[76:77], s[0:1], 64')
    a.e('v_lshrrev_b32 v1, 6, v0', 'v_and_b32 v2, 63, v0', 'v_readfirstlane_b32 s28, v1')
    if opt.get('map', 8) == 4:
        a.e('s_and_b32 s44, s2, 7', 's_lshl_b32 s44, s44, 2', 's_lshr_b32 s45, s2, 3', 's_and_b32 s46, s45, 3', 's_add_u32 s44, s44, s46')
        a.e('s_lshr_b32 s45, s45, 2')
    else:
        a.e('s_bfe_u32 s44, s2, 0x20001', 's_lshl_b32 s44, s44, 3', 's_bfe_u32 s46, s2, 0x30003', 's_add_u32 s44, s44, s46')
        a.e('s_and_b32 s45, s2, 1', 's_lshl_b32 s45, s45, 2', 's_lshr_b32 s46, s2, 6', 's_add_u32 s45, s45, s46')
    a.e('s_lshl_b32 s45, s45, 2', 's_add_u32 s45, s45, s28')
    CU = [(144, 148), (152, 160), (164, 168)]
    WA = 172; DW = 0; HV = 14; CSA = 15; TM = 8; RING = 176
    MF32 = 'v_mfma_f32_32x32x16_bf16'
    a.e('v_and_b32 v3, 15, v2', 'v_lshrrev_b32 v4, 4, v2')
    a.e('v_lshlrev_b32 v5, 2, v4', 'v_xor_b32 v5, v5, v3', 'v_lshlrev_b32 v5, 4, v5', f'v_lshl_add_u32 {V(DW)}, v4, 13, v5')
    a.e(f'v_lshlrev_b32 {V(HV)}, 4, v2')
    a.e('s_lshl_b32 s48, s28, 13', 's_lshl_b32 s49, s28, 10')
    a.e('s_waitcnt lgkmcnt(0)')
    a.e('s_lshl_b32 s46, s44, 8'); srd(a, 16, 40, 41, 0, add='s46'); a.e('s_sub_u32 s18, 4194304, s46')
    vm = []
    def vmwait(tags, extra=''):
        last = max([i for i, t in enumerate(vm) if t[:2] in tags], default=-1)
        if last < 0: return [f's_waitcnt{extra}'] if extra else []
        n = sum(1 for t in vm[last+1:] if len(t) == 2)
        del vm[:last+1]
        return [f's_waitcnt vmcnt({n}){extra}']
    HS = ' sc1' if single else ''
    def modq():
        srd(a, 24, 42, 43, 4096, add=WS_MODQ)
        a.e('s_add_u32 m0, s49, 147456', 's_nop 0', f'buffer_load_dwordx4 {V(HV)}, s[24:27], s49 offen{HS} lds'); vm.append(('w', 0))
    if not single: modq()
    a.e('s_lshl_b32 s46, s45, 16', f's_add_u32 s46, s46, {WS_H}'); srd(a, 20, 42, 43, 65536, add='s46')
    def wq(s0, n):
        r = []
        for i in range(2*n):
            sal = []
            if i == 0: sal += [f's_mul_i32 s57, s28, {8*n*8192}', f's_mul_i32 s58, s28, {8*n*256}']
            if i % 4 == 0: sal.append(f's_add_u32 m0, s58, {16384 + s0*8192 + 4096*(i//4)}')
            sal.append(f's_add_u32 s50, s57, {s0*32*8192 + 32768*i - 1024*(i & 3)}')
            r.append([sal, f'buffer_load_dwordx4 {V(DW)}, s[16:19], s50 offen offset:{1024*(i&3)}{NT["wq"]} lds', ('w', s0)])
        return r
    HR = lambda ks: RING + 8*(ks % 10)
    def hl(s):
        return [[[f's_mov_b32 s51, {qq*32768 + ((2*s) & ~3)*1024}'], f'buffer_load_dwordx4 {V(HR(ks)+4*qq,4)}, {V(HV)}, s[20:23], s51 offen offset:{1024*(ks & 3)}{HS}', ('h', ks)]
                for ks in (2*s, 2*s+1) for qq in range(2)]
    def emit_list(lst):
        for sal, ins, tag in lst:
            a.e(sal, ins); vm.append(tag)
    def setup():
        for j in range(4):
            a.e(f'v_add_u32 v6, {4*j}, v4', 'v_xor_b32 v6, v6, v3', 'v_lshlrev_b32 v6, 4, v6', f'v_lshl_add_u32 {V(DK+j)}, v4, 8, v6')
        a.e('v_and_b32 v1, 3, v2', 'v_bfe_u32 v6, v2, 2, 2', 'v_lshrrev_b32 v7, 5, v2', 'v_lshlrev_b32 v8, 5, v7', f'v_add_u32 {V(CSA)}, 147456, v8',
            'v_lshl_add_u32 v7, v7, 3, v6', 'v_lshlrev_b32 v7, 8, v7', 'v_and_b32 v8, 1, v4', 'v_lshl_add_u32 v7, v8, 3, v7', 'v_add_u32 v7, 0x4000, v7', 'v_lshlrev_b32 v6, 2, v6',
            'v_and_b32 v8, 1, v1', 'v_lshlrev_b32 v8, 1, v8', 'v_lshrrev_b32 v9, 1, v1', 'v_add_u32 v8, v8, v9')
        for db in range(4):
            a.e(f'v_add_u32 v5, {4*db}, v8', 'v_xor_b32 v5, v5, v6', f'v_lshl_add_u32 {V(WA+db)}, v5, 4, v7')
        for j in range(2):
            a.e(f'v_add_u32 v5, {4*j}, v4', 'v_lshlrev_b32 v5, 1, v5', 'v_xor_b32 v5, v5, v3', 'v_lshlrev_b32 v5, 4, v5', f'v_lshl_add_u32 {V(6+j)}, v4, 8, v5')
        for p in range(2):
            a.e(f's_add_u32 s53, s28, {6+4*p}', 's_and_b32 s53, s53, 7', f's_lshl_b32 s{30+p}, s53, 13')
            a.e(f's_add_u32 s53, s28, {3+4*p}', 's_and_b32 s53, s53, 7', 's_lshl_b32 s53, s53, 13', f's_add_u32 s{32+p}, s53, 65536')
        a.e(f's_add_u32 s34, s48, {6*8192}', 's_add_u32 s35, s34, 4096', f's_add_u32 s36, s48, {3*8192}', 's_add_u32 s37, s36, 4096')
        for i, size in enumerate((4194304, 1835008, 1835008, 1835008)): a.e(f's_mov_b32 s{66+4*i}, {size}', f's_mov_b32 s{67+4*i}, 0x20000')
    def kvsrd(): a.e('s_lshl_b32 s46, s44, 19'); srd(a, 8, 4, 5, 524288, add='s46'); srd(a, 12, 6, 7, 524288, add='s46')
    if single:
        gf.phase_front(a, L, opt, wq, emit_list, vm, setup, HV)
        emit_list(hl(0) + hl(1) + hl(2)); gf.front_late(a, L, wq, vm, opt); kvsrd()
        a.e(vmwait({('m', 0)})); gf.front_table(a, HV)
    else:
        emit_list(wq(0, 1) + hl(0) + wq(1, 1) + hl(1) + wq(2, 2) + hl(2)); kvsrd(); setup(); a.e('s_mov_b32 s39, 1')
    sc = Sched(a, age=4)
    QA = lambda qq, db: 16 + 64*qq + 16*db
    AR = lambda n: AK + 4*(n % 16)
    def a_reads(n):
        ks, db = divmod(n, 4)
        return [f'ds_read_b64_tr_b16 {A(AR(n)+2*v,2)}, {V(WA+db)} offset:{(ks % 8)*4096+v*1024}' for v in range(2)]
    def cs_reads(u):
        c, sh = CU[u % 3]
        return [f'ds_read_b128 {V(c,4)}, {V(CSA)} offset:{64*(u >> 1)+16*(u & 1)}', f'ds_read_b128 {V(sh,4)}, {V(CSA)} offset:{2048+64*(u >> 1)+16*(u & 1)}']
    xk = [0]
    def xform(u):
        r = [f'WAITDS {V(CU[u % 3][0],4)}, {V(CU[u % 3][1],4)}']
        c, sh = CU[u % 3]; ks, h = divmod(u, 2)
        for qq in range(2):
            for d in range(2):
                reg = HR(ks) + 4*qq + 2*h + d; t = TM + 2*(xk[0] % 3); xk[0] += 1
                r.append(f'v_fma_mix_f32 {V(t)}, {V(reg)}, {V(c+2*d)}, {V(sh+2*d)} op_sel_hi:[1,0,0]')
                r.append(f'v_fma_mix_f32 {V(t+1)}, {V(reg)}, {V(c+2*d+1)}, {V(sh+2*d+1)} op_sel:[1,0,0] op_sel_hi:[1,0,0]')
                r.append(f'v_cvt_pk_bf16_f32 {V(reg)}, {V(t)}, {V(t+1)}')
        return r
    D = opt.get('qdist', 6)
    a.e(vmwait({('w', 0)}), 's_barrier')
    stamp(a, opt, 1)
    if fuse: gf.mark2(a, 13)
    for u in range(3):
        for r in cs_reads(u): sc.emit_filler(r)
    for n in range(D):
        for r in a_reads(n): sc.emit_filler(r)
    a.e(vmwait({('h', 0)}))
    for x in xform(0): sc.emit_filler(x)
    for r in cs_reads(3): sc.emit_filler(r)
    for x in xform(1): sc.emit_filler(x)
    a.e('s_nop 1')
    k01 = [[[f's_lshl_b32 s52, s28, 12', 's_mov_b32 m0, s52'] if j == 0 else [], f'buffer_load_dwordx4 {V(DK+j)}, s[8:11], s52 offen offset:{1024*j}{NT["kv"]} lds', ('k', 0)] for j in range(4)]
    k25 = []
    for grp in range(2):
        st, ins = dma_group(0, 0, f's{54+grp}', f's{54+grp}')
        k25 += [[[f's_add_u32 s{54+grp}, s48, {2*8192 + 4096*grp}', st] if j == 0 else [], x, ('k', 2)] for j, x in enumerate(ins)]
    v02 = []
    for i in range(6):
        sal = []
        if i == 0: sal = ['s_mul_i32 s54, s28, 6144', 's_add_u32 m0, s54, 65536']
        if i == 4: sal = ['s_add_u32 s54, s54, 4096', 's_add_u32 m0, s54, 65536']
        v02.append([sal, f'buffer_load_dwordx4 {V(6+(i&1))}, s[12:15], s54 offen offset:{1024*(i&3)}{NT["kv"]} lds', ('v', 0)])
    w47, w8b, wcf = wq(4, 4), wq(8, 4), wq(12, 4)
    plan = {0: hl(3) + w47[:4], 1: hl(4) + w47[4:], 2: hl(5) + hl(6), 3: hl(7) + w8b[:4], 4: hl(8) + w8b[4:], 5: hl(9) + k01, 6: hl(10) + wcf[:4],
            7: hl(11) + wcf[4:], 8: hl(12) + k25[:4], 9: hl(13) + k25[4:], 10: hl(14), 11: hl(15), 12: v02, 13: [], 14: [], 15: []}
    groups = [1, 2, 4, 8, 12]
    if single:
        plan.update({0: hl(3) + w8b[:4], 1: hl(4) + w8b[4:], 3: hl(7) + k01, 4: hl(8) + wcf[:4], 5: hl(9) + wcf[4:], 6: hl(10), 7: hl(11)})
        groups = [4, 8, 12]
    late = []
    late += [f'v_mov_b32 {V(DV)}, v6', f'v_mov_b32 {V(DV+1)}, v7']
    late += ['v_xor_b32 v5, v3, v4', 'v_lshlrev_b32 v5, 4, v5', f'v_lshl_add_u32 {V(KA)}, v3, 8, v5'] + [f'v_xor_b32 {V(KA+t)}, {t*64}, {V(KA)}' for t in range(1, 4)]
    late2 = ['v_lshrrev_b32 v6, 2, v2', 'v_lshlrev_b32 v7, 8, v6', 'v_and_b32 v6, 7, v6', 'v_lshl_add_u32 v7, v1, 3, v7', 'v_add_u32 v7, 0x10000, v7']
    for db in range(8): late2 += [f'v_xor_b32 v5, {db}, v6', f'v_lshl_add_u32 {V(VA+db)}, v5, 5, v7']
    vq = []
    for ks in range(32):
        mf = [f'{MF32} {V(QA(qq,db),16)}, {A(AR(4*ks+db),4)}, {V(HR(ks)+4*qq,4)}, {"0" if ks == 0 else V(QA(qq,db),16)}' for db in range(4) for qq in range(2)]
        gaps = [[] for _ in range(8)]; pre = [[] for _ in range(8)]; post = [[] for _ in range(8)]
        if ks % 2 == 0: vq += plan[ks // 2]
        for db in range(4):
            n = 4*ks + db + D
            if n < 128:
                if n % 8 == 0 and n // 8 in groups:
                    post[2*db-1] += ['VMW', ('w', n // 8)]
                if n % 32 == 0: post[2*db-1] += [f'v_add_u32 {V(WA+x)}, 0x8000, {V(WA+x)}' for x in range(4)]
                r = a_reads(n); gaps[2*db].append(r[0]); gaps[2*db+1].append(r[1])
        if ks < 31:
            va = [xform(2*ks+2), xform(2*ks+3)]
            for h in range(2):
                u = 2*ks + 4 + h
                if u < 64:
                    r = cs_reads(u); gaps[4*h].append(r[0]); gaps[4*h+1].append(r[1])
        oddk = ks & 1
        for g in range(8):
            if vq and g % 2 == oddk:
                sal, ins, tag = vq.pop(0)
                if g == 0: pre[0] += sal + (['s_nop 0'] if sal and 'm0' in sal[-1] else [])
                else: pre[g-1] += sal
                gaps[g].append(('VM', ins, tag))
            if ks < 31:
                h, q = divmod(g, 4)
                if g == 0: gaps[g].append(('VMW', ('h', ks+1)))
                x = va[h]
                lo, hi = [(0, 4), (4, 7), (7, 10), (10, 13)][q] if h == 0 else [(0, 5), (5, 9), (9, 13), (13, 13)][q]
                gaps[g] += x[lo:hi]
        if ks == 31:
            la = late + late2
            for i, x in enumerate(la): gaps[min(i // 5, 7)].append(x)
            for i, r in enumerate(kreads(0)): gaps[4 + i // 2].insert(0, r)
        out = []
        for g in range(8):
            o = list(pre[g])
            for x in gaps[g]:
                if isinstance(x, tuple) and x[0] == 'VM': o.append(x[1]); vm.append(x[2])
                elif isinstance(x, tuple): o += vmwait({x[1]})
                else: o.append(x)
            p = post[g]
            if p and p[0] == 'VMW': o += vmwait({p[1]}) + ['s_barrier']; p = p[2:]
            out.append(o + p)
        sc.run(mf, out)
    assert not vq
    sc.age = 8
    stamp(a, opt, 2)
    if fuse: gf.mark2(a, 14)
    def cvtq(qq):
        r = []; sw = []
        for t in range(4):
            for j in range(4):
                for h in range(2): r.append(f'v_cvt_pk_bf16_f32 {V(Q+16*(2*qq+(j&1))+4*t+2*(j>>1)+h)}, {V(QA(qq,t)+4*j+2*h)}, {V(QA(qq,t)+4*j+2*h+1)}')
            r += sw
            sw = [f'v_permlane16_swap_b32 {V(Q+32*qq+4*t+f)}, {V(Q+32*qq+16+4*t+f)}' for f in range(4)]
        return r + ['s_nop 0', 's_nop 0'] + sw
    a.e('s_nop 1', cvtq(0), 's_nop 1')
    S0 = S_[0]
    def maxchain(qbs):
        st = [[f'v_max3_f32 {V(8+qb)}, {V(S0+8*qb)}, {V(S0+8*qb+1)}, {V(S0+8*qb+2)}' for qb in qbs],
              [f'v_max3_f32 {V(12+qb)}, {V(S0+8*qb+3)}, {V(S0+8*qb+4)}, {V(S0+8*qb+5)}' for qb in qbs],
              [f'v_max3_f32 {V(8+qb)}, {V(8+qb)}, {V(S0+8*qb+6)}, {V(S0+8*qb+7)}' for qb in qbs],
              [f'v_max_f32 {V(8+qb)}, {V(8+qb)}, {V(12+qb)}' for qb in qbs]]
        for perm in ('32', '16'):
            st += [[f'v_mov_b32 {V(12+qb)}, {V(8+qb)}' for qb in qbs], ['s_nop 0'], [f'v_permlane{perm}_swap_b32 {V(8+qb)}, {V(12+qb)}' for qb in qbs],
                   [f'v_max_f32 {V(8+qb)}, {V(8+qb)}, {V(12+qb)}' for qb in qbs]]
        return st
    mf = qk_mfmas(S_[0], czero=True, order='qkt')
    gaps = [[] for _ in mf]; pre = [[] for _ in mf]
    cv = cvtq(1)
    for i, x in enumerate(cv): gaps[min(i*15//len(cv), 14)].append(x)
    gaps[15].append('s_nop 0')
    ini = [f'v_mov_b32 {V(ONES+i)}, 0x3f803f80' for i in range(4)] + [f'v_mov_b32 {V(LV+i)}, 0' for i in range(8) if (i >> 1) not in XQ]
    for i, x in enumerate(ini): gaps[16 + i//2].append(x)
    for i, x in enumerate(maxchain([0, 1])): gaps[20 + i] += x
    b_ = Asm()
    b_.e('s_lshl_b32 s46, s45, 19', 's_lshl_b32 s47, s44, 14', 's_add_u32 s46, s46, s47', f's_add_u32 s46, s46, {WS_O}')
    b_.e('s_lshr_b32 s53, s2, 3', 's_lshl_b32 s53, s53, 2', 's_add_u32 s53, s53, s28', 's_bfe_u32 s56, s2, 0x20001', 's_lshl_b32 s54, s53, 13', 's_lshl_b32 s55, s56, 20', 's_add_u32 s84, s54, s55',
         's_mul_i32 s54, s53, 14336', 's_mul_i32 s55, s56, 896', 's_add_u32 s85, s54, s55', 's_and_b32 s55, s2, 1', 's_lshl_b32 s55, s55, 9', 's_add_u32 s86, s54, s55')
    for i, x in enumerate(b_.o): pre[i].append(x)
    pre[20] += ['s_add_u32 s24, s42, s46', 's_addc_u32 s25, s43, 0']; pre[21].append('s_mov_b32 s26, 16384'); pre[22].append('s_mov_b32 s27, 0x20000')
    sc.run(mf, [pre[g] + gaps[g] for g in range(32)])
    for r in kreads(8192): sc.emit_filler(r)
    for qb in range(2): a.e(f'v_sub_f32 {V(CI+4*qb)}, {f32hex(-opt.get("delta", DELTA))}, {V(8+qb)}')
    for st_ in maxchain([2, 3]): a.e(st_ if st_ != ['s_nop 0'] else 's_nop 1')
    for qb in range(2, 4): a.e(f'v_sub_f32 {V(CI+4*qb)}, {f32hex(-opt.get("delta", DELTA))}, {V(8+qb)}')
    for qb in range(4):
        for i in range(1, 4): a.e(f'v_mov_b32 {V(CI+4*qb+i)}, {V(CI+4*qb)}')
    for e in range(0, 32, 2): a.e(f'v_pk_add_f32 {V(S0+e,2)}, {V(S0+e,2)}, {V(CI+4*(e>>3),2)}')
    lateA = [f'v_subrev_u32 {V(VT+db)}, 0x10000, {V(VA+db)}' for db in range(8)] + ['v_lshlrev_b32 v5, 7, v2', f'v_add_u32 {V(PF)}, s84, v5']
    lateB = ['v_and_b32 v5, 31, v2', 'v_min_u32 v5, 27, v5', 'v_mul_u32_u24 v6, 37, v5', 'v_lshrrev_b32 v6, 8, v6', 'v_mul_u32_u24 v7, 7, v6', 'v_sub_u32 v5, v5, v7',
             'v_mul_u32_u24 v6, 3584, v6', 'v_lshl_add_u32 v6, v5, 7, v6', 'v_lshrrev_b32 v5, 5, v2', 'v_lshl_add_u32 v6, v5, 6, v6', f'v_add_u32 {V(PF+1)}, s85, v6']
    DP = opt.get('dp', 'rg') if fuse else ''
    srd(a, 20, 42, 43, 40 << 20)
    if single: lateA += ['v_lshlrev_b32 v140, 6, v2', f'v_add_u32 v140, {WS_FLAG + 4*16384 + 4096}, v140']
    if DP:
        ps_, pv_ = gf.poison_setup()
    lateC = ['v_min_u32 v5, 55, v2', 'v_lshrrev_b32 v6, 2, v5', 'v_and_b32 v5, 3, v5', 'v_lshlrev_b32 v6, 10, v6', 'v_lshl_add_u32 v6, v5, 7, v6', f'v_add_u32 {V(PF+2)}, s86, v6']
    if fuse:
        gf.unpark(a)
    if opt.get('tlb', 0):
        G = opt.get('tlbshift', 21)
        srd(a, 20, 42, 43, 40 << 20); a.e(f'v_lshlrev_b32 {V(PF+4)}, {G}, v2', 's_mov_b32 s86, 2097152', 's_mov_b32 s87, 0x20000', 's_mov_b32 s84, s82', 's_mov_b32 s85, s83')
    if opt.get('touch', 0):
        srd(a, 20, 42, 43, 24 << 20, add=WS_O)
        a.e('s_lshl_b32 s29, s2, 2', 's_add_u32 s29, s29, s28', 's_lshl_b32 s29, s29, 12', f'v_lshlrev_b32 {V(PF+4)}, 6, v2', f'v_add_u32 {V(PF+4)}, s29, {V(PF+4)}')
    a.e('s_waitcnt vmcnt(0) lgkmcnt(0)', 's_barrier'); sc.pend = []
    stamp(a, opt, 3)
    def adv():
        return ['s_add_u32 s34, s34, 32768', 's_add_u32 s35, s35, 32768', 's_add_u32 s36, s36, 32768', 's_add_u32 s37, s37, 32768']
    def epoch(E, kind):
        d = epoch_dmas(E, opt)
        if kind == 'e14':
            d = d[8:]
        if kind == 'e15': d = []
        ov, os_ = gf.o_setup() if fuse else ([], [])
        oad = [[x[0], x[1]] for st in range(4) for x in gf.o_dma_a(st)] if fuse else []
        npf = 0
        if kind == 'e14' and single:
            d.insert(0, [[], 'buffer_load_dword v140, v140, s[20:23], 0 offen sc1'])
        if kind == 'e14' and opt.get('pf', 1):
            for srd_, vo, off in ((64, PF, 0), (64, PF, 64), (68, PF+1, 0), (72, PF+1, 0), (76, PF+2, 0), (76, PF+2, 64)):
                if off and not opt.get('pf64', 1): continue
                d.append([[], f'buffer_load_dword {V(PF+3)}, {V(vo)}, s[{srd_}:{srd_+3}], 0 offen offset:{off}'])
                npf += 1
        split = list(opt['dsplit'])
        tch = []
        if kind == 'e14' and opt.get('tlb', 0):
            d.append([[], f'buffer_load_dword {V(PF+3)}, {V(PF+4)}, s[20:23], 0 offen']); d.append([[], f'buffer_load_dword {V(PF+3)}, {V(PF+4)}, s[84:87], 0 offen']); npf += 2
        if opt.get('touch', 0) and E == 2:
            d.append([[], f'buffer_load_dword {V(PF+3)}, {V(PF+4)}, s[20:23], 0 offen']); split[2] += 1; npf = 1
            tch = [f'v_add_u32 {V(PF+4)}, 0x400000, {V(PF+4)}']
        if DP and kind == 'n':
            po = gf.poison_stores(E, DP); d += po; split[2] += min(len(po), 1); npf = len(po)
            if len(po) > 1: split[3] += len(po) - 1
        for sl in range(4):
            s = 4*E + sl
            n = split[sl]
            dm = d[:n]; d = d[n:]
            if kind == 'e14' and sl == 0:
                a.e('s_cmp_eq_u32 s28, 3', f's_cbranch_scc1 {L}_e14d', 's_cmp_eq_u32 s28, 2', f's_cbranch_scc1 {L}_e14v')
                for sal, ins in epoch_dmas(E, opt)[:8]: a.e(sal, 's_nop 0' if sal else [], ins)
                a.e(f's_branch {L}_e14d', f'{L}_e14v:', f's_mov_b32 s54, {63*8192}', f's_mov_b32 s55, {63*8192+4096}', 's_mov_b32 s56, 0')
                for grp in range(2):
                    st, ins = dma_group(1, grp, 's56', f's{54+grp}'); a.e(st, 's_nop 0', ins)
                a.e(f'{L}_e14d:')
            if s == 0:
                exps, items = sm_items(S_[0], P_[0], XQ)
                mf = qk_mfmas(S_[1])
                kr = kreads(2*8192)
                ds_at = [(17+2*i, kr[i]) for i in range(4)]
                extra = []
                for n_, (sal, ins) in enumerate(dm):
                    extra += [(2+2*n_, x) for x in sal] + [(3+2*n_, ins)]
                packed(sc, mf, ds_at, exps, items, extra)
                for r in kr[4:]: sc.emit_filler(r)
            elif s in (3, 7):
                normal_slot(sc, opt, s, dm, salu=adv(), extra_v=(lateA + lateC[:2] if s == 3 else lateC[2:] + lateB[:0]) if False else (lateA if s == 3 else lateB))
            elif s == 2:
                normal_slot(sc, opt, s, dm, extra_v=lateC)
            elif s == 1 and DP:
                normal_slot(sc, opt, s, dm, first_pv=True, extra_v=pv_, salu=ps_, salu0=16)
            elif s == 59:
                normal_slot(sc, opt, s, dm, salu=adv(), extra_v=ov[:12])
            elif s == 60:
                a.e(os_)
                if DP: a.e('s_lshl_b32 s53, s2, 6', f's_add_u32 s53, s53, {WS_FLAG + 5*16384}', 'v_mov_b32 v8, s39', 'v_mov_b32 v9, 0', 'buffer_store_dword v8, v9, s[20:23], s53 offen sc1')
                normal_slot(sc, opt, s, dm, extra_v=ov[12:])
            elif s == 61:
                normal_slot(sc, opt, s, oad[:6])
            elif s == 62:
                normal_slot(sc, opt, s, oad[6:10], kread=False, late_v=vreads(VA, (62 % 8)*8192))
            elif s == 63:
                exps, items = sm_items(S_[1], P_[1], XQ)
                mf = pv_mfmas(P_[0], XQ)
                vr = vreads(VT, 0)
                ds_at = [(min(4*(i >> 1) + 4 + (i & 1), len(mf)-1), vr[i]) for i in range(16)]
                extra = []
                for n_, (sal, ins) in enumerate(oad[10:]):
                    extra += [(2+5*n_, x) for x in sal] + [(3+5*n_, ins)]
                packed(sc, mf, ds_at, exps, items, extra)
            else:
                normal_slot(sc, opt, s, dm, first_pv=(s == 1), salu=(adv() + (['s_add_u32 s38, s38, 1', 's_cmp_lt_u32 s38, 6'] if E == 3 else []) if sl == 3 else ()))
        assert not d
        a.e(tch)
        if kind != 'e15':
            if not opt.get('nobar'): a.e(f's_waitcnt vmcnt({npf}) lgkmcnt(0)', 's_barrier')
            else: a.e('s_waitcnt lgkmcnt(0)')
            sc.pend = []
    epoch(0, 'n'); epoch(1, 'n')
    a.e('s_mov_b32 s38, 0', '.p2align 6', f'{L}_loop:')
    epoch(2, 'n'); epoch(3, 'n')
    a.e(f's_cbranch_scc1 {L}_loop')
    epoch(14, 'e14'); epoch(15, 'e15')
    W = CI
    T = 16
    def unit(j, qb, n, pkmul):
        b = T + 8*(n % 8); pk = 80 + 4*(n % 4)
        r = [f'v_accvgpr_read_b32 {V(b+4*u+i)}, {A(AO+16*(2*j+u)+4*qb+i)}' for u in range(2) for i in range(4)]
        r += [f'v_maximum3_f32 {V(W+4*qb+i)}, abs({V(b+i)}), abs({V(b+4+i)}), {"0" if j == 0 else V(W+4*qb+i)}' for i in range(4)]
        if pkmul: r += [f'v_pk_mul_f32 {V(b+4*u+i,2)}, {V(b+4*u+i,2)}, {V(LM+4*qb+i,2)}' for u in range(2) for i in (0, 2)]
        else: r += [f'v_mul_f32 {V(b+4*u+i)}, {V(b+4*u+i)}, {V(LM+4*qb+i)}' for u in range(2) for i in range(4)]
        r += [f'v_cvt_pk_bf16_f32 {V(pk+h)}, {V(b+2*h)}, {V(b+2*h+1)}' for h in range(4)]
        off = (j*4+qb)*1024
        r += [f's_mov_b32 s54, {off & ~4095}', f'buffer_store_dwordx4 {V(pk,4)}, v9, s[24:27], s54 offen offset:{off & 4095}{opt.get("wt_a", " sc1")}']
        return r
    a.e('s_nop 1')
    VQ = [qb for qb in range(4) if qb not in XQ]
    assert len(VQ) == 2
    allm = pv_mfmas(P_[1], XQ)
    qord = list(XQ) + VQ
    mf = allm[32:] + [allm[4*db+qb] for qb in qord for db in range(8)]
    gaps = [[] for _ in mf]
    gaps[0].append('v_lshlrev_b32 v5, 4, v4')
    for n_, qb in enumerate(VQ):
        l = V(LV + 2*qb); t = V(6 + n_)
        ch = [(1, f'v_add_f32 {l}, {l}, {V(LV+2*qb+1)}'), (2, f'v_mov_b32 {t}, {l}'), (4, f'v_permlane32_swap_b32 {l}, {t}'), (5, f'v_add_f32 {l}, {l}, {t}'),
              (6, f'v_mov_b32 {t}, {l}'), (8, f'v_permlane16_swap_b32 {l}, {t}'), (9, f'v_add_f32 {l}, {l}, {t}')]
        for g, x in ch: gaps[g].append(x)
        for i in range(4): gaps[11 + n_].insert(0, f'ds_bpermute_b32 {V(LM+4*qb+i)}, v5, {l} offset:{4*i}')
    gaps[3] += ['v_lshlrev_b32 v9, 2, v4', 'v_xor_b32 v9, v9, v2']; gaps[7] += ['v_lshlrev_b32 v9, 4, v9', 'v_mov_b32 v8, 0']
    def lwork(qb): return [x for i in range(4) for x in (f'v_add_f32 v8, v8, {V(LM+4*qb+i)}', f'v_rcp_f32 {V(LM+4*qb+i)}, {V(LM+4*qb+i)}')]
    gaps[10] += lwork(qord[0])
    stream = []; n = 0
    NI = opt.get('t_units', 4)
    for j in range(NI): stream += unit(j, qord[0], n, False); n += 1
    stream += lwork(qord[1]) + [f'WAITDS {V(LM+4*VQ[0],4)}, {V(LM+4*VQ[1],4)}'] + lwork(qord[2]) + lwork(qord[3])
    g0 = 14
    per = -(-len(stream) // (len(mf) - g0))
    for i, x in enumerate(stream): gaps[g0 + i // per].append(x)
    sc.run(mf, gaps)
    stamp(a, opt, 4)
    if fuse: gf.mark(a, 15)
    for qb in qord:
        for j in range(NI if qb == qord[0] else 0, 4): a.e(unit(j, qb, n, True)); n += 1
    a.e(f'{L}_chk:')
    a.e(f'v_minimum3_f32 v11, {V(W)}, {V(W+1)}, {V(W+15)}', f'v_maximum3_f32 v10, {V(W)}, {V(W+1)}, {V(W+15)}')
    for i in range(2, 15, 2): a.e(f'v_minimum3_f32 v11, v11, {V(W+i)}, {V(W+i+1)}', f'v_maximum3_f32 v10, v10, {V(W+i)}, {V(W+i+1)}')
    a.e(f's_mov_b32 s54, {f32hex(2.0**100)}', f's_mov_b32 s55, {f32hex(2.0**-120)}', f's_mov_b32 s60, 0x7f000000')
    a.e('v_cmp_nle_f32 s[56:57], v8, s54', 'v_cmp_nge_f32 s[58:59], v11, s55', 'v_cmp_nle_f32 s[62:63], v10, s60', 's_nop 1',
        's_or_b64 s[56:57], s[56:57], s[58:59]', 's_or_b64 s[56:57], s[56:57], s[62:63]', 's_cmp_eq_u64 s[56:57], 0')
    if opt.get('force_fb'): a.e('s_cmp_eq_u32 s2, 1000')
    a.e(f's_cbranch_scc1 {L}_fin')
    a.e('s_mov_b32 s48, 40960', 's_cmp_eq_u32 s28, 1', 's_cselect_b32 s48, 65536, s48', 's_cmp_eq_u32 s28, 2', 's_cselect_b32 s48, 139264, s48',
        's_cmp_eq_u32 s28, 3', 's_cselect_b32 s48, 147456, s48', 's_waitcnt vmcnt(0)')
    MR = CI; LR = CI + 4; AL = CI + 8; AR_ = 96
    for i in range(128): a.e(f'v_accvgpr_write_b32 {A(i)}, 0')
    for qb in range(4): a.e(f'v_mov_b32 {V(MR+qb)}, 0xff7fffff', f'v_mov_b32 {V(LR+qb)}, 0')
    for db in range(8): a.e(f'v_add_u32 {V(VT+db)}, s48, {V(VT+db)}')
    a.e('v_lshlrev_b32 v7, 8, v3', 'v_lshl_add_u32 v7, v4, 4, v7')
    a.e('s_mov_b32 s54, 0', f'{L}_fb:', 's_add_u32 s55, s54, 4096')
    for f in range(8): a.e(f'buffer_load_dwordx4 {A(AK+4*f,4)}, v7, s[8:11], s{54+(f>>2)} offen offset:{64*(f&3)}')
    for grp in range(2):
        st, ins = dma_group(1, grp, 's48', f's{54+grp}'); a.e(st, 's_nop 0', ins)
    a.e('s_waitcnt vmcnt(0)')
    a.e(vreads(VT, 0))
    a.e(qk_mfmas(S0, czero=True), 's_nop 7', 's_nop 3')
    for qb in range(4):
        b = S0 + 8*qb; m = V(MR+qb); al = V(AL+qb)
        a.e(f'v_max3_f32 v8, {V(b)}, {V(b+1)}, {V(b+2)}', f'v_max3_f32 v8, v8, {V(b+3)}, {V(b+4)}', f'v_max3_f32 v8, v8, {V(b+5)}, {V(b+6)}', f'v_max3_f32 v8, v8, {V(b+7)}, {m}')
        for perm in ('32', '16'):
            a.e('v_mov_b32 v9, v8', 's_nop 1', f'v_permlane{perm}_swap_b32 v8, v9', 's_nop 1', 'v_max_f32 v8, v8, v9')
        a.e(f'v_sub_f32 {al}, {m}, v8', f'v_exp_f32 {al}, {al}', f'v_mov_b32 {m}, v8')
        for e in range(8): a.e(f'v_sub_f32 {V(b+e)}, {V(b+e)}, v8')
        for e in range(8): a.e(f'v_exp_f32 {V(b+e)}, {V(b+e)}')
        a.e(f'v_mul_f32 {V(LR+qb)}, {V(LR+qb)}, {al}')
        for e in range(8): a.e(f'v_add_f32 {V(LR+qb)}, {V(LR+qb)}, {V(b+e)}')
        for h in range(4): a.e(f'v_cvt_pk_bf16_f32 {V(P_[0]+4*qb+h)}, {V(b+2*h)}, {V(b+2*h+1)}')
        for i in range(4): a.e(f'ds_bpermute_b32 {V(AR_+4*qb+i)}, v5, {al} offset:{4*i}')
    a.e('s_waitcnt lgkmcnt(0)')
    for db in range(8):
        for qb in range(4):
            for i in range(4):
                o = AO + 16*db + 4*qb + i
                a.e(f'v_accvgpr_read_b32 v8, {A(o)}', f'v_mul_f32 v8, v8, {V(AR_+4*qb+i)}', f'v_accvgpr_write_b32 {A(o)}, v8')
    a.e('s_nop 1')
    a.e(pv_mfmas(P_[0], []), 's_nop 7', 's_nop 3')
    a.e('s_add_u32 s54, s54, 8192', 's_cmp_lt_u32 s54, 524288', f's_cbranch_scc1 {L}_fb')
    for qb in range(4):
        xlane_sum(a, V(LR+qb), 'v6')
        for i in range(4): a.e(f'ds_bpermute_b32 {V(LM+4*qb+i)}, v5, {V(LR+qb)} offset:{4*i}')
    a.e('s_waitcnt lgkmcnt(0)')
    for i in range(16): a.e(f'v_rcp_f32 {V(LM+i)}, {V(LM+i)}')
    a.e('v_lshlrev_b32 v9, 2, v4', 'v_xor_b32 v9, v9, v2', 'v_lshlrev_b32 v9, 4, v9')
    for qb in range(4):
        for j in range(4): a.e(unit(j, qb, 4*qb+j, True))
    a.e(f'{L}_fin:')
    if fuse: gf.fused_post(a, L, opt, Sched)
    if opt.get('stamps'):
        a.e('s_waitcnt vmcnt(0)')
        stamp(a, opt, 5); a.e('s_memrealtime s[98:99]', 's_waitcnt lgkmcnt(0)')
        srd(a, 20, 42, 43, 1 << 20, add=(58 << 20))
        a.e('s_lshl_b32 s54, s2, 2', 's_add_u32 s54, s54, s28', 's_lshl_b32 s54, s54, 5', 'v_mov_b32 v7, s54')
        for i in range(1, 6): a.e(f's_sub_u32 s55, s{80+2*i}, s80', f'v_mov_b32 v{8+i}, s55')
        a.e('v_mov_b32 v8, s92', 's_sub_u32 s55, s98, s92', 'v_mov_b32 v14, s55', 'v_mov_b32 v15, s39')
        a.e('v_cmp_eq_u32 vcc, 0, v2', 's_and_saveexec_b64 s[56:57], vcc')
        a.e('buffer_store_dwordx4 v[8:11], v7, s[20:23], 0 offen', 'buffer_store_dwordx4 v[12:15], v7, s[20:23], 0 offen offset:16')
    tl_end(a); a.e(f'{L}_end:', 's_endpgm')
    if fuse: a.e(gf.RETRY)
    return dict(label=L, grid=256, block=256, lds=163840, vgpr=512, accum=256)
```

```python
from asmlib import *
from gen_pre import *
MF = 'v_mfma_f32_16x16x32_bf16'
FLA = 141; FLB = 142; DIAG = 143
SC = ' sc1'

class VM:
    def __init__(self): self.q = []; self.seen = set()
    def add(self, tag): self.q.append(tag); self.seen.add(tag)
    def wait(self, tags, extra=''):
        last = max([i for i, t in enumerate(self.q) if t in tags], default=-1)
        if last < 0: return [f's_waitcnt{extra}'] if extra else []
        n = len(self.q) - 1 - last
        del self.q[:last+1]
        assert n < 64
        return [f's_waitcnt vmcnt({n}){extra}']
    def clear(self): self.q = []

def mark(a, i):
    if TL['on'] or TL.get('dm'): a.e('s_memrealtime s[98:99]', 's_waitcnt lgkmcnt(0)', f'v_writelane_b32 {V(DIAG)}, s98, {i}')

def mark2(a, i):
    park = {13: 88, 14: 90, 16: 92, 17: 84, 18: 86, 19: 100}
    if TL['on'] or TL.get('dm'): a.e(f's_memrealtime s[{park[i]}:{park[i]+1}]')
def unpark0(a):
    if TL['on'] or TL.get('dm'): a.e('s_waitcnt lgkmcnt(0)', 's_mov_b32 s93, s84', 's_mov_b32 s101, s86')
def unpark(a):
    if TL['on'] or TL.get('dm'): a.e('s_waitcnt lgkmcnt(0)', f'v_writelane_b32 {V(DIAG)}, s92, 16', f'v_writelane_b32 {V(DIAG)}, s93, 17', f'v_writelane_b32 {V(DIAG)}, s101, 18', f'v_writelane_b32 {V(DIAG)}, s100, 19')
    if TL['on'] or TL.get('dm'): a.e('s_waitcnt lgkmcnt(0)', f'v_writelane_b32 {V(DIAG)}, s94, 0', f'v_writelane_b32 {V(DIAG)}, s88, 13', f'v_writelane_b32 {V(DIAG)}, s90, 14')

def flag_setup():
    r = ['s_and_b32 s53, s2, 0xc7', 'v_and_b32 v5, 7, v2', 'v_lshlrev_b32 v5, 3, v5', 'v_add_u32 v5, s53, v5', f'v_lshlrev_b32 {V(FLA)}, 6, v5',
         's_and_b32 s53, s2, 0xe1', 'v_and_b32 v5, 3, v2', 'v_lshlrev_b32 v5, 3, v5', 'v_bfe_u32 v6, v2, 2, 2', 'v_lshl_add_u32 v5, v6, 1, v5', 'v_add_u32 v5, s53, v5', f'v_lshlrev_b32 {V(FLB)}, 6, v5']
    return r

SYNC = {'mode': 'cnt'}
def signal(a, L, k, waitlist):
    a.e(waitlist, 's_barrier')
    if SYNC['mode'] in ('flag', 'sflag', 'mix'):
        a.e(f's_and_b32 s3, s2, {0xc7 if k == 0 else 0xe1}', 's_lshl_b32 s3, s3, 6', f's_add_u32 s3, s3, {WS_FLAG + k*16384}')
        srd(a, 60, 42, 43, 16384, add=WS_FLAG + k*16384)
        a.e('s_cmp_lg_u32 s28, 0', f's_cbranch_scc1 {L}_sg{k}', 's_lshl_b32 s53, s2, 6', 's_mov_b64 exec, 1', 'v_mov_b32 v5, s53', f'v_mov_b32 v{9 if k == 4 else 6}, s39',
            f'buffer_store_dword v{9 if k == 4 else 6}, v5, s[60:63], 0 offen{SC}', 's_mov_b64 exec, -1', f'{L}_sg{k}:')
    else:
        a.e(f's_and_b32 s3, s2, {0xc7 if k == 0 else 0xe1}', 's_lshl_b32 s3, s3, 6', f's_add_u32 s3, s3, {WS_FLAG + k*16384}')
        a.e('s_cmp_lg_u32 s28, 0', f's_cbranch_scc1 {L}_sg{k}')
        srd(a, 60, 42, 43, 4, add='s3')
        a.e('s_mov_b64 exec, 1', 'v_mov_b32 v5, 0', 'v_mov_b32 v6, 1', f'buffer_atomic_add v6, v5, s[60:63], 0 offen{SC}', 's_mov_b64 exec, -1', f'{L}_sg{k}:')

def poll(a, L, k, grp, vm=None):
    mode = SYNC['mode']
    if mode == 'mix': mode = 'flag' if k in SYNC['vec'] else 'sflag'
    if mode == 'flag':
        if SYNC.get('one') and k < 4: a.e('s_cmp_lg_u32 s28, 3', f's_cbranch_scc1 {L}_pd{k}')
        a.e('s_mov_b32 s53, 0', f'{L}_pl{k}:', f'buffer_load_dword v5, {V(grp)}, s[60:63], 0 offen{SC}', 's_add_u32 s53, s53, 1', 's_waitcnt vmcnt(0)',
            'v_cmp_eq_u32 vcc, s39, v5', 's_cmp_gt_u32 s53, 200000', f's_cbranch_scc1 {L}_pd{k}', 's_cmp_eq_u64 vcc, -1', f's_cbranch_scc0 {L}_pl{k}', f'{L}_pd{k}:')
        if SYNC.get('one') and k < 4: a.e('s_barrier')
        elif vm: vm.clear()
    elif mode == 'sflag':
        regs = [60, 61, 62, 63, 84, 85, 86, 87, 88, 89, 90, 91, 92, 93, 100, 101]
        offs = [8*i*64 for i in range(8)] if k == 0 else [(2*x + 8*y)*64 for x in range(4) for y in range(4)]
        if SYNC.get('one'): a.e('s_cmp_lg_u32 s28, 3', f's_cbranch_scc1 {L}_pd{k}')
        a.e('s_mov_b32 s53, 0', f'{L}_pl{k}:')
        for r, o in zip(regs, offs): a.e(f's_load_dword s{r}, s[42:43], s3 offset:{o} glc')
        a.e('s_add_u32 s53, s53, 1', 's_cmp_gt_u32 s53, 200000', f's_cbranch_scc1 {L}_pd{k}', 's_waitcnt lgkmcnt(0)')
        for r in regs[:len(offs)]: a.e(f's_cmp_eq_u32 s{r}, s39', f's_cbranch_scc0 {L}_pl{k}')
        a.e(f'{L}_pd{k}:')
        if SYNC.get('one'): a.e('s_barrier')
    else:
        if SYNC.get('one'): a.e('s_cmp_lg_u32 s28, 3', f's_cbranch_scc1 {L}_pd{k}')
        a.e('s_mov_b32 s53, 0', f'{L}_pl{k}:', 's_load_dword s60, s[42:43], s3 glc', 's_add_u32 s53, s53, 1', 's_cmp_gt_u32 s53, 200000', f's_cbranch_scc1 {L}_pd{k}',
            's_waitcnt lgkmcnt(0)', f's_cmp_ge_u32 s60, {8 if k == 0 else 16}', f's_cbranch_scc0 {L}_pl{k}', f'{L}_pd{k}:')
        if SYNC.get('one'): a.e('s_barrier')

RETRY = []
def chk_v(regs, acc):
    r = [f'v_max_u32 {acc}, {V(regs[0])}, {V(regs[1])}']
    for i in range(2, len(regs), 2): r.append(f'v_max3_u32 {acc}, {acc}, {V(regs[i])}, {V(regs[i+1])}')
    return r
def chk_a(regs, acc, t0, t1):
    r = []
    for i in range(0, len(regs), 2):
        r += [f'v_accvgpr_read_b32 {t0}, {A(regs[i])}', f'v_accvgpr_read_b32 {t1}, {A(regs[i+1])}', f'v_max_u32 {acc}, {t0}, {t1}' if i == 0 else f'v_max3_u32 {acc}, {acc}, {t0}, {t1}']
    return r
def guard(L, name, loads, chk, acc):
    RETRY.append([f'{L}_rt{name}:', 's_mov_b32 s53, 0', f'{L}_rl{name}:'] + loads + ['s_add_u32 s53, s53, 1', 's_waitcnt vmcnt(0)'] + chk +
                 [f'v_cmp_eq_u32 vcc, -1, {acc}', 's_cmp_gt_u32 s53, 200000', f's_cbranch_scc1 {L}_rb{name}', f's_cbranch_vccnz {L}_rl{name}', f's_branch {L}_rb{name}'])
    return chk + [f'v_cmp_eq_u32 vcc, -1, {acc}', f's_cbranch_vccnz {L}_rt{name}', f'{L}_rb{name}:']
def spin(a, L, name, loads, chk, acc):
    a.e('s_mov_b32 s53, 0', f'{L}_sp{name}:', loads, 's_add_u32 s53, s53, 1', 's_waitcnt vmcnt(0)', chk, f'v_cmp_eq_u32 vcc, -1, {acc}', 's_cmp_gt_u32 s53, 200000',
        f's_cbranch_scc1 {L}_sd{name}', f's_cbranch_vccnz {L}_sp{name}', f'{L}_sd{name}:')
def flat(lst): return [x for sal, ins, tag in lst for x in (list(sal) + [ins])]

def poison_setup():
    sl = ['s_bfe_u32 s50, s2, 0x20001', 's_and_b32 s51, s2, 1', 's_lshl_b32 s51, s51, 3', 's_lshr_b32 s52, s2, 5', 's_add_u32 s51, s51, s52', 's_bfe_u32 s52, s2, 0x20003',
          's_lshl_b32 s4, s51, 1', 's_lshr_b32 s53, s28, 1', 's_add_u32 s4, s4, s53', 's_lshl_b32 s4, s4, 16', 's_lshl_b32 s53, s50, 21', 's_add_u32 s4, s4, s53',
          's_lshl_b32 s53, s52, 12', 's_add_u32 s4, s4, s53', 's_and_b32 s53, s28, 1', 's_lshl_b32 s53, s53, 11', 's_add_u32 s4, s4, s53', f's_add_u32 s4, s4, {WS_PART}',
          's_lshl_b32 s5, s51, 4', 's_lshl_b32 s53, s50, 2', 's_add_u32 s53, s53, s52', 's_add_u32 s5, s5, s53', 's_mul_i32 s6, s53, 7168',
          's_and_b32 s53, s5, 1', 's_lshl_b32 s53, s53, 7', 's_lshr_b32 s5, s5, 1', 's_lshl_b32 s5, s5, 14', 's_add_u32 s5, s5, s53', f's_add_u32 s5, s5, {WS_X1}',
          's_lshl_b32 s53, s51, 2', 's_add_u32 s53, s53, s28', f's_mul_i32 s53, s53, {112*1024}', 's_add_u32 s6, s6, s53', f's_add_u32 s6, s6, {WS_HH}', 's_mov_b32 s7, 1024']
    v = [f'v_mov_b32 v{8+i}, -1' for i in range(4)] + ['v_lshlrev_b32 v13, 4, v2',
         'v_lshrrev_b32 v12, 5, v2', 'v_lshl_add_u32 v12, s28, 2, v12', 'v_lshlrev_b32 v12, 10, v12', 'v_and_b32 v14, 7, v2', 'v_lshl_add_u32 v12, v14, 4, v12', 'v_bfe_u32 v14, v2, 3, 2', 'v_lshl_add_u32 v12, v14, 8, v12']
    return sl, v
def poison_stores(E, dp):
    st = lambda vo, so, off: f'buffer_store_dwordx4 v[8:11], {vo}, s[20:23], {so} offen offset:{off}{SC}'
    r = []
    if E == 0:
        if 'd' in dp: r += [[[], st('v12', 's5', 0)], [[], st('v12', 's5', 2048)]]
        if 'g' in dp: r += [[[f's_add_u32 s5, s5, {WS_H2 - WS_X1}'], st('v12', 's5', 0)], [[], st('v12', 's5', 2048)]]
    if E == 1:
        if 'd' in dp: r += [[[], st('v13', 's6', 0)]]
        if 'r' in dp: r += [[[], st('v13', 's4', 0)], [['s_add_u32 s4, s4, 1024'], st('v13', 's4', 0)]]
    if E == 2 and 'd' in dp: r += [[['s_add_u32 s6, s6, 1024'], st('v13', 's6', 0)]]
    if E == 3 and 'r' in dp: r += [[['s_add_u32 s4, s4, s7', 's_xor_b32 s7, s7, 14336'], st('v13', 's4', 0)]]
    return r

OA = [8192, 24576, 73728, 122880]; OB = [40960, 57344, 90112, 106496]
ODA = 156
def o_setup():
    r = []
    for i in range(4):
        r += [f'v_add_u32 v5, {4*(i&1)}, v4', 'v_lshlrev_b32 v5, 1, v5', 'v_xor_b32 v5, v5, v3', 'v_lshlrev_b32 v5, 4, v5', 'v_lshl_add_u32 v5, v4, 10, v5',
              f'v_add_u32 {V(ODA+i)}, {(16*(i&1) + 8*(i>>1) - i)*1024}, v5']
    s = ['s_lshr_b32 s47, s28, 1', 's_and_b32 s49, s28, 1', 's_lshl_b32 s50, s47, 15', 's_lshl_b32 s51, s49, 12', 's_add_u32 s50, s50, s51',
         's_bfe_u32 s51, s2, 0x20001', 's_lshl_b32 s51, s51, 20', 's_add_u32 s50, s50, s51', 's_bfe_u32 s51, s2, 0x20003', 's_lshl_b32 s51, s51, 8', 's_add_u32 s50, s50, s51',
         's_add_u32 s16, s64, s50', 's_addc_u32 s17, s65, 0', 's_sub_u32 s18, 4194304, s50', 's_mov_b32 s19, 0x20000', 's_lshl_b32 s30, s28, 12']
    return r, s
def o_dma_a(st):
    return [[[f's_add_u32 m0, s30, {OA[st % 4]}', f's_mov_b32 s34, {st*65536}'] if i == 0 else [], f'buffer_load_dwordx4 {V(ODA+i)}, s[16:19], s34 offen offset:{1024*i} lds', ('oa', st)] for i in range(4)]

def phase_o(a, L, opt, Sched):
    ACC = 64; FA = [0, 32]; FB = [64, 96]; DB = 12; RA = 16; RB = 24
    vm = VM()
    a.e('s_lshr_b32 s47, s28, 1', 's_and_b32 s48, s28, 1', 's_bfe_u32 s44, s2, 0x20001', 's_and_b32 s45, s2, 1', 's_lshl_b32 s45, s45, 3', 's_lshr_b32 s46, s2, 5', 's_add_u32 s45, s45, s46', 's_bfe_u32 s46, s2, 0x20003')
    a.e(f'v_lshlrev_b32 {V(DB)}, 4, v2')
    a.e('v_lshrrev_b32 v5, 2, v2', 'v_and_b32 v6, 3, v2', 'v_lshlrev_b32 v7, 8, v5', 'v_lshl_add_u32 v7, v6, 3, v7', 'v_and_b32 v5, 7, v5', 's_lshl_b32 s49, s48, 2')
    for nb in range(4): a.e(f's_add_u32 s50, s49, {nb}', 'v_xor_b32 v8, s50, v5', f'v_lshl_add_u32 {V(RA+nb)}, v8, 5, v7', f'v_add_u32 {V(RA+4+nb)}, {OA[2]}, {V(RA+nb)}')
    a.e('v_bfe_u32 v5, v2, 2, 2', 'v_lshrrev_b32 v7, 5, v2', 'v_lshl_add_u32 v5, v7, 3, v5', 'v_lshlrev_b32 v7, 2, v6', 'v_xor_b32 v5, v5, v7', 'v_lshl_add_u32 v5, v6, 4, v5')
    a.e('v_and_b32 v7, 1, v4', 'v_lshlrev_b32 v7, 3, v7', 'v_lshl_add_u32 v5, v5, 4, v7', 's_lshl_b32 s49, s47, 13', f's_add_u32 s49, s49, {OB[0]}')
    a.e(f'v_add_u32 {V(RB)}, s49, v5', 'v_xor_b32 v5, 64, v5', f'v_add_u32 {V(RB+1)}, s49, v5', f'v_add_u32 {V(RB+2)}, {OB[2]-OB[0]}, {V(RB)}', f'v_add_u32 {V(RB+3)}, {OB[2]-OB[0]}, {V(RB+1)}')
    a.e('s_lshl_b32 s49, s45, 1', 's_add_u32 s49, s49, s47', 's_lshl_b32 s50, s49, 19', 's_lshl_b32 s51, s44, 17', 's_add_u32 s50, s50, s51',
        's_lshl_b32 s51, s48, 12', 's_add_u32 s50, s50, s51', f's_add_u32 s50, s50, {WS_O}'); srd(a, 12, 42, 43, 131072, add='s50')
    a.e('s_lshl_b32 s49, s49, 16', 's_lshl_b32 s50, s44, 21', 's_add_u32 s49, s49, s50', 's_lshl_b32 s50, s46, 12', 's_add_u32 s49, s49, s50',
        's_lshl_b32 s50, s48, 11', 's_add_u32 s49, s49, s50', f's_add_u32 s49, s49, {WS_PART}'); srd(a, 8, 42, 43, 65536, add='s49')
    srd(a, 4, 42, 43, 1 << 20)
    r_setup(a)
    a.e(flag_setup())
    if opt.get('single', 1):
        a.e('v_cmp_eq_u32 vcc, s39, v140', 's_mov_b32 s53, 0', 's_nop 0', 's_cmp_eq_u64 vcc, -1', f's_cbranch_scc1 {L}_pmd')
        srd(a, 60, 42, 43, 16384, add=WS_FLAG + 4*16384)
        a.e('v_lshlrev_b32 v6, 6, v2', 'v_add_u32 v6, 4096, v6', f'{L}_pm:', f'buffer_load_dword v5, v6, s[60:63], 0 offen{SC}', 's_add_u32 s53, s53, 1', 's_waitcnt vmcnt(0)',
            'v_cmp_eq_u32 vcc, s39, v5', 's_cmp_gt_u32 s53, 200000', f's_cbranch_scc1 {L}_pmd', 's_cmp_eq_u64 vcc, -1', f's_cbranch_scc0 {L}_pm', f'{L}_pmd:')
    signal(a, L, 0, ['s_waitcnt vmcnt(0)']); mark(a, 1)
    poll(a, L, 0, FLA); mark(a, 2)
    def dma_b(st):
        return [[[f's_add_u32 m0, s30, {OB[st % 4]}', f's_mov_b32 s35, {st*8192}'] if i == 0 else [], f'buffer_load_dwordx4 {V(DB)}, s[12:15], s35 offen offset:{1024*i}{opt.get("o_ld", SC)} lds', ('ob', st)] for i in range(4)]
    for st in range(4):
        for sal, ins, tag in dma_b(st): a.e(sal, ins); vm.add(tag)
    def reads(st):
        p = st & 1; sl = st % 4
        ra = [f'ds_read_b64_tr_b16 {A(FA[p]+8*x+4*tt+2*v,2)}, {V(RA+(4 if sl >= 2 else 0)+x)} offset:{OA[sl] - (OA[2] if sl >= 2 else 0)+tt*8192+v*4096}' for x in range(4) for tt in range(2) for v in range(2)]
        rb = [f'ds_read_b64_tr_b16 {A(FB[p]+8*x+4*tt+2*u,2)}, {V(RB+2*(sl >> 1)+u)} offset:{(sl & 1)*16384+tt*4096+x*1024}' for x in range(4) for tt in range(2) for u in range(2)]
        return ra[:4] + rb + ra[4:]
    sc = Sched(a, age=6)
    a.e(vm.wait({('ob', 0)}), 's_barrier')
    for r in reads(0): sc.emit_filler(r)
    NV = opt.get('o_var', 1)
    import copy
    vm0 = copy.deepcopy(vm); pend0 = list(sc.pend)
    for var in range(NV):
        PH = 2 if NV == 1 else (var if NV == 4 else 1 + 2*var)
        if var < NV - 1: a.e(f's_cmp_ge_u32 s28, {(var+1)*4//NV}', f's_cbranch_scc1 {L}_ov{var+1}')
        vm = copy.deepcopy(vm0); sc.pend = list(pend0)
        rl = r_loads()
        if opt.get('dp', 'rg'): rl.append([[f's_mov_b32 s36, {WS_FLAG + 5*16384}'], f'buffer_load_dword v28, {V(FLB)}, s[4:7], s36 offen{SC}', ('r', 0)])
        gs0, gv, gs1 = g_setup()
        gq = [x for st_ in range(opt.get('g_pre0', 2)) for x in g_dma(st_)]
        for st in range(16):
            p = st & 1
            a.e(vm.wait({('oa', st+1), ('ob', st+1)}, ' lgkmcnt(0)'), 's_barrier'); sc.pend = []
            if st == 12: a.e(gs0)
            if st == 15: a.e(gs1)
            mf = [f'{MF} {V(ACC+16*nb+4*qb,4)}, {A(FA[p]+8*nb+4*tt,4)}, {A(FB[p]+8*qb+4*tt,4)}, {"0" if (st == 0 and tt == 0) else V(ACC+16*nb+4*qb,4)}' for nb in range(4) for qb in range(4) for tt in range(2)]
            gaps = [[] for _ in mf]; pre = [[] for _ in mf]
            rd = reads(st+1) if st < 15 else []
            d = (dma_b(st+4) + o_dma_a(st+4)) if st + 4 < 16 else rl[8*(st-12):8*(st-12)+8]
            ri = 0
            for g in range(32):
                if g % 4 == PH and d:
                    sal, ins, tag = d.pop(0)
                    if g: pre[g-1] += sal
                    else: pre[0] += sal
                    gaps[g].append(ins); vm.add(tag)
                else:
                    k = 2
                    while k and ri < len(rd):
                        gaps[g].append(rd[ri]); ri += 1; k -= 1
            assert not d
            if 12 <= st < 15:
                for i, x in enumerate(gv[19*(st-12):19*(st-11)]): gaps[22 + i//2].append(x)
            if st == 15:
                for g in range(2, 20, 4):
                    sal, ins, tag = gq.pop(0)
                    pre[g-1] += sal; gaps[g].append(ins); vm.add(tag)
                n = 0
                for qb in range(4):
                    t = 32 + 4*qb
                    ins = []
                    for u in range(2):
                        b = ACC + 16*u + 4*qb
                        ins += [f'v_cvt_pk_bf16_f32 {V(t+2*u)}, {V(b)}, {V(b+1)}', f'v_cvt_pk_bf16_f32 {V(t+2*u+1)}, {V(b+2)}, {V(b+3)}']
                    g = 20 + 3*qb
                    gaps[g] += ins[:2]; gaps[g+1] += ins[2:]; pre[g+1].append(f's_mov_b32 s50, {qb*16384}')
                    gaps[g+2].append(f'buffer_store_dwordx4 {V(t,4)}, {V(DB)}, s[8:11], s50 offen{SC}'); vm.add(('st', 0))
            sc.run(mf, [pre[g] + gaps[g] for g in range(32)])
        if var < NV - 1: a.e(f's_branch {L}_ovend', f'{L}_ov{var+1}:')
    a.e(f'{L}_ovend:')
    mark(a, 3)
    a.e('s_nop 1')
    for qb in range(4):
        t = 48 + 4*qb
        for u in range(2):
            b = ACC + 16*(2+u) + 4*qb
            a.e(f'v_cvt_pk_bf16_f32 {V(t+2*u)}, {V(b)}, {V(b+1)}', f'v_cvt_pk_bf16_f32 {V(t+2*u+1)}, {V(b+2)}, {V(b+3)}')
        a.e(f's_mov_b32 s50, {qb*16384}', f'buffer_store_dwordx4 {V(t,4)}, {V(DB)}, s[8:11], s50 offen offset:1024{SC}'); vm.add(('st', 0))
    for sal, ins, tag in gq: a.e(sal, ins); vm.add(tag)
    return vm

RX = 144; RGA = 160; RCB = 176; RSB = 192; RO = 152
RSTAT = 159744
def r_setup(a):
    a.e('s_lshl_b32 s29, s45, 4', 's_lshl_b32 s50, s44, 2', 's_add_u32 s29, s29, s50', 's_add_u32 s29, s29, s46')
    a.e('v_and_b32 v5, 7, v2', 'v_bfe_u32 v6, v2, 3, 2', 'v_lshrrev_b32 v7, 5, v2', 's_lshl_b32 s50, s28, 2', 'v_add_u32 v7, s50, v7')
    a.e(f'v_lshlrev_b32 {V(RO)}, 10, v7', f'v_lshl_add_u32 {V(RO)}, v5, 4, {V(RO)}', f'v_lshl_add_u32 {V(RO)}, v6, 8, {V(RO)}')
    a.e(f'v_lshlrev_b32 {V(RO+1)}, 10, v5', f'v_lshl_add_u32 {V(RO+1)}, v7, 6, {V(RO+1)}', f'v_lshl_add_u32 {V(RO+1)}, v6, 3, {V(RO+1)}')
    a.e(f'v_lshlrev_b32 {V(RO+2)}, 7, v7', f'v_lshl_add_u32 {V(RO+2)}, v6, 4, {V(RO+2)}')
    a.e(f'v_lshlrev_b32 {V(RO+3)}, 3, v5', f'v_add_u32 {V(RO+3)}, {RSTAT}, {V(RO+3)}')
    srd(a, 20, 80, 81, 2097152); srd(a, 24, 42, 43, 12288)
    a.e('s_lshl_b32 s31, s29, 13', 's_lshr_b32 s50, s29, 1', 's_lshl_b32 s50, s50, 14', 's_and_b32 s51, s29, 1', 's_lshl_b32 s51, s51, 7', 's_add_u32 s29, s50, s51')
def r_loads():
    r = [[[], f'buffer_load_dwordx2 {V(RX+4*i+2*v,2)}, {V(RO+1)}, s[20:23], s31 offen offset:{128*i+32*v}', ('r', 0)] for i in range(2) for v in range(2)]
    for part, reg in ((2, RGA), (4, RCB), (3, RSB)):
        for i in range(2):
            for v in range(2):
                r.append([[f's_mov_b32 s36, {part*2048}'] if (i == 0 and v == 0) else [], f'buffer_load_dwordx4 {V(reg+8*i+4*v,4)}, {V(RO+2)}, s[24:27], s36 offen offset:{256*i+64*v}{SC}', ('r', 0)])
    return r

def phase_r(a, L, opt, vm):
    PT = 16; F = 48
    n0 = opt.get('g_pre0', 2); n1 = opt.get('g_pre1', 3)
    srd(a, 12, 42, 43, 8388608, add=WS_PART); srd(a, 20, 42, 43, 4194304, add=WS_X1)
    DP = 'r' in opt.get('dp', 'rg')
    pl = [[[f's_add_u32 s50, s29, {ks << 21}'] if i == 0 else [], f'buffer_load_dwordx4 {V(PT+8*ks+4*i,4)}, {V(RO)}, s[12:15], s50 offen offset:{2048*i}{SC}', ('p', ks)] for ks in range(4) for i in range(2)]
    if not DP: signal(a, L, 1, vm.wait({('st', 0)}))
    if opt.get('dp', 'rg'):
        a.e(vm.wait({('r', 0)}), f'v_cmp_eq_u32 vcc, s39, v28', 's_nop 1', 's_cmp_eq_u64 vcc, -1', f's_cbranch_scc1 {L}_pd5')
        a.e('s_mov_b32 s53, 0', f's_mov_b32 s50, {WS_FLAG + 5*16384}', f'{L}_pl5:', f'buffer_load_dword v5, {V(FLB)}, s[4:7], s50 offen{SC}', 's_add_u32 s53, s53, 1', 's_waitcnt vmcnt(0)',
            'v_cmp_eq_u32 vcc, s39, v5', 's_cmp_gt_u32 s53, 200000', f's_cbranch_scc1 {L}_pd5', 's_cmp_eq_u64 vcc, -1', f's_cbranch_scc0 {L}_pl5', f'{L}_pd5:')
    mark(a, 4)
    for r in range(8): a.e(f'v_lshlrev_b32 {V(64+2*r)}, 16, {V(RX+r)}', f'v_and_b32 {V(65+2*r)}, 0xffff0000, {V(RX+r)}')
    if not DP:
        poll(a, L, 1, FLB, vm); mark(a, 5)
        for sal, ins, tag in pl: a.e(sal, ins); vm.add(tag)
    else:
        spin(a, L, 'p', flat(pl), chk_v(list(range(PT, PT+32)), 'v10'), 'v10'); vm.clear(); mark(a, 5)
    for st in range(n0, n1):
        for sal, ins, tag in g_dma(st): a.e(sal, ins); vm.add(tag)
    for ks in range(4):
        a.e(vm.wait({('p', ks)}))
        for r in range(8):
            src = V(PT+8*ks+r)
            if ks == 0: a.e(f'v_lshlrev_b32 {V(F+2*r)}, 16, {src}', f'v_and_b32 {V(F+2*r+1)}, 0xffff0000, {src}')
            else: a.e(f'v_lshlrev_b32 v10, 16, {src}', f'v_and_b32 v11, 0xffff0000, {src}', f'v_add_f32 {V(F+2*r)}, {V(F+2*r)}, v10', f'v_add_f32 {V(F+2*r+1)}, {V(F+2*r+1)}, v11')
    for e in range(16): a.e(f'v_fmac_f32 {V(64+e)}, {V(F+e)}, {V(RGA+e)}')
    for r in range(8): a.e(f'v_cvt_pk_bf16_f32 {V(RX+r)}, {V(64+2*r)}, {V(65+2*r)}')
    for i in range(2): a.e(f'buffer_store_dwordx4 {V(RX+4*i,4)}, {V(RO)}, s[20:23], s29 offen offset:{2048*i}{SC}'); vm.add(('st', 1))
    F = 64
    a.e(f'v_add_f32 v10, {V(F)}, {V(F+1)}', f'v_mul_f32 v14, {V(F)}, {V(F)}', f'v_add_f32 v11, {V(F+2)}, {V(F+3)}', f'v_mul_f32 v15, {V(F+1)}, {V(F+1)}')
    for e in range(2, 16, 2):
        if e >= 4: a.e(f'v_add_f32 v10, v10, {V(F+e)}', f'v_add_f32 v11, v11, {V(F+e+1)}')
        a.e(f'v_fmac_f32 v14, {V(F+e)}, {V(F+e)}', f'v_fmac_f32 v15, {V(F+e+1)}, {V(F+e+1)}')
    a.e('v_add_f32 v10, v10, v11', 'v_add_f32 v11, v14, v15')
    for perm in ('32', '16'):
        a.e('v_mov_b32 v14, v10', 'v_mov_b32 v15, v11', 's_nop 0', f'v_permlane{perm}_swap_b32 v10, v14', f'v_permlane{perm}_swap_b32 v11, v15', 'v_add_f32 v10, v10, v14', 'v_add_f32 v11, v11, v15')
    a.e('s_lshl_b32 s50, s28, 6', f'v_add_u32 v13, s50, {V(RO+3)}')
    a.e('v_add_f32_dpp v10, v10, v10 row_ror:8 row_mask:0xf bank_mask:0xf', 's_nop 0', 'v_add_f32_dpp v11, v11, v11 row_ror:8 row_mask:0xf bank_mask:0xf')
    a.e('ds_write_b64 v13, v[10:11]', 's_waitcnt lgkmcnt(0)', 's_barrier')
    for i in range(4): a.e(f'ds_read_b64 v[{24+2*i}:{25+2*i}], {V(RO+3)} offset:{64*i}')
    a.e('s_waitcnt lgkmcnt(0)', 'v_pk_add_f32 v[24:25], v[24:25], v[26:27]', 'v_pk_add_f32 v[28:29], v[28:29], v[30:31]', 'v_pk_add_f32 v[24:25], v[24:25], v[28:29]')
    a.e(f'v_mul_f32 v24, {f32hex(1/512)}, v24', f'v_mov_b32 v26, {f32hex(1e-5)}', f'v_fmac_f32 v26, {f32hex(1/512)}, v25', 'v_fma_f32 v26, -v24, v24, v26',
        f'v_max_f32 v26, {f32hex(1e-5)}, v26', 'v_rsq_f32 v25, v26', f's_add_u32 s50, s29, {WS_H2 - WS_X1}')
    for e in range(16): a.e(f'v_sub_f32 {V(F+e)}, {V(F+e)}, v24')
    for e in range(16): a.e(f'v_mul_f32 {V(RCB+e)}, {V(RCB+e)}, v25')
    for e in range(16): a.e(f'v_fma_f32 {V(F+e)}, {V(F+e)}, {V(RCB+e)}, {V(RSB+e)}')
    for r in range(8): a.e(f'v_cvt_pk_bf16_f32 {V(PT+r)}, {V(F+2*r)}, {V(F+2*r+1)}')
    for i in range(2): a.e(f'buffer_store_dwordx4 {V(PT+4*i,4)}, {V(RO)}, s[20:23], s50 offen offset:{2048*i}{SC}'); vm.add(('st', 1))
    return vm

GR = 5; GSTG = 28672; GDA = 208
def g_setup():
    s0 = ['s_lshl_b32 s52, s44, 2', 's_add_u32 s52, s52, s46', 's_and_b32 s47, s28, 1', 's_mul_i32 s47, s47, 448', 's_mov_b32 s48, 4682', 's_mov_b32 s49, 3584']
    v = ['v_add_u32 v5, s47, v2']
    for i in range(7):
        v += [f'v_add_u32 v6, {64*i}, v5', 'v_mul_lo_u32 v7, v6, s48', 'v_lshrrev_b32 v7, 16, v7', 'v_mul_u32_u24 v8, 14, v7', 'v_sub_u32 v8, v6, v8',
              'v_mul_lo_u32 v9, v7, s49', 'v_lshl_add_u32 v9, v8, 4, v9', f'v_subrev_u32 {V(GDA+i)}, {1024*(i & 3)}, v9']
    b = Asm()
    b.e('s_cmp_lt_u32 s28, 2', 's_cselect_b32 s54, s68, s72', 's_cselect_b32 s55, s69, s73', 's_mul_i32 s56, s52, 224')
    srd(b, 16, 54, 55, 0, add='s56'); b.e(f's_sub_u32 s18, {512*3584}, s56')
    b.e('s_lshr_b32 s56, s28, 1', 's_mul_i32 s56, s56, 14336', 's_and_b32 s54, s28, 1', 's_mul_i32 s54, s54, 7168', 's_add_u32 s30, s56, s54')
    return s0, v, b.o
def g_dma(st):
    base = (st % GR) * GSTG
    return [[([f's_add_u32 m0, s30, {base + 4096*(i//4)}', f's_mov_b32 s34, {st*64*3584}'] if i % 4 == 0 else []),
             f'buffer_load_dwordx4 {V(GDA+i)}, s[16:19], s34 offen offset:{1024*(i&3)} lds', ('ga', st)] for i in range(7)]

def phase_g(a, L, opt, vm, Sched):
    ACC = 16; RA = 8; FA = 128; BD = 0
    n1 = opt.get('g_pre1', 3)
    a.e('v_lshrrev_b32 v5, 2, v2', 'v_mul_u32_u24 v5, 224, v5', 'v_and_b32 v6, 3, v2', f'v_lshl_add_u32 {V(RA)}, v6, 3, v5', 'v_lshlrev_b32 v7, 4, v2')
    for i in range(1, GR): a.e(f'v_add_u32 {V(RA+i)}, {i*GSTG}, {V(RA)}')
    a.e('s_lshl_b32 s47, s45, 2', 's_add_u32 s47, s47, s28', 's_lshl_b32 s48, s47, 15', f's_add_u32 s48, s48, {WS_H2}'); srd(a, 12, 42, 43, 32768, add='s48')
    a.e(f's_mul_i32 s47, s47, {112*1024}', 's_mul_i32 s48, s52, 7168', 's_add_u32 s47, s47, s48', f's_add_u32 s47, s47, {WS_HH}'); srd(a, 8, 42, 43, 7168, add='s47')
    DP = 'g' in opt.get('dp', 'rg')
    if not DP: signal(a, L, 2, vm.wait({('st', 1)}))
    else: a.e(vm.wait({('ga', x) for x in range(n1)}), 's_barrier')
    mark(a, 6)
    def rd(n):
        ks, b = divmod(n, 14); st, tt = divmod(ks, 2)
        off = (b // 7)*14336 + tt*7168 + (b % 7)*32
        return [f'ds_read_b64_tr_b16 {A(FA+4*(n % 8)+2*v,2)}, {V(RA + st % GR)} offset:{off+3584*v}' for v in range(2)]
    D = opt.get('g_dist', 5)
    sc = Sched(a, age=6)
    d_setup(a)
    for n in range(D):
        for r in rd(n): sc.emit_filler(r)
    if not DP: poll(a, L, 2, FLB, vm); mark(a, 7)
    def bl(ks):
        return [[[f's_mov_b32 s36, {qb*16384 + (ks & ~3)*1024}'], f'buffer_load_dwordx4 {A(BD+8*ks+4*qb,4)}, v7, s[12:15], s36 offen offset:{(ks & 3)*1024}{SC}', ('gb', ks)] for qb in range(2)]
    UP = opt.get('g_up', 6)
    def gchk(ks, n=1): return chk_a(list(range(BD+8*ks, BD+8*(ks+n))), 'v13', 'v14', 'v15')
    if DP:
        spin(a, L, 'g', flat(bl(0) + bl(1)), gchk(0, 2), 'v13'); vm.clear(); vm.seen |= {('gb', 0), ('gb', 1)}; mark(a, 7)
    for ks in range(2 if DP else 0, UP):
        for sal, ins, tag in bl(ks): a.e(sal, ins); vm.add(tag)
    q = []
    for ks in range(UP, 16): q += bl(ks)
    for st in range(n1, GR): q = q[:4] + g_dma(st) + q[4:]
    NF = 16*14
    mf = []; gaps = []; pre = []; cq = []
    a.e(vm.wait({('gb', 0)}))
    for n in range(NF):
        ks, b = divmod(n, 14)
        for qb in range(2):
            acc = V(ACC+8*b+4*qb, 4)
            mf.append(f'{MF} {acc}, {A(FA+4*(n % 8),4)}, {A(BD+8*ks+4*qb,4)}, {"0" if ks == 0 else acc}')
            gaps.append([]); pre.append([])
        nn = n + D
        if nn < NF:
            if nn % 28 == 0:
                s2 = nn // 28
                assert ('ga', s2) in vm.seen and not any(x[2] == ('ga', s2) for x in q)
                w = vm.wait({('ga', s2)})
                if s2 >= n1 or s2 + GR - 2 < 8: gaps[2*n-1] += w + ['s_barrier']
                if n1 <= s2 + GR - 2 < 8 and s2 + GR - 2 >= GR: q += g_dma(s2 + GR - 2)
            r = rd(nn)
            gaps[2*n].append(r[0]); gaps[2*n+1].append(r[1])
        if q and n % 2 == 0:
            sal, ins, tag = q.pop(0)
            pre[2*n] += sal; gaps[2*n+1].append(ins); vm.add(tag)
        if b == (opt.get('g_chk', 5) if DP else 13) and ks < 15 and not (DP and ks == 0):
            assert not any(x[2] == ('gb', ks+1) for x in q)
            gaps[2*n+1] += vm.wait({('gb', ks+1)})
            if DP: cq = guard(L, f'g{ks+1}', [x.replace('s36', 's37') for x in flat(bl(ks+1))], gchk(ks+1), 'v13')
        elif cq:
            for g in (2*n, 2*n+1):
                k = 1 if len(cq) > 3 else 3
                gaps[g] += cq[:k]; cq = cq[k:]
    assert not q
    sc.run(mf, [pre[g] + gaps[g] for g in range(len(mf))])
    mark(a, 8)
    a.e('s_barrier')
    for b in range(7):
        t = ACC + 8*b
        for i in range(0, 8, 2): a.e(f'v_pk_mul_f32 {V(t+i,2)}, {V(t+i,2)}, {V(t+56+i,2)}')
        for i in range(4): a.e(f'v_cvt_pk_bf16_f32 {V(t+i)}, {V(t+2*i)}, {V(t+2*i+1)}')
        a.e(f's_mov_b32 s48, {(b*1024) & ~4095}', f'buffer_store_dwordx4 {V(t,4)}, v7, s[8:11], s48 offen offset:{(b*1024) & 4095}{SC}'); vm.add(('st', 2))
    return vm

DR = 9; DE = 128; DDA = 133; DRA = 137
def d_setup(a):
    E = DE
    a.e('s_lshl_b32 s54, s45, 1', 's_and_b32 s50, s44, 1', 's_add_u32 s54, s54, s50', 's_lshr_b32 s55, s44, 1', 's_lshl_b32 s55, s55, 2', 's_add_u32 s55, s55, s46')
    a.e('v_lshrrev_b32 v5, 3, v2', 'v_lshlrev_b32 v13, 1, v4', 'v_and_b32 v6, 7, v2', 'v_xor_b32 v13, v13, v6', 'v_lshlrev_b32 v13, 4, v13', 'v_lshl_add_u32 v13, v5, 10, v13')
    for i in range(4): a.e(f'v_add_u32 {V(DDA+i)}, {7*i*1024}, v13')
    a.e('s_lshl_b32 s50, s55, 7', f's_mul_i32 s51, s28, {14*32*1024}', 's_add_u32 s50, s50, s51')
    srd(a, 24, 76, 77, 0, add='s50'); a.e(f's_sub_u32 s26, {1792*1024}, s50', f's_mul_i32 s31, s28, {DR*4096}')
    a.e(f'v_and_b32 {V(E)}, 1, v6', f'v_lshlrev_b32 {V(E)}, 9, {V(E)}', f'v_lshl_add_u32 {V(E)}, v5, 4, {V(E)}', 'v_bfe_u32 v13, v6, 1, 1', f'v_lshl_add_u32 {V(E)}, v13, 3, {V(E)}', 'v_lshrrev_b32 v13, 2, v6', f'v_lshl_add_u32 {V(E)}, v13, 10, {V(E)}')
    a.e(f'v_lshlrev_b32 {V(E+1)}, 5, v6', f'v_lshlrev_b32 {V(E+2)}, 10, v5', f'v_lshl_add_u32 {V(E+2)}, v6, 4, {V(E+2)}')
    a.e(f'v_mul_u32_u24 {V(E+3)}, 272, v5', f'v_lshl_add_u32 {V(E+3)}, v6, 5, {V(E+3)}', 's_mul_i32 s47, s28, 4352', f'v_add_u32 {V(E+3)}, s47, {V(E+3)}')
    a.e(f'v_mul_u32_u24 {V(E+4)}, 272, v3', f'v_lshl_add_u32 {V(E+4)}, v4, 4, {V(E+4)}', 's_mul_i32 s47, s28, 17408', f'v_add_u32 {V(E+4)}, s47, {V(E+4)}')
    a.e('v_lshrrev_b32 v5, 2, v2', 'v_and_b32 v6, 3, v2', 'v_lshlrev_b32 v13, 7, v5', 'v_lshl_add_u32 v13, v6, 3, v13', 'v_add_u32 v13, s31, v13', 'v_bfe_u32 v5, v5, 1, 2')
    for nb in range(4): a.e(f'v_xor_b32 v6, {nb}, v5', f'v_lshl_add_u32 {V(DRA+nb)}, v6, 5, v13')
    a.e('s_lshl_b32 s47, s54, 2', 's_add_u32 s47, s47, s28', 's_lshl_b32 s49, s47, 14', 's_lshl_b32 s50, s55, 7', 's_add_u32 s56, s50, s49', 's_lshl_b32 s51, s55, 11', 's_add_u32 s57, s51, s49')
    a.e('s_lshl_b32 s58, s55, 8', f's_add_u32 s58, s58, {5*2048}')
    a.e(f's_mul_i32 s48, s54, {2*112*1024}', f's_mul_i32 s49, s28, {28*1024}', 's_add_u32 s48, s48, s49', f's_add_u32 s59, s48, {WS_HH}')
def d_dma(s):
    return [[([f's_add_u32 m0, s31, {(s % DR)*4096}', f's_mov_b32 s35, {s*32768}'] if i == 0 else []),
             f'buffer_load_dwordx4 {V(DDA+i)}, s[24:27], s35 offen offset:{1024*i} lds', ('da', s)] for i in range(4)]

def phase_d(a, L, opt, vm, Sched):
    NS = 14
    ACC = 0; FA = [64, 80]; XR = 96; GV = 104; RA = DRA; E = DE
    BR = lambda s: (16 + 16*s) if s < 7 else (144 + 16*(s-7))
    n0 = opt.get('d_pre0', 8); n0a = opt.get('d_pre0a', 3)
    for s in range(n0a):
        for sal, ins, tag in d_dma(s): a.e(sal, ins); vm.add(tag)
    srd(a, 12, 42, 43, 2*112*1024, add='s59')
    DP = 'd' in opt.get('dp', 'rg')
    if not DP: signal(a, L, 3, vm.wait({('st', 2)}))
    mark(a, 9)
    for s in range(n0a, n0):
        for sal, ins, tag in d_dma(s): a.e(sal, ins); vm.add(tag)
    srd(a, 16, 42, 43, 12288); srd(a, 8, 82, 83, 2097152)
    xl = [f'buffer_load_dwordx2 {A(XR+4*p+2*e,2)}, {V(E)}, s[20:23], s57 offen offset:{128*p+256*e}{SC}' for p in range(2) for e in range(2)]
    late_x = (not DP) and 'g' in opt.get('dp', 'rg')
    if not late_x:
        for x in xl: a.e(x); vm.add(('e', 0))
    for h in range(2): a.e(f'buffer_load_dwordx4 {A(GV+4*h,4)}, {V(E+1)}, s[16:19], s58 offen offset:{16*h}{SC}'); vm.add(('e', 0))
    if not DP: poll(a, L, 3, FLB, vm); mark(a, 10)
    dma2 = d_dma
    def bload(s):
        return [[[f's_mov_b32 s36, {qp*112*1024 + 2048*s}'] if u == 0 else [], f'buffer_load_dwordx4 {V(BR(s)+8*qp+4*u,4)}, v7, s[12:15], s36 offen offset:{1024*u}{SC}', ('db', s)] for qp in range(2) for u in range(2)]
    def reads(s): return [f'ds_read_b64_tr_b16 {A(FA[s & 1]+4*x+2*v,2)}, {V(RA+x)} offset:{(s % DR)*4096+2048*v}' for x in range(4) for v in range(2)]
    def swaps(s): return [f'v_swap_b32 {V(BR(s)+8*qp+2+i)}, {V(BR(s)+8*qp+4+i)}' for qp in range(2) for i in range(2)]
    sc = Sched(a, age=6)
    PRE = opt.get('d_pre', 4)
    def dchk(s): return chk_v(list(range(BR(s), BR(s)+16)), 'v13')
    if DP:
        spin(a, L, 'd', flat(bload(0)), dchk(0), 'v13'); vm.clear(); vm.seen.add(('db', 0)); mark(a, 10)
        for r in reads(0): sc.emit_filler(r)
    for s in range(1 if DP else 0, PRE):
        for sal, ins, tag in bload(s): a.e(sal, ins); vm.add(tag)
        if s == 0:
            a.e(vm.wait({('da', 0)}))
            for r in reads(0): sc.emit_filler(r)
    a.e(vm.wait({('db', 0)}), swaps(0))
    nb_ = PRE; na_ = n0
    for s in range(NS):
        mf = [f'{MF} {A(ACC+16*nb+4*qb,4)}, {A(FA[s & 1]+4*nb,4)}, {V(BR(s)+4*qb,4)}, {"0" if s == 0 else A(ACC+16*nb+4*qb,4)}' for nb in range(4) for qb in range(4)]
        gaps = [[] for _ in mf]
        a.e('s_waitcnt lgkmcnt(0)'); sc.pend = []
        iss = []
        if nb_ < NS: iss += bload(nb_); nb_ += 1
        if na_ < NS and na_ <= s + DR and na_ <= nb_ + 1: iss += dma2(na_); na_ += 1
        elif nb_ < NS: iss += bload(nb_); nb_ += 1
        if late_x and s == 10: iss += [[[], x, ('e', 99)] for x in xl]
        for g, (sal, ins, tag) in enumerate(iss[:7]):
            gaps[g] += sal + [ins]; vm.add(tag)
        if s + 1 < NS:
            assert ('da', s+1) in vm.seen and ('db', s+1) in vm.seen and not any(x[2][1] == s+1 for x in iss[7:])
            gaps[7] += vm.wait({('da', s+1), ('db', s+1)})
            for i, r in enumerate(reads(s+1)): gaps[7 + i//2].append(r)
            if DP:
                cq = guard(L, f'd{s+1}', [x.replace('s36', 's37') for x in flat(bload(s+1))], dchk(s+1), 'v13')
                for i, x in enumerate(cq[:8]): gaps[8 + i//2].append(x)
                gaps[12] += cq[8:]
                for i, x in enumerate(swaps(s+1)): gaps[13 + i//2].append(x)
            else:
                for i, x in enumerate(swaps(s+1)): gaps[11 + i//2].append(x)
        for i, (sal, ins, tag) in enumerate(iss[7:]):
            gaps[13] += sal + [ins]; vm.add(tag)
        sc.run(mf, gaps)
    assert nb_ == NS and na_ == NS, (nb_, na_)
    mark(a, 11)
    PT = 32
    a.e('s_nop 3', 's_barrier')
    for nb in range(4):
        for qb in range(4):
            a.e(f'ds_write_b128 {V(E+4)}, {A(ACC+16*nb+4*qb,4)} offset:{qb*16*272 + nb*64}')
    a.e(vm.wait({('e', 99)}))
    if DP: a.e(guard(L, 'x', xl, chk_a(list(range(XR, XR+8)), 'v13', 'v14', 'v15'), 'v13'))
    for i in range(8): a.e(f'v_accvgpr_read_b32 {V(112+i)}, {A(XR+i)}', f'v_accvgpr_read_b32 {V(120+i)}, {A(GV+i)}')
    for i in range(8): a.e(f'v_lshlrev_b32 {V(96+2*i)}, 16, {V(112+i)}', f'v_and_b32 {V(97+2*i)}, 0xffff0000, {V(112+i)}')
    a.e('s_waitcnt lgkmcnt(0)', 's_barrier')
    for p in range(2):
        for pw in range(4):
            for h in range(2): a.e(f'ds_read_b128 {V(PT+32*p+8*pw+4*h,4)}, {V(E+3)} offset:{pw*17408 + p*8*272 + h*16}')
    for p in range(2):
        b = PT + 32*p
        a.e(f's_waitcnt lgkmcnt({12-8*p})')
        for i in range(0, 8, 2): a.e(f'v_pk_add_f32 {V(b+i,2)}, {V(b+i,2)}, {V(b+8+i,2)}')
        a.e(f's_waitcnt lgkmcnt({8-8*p})')
        for i in range(0, 8, 2): a.e(f'v_pk_add_f32 {V(b+16+i,2)}, {V(b+16+i,2)}, {V(b+24+i,2)}')
        for i in range(0, 8, 2): a.e(f'v_pk_add_f32 {V(b+i,2)}, {V(b+i,2)}, {V(b+16+i,2)}')
        for i in range(0, 8, 2): a.e(f'v_pk_fma_f32 {V(96+8*p+i,2)}, {V(b+i,2)}, {V(120+i,2)}, {V(96+8*p+i,2)}')
        for i in range(4): a.e(f'v_cvt_pk_bf16_f32 {V(b+i)}, {V(96+8*p+2*i)}, {V(97+8*p+2*i)}')
        if p: a.e('s_add_u32 s56, s56, 8192')
        a.e(f'buffer_store_dwordx4 {V(b,4)}, {V(E+2)}, s[8:11], s56 offen{opt.get("wt_d", "")}')

def fused_post(a, L, opt, Sched):
    del RETRY[:]
    SYNC['mode'] = opt.get('sync', 'mix'); SYNC['one'] = opt.get('one', 1); SYNC['vec'] = opt.get('vec', [2])
    vm = phase_o(a, L, opt, Sched)
    vm = phase_r(a, L, opt, vm)
    vm = phase_g(a, L, opt, vm, Sched)
    phase_d(a, L, opt, vm, Sched)
    if TL['on']:
        a.e('s_waitcnt vmcnt(0)'); mark(a, 12)
        srd(a, 8, 42, 43, 1 << 20, add=(58 << 20))
        a.e('s_lshl_b32 s54, s2, 2', 's_add_u32 s54, s54, s28', 's_lshl_b32 s54, s54, 7', 'v_lshlrev_b32 v5, 2, v2', 's_mov_b32 exec_hi, 0')
        a.e(f'buffer_store_dword {V(DIAG)}, v5, s[8:11], s54 offen', 's_mov_b64 exec, -1')
    if TL.get('dm'):
        W, x, y, f = TL['dm']
        a.e('s_waitcnt vmcnt(0)'); mark(a, 12)
        a.e(f's_cmp_lg_u32 s2, {W}', f's_cbranch_scc1 {L}_dmx', 's_cmp_lg_u32 s28, 0', f's_cbranch_scc1 {L}_dmx')
        a.e('s_load_dwordx2 s[8:9], s[0:1], 96', 's_waitcnt lgkmcnt(0)', 's_mov_b32 s10, 256', 's_mov_b32 s11, 0x20000', f'v_subrev_u32 v6, s94, {V(DIAG)}', 'v_lshlrev_b32 v5, 2, v2', 'v_subrev_u32 v5, 16, v5',
            'buffer_store_dword v6, v5, s[8:11], 0 offen')
        if f:
            a.e(f'v_readlane_b32 s92, v6, {x}', f'v_readlane_b32 s93, v6, {y}', 's_nop 3', 's_sub_u32 s92, s93, s92', f's_mul_i32 s92, s92, {f}', 's_min_u32 s92, s92, 100000',
                'spinl:', 's_memrealtime s[96:97]', 's_waitcnt lgkmcnt(0)', 's_sub_u32 s96, s96, s98', 's_cmp_lt_u32 s96, s92', 's_cbranch_scc1 spinl')
        a.e(f'{L}_dmx:')

WS_TAG = 32768
def front_addr(a):
    pass

WS_MODP = 24576
def phase_front(a, L, opt, wq, emit_list, vm, setup, HV):
    import math
    WA_ = wq(0, 4) + (wq(4, 4) if opt.get('w_pre', 16) == 16 else [])
    wn = [0]
    def wdma(lo=0):
        def em(lst):
            for sal, ins, tag in lst: a.e([x.replace('s50', 's56') for x in sal], ins.replace('s50', 's56'))
        em(WA_[lo:8])
        wn[0] += 1
        if opt.get('ghost', 0): a.e('s_cmp_eq_u32 s28, 3', f's_cbranch_scc1 {L}_fw{wn[0]}')
        em(WA_[8:]); a.e(f'{L}_fw{wn[0]}:')
    a.e('s_mov_b32 s62, 256', 's_mov_b32 s63, 0x20000')
    a.e('s_cmp_lg_u32 s2, 255', f's_cbranch_scc1 {L}_f1', 's_cmp_lg_u32 s28, 0', f's_cbranch_scc1 {L}_f1', 's_or_b32 s50, s86, 0x80000000')
    a.e('s_mov_b64 exec, 1', 'v_mov_b32 v12, 0', 'v_mov_b32 v11, s50', f'buffer_store_dword v11, v12, s[60:63], 0 offen{SC}', 's_mov_b64 exec, -1', f'{L}_f1:')
    a.e('s_cmp_lt_u32 s2, 128', f's_cbranch_scc1 {L}_fm0')
    a.e('s_and_b32 s50, s2, 1', 's_lshl_b32 s50, s50, 6', 's_bfe_u32 s51, s2, 0x20001', 's_lshl_b32 s51, s51, 4', 's_add_u32 s50, s50, s51', 's_bfe_u32 s51, s2, 0x40003', 's_add_u32 s47, s50, s51')
    srd(a, 8, 80, 81, 2097152)
    a.e('s_lshl_b32 s50, s47, 14', 's_lshl_b32 s51, s28, 8', 's_add_u32 s50, s50, s51', 'v_lshlrev_b32 v5, 10, v3', 'v_lshl_add_u32 v5, v4, 4, v5')
    for i in range(4): a.e(f'buffer_load_dwordx4 {V(16+4*i,4)}, v5, s[8:11], s50 offen offset:{64*i}{opt.get("xnt", "")}')
    a.e(f's_branch {L}_fj0')
    a.e(f'{L}_fm0:')
    srd(a, 8, 56, 57, 1024); srd(a, 12, 58, 59, 512*6144)
    E0 = opt.get('e0', 0)
    if E0:
        a.e('s_cmp_lg_u32 s28, 0', f's_cbranch_scc1 {L}_fe0')
        for sal, ins, tag in WA_[:E0]: a.e(sal, ins)
        a.e(f'{L}_fe0:')
    a.e('v_lshrrev_b32 v5, 2, v2', 's_lshl_b32 s50, s28, 4', 'v_add_u32 v5, s50, v5', 's_mov_b32 s51, 6144', 'v_mul_lo_u32 v6, v5, s51', 'v_and_b32 v7, 3, v2', 'v_lshl_add_u32 v6, v7, 4, v6', 'v_lshlrev_b32 v5, 1, v5')
    a.e('s_and_b32 s50, s2, 31', 's_lshr_b32 s51, s2, 5', 's_cmp_lt_u32 s2, 64', f's_cbranch_scc1 {L}_fa0')
    a.e('s_sub_u32 s50, s2, 32', 's_lshl_b32 s52, s50, 6', f's_add_u32 s52, s52, {256*6144}')
    for i in range(4, 8): a.e(f'buffer_load_ushort {V(64+i)}, v5, s[8:11], 0 offen offset:{i*128}')
    for i in range(4, 8): a.e(f'buffer_load_dwordx4 {V(16+4*i,4)}, v6, s[12:15], s52 offen{opt.get("mnt", "")}', f's_add_u32 s52, s52, {64*6144}')
    a.e('s_mov_b32 s51, 0', f'{L}_fa0:')
    a.e('s_mov_b32 s47, s50', 's_lshl_b32 s52, s50, 6', f's_mul_i32 s53, s51, {256*6144}', 's_add_u32 s52, s52, s53', 's_lshl_b32 s53, s51, 9')
    for i in range(4): a.e(f'buffer_load_ushort {V(64+i)}, v5, s[8:11], s53 offen offset:{i*128}')
    for i in range(4): a.e(f'buffer_load_dwordx4 {V(16+4*i,4)}, v6, s[12:15], s52 offen{opt.get("mnt", "")}', f's_add_u32 s52, s52, {64*6144}' if i < 3 else [])
    a.e(f'{L}_fj0:')
    NC = 0
    if opt.get('cpf', 1):
        a.e('s_getpc_b64 s[50:51]', f'{L}_pc:', f's_sub_u32 s50, s50, {L}_pc - code_begin', 's_subb_u32 s51, s51, 0')
        a.e('s_lshr_b32 s52, s2, 3', 's_lshl_b32 s52, s52, 2', 's_add_u32 s52, s52, s28', 's_lshl_b32 s52, s52, 12', 'v_lshlrev_b32 v80, 6, v2', 'v_add_u32 v80, s52, v80',
            'v_min_u32 v80, code_end - code_begin - 4, v80', 'global_load_dword v80, v80, s[50:51]'); NC += 1
    setup()
    def tagload(): a.e('v_mov_b32 v82, 0', f'buffer_load_dword v81, v82, s[60:63], 0 offen{SC}')
    def gettag(n):
        a.e('s_mov_b32 s53, 0', f'{L}_ft{n}:', 's_waitcnt vmcnt(0)', 'v_readfirstlane_b32 s39, v81', 's_add_u32 s53, s53, 1', 's_cmp_gt_u32 s53, 200000', f's_cbranch_scc1 {L}_ftd{n}',
            's_nop 1', 's_cmp_lg_u32 s39, 0', f's_cbranch_scc1 {L}_ftd{n}', f'buffer_load_dword v81, v82, s[60:63], 0 offen{SC}', f's_branch {L}_ft{n}', f'{L}_ftd{n}:')
    def flag():
        srd(a, 52, 42, 43, 16384, add=WS_FLAG + 4*16384)
        a.e('s_lshl_b32 s50, s2, 6', 's_mov_b64 exec, 1', 'v_mov_b32 v5, s50', 'v_mov_b32 v9, s39', f'buffer_store_dword v9, v5, s[52:55], 0 offen{SC}', 's_mov_b64 exec, -1')
    a.e('s_cmp_lt_u32 s2, 128', f's_cbranch_scc1 {L}_fm1')
    a.e('v_lshlrev_b32 v5, 4, v3', 'v_lshrrev_b32 v8, 1, v4', 'v_lshl_add_u32 v5, v8, 10, v5', 'v_and_b32 v8, 1, v4', 'v_lshl_add_u32 v5, v8, 9, v5')
    a.e('s_lshr_b32 s50, s47, 1', 's_lshl_b32 s50, s50, 15', 's_and_b32 s51, s47, 1', 's_lshl_b32 s51, s51, 8', 's_add_u32 s50, s50, s51', 's_lshl_b32 s51, s28, 13', 's_add_u32 s47, s50, s51')
    srd(a, 52, 42, 43, 2097152, add=WS_H)
    a.e('v_lshlrev_b32 v12, 3, v3', 's_lshl_b32 s50, s28, 7', 'v_add_u32 v13, s50, v12')
    a.e(f's_waitcnt vmcnt({NC})'); mark2(a, 17)
    LNW = opt.get('ln_w', 4)
    for sal, ins, tag in WA_[:LNW]: a.e([x.replace('s50', 's56') for x in sal], ins.replace('s50', 's56'))
    for i in range(16): a.e(f'v_lshlrev_b32 {V(32+2*i)}, 16, {V(16+i)}', f'v_and_b32 {V(33+2*i)}, 0xffff0000, {V(16+i)}')
    a.e('v_add_f32 v8, v32, v33', 'v_mul_f32 v9, v32, v32', 'v_add_f32 v10, v34, v35', 'v_mul_f32 v11, v33, v33')
    for e in range(2, 32, 2):
        if e >= 4: a.e(f'v_add_f32 v8, v8, {V(32+e)}', f'v_add_f32 v10, v10, {V(33+e)}')
        a.e(f'v_fmac_f32 v9, {V(32+e)}, {V(32+e)}', f'v_fmac_f32 v11, {V(33+e)}, {V(33+e)}')
    a.e('v_add_f32 v8, v8, v10', 'v_add_f32 v9, v9, v11')
    for perm in ('32', '16'):
        a.e('v_mov_b32 v10, v8', 'v_mov_b32 v11, v9', 's_nop 0', f'v_permlane{perm}_swap_b32 v8, v10', f'v_permlane{perm}_swap_b32 v9, v11', 'v_add_f32 v8, v8, v10', 'v_add_f32 v9, v9, v11')
    tagload()
    a.e('ds_write_b64 v13, v[8:9]', 's_waitcnt lgkmcnt(0)', 's_barrier')
    for i in range(4): a.e(f'ds_read_b64 {V(16+2*i,2)}, v12 offset:{128*i}')
    a.e('s_waitcnt lgkmcnt(0)', 'v_pk_add_f32 v[16:17], v[16:17], v[18:19]', 'v_pk_add_f32 v[20:21], v[20:21], v[22:23]', 'v_pk_add_f32 v[16:17], v[16:17], v[20:21]')
    a.e(f'v_mul_f32 v8, {f32hex(1/512)}, v16', f'v_mov_b32 v9, {f32hex(1e-5)}', f'v_fmac_f32 v9, {f32hex(1/512)}, v17', 'v_fma_f32 v9, -v8, v8, v9', f'v_max_f32 v9, {f32hex(1e-5)}, v9', 'v_rsq_f32 v9, v9', 's_add_u32 s50, s47, 4096')
    a.e('v_mul_f32 v8, v8, v9')
    for e in range(32): a.e(f'v_fma_f32 {V(32+e)}, {V(32+e)}, v9, -v8')
    for i in range(16): a.e(f'v_cvt_pk_f16_f32 {V(16+i)}, {V(32+2*i)}, {V(33+2*i)}')
    for i in range(4): a.e(f'buffer_store_dwordx4 {V(16+4*i,4)}, v5, s[52:55], {"s47" if i < 2 else "s50"} offen offset:{2048*(i & 1)}{SC}')
    mark2(a, 18)
    gettag(0)
    a.e('s_barrier', 's_cmp_lg_u32 s28, 0', f's_cbranch_scc1 {L}_fl1'); flag(); a.e(f'{L}_fl1:')
    wdma(LNW)
    a.e(f's_branch {L}_fj1')
    a.e(f'{L}_fm1:')
    a.e('v_and_b32 v5, 3, v2', 'v_lshlrev_b32 v12, 5, v5', 'v_and_b32 v5, 1, v4', 'v_lshl_add_u32 v12, v5, 3, v12', 'v_lshrrev_b32 v5, 5, v2', 'v_lshl_add_u32 v12, v5, 4, v12', 's_lshl_b32 s50, s28, 7', 'v_add_u32 v12, s50, v12')
    a.e(f's_mov_b32 s50, {f32hex(-math.log2(math.e))}')
    for d in range(8): a.e(f'v_mov_b32 {V(48+d)}, 0')
    def silu(rng):
        for i in rng: a.e(f'v_lshlrev_b32 {V(64+i)}, 16, {V(64+i)}')
        for i in rng: a.e(f'v_mul_f32 {V(72+i)}, s50, {V(64+i)}')
        for i in rng: a.e(f'v_exp_f32 {V(72+i)}, {V(72+i)}')
        a.e('s_nop 0')
        for i in rng: a.e(f'v_add_f32 {V(72+i)}, 1.0, {V(72+i)}')
        for i in rng: a.e(f'v_rcp_f32 {V(72+i)}, {V(72+i)}')
        a.e('s_nop 0')
        for i in rng: a.e(f'v_mul_f32 {V(64+i)}, {V(64+i)}, {V(72+i)}')
        for i in rng: round_bf16(a, V(64+i), V(64+i))
    def fma(i):
        for d in range(4):
            w = 16+4*i+d
            a.e(f'v_lshlrev_b32 v8, 16, {V(w)}', f'v_and_b32 v9, 0xffff0000, {V(w)}', f'v_fmac_f32 {V(48+2*d)}, v8, {V(64+i)}', f'v_fmac_f32 {V(49+2*d)}, v9, {V(64+i)}')
    a.e('s_cmp_lt_u32 s2, 64', f's_cbranch_scc1 {L}_fa1')
    a.e(f's_waitcnt vmcnt({NC+12})'); silu(range(4, 8))
    for i in range(4, 8): a.e(f's_waitcnt vmcnt({NC+8+7-i})'); fma(i)
    a.e(f'{L}_fa1:', f's_waitcnt vmcnt({NC+4})'); silu(range(4))
    for i in range(4):
        a.e(f's_waitcnt vmcnt({NC+3-i})')
        if i == 3: mark2(a, 17); tagload()
        fma(i)
    a.e('s_nop 1')
    for i in range(4): a.e(f'v_permlane32_swap_b32 v{48+i}, v{52+i}')
    for i in range(4): a.e(f'v_add_f32 v{48+i}, v{48+i}, v{52+i}')
    a.e('s_nop 0')
    for i in range(2): a.e(f'v_permlane16_swap_b32 v{48+i}, v{50+i}')
    for i in range(2): a.e(f'v_add_f32 v{48+i}, v{48+i}, v{50+i}')
    for r in (4, 8):
        a.e('s_nop 1')
        for i in range(2): a.e(f'v_add_f32_dpp v{48+i}, v{48+i}, v{48+i} row_ror:{r} row_mask:0xf bank_mask:0xf')
    a.e('ds_write_b64 v12, v[48:49]', 'v_and_b32 v5, 31, v2', 'v_lshlrev_b32 v5, 2, v5', 's_waitcnt lgkmcnt(0)', 's_barrier')
    a.e('s_cmp_eq_u32 s28, 0', f's_cbranch_scc1 {L}_fm2')
    gettag(1); wdma(); a.e(f's_branch {L}_fj1')
    a.e(f'{L}_fm2:')
    for i in range(4): a.e(f'ds_read_b32 {V(16+i)}, v5 offset:{128*i}')
    srd(a, 52, 42, 43, 65536)
    a.e('s_lshl_b32 s50, s47, 7', 'v_add_u32 v5, s50, v5', 's_lshr_b32 s51, s2, 5', 's_lshl_b32 s51, s51, 12', f's_add_u32 s51, s51, {WS_MODP}')
    a.e('s_waitcnt lgkmcnt(0)', 'v_add_f32 v16, v16, v17', 'v_add_f32 v18, v18, v19', 'v_add_f32 v16, v16, v18')
    a.e('s_cmp_lt_u32 s2, 64', f's_cbranch_scc1 {L}_fa2')
    a.e('s_lshr_b32 s50, s47, 4', 's_cmp_eq_u32 s50, 4', 's_cselect_b32 s50, 1.0, 0', 's_mov_b32 s51, 0')
    round_bf16(a, 'v16', 'v16'); a.e('v_add_f32 v16, s50, v16'); round_bf16(a, 'v16', 'v16')
    a.e(f'{L}_fa2:', 's_mov_b32 exec_hi, 0', f'buffer_store_dword v16, v5, s[52:55], s51 offen{SC}', 's_mov_b64 exec, -1')
    mark2(a, 18)
    gettag(2); flag(); wdma(opt.get('e0', 0))
    a.e(f'{L}_fj1:'); mark2(a, 16)
    a.e('s_lshr_b32 s50, s45, 2', 's_and_b32 s51, s50, 3', 's_lshl_b32 s51, s51, 1', 's_lshr_b32 s50, s50, 2', 's_add_u32 s50, s50, s51', 's_add_u32 s50, s50, 128')
    a.e('v_lshlrev_b32 v8, 3, v3', 'v_add_u32 v8, s50, v8', 'v_lshlrev_b32 v8, 6, v8', 'v_lshlrev_b32 v10, 6, v2')
    srd(a, 52, 42, 43, 16384, add=WS_FLAG + 4*16384); srd(a, 24, 42, 43, 8192, add=WS_MODP)
    a.e('s_cmp_lg_u32 s28, 3', f's_cbranch_scc1 {L}_pd4', 's_mov_b32 s50, 0', f'{L}_pl4:', f'buffer_load_dword v5, v8, s[52:55], 0 offen{SC}', f'buffer_load_dword v9, v10, s[52:55], 0 offen{SC}',
        's_add_u32 s50, s50, 1', 's_waitcnt vmcnt(0)', 'v_cmp_eq_u32 vcc, s39, v5', 'v_cmp_eq_u32 s[56:57], s39, v9', 's_cmp_gt_u32 s50, 200000', f's_cbranch_scc1 {L}_pd4',
        's_and_b64 vcc, vcc, s[56:57]', 's_cmp_eq_u64 vcc, -1', f's_cbranch_scc1 {L}_pd4', f's_sleep {opt.get("psleep", 0)}' if opt.get('psleep', 0) else [], f's_branch {L}_pl4', f'{L}_pd4:')
    a.e('s_waitcnt vmcnt(8)', 's_barrier'); mark2(a, 19); unpark0(a)
    del vm[:]
    for h in range(2): a.e(f's_add_u32 s50, s49, {4096*h}' , f'buffer_load_dwordx4 {V(16+4*h,4)}, {V(HV)}, s[24:27], s50 offen{SC}'); vm.append(('m', 0))

def front_late(a, L, wq, vm, opt):
    if not opt.get('ghost', 0): return
    a.e('s_cmp_lg_u32 s28, 3', f's_cbranch_scc1 {L}_fwl')
    for sal, ins, tag in wq(4, 4): a.e(sal, ins)
    a.e(f'{L}_fwl:')
    vm.append(('w', 4, 'ghost'))

def front_table(a, HV):
    a.e('s_cmp_ge_u32 s28, 2', 's_cselect_b32 s50, 1.0, 0', 's_xor_b32 s51, s49, 2048', 's_add_u32 s51, s51, 147456', f'v_add_u32 v5, s51, {V(HV)}')
    for i in range(4): a.e(f'v_add_f32 {V(16+i)}, {V(16+i)}, {V(20+i)}')
    for i in range(4): round_bf16(a, V(16+i), V(16+i))
    for i in range(4): a.e(f'v_add_f32 {V(16+i)}, s50, {V(16+i)}')
    for i in range(4): round_bf16(a, V(16+i), V(16+i))
    for i in range(4): a.e(f'v_mul_f32 {V(16+i)}, {f32hex(QSCALE)}, {V(16+i)}')
    a.e('ds_write_b128 v5, v[16:19]', 's_waitcnt lgkmcnt(0)')
```

```python
from asmlib import *
from gen_pre import *
import gen_fuse as gf
import re

S_ = [16, 48]; P_ = [80, 96]; CI = 112; VT = 128
KA = 144; VA = 148; DK = 156; DV = 160; LV = 162; ONES = 172; LM = 176; Q = 192
WA = 176; DW = 180; HV = 181
AO = 0; AK = 192; AV = 224
DELTA = 100.0
MF = 'v_mfma_f32_16x16x32_bf16'
NT = {'kv': '', 'wq': ''}
PF = 136

class Sched:
    def __init__(self, a, age=8):
        self.a = a
        self.pend = []
        self.t = 0; self.age = age
    @staticmethod
    def regs(tok):
        m = re.match(r'([av])\[(\d+):(\d+)\]', tok)
        if m: return {(m.group(1), i) for i in range(int(m.group(2)), int(m.group(3))+1)}
        m = re.match(r'([av])(\d+)$', tok)
        if m: return {(m.group(1), int(m.group(2)))}
        return set()
    def need(self, ins):
        ops = [t.strip() for t in ins.split(None, 1)[1].split(',')]
        rs = set()
        for t in ops[1:3]: rs |= self.regs(t.split()[0])
        last = -1
        for i, p in enumerate(self.pend):
            if p[0] & rs: last = i
        if last < 0: return None
        while last + 1 < len(self.pend) and self.pend[last+1][1] <= self.t - self.age: last += 1
        return len(self.pend) - 1 - last
    def wait(self, n):
        n = min(n, 15)
        self.a.e(f's_waitcnt lgkmcnt({n})')
        self.pend = self.pend[len(self.pend)-n:] if n else []
    def emit_filler(self, ins):
        if ins.startswith('WAITDS '):
            n = self.need('x d, ' + ins[7:])
            if n is not None: self.wait(n)
            return
        self.a.e(ins)
        if ins.startswith('ds_read') or ins.startswith('ds_bpermute'):
            self.pend.append((self.regs(ins.split(None, 1)[1].split(',')[0].strip()), self.t))
        elif ins.startswith('ds_'):
            self.pend.append((set(), self.t))
        elif ins.startswith('s_waitcnt') and 'lgkmcnt(0)' in ins:
            self.pend = []
    def run(self, mf, gaps, nextmf=None):
        n0 = self.need(mf[0]) if mf else None
        if n0 is not None: self.wait(n0)
        for g, m in enumerate(mf):
            self.a.e(m); self.t += 1
            nxt = mf[g+1] if g+1 < len(mf) else nextmf
            if nxt is not None:
                n = self.need(nxt)
                if n is not None: self.wait(n)
            for f in gaps[g]: self.emit_filler(f)
            if nxt is not None:
                n = self.need(nxt)
                if n is not None: self.wait(n)

def qk_mfmas(Sw, czero=False, order='kqt'):
    it = [(kb, qb, t) for kb in range(2) for qb in range(4) for t in range(4)] if order == 'kqt' else \
         [(kb, qb, t) for qb in range(4) for kb in range(2) for t in range(4)]
    r = []
    for kb, qb, t in it:
        d = Sw + 8*qb + 4*kb
        c = (('0' if czero else V(CI+4*qb, 4)) if t == 0 else V(d, 4))
        r.append(f'{MF} {V(d,4)}, {A(AK+16*kb+4*t,4)}, {V(Q+16*qb+4*t,4)}, {c}')
    return r

def pv_mfmas(Pr, XQ, first=False):
    r = []
    for db in range(8):
        for qb in range(4):
            o = AO + 16*db + 4*qb
            r.append(f'{MF} {A(o,4)}, {V(Pr+4*qb,4)}, {A(AV+4*db,4)}, {"0" if first else A(o,4)}')
    for qb in XQ:
        r.append(f'{MF} {V(LM+4*qb,4)}, {V(Pr+4*qb,4)}, {V(ONES,4)}, {"0" if first else V(LM+4*qb,4)}')
    return r

def vreads(base_reg, off):
    return [f'ds_read_b64_tr_b16 {A(AV+4*db+2*u,2)}, {V(base_reg+db)} offset:{off+4096*u}' for db in range(8) for u in range(2)]
def kreads(off):
    return [f'ds_read_b128 {A(AK+4*f,4)}, {V(KA+(f&3))} offset:{off+4096*(f>>2)}' for f in range(8)]

def sm_items(Sr, Pw, XQ):
    exps = [f'v_exp_f32 {V(Sr+e)}, {V(Sr+e)}' for e in range(32)]
    items = []
    for e in range(32):
        qb = e >> 3
        if qb not in XQ:
            l = LV + 2*qb + (e & 1)
            items.append((e, f'v_add_f32 {V(l)}, {V(l)}, {V(Sr+e)}'))
        if e & 1: items.append((e, f'v_cvt_pk_bf16_f32 {V(Pw+e//2)}, {V(Sr+e-1)}, {V(Sr+e)}'))
    return exps, items

def dma_group(isV, grp, m0s, soff):
    srd_ = 's[12:15]' if isV else 's[8:11]'
    st = f's_mov_b32 m0, {m0s}' if grp == 0 else f's_add_u32 m0, {m0s}, 4096'
    r = []
    for j in range(4):
        vo = DV + (j & 1) if isV else DK + j
        r.append(f'buffer_load_dwordx4 {V(vo)}, {srd_}, {soff} offen offset:{j*1024}{NT["kv"]} lds')
    return st, r

def normal_slot(sc, opt, s, dmas, kread=True, first_pv=False, late_v=None, salu=(), extra_v=(), salu0=40):
    XQ = opt['XQ']
    par = s & 1
    mf = qk_mfmas(S_[par ^ 1]) + pv_mfmas(P_[par ^ 1], XQ, first_pv)
    N = len(mf)
    gaps = [[] for _ in range(N)]; cap = [0 if (g < 64 and g % 2 == 0) else 2 for g in range(N)]
    pre = [[] for _ in range(N)]
    exps, items = sm_items(S_[par], P_[par], XQ)
    for e in range(32): gaps[2*e].append(exps[e])
    for n, (sal, ins) in enumerate(dmas):
        g = opt['dpos'][n]
        for k, x in enumerate(sal): pre[g-1-k].append(x)
        gaps[g].append(ins); cap[g] -= opt['dcost']
    if opt.get('nodma'):
        gaps = [[x for x in gp if not x.startswith('buffer_load')] for gp in gaps]
    for k, x in enumerate(salu): pre[salu0 + (2 if salu0 == 40 else 1)*k].append(x)
    LAT = opt.get('dslat', 10)
    ds = []
    for i, r in enumerate(vreads(VA, ((s-1) % 8)*8192)): ds.append((0, 32 + 4*(i >> 1) - LAT, r))
    if kread:
        for f, r in enumerate(kreads(((s+2) % 8)*8192)): ds.append((16 if f < 4 else 32, N - LAT if (f < 4 or (s % 4) == 3) else N - 1, r))
    if late_v is not None:
        for i, r in enumerate(late_v): ds.append((min(36 + 4*(i >> 1), N-1), N - 1, r))
    va = [(2*e + 1, N - 1, t) for e, t in items]
    for i, t in enumerate(extra_v): va.append((4*i + 1, N - 1, t))
    va.sort(key=lambda x: x[0])
    maxds = opt.get('maxds', 1)
    for g in range(N):
        nds = 0
        while cap[g] > 0:
            rd = [x for x in ds if x[0] <= g]
            rv = [x for x in va if x[0] <= g]
            pick = None
            if rd:
                rd.sort(key=lambda x: x[1])
                urgent = rd[0][1] <= g + 2*sum(1 for x in rd if x[1] <= rd[0][1] + 4)
                if nds < maxds or urgent or not rv: pick = ('d', rd[0])
            if pick is None and rv: pick = ('v', rv[0])
            if pick is None: break
            if pick[0] == 'd':
                ds.remove(pick[1]); gaps[g].insert(nds, pick[1][2]); nds += 1
            else:
                va.remove(pick[1]); gaps[g].append(pick[1][2])
            cap[g] -= 1
    gaps[N-1] = [x[2] for x in ds] + gaps[N-1] + [x[2] for x in va]
    if opt.get('verbose'): print('slot', s, 'overflow', len(ds), len(va), 'free', sum(cap))
    sc.run(mf, [pre[g] + gaps[g] for g in range(N)], nextmf=(qk_mfmas(S_[par])[0] if kread else None))

def packed(sc, mf, ds_at, exps, items, extra=None):
    N = len(mf)
    gaps = [[] for _ in range(N)]
    for g, r in ds_at: gaps[g].append(r)
    q = list(items); ne = len(exps)
    e = 0
    for g in range(N):
        k = 0
        while q and q[0][0] < e and k < 2:
            gaps[g].append(q.pop(0)[1]); k += 1
        if e < ne: gaps[g].append(exps[e]); e += 1
    assert e == ne
    if q: gaps[N-1] += ['s_nop 0'] + [x[1] for x in q]
    if extra:
        for g, x in extra: gaps[g].append(x)
    sc.run(mf, gaps)

def epoch_dmas(E, opt, mode='full'):
    p = E & 1
    r = []
    for isV in (0, 1):
        for grp in (0, 1):
            st, ins = dma_group(isV, grp, f's{30+2*isV+p}', f's{34+2*isV+grp}')
            for j, x in enumerate(ins):
                sal = [st] if j == 0 else []
                r.append([sal, x])
    return r

def stamp(a, opt, idx):
    if opt.get('stamps'):
        a.e(f's_memtime s[{80+2*idx}:{81+2*idx}]')

def gen_attn(a, opt=None):
    opt = dict(opt or {})
    opt.setdefault('XQ', [0, 2]); opt.setdefault('kpos', [33, 35, 37, 39, 41, 43, 45, 47])
    opt.setdefault('dpos', [5, 15, 25, 35, 45, 55, 61, 51]); opt.setdefault('dcost', 2); opt.setdefault('dsplit', [6, 5, 5, 0])
    XQ = opt['XQ']
    assert opt['dsplit'][3] == 0 and opt['dpos'][:max(opt['dsplit'])] == sorted(opt['dpos'][:max(opt['dsplit'])])
    NT['kv'] = ' nt' if opt.get('ntkv', 1) else ''; NT['wq'] = ' nt' if opt.get('ntwq', 0) else ''
    single = opt.get('single', 1)
    L = 'attn_kernel' if not single else NAME + '_kernel'
    if single: a.e('.text', 'code_begin:')
    kernel_head(a, L)
    a.e('s_cmp_ge_u32 s2, 256', f's_cbranch_scc1 {L}_end')
    tl_start(a)
    stamp(a, opt, 0)
    if opt.get('stamps'): a.e('s_memrealtime s[92:93]')
    a.e('s_load_dwordx4 s[4:7], s[0:1], 8', 's_load_dwordx2 s[40:41], s[0:1], 24', 's_load_dwordx2 s[42:43], s[0:1], 104')
    fuse = opt.get('fuse', 1)
    if fuse:
        a.e('s_load_dwordx2 s[80:81], s[0:1], 0', 's_load_dwordx2 s[82:83], s[0:1], 88')
    if single: a.e('s_load_dwordx4 s[56:59], s[0:1], 72', 's_load_dwordx2 s[60:61], s[0:1], 96', 's_memrealtime s[86:87]')
    a.e('s_load_dwordx2 s[64:65], s[0:1], 32', 's_load_dwordx2 s[68:69], s[0:1], 48', 's_load_dwordx2 s[72:73], s[0:1], 56', 's_load_dwordx2 s[76:77], s[0:1], 64')
    a.e('v_lshrrev_b32 v1, 6, v0', 'v_and_b32 v2, 63, v0', 'v_readfirstlane_b32 s28, v1')
    if opt.get('map', 8) == 4:
        a.e('s_and_b32 s44, s2, 7', 's_lshl_b32 s44, s44, 2', 's_lshr_b32 s45, s2, 3', 's_and_b32 s46, s45, 3', 's_add_u32 s44, s44, s46')
        a.e('s_lshr_b32 s45, s45, 2')
    else:
        a.e('s_bfe_u32 s44, s2, 0x20001', 's_lshl_b32 s44, s44, 3', 's_bfe_u32 s46, s2, 0x30003', 's_add_u32 s44, s44, s46')
        a.e('s_and_b32 s45, s2, 1', 's_lshl_b32 s45, s45, 2', 's_lshr_b32 s46, s2, 6', 's_add_u32 s45, s45, s46')
    a.e('s_lshl_b32 s45, s45, 2', 's_add_u32 s45, s45, s28')
    CU = [(144, 148), (152, 160), (164, 168)]
    WA = 172; DW = 0; HV = 14; CSA = 15; TM = 8; RING = 176
    MF32 = 'v_mfma_f32_32x32x16_bf16'
    a.e('v_and_b32 v3, 15, v2', 'v_lshrrev_b32 v4, 4, v2')
    a.e('v_lshlrev_b32 v5, 2, v4', 'v_xor_b32 v5, v5, v3', 'v_lshlrev_b32 v5, 4, v5', f'v_lshl_add_u32 {V(DW)}, v4, 13, v5')
    a.e(f'v_lshlrev_b32 {V(HV)}, 4, v2')
    a.e('s_lshl_b32 s48, s28, 13', 's_lshl_b32 s49, s28, 10')
    a.e('s_waitcnt lgkmcnt(0)')
    a.e('s_lshl_b32 s46, s44, 8'); srd(a, 16, 40, 41, 0, add='s46'); a.e('s_sub_u32 s18, 4194304, s46')
    vm = []
    def vmwait(tags, extra=''):
        last = max([i for i, t in enumerate(vm) if t[:2] in tags], default=-1)
        if last < 0: return [f's_waitcnt{extra}'] if extra else []
        n = sum(1 for t in vm[last+1:] if len(t) == 2)
        del vm[:last+1]
        return [f's_waitcnt vmcnt({n}){extra}']
    HS = ' sc1' if single else ''
    def modq():
        srd(a, 24, 42, 43, 4096, add=WS_MODQ)
        a.e('s_add_u32 m0, s49, 147456', 's_nop 0', f'buffer_load_dwordx4 {V(HV)}, s[24:27], s49 offen{HS} lds'); vm.append(('w', 0))
    if not single: modq()
    a.e('s_lshl_b32 s46, s45, 16', f's_add_u32 s46, s46, {WS_H}'); srd(a, 20, 42, 43, 65536, add='s46')
    def wq(s0, n):
        r = []
        for i in range(2*n):
            sal = []
            if i == 0: sal += [f's_mul_i32 s57, s28, {8*n*8192}', f's_mul_i32 s58, s28, {8*n*256}']
            if i % 4 == 0: sal.append(f's_add_u32 m0, s58, {16384 + s0*8192 + 4096*(i//4)}')
            sal.append(f's_add_u32 s50, s57, {s0*32*8192 + 32768*i - 1024*(i & 3)}')
            r.append([sal, f'buffer_load_dwordx4 {V(DW)}, s[16:19], s50 offen offset:{1024*(i&3)}{NT["wq"]} lds', ('w', s0)])
        return r
    HR = lambda ks: RING + 8*(ks % 10)
    def hl(s):
        return [[[f's_mov_b32 s51, {qq*32768 + ((2*s) & ~3)*1024}'], f'buffer_load_dwordx4 {V(HR(ks)+4*qq,4)}, {V(HV)}, s[20:23], s51 offen offset:{1024*(ks & 3)}{HS}', ('h', ks)]
                for ks in (2*s, 2*s+1) for qq in range(2)]
    def emit_list(lst):
        for sal, ins, tag in lst:
            a.e(sal, ins); vm.append(tag)
    def setup():
        for j in range(4):
            a.e(f'v_add_u32 v6, {4*j}, v4', 'v_xor_b32 v6, v6, v3', 'v_lshlrev_b32 v6, 4, v6', f'v_lshl_add_u32 {V(DK+j)}, v4, 8, v6')
        a.e('v_and_b32 v1, 3, v2', 'v_bfe_u32 v6, v2, 2, 2', 'v_lshrrev_b32 v7, 5, v2', 'v_lshlrev_b32 v8, 5, v7', f'v_add_u32 {V(CSA)}, 147456, v8',
            'v_lshl_add_u32 v7, v7, 3, v6', 'v_lshlrev_b32 v7, 8, v7', 'v_and_b32 v8, 1, v4', 'v_lshl_add_u32 v7, v8, 3, v7', 'v_add_u32 v7, 0x4000, v7', 'v_lshlrev_b32 v6, 2, v6',
            'v_and_b32 v8, 1, v1', 'v_lshlrev_b32 v8, 1, v8', 'v_lshrrev_b32 v9, 1, v1', 'v_add_u32 v8, v8, v9')
        for db in range(4):
            a.e(f'v_add_u32 v5, {4*db}, v8', 'v_xor_b32 v5, v5, v6', f'v_lshl_add_u32 {V(WA+db)}, v5, 4, v7')
        for j in range(2):
            a.e(f'v_add_u32 v5, {4*j}, v4', 'v_lshlrev_b32 v5, 1, v5', 'v_xor_b32 v5, v5, v3', 'v_lshlrev_b32 v5, 4, v5', f'v_lshl_add_u32 {V(6+j)}, v4, 8, v5')
        for p in range(2):
            a.e(f's_add_u32 s53, s28, {6+4*p}', 's_and_b32 s53, s53, 7', f's_lshl_b32 s{30+p}, s53, 13')
            a.e(f's_add_u32 s53, s28, {3+4*p}', 's_and_b32 s53, s53, 7', 's_lshl_b32 s53, s53, 13', f's_add_u32 s{32+p}, s53, 65536')
        a.e(f's_add_u32 s34, s48, {6*8192}', 's_add_u32 s35, s34, 4096', f's_add_u32 s36, s48, {3*8192}', 's_add_u32 s37, s36, 4096')
        for i, size in enumerate((4194304, 1835008, 1835008, 1835008)): a.e(f's_mov_b32 s{66+4*i}, {size}', f's_mov_b32 s{67+4*i}, 0x20000')
    def kvsrd(): a.e('s_lshl_b32 s46, s44, 19'); srd(a, 8, 4, 5, 524288, add='s46'); srd(a, 12, 6, 7, 524288, add='s46')
    if single:
        gf.phase_front(a, L, opt, wq, emit_list, vm, setup, HV)
        emit_list(hl(0) + hl(1) + hl(2)); gf.front_late(a, L, wq, vm, opt); kvsrd()
        a.e(vmwait({('m', 0)})); gf.front_table(a, HV)
    else:
        emit_list(wq(0, 1) + hl(0) + wq(1, 1) + hl(1) + wq(2, 2) + hl(2)); kvsrd(); setup(); a.e('s_mov_b32 s39, 1')
    sc = Sched(a, age=4)
    QA = lambda qq, db: 16 + 64*qq + 16*db
    AR = lambda n: AK + 4*(n % 16)
    def a_reads(n):
        ks, db = divmod(n, 4)
        return [f'ds_read_b64_tr_b16 {A(AR(n)+2*v,2)}, {V(WA+db)} offset:{(ks % 8)*4096+v*1024}' for v in range(2)]
    def cs_reads(u):
        c, sh = CU[u % 3]
        return [f'ds_read_b128 {V(c,4)}, {V(CSA)} offset:{64*(u >> 1)+16*(u & 1)}', f'ds_read_b128 {V(sh,4)}, {V(CSA)} offset:{2048+64*(u >> 1)+16*(u & 1)}']
    xk = [0]
    def xform(u):
        r = [f'WAITDS {V(CU[u % 3][0],4)}, {V(CU[u % 3][1],4)}']
        c, sh = CU[u % 3]; ks, h = divmod(u, 2)
        for qq in range(2):
            for d in range(2):
                reg = HR(ks) + 4*qq + 2*h + d; t = TM + 2*(xk[0] % 3); xk[0] += 1
                r.append(f'v_fma_mix_f32 {V(t)}, {V(reg)}, {V(c+2*d)}, {V(sh+2*d)} op_sel_hi:[1,0,0]')
                r.append(f'v_fma_mix_f32 {V(t+1)}, {V(reg)}, {V(c+2*d+1)}, {V(sh+2*d+1)} op_sel:[1,0,0] op_sel_hi:[1,0,0]')
                r.append(f'v_cvt_pk_bf16_f32 {V(reg)}, {V(t)}, {V(t+1)}')
        return r
    D = opt.get('qdist', 6)
    a.e(vmwait({('w', 0)}), 's_barrier')
    stamp(a, opt, 1)
    if fuse: gf.mark2(a, 13)
    for u in range(3):
        for r in cs_reads(u): sc.emit_filler(r)
    for n in range(D):
        for r in a_reads(n): sc.emit_filler(r)
    a.e(vmwait({('h', 0)}))
    for x in xform(0): sc.emit_filler(x)
    for r in cs_reads(3): sc.emit_filler(r)
    for x in xform(1): sc.emit_filler(x)
    a.e('s_nop 1')
    k01 = [[[f's_lshl_b32 s52, s28, 12', 's_mov_b32 m0, s52'] if j == 0 else [], f'buffer_load_dwordx4 {V(DK+j)}, s[8:11], s52 offen offset:{1024*j}{NT["kv"]} lds', ('k', 0)] for j in range(4)]
    k25 = []
    for grp in range(2):
        st, ins = dma_group(0, 0, f's{54+grp}', f's{54+grp}')
        k25 += [[[f's_add_u32 s{54+grp}, s48, {2*8192 + 4096*grp}', st] if j == 0 else [], x, ('k', 2)] for j, x in enumerate(ins)]
    v02 = []
    for i in range(6):
        sal = []
        if i == 0: sal = ['s_mul_i32 s54, s28, 6144', 's_add_u32 m0, s54, 65536']
        if i == 4: sal = ['s_add_u32 s54, s54, 4096', 's_add_u32 m0, s54, 65536']
        v02.append([sal, f'buffer_load_dwordx4 {V(6+(i&1))}, s[12:15], s54 offen offset:{1024*(i&3)}{NT["kv"]} lds', ('v', 0)])
    w47, w8b, wcf = wq(4, 4), wq(8, 4), wq(12, 4)
    plan = {0: hl(3) + w47[:4], 1: hl(4) + w47[4:], 2: hl(5) + hl(6), 3: hl(7) + w8b[:4], 4: hl(8) + w8b[4:], 5: hl(9) + k01, 6: hl(10) + wcf[:4],
            7: hl(11) + wcf[4:], 8: hl(12) + k25[:4], 9: hl(13) + k25[4:], 10: hl(14), 11: hl(15), 12: v02, 13: [], 14: [], 15: []}
    groups = [1, 2, 4, 8, 12]
    if single:
        plan.update({0: hl(3) + w8b[:4], 1: hl(4) + w8b[4:], 3: hl(7) + k01, 4: hl(8) + wcf[:4], 5: hl(9) + wcf[4:], 6: hl(10), 7: hl(11)})
        groups = [4, 8, 12]
    late = []
    late += [f'v_mov_b32 {V(DV)}, v6', f'v_mov_b32 {V(DV+1)}, v7']
    late += ['v_xor_b32 v5, v3, v4', 'v_lshlrev_b32 v5, 4, v5', f'v_lshl_add_u32 {V(KA)}, v3, 8, v5'] + [f'v_xor_b32 {V(KA+t)}, {t*64}, {V(KA)}' for t in range(1, 4)]
    late2 = ['v_lshrrev_b32 v6, 2, v2', 'v_lshlrev_b32 v7, 8, v6', 'v_and_b32 v6, 7, v6', 'v_lshl_add_u32 v7, v1, 3, v7', 'v_add_u32 v7, 0x10000, v7']
    for db in range(8): late2 += [f'v_xor_b32 v5, {db}, v6', f'v_lshl_add_u32 {V(VA+db)}, v5, 5, v7']
    vq = []
    for ks in range(32):
        mf = [f'{MF32} {V(QA(qq,db),16)}, {A(AR(4*ks+db),4)}, {V(HR(ks)+4*qq,4)}, {"0" if ks == 0 else V(QA(qq,db),16)}' for db in range(4) for qq in range(2)]
        gaps = [[] for _ in range(8)]; pre = [[] for _ in range(8)]; post = [[] for _ in range(8)]
        if ks % 2 == 0: vq += plan[ks // 2]
        for db in range(4):
            n = 4*ks + db + D
            if n < 128:
                if n % 8 == 0 and n // 8 in groups:
                    post[2*db-1] += ['VMW', ('w', n // 8)]
                if n % 32 == 0: post[2*db-1] += [f'v_add_u32 {V(WA+x)}, 0x8000, {V(WA+x)}' for x in range(4)]
                r = a_reads(n); gaps[2*db].append(r[0]); gaps[2*db+1].append(r[1])
        if ks < 31:
            va = [xform(2*ks+2), xform(2*ks+3)]
            for h in range(2):
                u = 2*ks + 4 + h
                if u < 64:
                    r = cs_reads(u); gaps[4*h].append(r[0]); gaps[4*h+1].append(r[1])
        oddk = ks & 1
        for g in range(8):
            if vq and g % 2 == oddk:
                sal, ins, tag = vq.pop(0)
                if g == 0: pre[0] += sal + (['s_nop 0'] if sal and 'm0' in sal[-1] else [])
                else: pre[g-1] += sal
                gaps[g].append(('VM', ins, tag))
            if ks < 31:
                h, q = divmod(g, 4)
                if g == 0: gaps[g].append(('VMW', ('h', ks+1)))
                x = va[h]
                lo, hi = [(0, 4), (4, 7), (7, 10), (10, 13)][q] if h == 0 else [(0, 5), (5, 9), (9, 13), (13, 13)][q]
                gaps[g] += x[lo:hi]
        if ks == 31:
            la = late + late2
            for i, x in enumerate(la): gaps[min(i // 5, 7)].append(x)
            for i, r in enumerate(kreads(0)): gaps[4 + i // 2].insert(0, r)
        out = []
        for g in range(8):
            o = list(pre[g])
            for x in gaps[g]:
                if isinstance(x, tuple) and x[0] == 'VM': o.append(x[1]); vm.append(x[2])
                elif isinstance(x, tuple): o += vmwait({x[1]})
                else: o.append(x)
            p = post[g]
            if p and p[0] == 'VMW': o += vmwait({p[1]}) + ['s_barrier']; p = p[2:]
            out.append(o + p)
        sc.run(mf, out)
    assert not vq
    sc.age = 8
    stamp(a, opt, 2)
    if fuse: gf.mark2(a, 14)
    def cvtq(qq):
        r = []; sw = []
        for t in range(4):
            for j in range(4):
                for h in range(2): r.append(f'v_cvt_pk_bf16_f32 {V(Q+16*(2*qq+(j&1))+4*t+2*(j>>1)+h)}, {V(QA(qq,t)+4*j+2*h)}, {V(QA(qq,t)+4*j+2*h+1)}')
            r += sw
            sw = [f'v_permlane16_swap_b32 {V(Q+32*qq+4*t+f)}, {V(Q+32*qq+16+4*t+f)}' for f in range(4)]
        return r + ['s_nop 0', 's_nop 0'] + sw
    a.e('s_nop 1', cvtq(0), 's_nop 1')
    S0 = S_[0]
    def maxchain(qbs):
        st = [[f'v_max3_f32 {V(8+qb)}, {V(S0+8*qb)}, {V(S0+8*qb+1)}, {V(S0+8*qb+2)}' for qb in qbs],
              [f'v_max3_f32 {V(12+qb)}, {V(S0+8*qb+3)}, {V(S0+8*qb+4)}, {V(S0+8*qb+5)}' for qb in qbs],
              [f'v_max3_f32 {V(8+qb)}, {V(8+qb)}, {V(S0+8*qb+6)}, {V(S0+8*qb+7)}' for qb in qbs],
              [f'v_max_f32 {V(8+qb)}, {V(8+qb)}, {V(12+qb)}' for qb in qbs]]
        for perm in ('32', '16'):
            st += [[f'v_mov_b32 {V(12+qb)}, {V(8+qb)}' for qb in qbs], ['s_nop 0'], [f'v_permlane{perm}_swap_b32 {V(8+qb)}, {V(12+qb)}' for qb in qbs],
                   [f'v_max_f32 {V(8+qb)}, {V(8+qb)}, {V(12+qb)}' for qb in qbs]]
        return st
    mf = qk_mfmas(S_[0], czero=True, order='qkt')
    gaps = [[] for _ in mf]; pre = [[] for _ in mf]
    cv = cvtq(1)
    for i, x in enumerate(cv): gaps[min(i*15//len(cv), 14)].append(x)
    gaps[15].append('s_nop 0')
    ini = [f'v_mov_b32 {V(ONES+i)}, 0x3f803f80' for i in range(4)] + [f'v_mov_b32 {V(LV+i)}, 0' for i in range(8) if (i >> 1) not in XQ]
    for i, x in enumerate(ini): gaps[16 + i//2].append(x)
    for i, x in enumerate(maxchain([0, 1])): gaps[20 + i] += x
    b_ = Asm()
    b_.e('s_lshl_b32 s46, s45, 19', 's_lshl_b32 s47, s44, 14', 's_add_u32 s46, s46, s47', f's_add_u32 s46, s46, {WS_O}')
    b_.e('s_lshr_b32 s53, s2, 3', 's_lshl_b32 s53, s53, 2', 's_add_u32 s53, s53, s28', 's_bfe_u32 s56, s2, 0x20001', 's_lshl_b32 s54, s53, 13', 's_lshl_b32 s55, s56, 20', 's_add_u32 s84, s54, s55',
         's_mul_i32 s54, s53, 14336', 's_mul_i32 s55, s56, 896', 's_add_u32 s85, s54, s55', 's_and_b32 s55, s2, 1', 's_lshl_b32 s55, s55, 9', 's_add_u32 s86, s54, s55')
    for i, x in enumerate(b_.o): pre[i].append(x)
    pre[20] += ['s_add_u32 s24, s42, s46', 's_addc_u32 s25, s43, 0']; pre[21].append('s_mov_b32 s26, 16384'); pre[22].append('s_mov_b32 s27, 0x20000')
    sc.run(mf, [pre[g] + gaps[g] for g in range(32)])
    for r in kreads(8192): sc.emit_filler(r)
    for qb in range(2): a.e(f'v_sub_f32 {V(CI+4*qb)}, {f32hex(-opt.get("delta", DELTA))}, {V(8+qb)}')
    for st_ in maxchain([2, 3]): a.e(st_ if st_ != ['s_nop 0'] else 's_nop 1')
    for qb in range(2, 4): a.e(f'v_sub_f32 {V(CI+4*qb)}, {f32hex(-opt.get("delta", DELTA))}, {V(8+qb)}')
    for qb in range(4):
        for i in range(1, 4): a.e(f'v_mov_b32 {V(CI+4*qb+i)}, {V(CI+4*qb)}')
    for e in range(0, 32, 2): a.e(f'v_pk_add_f32 {V(S0+e,2)}, {V(S0+e,2)}, {V(CI+4*(e>>3),2)}')
    lateA = [f'v_subrev_u32 {V(VT+db)}, 0x10000, {V(VA+db)}' for db in range(8)] + ['v_lshlrev_b32 v5, 7, v2', f'v_add_u32 {V(PF)}, s84, v5']
    lateB = ['v_and_b32 v5, 31, v2', 'v_min_u32 v5, 27, v5', 'v_mul_u32_u24 v6, 37, v5', 'v_lshrrev_b32 v6, 8, v6', 'v_mul_u32_u24 v7, 7, v6', 'v_sub_u32 v5, v5, v7',
             'v_mul_u32_u24 v6, 3584, v6', 'v_lshl_add_u32 v6, v5, 7, v6', 'v_lshrrev_b32 v5, 5, v2', 'v_lshl_add_u32 v6, v5, 6, v6', f'v_add_u32 {V(PF+1)}, s85, v6']
    DP = opt.get('dp', 'rg') if fuse else ''
    srd(a, 20, 42, 43, 40 << 20)
    if single: lateA += ['v_lshlrev_b32 v140, 6, v2', f'v_add_u32 v140, {WS_FLAG + 4*16384 + 4096}, v140']
    if DP:
        ps_, pv_ = gf.poison_setup()
    lateC = ['v_min_u32 v5, 55, v2', 'v_lshrrev_b32 v6, 2, v5', 'v_and_b32 v5, 3, v5', 'v_lshlrev_b32 v6, 10, v6', 'v_lshl_add_u32 v6, v5, 7, v6', f'v_add_u32 {V(PF+2)}, s86, v6']
    if fuse:
        gf.unpark(a)
    if opt.get('tlb', 0):
        G = opt.get('tlbshift', 21)
        srd(a, 20, 42, 43, 40 << 20); a.e(f'v_lshlrev_b32 {V(PF+4)}, {G}, v2', 's_mov_b32 s86, 2097152', 's_mov_b32 s87, 0x20000', 's_mov_b32 s84, s82', 's_mov_b32 s85, s83')
    if opt.get('touch', 0):
        srd(a, 20, 42, 43, 24 << 20, add=WS_O)
        a.e('s_lshl_b32 s29, s2, 2', 's_add_u32 s29, s29, s28', 's_lshl_b32 s29, s29, 12', f'v_lshlrev_b32 {V(PF+4)}, 6, v2', f'v_add_u32 {V(PF+4)}, s29, {V(PF+4)}')
    a.e('s_waitcnt vmcnt(0) lgkmcnt(0)', 's_barrier'); sc.pend = []
    stamp(a, opt, 3)
    def adv():
        return ['s_add_u32 s34, s34, 32768', 's_add_u32 s35, s35, 32768', 's_add_u32 s36, s36, 32768', 's_add_u32 s37, s37, 32768']
    E14U = opt.get('e14u', 1)
    def epoch(E, kind):
        d = epoch_dmas(E, opt)
        if kind == 'e14':
            if E14U: d = [[x[0], x[1].replace('s[8:11]', 's[16:19]')] for x in d[:8]] + d[8:]
            else: d = d[8:]
        if kind == 'e15': d = []
        ov, os_ = gf.o_setup() if fuse else ([], [])
        oad = [[x[0], x[1]] for st in range(4) for x in gf.o_dma_a(st)] if fuse else []
        npf = 0
        if kind == 'e14' and single:
            d.insert(0, [[], 'buffer_load_dword v140, v140, s[20:23], 0 offen sc1'])
        if kind == 'e14' and opt.get('pf', 1):
            for srd_, vo, off in ((64, PF, 0), (64, PF, 64), (68, PF+1, 0), (72, PF+1, 0), (76, PF+2, 0), (76, PF+2, 64)):
                if off and not opt.get('pf64', 1): continue
                d.append([[], f'buffer_load_dword {V(PF+3)}, {V(vo)}, s[{srd_}:{srd_+3}], 0 offen offset:{off}'])
                npf += 1
        split = list(opt['dsplit'])
        tch = []
        if kind == 'e14' and opt.get('tlb', 0):
            d.append([[], f'buffer_load_dword {V(PF+3)}, {V(PF+4)}, s[20:23], 0 offen']); d.append([[], f'buffer_load_dword {V(PF+3)}, {V(PF+4)}, s[84:87], 0 offen']); npf += 2
        if opt.get('touch', 0) and E == 2:
            d.append([[], f'buffer_load_dword {V(PF+3)}, {V(PF+4)}, s[20:23], 0 offen']); split[2] += 1; npf = 1
            tch = [f'v_add_u32 {V(PF+4)}, 0x400000, {V(PF+4)}']
        if kind == 'e14' and E14U:
            split = [6, 6, 5, 6]
        if DP and kind == 'n':
            po = gf.poison_stores(E, DP); d += po; split[2] += min(len(po), 1); npf = len(po)
            if len(po) > 1: split[3] += len(po) - 1
        for sl in range(4):
            s = 4*E + sl
            n = split[sl]
            dm = d[:n]; d = d[n:]
            if kind == 'e14' and sl == 0 and not E14U:
                a.e('s_cmp_eq_u32 s28, 3', f's_cbranch_scc1 {L}_e14d', 's_cmp_eq_u32 s28, 2', f's_cbranch_scc1 {L}_e14v')
                for sal, ins in epoch_dmas(E, opt)[:8]: a.e(sal, 's_nop 0' if sal else [], ins)
                a.e(f's_branch {L}_e14d', f'{L}_e14v:', f's_mov_b32 s54, {63*8192}', f's_mov_b32 s55, {63*8192+4096}', 's_mov_b32 s56, 0')
                for grp in range(2):
                    st, ins = dma_group(1, grp, 's56', f's{54+grp}'); a.e(st, 's_nop 0', ins)
                a.e(f'{L}_e14d:')
            if kind == 'e14' and sl == 0 and E14U:
                a.e('s_cmp_eq_u32 s28, 2', 's_cselect_b32 s16, s12, s8', 's_cselect_b32 s17, s13, s9', f's_cselect_b32 s34, {63*8192}, s34', f's_cselect_b32 s35, {63*8192+4096}, s35',
                    's_cselect_b64 vcc, -1, 0', 's_mov_b32 s19, 0x20000', 's_cmp_eq_u32 s28, 3', 's_cselect_b32 s18, 0, s10')
                for j in range(4): a.e(f'v_cndmask_b32 {V(DK+j)}, {V(DK+j)}, {V(DV+(j & 1))}, vcc')
            if s == 0:
                exps, items = sm_items(S_[0], P_[0], XQ)
                mf = qk_mfmas(S_[1])
                kr = kreads(2*8192)
                ds_at = [(17+2*i, kr[i]) for i in range(4)]
                extra = []
                for n_, (sal, ins) in enumerate(dm):
                    extra += [(2+2*n_, x) for x in sal] + [(3+2*n_, ins)]
                packed(sc, mf, ds_at, exps, items, extra)
                for r in kr[4:]: sc.emit_filler(r)
            elif s in (3, 7):
                normal_slot(sc, opt, s, dm, salu=adv(), extra_v=(lateA + lateC[:2] if s == 3 else lateC[2:] + lateB[:0]) if False else (lateA if s == 3 else lateB))
            elif s == 2:
                normal_slot(sc, opt, s, dm, extra_v=lateC)
            elif s == 1 and DP:
                normal_slot(sc, opt, s, dm, first_pv=True, extra_v=pv_, salu=ps_, salu0=16)
            elif s == 59:
                normal_slot(sc, opt, s, dm, extra_v=[] if E14U else ov[:12])
            elif s == 60:
                a.e(os_)
                if DP: a.e('s_lshl_b32 s53, s2, 6', f's_add_u32 s53, s53, {WS_FLAG + 5*16384}', 'v_mov_b32 v8, s39', 'v_mov_b32 v9, 0', 'buffer_store_dword v8, v9, s[20:23], s53 offen sc1')
                normal_slot(sc, opt, s, dm, extra_v=ov if E14U else ov[12:])
            elif s == 61:
                normal_slot(sc, opt, s, oad[:6])
            elif s == 62:
                normal_slot(sc, opt, s, oad[6:10], kread=False, late_v=vreads(VA, (62 % 8)*8192))
            elif s == 63:
                exps, items = sm_items(S_[1], P_[1], XQ)
                mf = pv_mfmas(P_[0], XQ)
                vr = vreads(VT, 0)
                ds_at = [(min(4*(i >> 1) + 4 + (i & 1), len(mf)-1), vr[i]) for i in range(16)]
                extra = []
                for n_, (sal, ins) in enumerate(oad[10:]):
                    extra += [(2+5*n_, x) for x in sal] + [(3+5*n_, ins)]
                packed(sc, mf, ds_at, exps, items, extra)
            else:
                normal_slot(sc, opt, s, dm, first_pv=(s == 1), salu=(adv() + (['s_add_u32 s38, s38, 1', 's_cmp_lt_u32 s38, 6'] if E == 3 else []) if sl == 3 else ()))
        assert not d
        a.e(tch)
        if kind != 'e15':
            if not opt.get('nobar'): a.e(f's_waitcnt vmcnt({npf}) lgkmcnt(0)', 's_barrier')
            else: a.e('s_waitcnt lgkmcnt(0)')
            sc.pend = []
    epoch(0, 'n'); epoch(1, 'n')
    a.e('s_mov_b32 s38, 0', '.p2align 6', f'{L}_loop:')
    epoch(2, 'n'); epoch(3, 'n')
    a.e(f's_cbranch_scc1 {L}_loop')
    epoch(14, 'e14'); epoch(15, 'e15')
    W = CI
    T = 16
    def unit(j, qb, n, pkmul):
        b = T + 8*(n % 8); pk = 80 + 4*(n % 4)
        r = [f'v_accvgpr_read_b32 {V(b+4*u+i)}, {A(AO+16*(2*j+u)+4*qb+i)}' for u in range(2) for i in range(4)]
        r += [f'v_maximum3_f32 {V(W+4*qb+i)}, abs({V(b+i)}), abs({V(b+4+i)}), {"0" if j == 0 else V(W+4*qb+i)}' for i in range(4)]
        if pkmul: r += [f'v_pk_mul_f32 {V(b+4*u+i,2)}, {V(b+4*u+i,2)}, {V(LM+4*qb+i,2)}' for u in range(2) for i in (0, 2)]
        else: r += [f'v_mul_f32 {V(b+4*u+i)}, {V(b+4*u+i)}, {V(LM+4*qb+i)}' for u in range(2) for i in range(4)]
        r += [f'v_cvt_pk_bf16_f32 {V(pk+h)}, {V(b+2*h)}, {V(b+2*h+1)}' for h in range(4)]
        off = (j*4+qb)*1024
        r += [f's_mov_b32 s54, {off & ~4095}', f'buffer_store_dwordx4 {V(pk,4)}, v9, s[24:27], s54 offen offset:{off & 4095}{opt.get("wt_a", " sc1")}']
        return r
    a.e('s_nop 1')
    VQ = [qb for qb in range(4) if qb not in XQ]
    assert len(VQ) == 2
    allm = pv_mfmas(P_[1], XQ)
    qord = list(XQ) + VQ
    mf = allm[32:] + [allm[4*db+qb] for qb in qord for db in range(8)]
    gaps = [[] for _ in mf]
    gaps[0].append('v_lshlrev_b32 v5, 4, v4')
    for n_, qb in enumerate(VQ):
        l = V(LV + 2*qb); t = V(6 + n_)
        ch = [(1, f'v_add_f32 {l}, {l}, {V(LV+2*qb+1)}'), (2, f'v_mov_b32 {t}, {l}'), (4, f'v_permlane32_swap_b32 {l}, {t}'), (5, f'v_add_f32 {l}, {l}, {t}'),
              (6, f'v_mov_b32 {t}, {l}'), (8, f'v_permlane16_swap_b32 {l}, {t}'), (9, f'v_add_f32 {l}, {l}, {t}')]
        for g, x in ch: gaps[g].append(x)
        for i in range(4): gaps[11 + n_].insert(0, f'ds_bpermute_b32 {V(LM+4*qb+i)}, v5, {l} offset:{4*i}')
    gaps[3] += ['v_lshlrev_b32 v9, 2, v4', 'v_xor_b32 v9, v9, v2']; gaps[7] += ['v_lshlrev_b32 v9, 4, v9', 'v_mov_b32 v8, 0']
    def lwork(qb): return [x for i in range(4) for x in (f'v_add_f32 v8, v8, {V(LM+4*qb+i)}', f'v_rcp_f32 {V(LM+4*qb+i)}, {V(LM+4*qb+i)}')]
    gaps[10] += lwork(qord[0])
    stream = []; n = 0
    NI = opt.get('t_units', 4)
    for j in range(NI): stream += unit(j, qord[0], n, False); n += 1
    stream += lwork(qord[1]) + [f'WAITDS {V(LM+4*VQ[0],4)}, {V(LM+4*VQ[1],4)}'] + lwork(qord[2]) + lwork(qord[3])
    g0 = 14
    per = -(-len(stream) // (len(mf) - g0))
    for i, x in enumerate(stream): gaps[g0 + i // per].append(x)
    sc.run(mf, gaps)
    stamp(a, opt, 4)
    if fuse: gf.mark(a, 15)
    for qb in qord:
        for j in range(NI if qb == qord[0] else 0, 4): a.e(unit(j, qb, n, True)); n += 1
    a.e(f'{L}_chk:')
    a.e(f'v_minimum3_f32 v11, {V(W)}, {V(W+1)}, {V(W+15)}', f'v_maximum3_f32 v10, {V(W)}, {V(W+1)}, {V(W+15)}')
    for i in range(2, 15, 2): a.e(f'v_minimum3_f32 v11, v11, {V(W+i)}, {V(W+i+1)}', f'v_maximum3_f32 v10, v10, {V(W+i)}, {V(W+i+1)}')
    a.e(f's_mov_b32 s54, {f32hex(2.0**100)}', f's_mov_b32 s55, {f32hex(2.0**-120)}', f's_mov_b32 s60, 0x7f000000')
    a.e('v_cmp_nle_f32 s[56:57], v8, s54', 'v_cmp_nge_f32 s[58:59], v11, s55', 'v_cmp_nle_f32 s[62:63], v10, s60', 's_nop 1',
        's_or_b64 s[56:57], s[56:57], s[58:59]', 's_or_b64 s[56:57], s[56:57], s[62:63]', 's_cmp_eq_u64 s[56:57], 0')
    if opt.get('force_fb'): a.e('s_cmp_eq_u32 s2, 1000')
    a.e(f's_cbranch_scc1 {L}_fin')
    a.e('s_mov_b32 s48, 40960', 's_cmp_eq_u32 s28, 1', 's_cselect_b32 s48, 65536, s48', 's_cmp_eq_u32 s28, 2', 's_cselect_b32 s48, 139264, s48',
        's_cmp_eq_u32 s28, 3', 's_cselect_b32 s48, 147456, s48', 's_waitcnt vmcnt(0)')
    MR = CI; LR = CI + 4; AL = CI + 8; AR_ = 96
    for i in range(128): a.e(f'v_accvgpr_write_b32 {A(i)}, 0')
    for qb in range(4): a.e(f'v_mov_b32 {V(MR+qb)}, 0xff7fffff', f'v_mov_b32 {V(LR+qb)}, 0')
    for db in range(8): a.e(f'v_add_u32 {V(VT+db)}, s48, {V(VT+db)}')
    a.e('v_lshlrev_b32 v7, 8, v3', 'v_lshl_add_u32 v7, v4, 4, v7')
    a.e('s_mov_b32 s54, 0', f'{L}_fb:', 's_add_u32 s55, s54, 4096')
    for f in range(8): a.e(f'buffer_load_dwordx4 {A(AK+4*f,4)}, v7, s[8:11], s{54+(f>>2)} offen offset:{64*(f&3)}')
    for grp in range(2):
        st, ins = dma_group(1, grp, 's48', f's{54+grp}'); a.e(st, 's_nop 0', ins)
    a.e('s_waitcnt vmcnt(0)')
    a.e(vreads(VT, 0))
    a.e(qk_mfmas(S0, czero=True), 's_nop 7', 's_nop 3')
    for qb in range(4):
        b = S0 + 8*qb; m = V(MR+qb); al = V(AL+qb)
        a.e(f'v_max3_f32 v8, {V(b)}, {V(b+1)}, {V(b+2)}', f'v_max3_f32 v8, v8, {V(b+3)}, {V(b+4)}', f'v_max3_f32 v8, v8, {V(b+5)}, {V(b+6)}', f'v_max3_f32 v8, v8, {V(b+7)}, {m}')
        for perm in ('32', '16'):
            a.e('v_mov_b32 v9, v8', 's_nop 1', f'v_permlane{perm}_swap_b32 v8, v9', 's_nop 1', 'v_max_f32 v8, v8, v9')
        a.e(f'v_sub_f32 {al}, {m}, v8', f'v_exp_f32 {al}, {al}', f'v_mov_b32 {m}, v8')
        for e in range(8): a.e(f'v_sub_f32 {V(b+e)}, {V(b+e)}, v8')
        for e in range(8): a.e(f'v_exp_f32 {V(b+e)}, {V(b+e)}')
        a.e(f'v_mul_f32 {V(LR+qb)}, {V(LR+qb)}, {al}')
        for e in range(8): a.e(f'v_add_f32 {V(LR+qb)}, {V(LR+qb)}, {V(b+e)}')
        for h in range(4): a.e(f'v_cvt_pk_bf16_f32 {V(P_[0]+4*qb+h)}, {V(b+2*h)}, {V(b+2*h+1)}')
        for i in range(4): a.e(f'ds_bpermute_b32 {V(AR_+4*qb+i)}, v5, {al} offset:{4*i}')
    a.e('s_waitcnt lgkmcnt(0)')
    for db in range(8):
        for qb in range(4):
            for i in range(4):
                o = AO + 16*db + 4*qb + i
                a.e(f'v_accvgpr_read_b32 v8, {A(o)}', f'v_mul_f32 v8, v8, {V(AR_+4*qb+i)}', f'v_accvgpr_write_b32 {A(o)}, v8')
    a.e('s_nop 1')
    a.e(pv_mfmas(P_[0], []), 's_nop 7', 's_nop 3')
    a.e('s_add_u32 s54, s54, 8192', 's_cmp_lt_u32 s54, 524288', f's_cbranch_scc1 {L}_fb')
    for qb in range(4):
        xlane_sum(a, V(LR+qb), 'v6')
        for i in range(4): a.e(f'ds_bpermute_b32 {V(LM+4*qb+i)}, v5, {V(LR+qb)} offset:{4*i}')
    a.e('s_waitcnt lgkmcnt(0)')
    for i in range(16): a.e(f'v_rcp_f32 {V(LM+i)}, {V(LM+i)}')
    a.e('v_lshlrev_b32 v9, 2, v4', 'v_xor_b32 v9, v9, v2', 'v_lshlrev_b32 v9, 4, v9')
    for qb in range(4):
        for j in range(4): a.e(unit(j, qb, 4*qb+j, True))
    a.e(f'{L}_fin:')
    if fuse: gf.fused_post(a, L, opt, Sched)
    if opt.get('stamps'):
        a.e('s_waitcnt vmcnt(0)')
        stamp(a, opt, 5); a.e('s_memrealtime s[98:99]', 's_waitcnt lgkmcnt(0)')
        srd(a, 20, 42, 43, 1 << 20, add=(58 << 20))
        a.e('s_lshl_b32 s54, s2, 2', 's_add_u32 s54, s54, s28', 's_lshl_b32 s54, s54, 5', 'v_mov_b32 v7, s54')
        for i in range(1, 6): a.e(f's_sub_u32 s55, s{80+2*i}, s80', f'v_mov_b32 v{8+i}, s55')
        a.e('v_mov_b32 v8, s92', 's_sub_u32 s55, s98, s92', 'v_mov_b32 v14, s55', 'v_mov_b32 v15, s39')
        a.e('v_cmp_eq_u32 vcc, 0, v2', 's_and_saveexec_b64 s[56:57], vcc')
        a.e('buffer_store_dwordx4 v[8:11], v7, s[20:23], 0 offen', 'buffer_store_dwordx4 v[12:15], v7, s[20:23], 0 offen offset:16')
    tl_end(a); a.e(f'{L}_end:', 's_endpgm')
    if fuse: a.e(gf.RETRY)
    return dict(label=L, grid=256, block=256, lds=163840, vgpr=512, accum=256)
```

```python
from asmlib import *
from gen_pre import *
MF = 'v_mfma_f32_16x16x32_bf16'
FLA = 141; FLB = 142; DIAG = 143
SC = ' sc1'

class VM:
    def __init__(self): self.q = []; self.seen = set()
    def add(self, tag): self.q.append(tag); self.seen.add(tag)
    def wait(self, tags, extra=''):
        last = max([i for i, t in enumerate(self.q) if t in tags], default=-1)
        if last < 0: return [f's_waitcnt{extra}'] if extra else []
        n = len(self.q) - 1 - last
        del self.q[:last+1]
        assert n < 64
        return [f's_waitcnt vmcnt({n}){extra}']
    def clear(self): self.q = []

def mark(a, i):
    if TL['on'] or TL.get('dm'): a.e('s_memrealtime s[98:99]', 's_waitcnt lgkmcnt(0)', f'v_writelane_b32 {V(DIAG)}, s98, {i}')

def mark2(a, i):
    park = {13: 88, 14: 90, 16: 92, 17: 84, 18: 86, 19: 100}
    if TL['on'] or TL.get('dm'): a.e(f's_memrealtime s[{park[i]}:{park[i]+1}]')
def unpark0(a):
    if TL['on'] or TL.get('dm'): a.e('s_waitcnt lgkmcnt(0)', 's_mov_b32 s93, s84', 's_mov_b32 s101, s86')
def unpark(a):
    if TL['on'] or TL.get('dm'): a.e('s_waitcnt lgkmcnt(0)', f'v_writelane_b32 {V(DIAG)}, s92, 16', f'v_writelane_b32 {V(DIAG)}, s93, 17', f'v_writelane_b32 {V(DIAG)}, s101, 18', f'v_writelane_b32 {V(DIAG)}, s100, 19')
    if TL['on'] or TL.get('dm'): a.e('s_waitcnt lgkmcnt(0)', f'v_writelane_b32 {V(DIAG)}, s94, 0', f'v_writelane_b32 {V(DIAG)}, s88, 13', f'v_writelane_b32 {V(DIAG)}, s90, 14')

def flag_setup():
    r = ['s_and_b32 s53, s2, 0xc7', 'v_and_b32 v5, 7, v2', 'v_lshlrev_b32 v5, 3, v5', 'v_add_u32 v5, s53, v5', f'v_lshlrev_b32 {V(FLA)}, 6, v5',
         's_and_b32 s53, s2, 0xe1', 'v_and_b32 v5, 3, v2', 'v_lshlrev_b32 v5, 3, v5', 'v_bfe_u32 v6, v2, 2, 2', 'v_lshl_add_u32 v5, v6, 1, v5', 'v_add_u32 v5, s53, v5', f'v_lshlrev_b32 {V(FLB)}, 6, v5']
    return r

SYNC = {'mode': 'cnt'}
def signal(a, L, k, waitlist):
    a.e(waitlist, 's_barrier')
    if SYNC['mode'] in ('flag', 'sflag', 'mix'):
        if k == 0 and SYNC.get('map') == 4:
            a.e('s_and_b32 s3, s2, 1', 's_lshl_b32 s3, s3, 2', 's_lshr_b32 s53, s2, 6', 's_add_u32 s3, s3, s53', 's_lshl_b32 s3, s3, 5', 's_and_b32 s53, s2, 6', 's_add_u32 s3, s3, s53')
        else: a.e(f's_and_b32 s3, s2, {0xc7 if k == 0 else 0xe1}')
        a.e('s_lshl_b32 s3, s3, 6', f's_add_u32 s3, s3, {WS_FLAG + k*16384}')
        srd(a, 60, 42, 43, 16384, add=WS_FLAG + k*16384)
        a.e('s_cmp_lg_u32 s28, 0', f's_cbranch_scc1 {L}_sg{k}', 's_lshl_b32 s53, s2, 6', 's_mov_b64 exec, 1', 'v_mov_b32 v5, s53', f'v_mov_b32 v{9 if k == 4 else 6}, s39',
            f'buffer_store_dword v{9 if k == 4 else 6}, v5, s[60:63], 0 offen{SC}', 's_mov_b64 exec, -1', f'{L}_sg{k}:')
    else:
        a.e(f's_and_b32 s3, s2, {0xc7 if k == 0 else 0xe1}', 's_lshl_b32 s3, s3, 6', f's_add_u32 s3, s3, {WS_FLAG + k*16384}')
        a.e('s_cmp_lg_u32 s28, 0', f's_cbranch_scc1 {L}_sg{k}')
        srd(a, 60, 42, 43, 4, add='s3')
        a.e('s_mov_b64 exec, 1', 'v_mov_b32 v5, 0', 'v_mov_b32 v6, 1', f'buffer_atomic_add v6, v5, s[60:63], 0 offen{SC}', 's_mov_b64 exec, -1', f'{L}_sg{k}:')

def poll(a, L, k, grp, vm=None):
    mode = SYNC['mode']
    if mode == 'mix': mode = 'flag' if k in SYNC['vec'] else 'sflag'
    if mode == 'flag':
        if SYNC.get('one') and k < 4: a.e('s_cmp_lg_u32 s28, 3', f's_cbranch_scc1 {L}_pd{k}')
        a.e('s_mov_b32 s53, 0', f'{L}_pl{k}:', f'buffer_load_dword v5, {V(grp)}, s[60:63], 0 offen{SC}', 's_add_u32 s53, s53, 1', 's_waitcnt vmcnt(0)',
            'v_cmp_eq_u32 vcc, s39, v5', 's_cmp_gt_u32 s53, 200000', f's_cbranch_scc1 {L}_pd{k}', 's_cmp_eq_u64 vcc, -1', f's_cbranch_scc0 {L}_pl{k}', f'{L}_pd{k}:')
        if SYNC.get('one') and k < 4: a.e('s_barrier')
        elif vm: vm.clear()
    elif mode == 'sflag':
        regs = [60, 61, 62, 63, 84, 85, 86, 87, 88, 89, 90, 91, 92, 93, 100, 101]
        offs = ([(x + 8*y)*64 for x in range(2) for y in range(4)] if SYNC.get('map') == 4 else [8*i*64 for i in range(8)]) if k == 0 else [(2*x + 8*y)*64 for x in range(4) for y in range(4)]
        if SYNC.get('one'): a.e('s_cmp_lg_u32 s28, 3', f's_cbranch_scc1 {L}_pd{k}')
        a.e('s_mov_b32 s53, 0', f'{L}_pl{k}:')
        for r, o in zip(regs, offs): a.e(f's_load_dword s{r}, s[42:43], s3 offset:{o} glc')
        a.e('s_add_u32 s53, s53, 1', 's_cmp_gt_u32 s53, 200000', f's_cbranch_scc1 {L}_pd{k}', 's_waitcnt lgkmcnt(0)')
        for r in regs[:len(offs)]: a.e(f's_cmp_eq_u32 s{r}, s39', f's_cbranch_scc0 {L}_pl{k}')
        a.e(f'{L}_pd{k}:')
        if SYNC.get('one'): a.e('s_barrier')
    else:
        if SYNC.get('one'): a.e('s_cmp_lg_u32 s28, 3', f's_cbranch_scc1 {L}_pd{k}')
        a.e('s_mov_b32 s53, 0', f'{L}_pl{k}:', 's_load_dword s60, s[42:43], s3 glc', 's_add_u32 s53, s53, 1', 's_cmp_gt_u32 s53, 200000', f's_cbranch_scc1 {L}_pd{k}',
            's_waitcnt lgkmcnt(0)', f's_cmp_ge_u32 s60, {8 if k == 0 else 16}', f's_cbranch_scc0 {L}_pl{k}', f'{L}_pd{k}:')
        if SYNC.get('one'): a.e('s_barrier')

RETRY = []
def chk_v(regs, acc):
    r = [f'v_max_u32 {acc}, {V(regs[0])}, {V(regs[1])}']
    for i in range(2, len(regs), 2): r.append(f'v_max3_u32 {acc}, {acc}, {V(regs[i])}, {V(regs[i+1])}')
    return r
def chk_a(regs, acc, t0, t1):
    r = []
    for i in range(0, len(regs), 2):
        r += [f'v_accvgpr_read_b32 {t0}, {A(regs[i])}', f'v_accvgpr_read_b32 {t1}, {A(regs[i+1])}', f'v_max_u32 {acc}, {t0}, {t1}' if i == 0 else f'v_max3_u32 {acc}, {acc}, {t0}, {t1}']
    return r
def guard(L, name, loads, chk, acc):
    RETRY.append([f'{L}_rt{name}:', 's_mov_b32 s53, 0', f'{L}_rl{name}:'] + loads + ['s_add_u32 s53, s53, 1', 's_waitcnt vmcnt(0)'] + chk +
                 [f'v_cmp_eq_u32 vcc, -1, {acc}', 's_cmp_gt_u32 s53, 200000', f's_cbranch_scc1 {L}_rb{name}', f's_cbranch_vccnz {L}_rl{name}', f's_branch {L}_rb{name}'])
    return chk + [f'v_cmp_eq_u32 vcc, -1, {acc}', f's_cbranch_vccnz {L}_rt{name}', f'{L}_rb{name}:']
def spin(a, L, name, loads, chk, acc):
    a.e('s_mov_b32 s53, 0', f'{L}_sp{name}:', loads, 's_add_u32 s53, s53, 1', 's_waitcnt vmcnt(0)', chk, f'v_cmp_eq_u32 vcc, -1, {acc}', 's_cmp_gt_u32 s53, 200000',
        f's_cbranch_scc1 {L}_sd{name}', f's_cbranch_vccnz {L}_sp{name}', f'{L}_sd{name}:')
def flat(lst): return [x for sal, ins, tag in lst for x in (list(sal) + [ins])]

def poison_setup():
    sl = ['s_bfe_u32 s50, s2, 0x20001', 's_and_b32 s51, s2, 1', 's_lshl_b32 s51, s51, 3', 's_lshr_b32 s52, s2, 5', 's_add_u32 s51, s51, s52', 's_bfe_u32 s52, s2, 0x20003',
          's_lshl_b32 s4, s51, 1', 's_lshr_b32 s53, s28, 1', 's_add_u32 s4, s4, s53', 's_lshl_b32 s4, s4, 16', 's_lshl_b32 s53, s50, 21', 's_add_u32 s4, s4, s53',
          's_lshl_b32 s53, s52, 12', 's_add_u32 s4, s4, s53', 's_and_b32 s53, s28, 1', 's_lshl_b32 s53, s53, 11', 's_add_u32 s4, s4, s53', f's_add_u32 s4, s4, {WS_PART}',
          's_lshl_b32 s5, s51, 4', 's_lshl_b32 s53, s50, 2', 's_add_u32 s53, s53, s52', 's_add_u32 s5, s5, s53', 's_mul_i32 s6, s53, 7168',
          's_and_b32 s53, s5, 1', 's_lshl_b32 s53, s53, 7', 's_lshr_b32 s5, s5, 1', 's_lshl_b32 s5, s5, 14', 's_add_u32 s5, s5, s53', f's_add_u32 s5, s5, {WS_X1}',
          's_lshl_b32 s53, s51, 2', 's_add_u32 s53, s53, s28', f's_mul_i32 s53, s53, {112*1024}', 's_add_u32 s6, s6, s53', f's_add_u32 s6, s6, {WS_HH}', 's_mov_b32 s7, 1024']
    v = [f'v_mov_b32 v{8+i}, -1' for i in range(4)] + ['v_lshlrev_b32 v13, 4, v2',
         'v_lshrrev_b32 v12, 5, v2', 'v_lshl_add_u32 v12, s28, 2, v12', 'v_lshlrev_b32 v12, 10, v12', 'v_and_b32 v14, 7, v2', 'v_lshl_add_u32 v12, v14, 4, v12', 'v_bfe_u32 v14, v2, 3, 2', 'v_lshl_add_u32 v12, v14, 8, v12']
    return sl, v
def poison_stores(E, dp):
    st = lambda vo, so, off: f'buffer_store_dwordx4 v[8:11], {vo}, s[20:23], {so} offen offset:{off}{SC}'
    r = []
    if E == 0:
        if 'd' in dp: r += [[[], st('v12', 's5', 0)], [[], st('v12', 's5', 2048)]]
        if 'g' in dp: r += [[[f's_add_u32 s5, s5, {WS_H2 - WS_X1}'], st('v12', 's5', 0)], [[], st('v12', 's5', 2048)]]
    if E == 1:
        if 'd' in dp: r += [[[], st('v13', 's6', 0)]]
        if 'r' in dp: r += [[[], st('v13', 's4', 0)], [['s_add_u32 s4, s4, 1024'], st('v13', 's4', 0)]]
    if E == 2 and 'd' in dp: r += [[['s_add_u32 s6, s6, 1024'], st('v13', 's6', 0)]]
    if E == 3 and 'r' in dp: r += [[['s_add_u32 s4, s4, s7', 's_xor_b32 s7, s7, 14336'], st('v13', 's4', 0)]]
    return r

OA = [8192, 24576, 73728, 122880]; OB = [40960, 57344, 90112, 106496]
ODA = 156
def o_setup():
    r = []
    for i in range(4):
        r += [f'v_add_u32 v5, {4*(i&1)}, v4', 'v_lshlrev_b32 v5, 1, v5', 'v_xor_b32 v5, v5, v3', 'v_lshlrev_b32 v5, 4, v5', 'v_lshl_add_u32 v5, v4, 10, v5',
              f'v_add_u32 {V(ODA+i)}, {(16*(i&1) + 8*(i>>1) - i)*1024}, v5']
    s = ['s_lshr_b32 s47, s28, 1', 's_and_b32 s49, s28, 1', 's_lshl_b32 s50, s47, 15', 's_lshl_b32 s51, s49, 12', 's_add_u32 s50, s50, s51',
         's_bfe_u32 s51, s2, 0x20001', 's_lshl_b32 s51, s51, 20', 's_add_u32 s50, s50, s51', 's_bfe_u32 s51, s2, 0x20003', 's_lshl_b32 s51, s51, 8', 's_add_u32 s50, s50, s51',
         's_add_u32 s16, s64, s50', 's_addc_u32 s17, s65, 0', 's_sub_u32 s18, 4194304, s50', 's_mov_b32 s19, 0x20000', 's_lshl_b32 s30, s28, 12']
    return r, s
def o_dma_a(st):
    return [[[f's_add_u32 m0, s30, {OA[st % 4]}', f's_mov_b32 s34, {st*65536}'] if i == 0 else [], f'buffer_load_dwordx4 {V(ODA+i)}, s[16:19], s34 offen offset:{1024*i} lds', ('oa', st)] for i in range(4)]

def phase_o(a, L, opt, Sched):
    ACC = 64; FA = [0, 32]; FB = [64, 96]; DB = 12; RA = 16; RB = 24
    vm = VM()
    a.e('s_lshr_b32 s47, s28, 1', 's_and_b32 s48, s28, 1', 's_bfe_u32 s44, s2, 0x20001', 's_and_b32 s45, s2, 1', 's_lshl_b32 s45, s45, 3', 's_lshr_b32 s46, s2, 5', 's_add_u32 s45, s45, s46', 's_bfe_u32 s46, s2, 0x20003')
    a.e(f'v_lshlrev_b32 {V(DB)}, 4, v2')
    a.e('v_lshrrev_b32 v5, 2, v2', 'v_and_b32 v6, 3, v2', 'v_lshlrev_b32 v7, 8, v5', 'v_lshl_add_u32 v7, v6, 3, v7', 'v_and_b32 v5, 7, v5', 's_lshl_b32 s49, s48, 2')
    for nb in range(4): a.e(f's_add_u32 s50, s49, {nb}', 'v_xor_b32 v8, s50, v5', f'v_lshl_add_u32 {V(RA+nb)}, v8, 5, v7', f'v_add_u32 {V(RA+4+nb)}, {OA[2]}, {V(RA+nb)}')
    a.e('v_bfe_u32 v5, v2, 2, 2', 'v_lshrrev_b32 v7, 5, v2', 'v_lshl_add_u32 v5, v7, 3, v5', 'v_lshlrev_b32 v7, 2, v6', 'v_xor_b32 v5, v5, v7', 'v_lshl_add_u32 v5, v6, 4, v5')
    a.e('v_and_b32 v7, 1, v4', 'v_lshlrev_b32 v7, 3, v7', 'v_lshl_add_u32 v5, v5, 4, v7', 's_lshl_b32 s49, s47, 13', f's_add_u32 s49, s49, {OB[0]}')
    a.e(f'v_add_u32 {V(RB)}, s49, v5', 'v_xor_b32 v5, 64, v5', f'v_add_u32 {V(RB+1)}, s49, v5', f'v_add_u32 {V(RB+2)}, {OB[2]-OB[0]}, {V(RB)}', f'v_add_u32 {V(RB+3)}, {OB[2]-OB[0]}, {V(RB+1)}')
    a.e('s_lshl_b32 s49, s45, 1', 's_add_u32 s49, s49, s47', 's_lshl_b32 s50, s49, 19', 's_lshl_b32 s51, s44, 17', 's_add_u32 s50, s50, s51',
        's_lshl_b32 s51, s48, 12', 's_add_u32 s50, s50, s51', f's_add_u32 s50, s50, {WS_O}'); srd(a, 12, 42, 43, 131072, add='s50')
    a.e('s_lshl_b32 s49, s49, 16', 's_lshl_b32 s50, s44, 21', 's_add_u32 s49, s49, s50', 's_lshl_b32 s50, s46, 12', 's_add_u32 s49, s49, s50',
        's_lshl_b32 s50, s48, 11', 's_add_u32 s49, s49, s50', f's_add_u32 s49, s49, {WS_PART}'); srd(a, 8, 42, 43, 65536, add='s49')
    srd(a, 4, 42, 43, 1 << 20)
    r_setup(a)
    a.e(flag_setup())
    if opt.get('single', 1):
        a.e('v_cmp_eq_u32 vcc, s39, v140', 's_mov_b32 s53, 0', 's_nop 0', 's_cmp_eq_u64 vcc, -1', f's_cbranch_scc1 {L}_pmd')
        srd(a, 60, 42, 43, 16384, add=WS_FLAG + 4*16384)
        a.e('v_lshlrev_b32 v6, 6, v2', 'v_add_u32 v6, 4096, v6', f'{L}_pm:', f'buffer_load_dword v5, v6, s[60:63], 0 offen{SC}', 's_add_u32 s53, s53, 1', 's_waitcnt vmcnt(0)',
            'v_cmp_eq_u32 vcc, s39, v5', 's_cmp_gt_u32 s53, 200000', f's_cbranch_scc1 {L}_pmd', 's_cmp_eq_u64 vcc, -1', f's_cbranch_scc0 {L}_pm', f'{L}_pmd:')
    signal(a, L, 0, ['s_waitcnt vmcnt(0)']); mark(a, 1)
    poll(a, L, 0, FLA); mark(a, 2)
    def dma_b(st):
        return [[[f's_add_u32 m0, s30, {OB[st % 4]}', f's_mov_b32 s35, {st*8192}'] if i == 0 else [], f'buffer_load_dwordx4 {V(DB)}, s[12:15], s35 offen offset:{1024*i}{opt.get("o_ld", SC)} lds', ('ob', st)] for i in range(4)]
    for st in range(4):
        for sal, ins, tag in dma_b(st): a.e(sal, ins); vm.add(tag)
    def reads(st):
        p = st & 1; sl = st % 4
        ra = [f'ds_read_b64_tr_b16 {A(FA[p]+8*x+4*tt+2*v,2)}, {V(RA+(4 if sl >= 2 else 0)+x)} offset:{OA[sl] - (OA[2] if sl >= 2 else 0)+tt*8192+v*4096}' for x in range(4) for tt in range(2) for v in range(2)]
        rb = [f'ds_read_b64_tr_b16 {A(FB[p]+8*x+4*tt+2*u,2)}, {V(RB+2*(sl >> 1)+u)} offset:{(sl & 1)*16384+tt*4096+x*1024}' for x in range(4) for tt in range(2) for u in range(2)]
        return ra[:4] + rb + ra[4:]
    sc = Sched(a, age=6)
    a.e(vm.wait({('ob', 0)}), 's_barrier')
    for r in reads(0): sc.emit_filler(r)
    NV = opt.get('o_var', 1)
    import copy
    vm0 = copy.deepcopy(vm); pend0 = list(sc.pend)
    for var in range(NV):
        PH = 2 if NV == 1 else (var if NV == 4 else 1 + 2*var)
        if var < NV - 1: a.e(f's_cmp_ge_u32 s28, {(var+1)*4//NV}', f's_cbranch_scc1 {L}_ov{var+1}')
        vm = copy.deepcopy(vm0); sc.pend = list(pend0)
        rl = r_loads()
        if opt.get('dp', 'rg'): rl.append([[f's_mov_b32 s36, {WS_FLAG + 5*16384}'], f'buffer_load_dword v28, {V(FLB)}, s[4:7], s36 offen{SC}', ('r', 0)])
        gs0, gv, gs1 = g_setup()
        gq = [x for st_ in range(opt.get('g_pre0', 2)) for x in g_dma(st_)]
        for st in range(16):
            p = st & 1
            a.e(vm.wait({('oa', st+1), ('ob', st+1)}, ' lgkmcnt(0)'), 's_barrier'); sc.pend = []
            if st == 12: a.e(gs0)
            if st == 15: a.e(gs1)
            mf = [f'{MF} {V(ACC+16*nb+4*qb,4)}, {A(FA[p]+8*nb+4*tt,4)}, {A(FB[p]+8*qb+4*tt,4)}, {"0" if (st == 0 and tt == 0) else V(ACC+16*nb+4*qb,4)}' for nb in range(4) for qb in range(4) for tt in range(2)]
            gaps = [[] for _ in mf]; pre = [[] for _ in mf]
            rd = reads(st+1) if st < 15 else []
            d = (dma_b(st+4) + o_dma_a(st+4)) if st + 4 < 16 else rl[8*(st-12):8*(st-12)+8]
            ri = 0
            for g in range(32):
                if g % 4 == PH and d:
                    sal, ins, tag = d.pop(0)
                    if g: pre[g-1] += sal
                    else: pre[0] += sal
                    gaps[g].append(ins); vm.add(tag)
                else:
                    k = 2
                    while k and ri < len(rd):
                        gaps[g].append(rd[ri]); ri += 1; k -= 1
            assert not d
            if 12 <= st < 15:
                for i, x in enumerate(gv[19*(st-12):19*(st-11)]): gaps[22 + i//2].append(x)
            if st == 15:
                for g in range(2, 20, 4):
                    sal, ins, tag = gq.pop(0)
                    pre[g-1] += sal; gaps[g].append(ins); vm.add(tag)
                n = 0
                for qb in range(4):
                    t = 32 + 4*qb
                    ins = []
                    for u in range(2):
                        b = ACC + 16*u + 4*qb
                        ins += [f'v_cvt_pk_bf16_f32 {V(t+2*u)}, {V(b)}, {V(b+1)}', f'v_cvt_pk_bf16_f32 {V(t+2*u+1)}, {V(b+2)}, {V(b+3)}']
                    g = 20 + 3*qb
                    gaps[g] += ins[:2]; gaps[g+1] += ins[2:]; pre[g+1].append(f's_mov_b32 s50, {qb*16384}')
                    gaps[g+2].append(f'buffer_store_dwordx4 {V(t,4)}, {V(DB)}, s[8:11], s50 offen{SC}'); vm.add(('st', 0))
            sc.run(mf, [pre[g] + gaps[g] for g in range(32)])
        if var < NV - 1: a.e(f's_branch {L}_ovend', f'{L}_ov{var+1}:')
    a.e(f'{L}_ovend:')
    mark(a, 3)
    a.e('s_nop 1')
    for qb in range(4):
        t = 48 + 4*qb
        for u in range(2):
            b = ACC + 16*(2+u) + 4*qb
            a.e(f'v_cvt_pk_bf16_f32 {V(t+2*u)}, {V(b)}, {V(b+1)}', f'v_cvt_pk_bf16_f32 {V(t+2*u+1)}, {V(b+2)}, {V(b+3)}')
        a.e(f's_mov_b32 s50, {qb*16384}', f'buffer_store_dwordx4 {V(t,4)}, {V(DB)}, s[8:11], s50 offen offset:1024{SC}'); vm.add(('st', 0))
    for sal, ins, tag in gq: a.e(sal, ins); vm.add(tag)
    return vm

RX = 144; RGA = 160; RCB = 176; RSB = 192; RO = 152
RSTAT = 159744
def r_setup(a):
    a.e('s_lshl_b32 s29, s45, 4', 's_lshl_b32 s50, s44, 2', 's_add_u32 s29, s29, s50', 's_add_u32 s29, s29, s46')
    a.e('v_and_b32 v5, 7, v2', 'v_bfe_u32 v6, v2, 3, 2', 'v_lshrrev_b32 v7, 5, v2', 's_lshl_b32 s50, s28, 2', 'v_add_u32 v7, s50, v7')
    a.e(f'v_lshlrev_b32 {V(RO)}, 10, v7', f'v_lshl_add_u32 {V(RO)}, v5, 4, {V(RO)}', f'v_lshl_add_u32 {V(RO)}, v6, 8, {V(RO)}')
    a.e(f'v_lshlrev_b32 {V(RO+1)}, 10, v5', f'v_lshl_add_u32 {V(RO+1)}, v7, 6, {V(RO+1)}', f'v_lshl_add_u32 {V(RO+1)}, v6, 3, {V(RO+1)}')
    a.e(f'v_lshlrev_b32 {V(RO+2)}, 7, v7', f'v_lshl_add_u32 {V(RO+2)}, v6, 4, {V(RO+2)}')
    a.e(f'v_lshlrev_b32 {V(RO+3)}, 3, v5', f'v_add_u32 {V(RO+3)}, {RSTAT}, {V(RO+3)}')
    srd(a, 20, 80, 81, 2097152); srd(a, 24, 42, 43, 12288)
    a.e('s_lshl_b32 s31, s29, 13', 's_lshr_b32 s50, s29, 1', 's_lshl_b32 s50, s50, 14', 's_and_b32 s51, s29, 1', 's_lshl_b32 s51, s51, 7', 's_add_u32 s29, s50, s51')
def r_loads():
    r = [[[], f'buffer_load_dwordx2 {V(RX+4*i+2*v,2)}, {V(RO+1)}, s[20:23], s31 offen offset:{128*i+32*v}', ('r', 0)] for i in range(2) for v in range(2)]
    for part, reg in ((2, RGA), (4, RCB), (3, RSB)):
        for i in range(2):
            for v in range(2):
                r.append([[f's_mov_b32 s36, {part*2048}'] if (i == 0 and v == 0) else [], f'buffer_load_dwordx4 {V(reg+8*i+4*v,4)}, {V(RO+2)}, s[24:27], s36 offen offset:{256*i+64*v}{SC}', ('r', 0)])
    return r

def phase_r(a, L, opt, vm):
    PT = 16; F = 48
    n0 = opt.get('g_pre0', 2); n1 = opt.get('g_pre1', 3)
    srd(a, 12, 42, 43, 8388608, add=WS_PART); srd(a, 20, 42, 43, 4194304, add=WS_X1)
    DP = 'r' in opt.get('dp', 'rg')
    pl = [[[f's_add_u32 s50, s29, {ks << 21}'] if i == 0 else [], f'buffer_load_dwordx4 {V(PT+8*ks+4*i,4)}, {V(RO)}, s[12:15], s50 offen offset:{2048*i}{SC}', ('p', ks)] for ks in range(4) for i in range(2)]
    if not DP: signal(a, L, 1, vm.wait({('st', 0)}))
    if opt.get('dp', 'rg'):
        a.e(vm.wait({('r', 0)}), f'v_cmp_eq_u32 vcc, s39, v28', 's_nop 1', 's_cmp_eq_u64 vcc, -1', f's_cbranch_scc1 {L}_pd5')
        a.e('s_mov_b32 s53, 0', f's_mov_b32 s50, {WS_FLAG + 5*16384}', f'{L}_pl5:', f'buffer_load_dword v5, {V(FLB)}, s[4:7], s50 offen{SC}', 's_add_u32 s53, s53, 1', 's_waitcnt vmcnt(0)',
            'v_cmp_eq_u32 vcc, s39, v5', 's_cmp_gt_u32 s53, 200000', f's_cbranch_scc1 {L}_pd5', 's_cmp_eq_u64 vcc, -1', f's_cbranch_scc0 {L}_pl5', f'{L}_pd5:')
    mark(a, 4)
    for r in range(8): a.e(f'v_lshlrev_b32 {V(64+2*r)}, 16, {V(RX+r)}', f'v_and_b32 {V(65+2*r)}, 0xffff0000, {V(RX+r)}')
    if not DP:
        poll(a, L, 1, FLB, vm); mark(a, 5)
        for sal, ins, tag in pl: a.e(sal, ins); vm.add(tag)
    else:
        spin(a, L, 'p', flat(pl), chk_v(list(range(PT, PT+32)), 'v10'), 'v10'); vm.clear(); mark(a, 5)
    for st in range(n0, n1):
        for sal, ins, tag in g_dma(st): a.e(sal, ins); vm.add(tag)
    for ks in range(4):
        a.e(vm.wait({('p', ks)}))
        for r in range(8):
            src = V(PT+8*ks+r)
            if ks == 0: a.e(f'v_lshlrev_b32 {V(F+2*r)}, 16, {src}', f'v_and_b32 {V(F+2*r+1)}, 0xffff0000, {src}')
            else: a.e(f'v_lshlrev_b32 v10, 16, {src}', f'v_and_b32 v11, 0xffff0000, {src}', f'v_add_f32 {V(F+2*r)}, {V(F+2*r)}, v10', f'v_add_f32 {V(F+2*r+1)}, {V(F+2*r+1)}, v11')
    for e in range(16): a.e(f'v_fmac_f32 {V(64+e)}, {V(F+e)}, {V(RGA+e)}')
    for r in range(8): a.e(f'v_cvt_pk_bf16_f32 {V(RX+r)}, {V(64+2*r)}, {V(65+2*r)}')
    for i in range(2): a.e(f'buffer_store_dwordx4 {V(RX+4*i,4)}, {V(RO)}, s[20:23], s29 offen offset:{2048*i}{SC}'); vm.add(('st', 1))
    F = 64
    a.e(f'v_add_f32 v10, {V(F)}, {V(F+1)}', f'v_mul_f32 v14, {V(F)}, {V(F)}', f'v_add_f32 v11, {V(F+2)}, {V(F+3)}', f'v_mul_f32 v15, {V(F+1)}, {V(F+1)}')
    for e in range(2, 16, 2):
        if e >= 4: a.e(f'v_add_f32 v10, v10, {V(F+e)}', f'v_add_f32 v11, v11, {V(F+e+1)}')
        a.e(f'v_fmac_f32 v14, {V(F+e)}, {V(F+e)}', f'v_fmac_f32 v15, {V(F+e+1)}, {V(F+e+1)}')
    a.e('v_add_f32 v10, v10, v11', 'v_add_f32 v11, v14, v15')
    for perm in ('32', '16'):
        a.e('v_mov_b32 v14, v10', 'v_mov_b32 v15, v11', 's_nop 0', f'v_permlane{perm}_swap_b32 v10, v14', f'v_permlane{perm}_swap_b32 v11, v15', 'v_add_f32 v10, v10, v14', 'v_add_f32 v11, v11, v15')
    a.e('s_lshl_b32 s50, s28, 6', f'v_add_u32 v13, s50, {V(RO+3)}')
    a.e('v_add_f32_dpp v10, v10, v10 row_ror:8 row_mask:0xf bank_mask:0xf', 's_nop 0', 'v_add_f32_dpp v11, v11, v11 row_ror:8 row_mask:0xf bank_mask:0xf')
    a.e('ds_write_b64 v13, v[10:11]', 's_waitcnt lgkmcnt(0)', 's_barrier')
    for i in range(4): a.e(f'ds_read_b64 v[{24+2*i}:{25+2*i}], {V(RO+3)} offset:{64*i}')
    a.e('s_waitcnt lgkmcnt(0)', 'v_pk_add_f32 v[24:25], v[24:25], v[26:27]', 'v_pk_add_f32 v[28:29], v[28:29], v[30:31]', 'v_pk_add_f32 v[24:25], v[24:25], v[28:29]')
    a.e(f'v_mul_f32 v24, {f32hex(1/512)}, v24', f'v_mov_b32 v26, {f32hex(1e-5)}', f'v_fmac_f32 v26, {f32hex(1/512)}, v25', 'v_fma_f32 v26, -v24, v24, v26',
        f'v_max_f32 v26, {f32hex(1e-5)}, v26', 'v_rsq_f32 v25, v26', f's_add_u32 s50, s29, {WS_H2 - WS_X1}')
    for e in range(16): a.e(f'v_sub_f32 {V(F+e)}, {V(F+e)}, v24')
    for e in range(16): a.e(f'v_mul_f32 {V(RCB+e)}, {V(RCB+e)}, v25')
    for e in range(16): a.e(f'v_fma_f32 {V(F+e)}, {V(F+e)}, {V(RCB+e)}, {V(RSB+e)}')
    for r in range(8): a.e(f'v_cvt_pk_bf16_f32 {V(PT+r)}, {V(F+2*r)}, {V(F+2*r+1)}')
    for i in range(2): a.e(f'buffer_store_dwordx4 {V(PT+4*i,4)}, {V(RO)}, s[20:23], s50 offen offset:{2048*i}{SC}'); vm.add(('st', 1))
    return vm

GR = 5; GSTG = 28672; GDA = 208
def g_setup():
    s0 = ['s_lshl_b32 s52, s44, 2', 's_add_u32 s52, s52, s46', 's_and_b32 s47, s28, 1', 's_mul_i32 s47, s47, 448', 's_mov_b32 s48, 4682', 's_mov_b32 s49, 3584']
    v = ['v_add_u32 v5, s47, v2']
    for i in range(7):
        v += [f'v_add_u32 v6, {64*i}, v5', 'v_mul_lo_u32 v7, v6, s48', 'v_lshrrev_b32 v7, 16, v7', 'v_mul_u32_u24 v8, 14, v7', 'v_sub_u32 v8, v6, v8',
              'v_mul_lo_u32 v9, v7, s49', 'v_lshl_add_u32 v9, v8, 4, v9', f'v_subrev_u32 {V(GDA+i)}, {1024*(i & 3)}, v9']
    b = Asm()
    b.e('s_cmp_lt_u32 s28, 2', 's_cselect_b32 s54, s68, s72', 's_cselect_b32 s55, s69, s73', 's_mul_i32 s56, s52, 224')
    srd(b, 16, 54, 55, 0, add='s56'); b.e(f's_sub_u32 s18, {512*3584}, s56')
    b.e('s_lshr_b32 s56, s28, 1', 's_mul_i32 s56, s56, 14336', 's_and_b32 s54, s28, 1', 's_mul_i32 s54, s54, 7168', 's_add_u32 s30, s56, s54')
    return s0, v, b.o
def g_dma(st):
    base = (st % GR) * GSTG
    return [[([f's_add_u32 m0, s30, {base + 4096*(i//4)}', f's_mov_b32 s34, {st*64*3584}'] if i % 4 == 0 else []),
             f'buffer_load_dwordx4 {V(GDA+i)}, s[16:19], s34 offen offset:{1024*(i&3)} lds', ('ga', st)] for i in range(7)]

def phase_g(a, L, opt, vm, Sched):
    ACC = 16; RA = 8; FA = 128; BD = 0
    n1 = opt.get('g_pre1', 3)
    a.e('v_lshrrev_b32 v5, 2, v2', 'v_mul_u32_u24 v5, 224, v5', 'v_and_b32 v6, 3, v2', f'v_lshl_add_u32 {V(RA)}, v6, 3, v5', 'v_lshlrev_b32 v7, 4, v2')
    for i in range(1, GR): a.e(f'v_add_u32 {V(RA+i)}, {i*GSTG}, {V(RA)}')
    a.e('s_lshl_b32 s47, s45, 2', 's_add_u32 s47, s47, s28', 's_lshl_b32 s48, s47, 15', f's_add_u32 s48, s48, {WS_H2}'); srd(a, 12, 42, 43, 32768, add='s48')
    a.e(f's_mul_i32 s47, s47, {112*1024}', 's_mul_i32 s48, s52, 7168', 's_add_u32 s47, s47, s48', f's_add_u32 s47, s47, {WS_HH}'); srd(a, 8, 42, 43, 7168, add='s47')
    DP = 'g' in opt.get('dp', 'rg')
    if not DP: signal(a, L, 2, vm.wait({('st', 1)}))
    else: a.e(vm.wait({('ga', x) for x in range(n1)}), 's_barrier')
    mark(a, 6)
    CH = opt.get('g_chain', 1)
    NR = 12 if CH else 8
    def dec(n):
        st, r = divmod(n, 28)
        if CH: b, tt = divmod(r, 2)
        else: tt, b = divmod(r, 14)
        return st, tt, b
    def rd(n):
        st, tt, b = dec(n)
        off = (b // 7)*14336 + tt*7168 + (b % 7)*32
        return [f'ds_read_b64_tr_b16 {A(FA+4*(n % NR)+2*v,2)}, {V(RA + st % GR)} offset:{off+3584*v}' for v in range(2)]
    D = opt.get('g_dist', 8 if CH else 5)
    sc = Sched(a, age=6)
    d_setup(a)
    for n in range(D):
        for r in rd(n): sc.emit_filler(r)
    if not DP: poll(a, L, 2, FLB, vm); mark(a, 7)
    def bl(ks):
        return [[[f's_mov_b32 s36, {qb*16384 + (ks & ~3)*1024}'], f'buffer_load_dwordx4 {A(BD+8*ks+4*qb,4)}, v7, s[12:15], s36 offen offset:{(ks & 3)*1024}{SC}', ('gb', ks)] for qb in range(2)]
    UP = opt.get('g_up', 6)
    def gchk(ks, n=1): return chk_a(list(range(BD+8*ks, BD+8*(ks+n))), 'v13', 'v14', 'v15')
    if DP:
        spin(a, L, 'g', flat(bl(0) + bl(1)), gchk(0, 2), 'v13'); vm.clear(); vm.seen |= {('gb', 0), ('gb', 1)}; mark(a, 7)
    for ks in range(2 if DP else 0, UP):
        for sal, ins, tag in bl(ks): a.e(sal, ins); vm.add(tag)
    q = []
    for ks in range(UP, 16): q += bl(ks)
    for st in range(n1, GR): q += g_dma(st)
    MARG = opt.get('g_marg', 36); SP = opt.get('g_sp', 4)
    def need_at(x):
        kind, i = x[2]
        if kind == 'ga': return 28*i - D
        if CH: return 28*(i//2 - 1) + ((12 if i % 2 == 0 else 20) if DP else (26 + i % 2))
        return 14*(i-1) + (opt.get('g_chk', 5) if DP else 13)
    q.sort(key=need_at); last_iss = [-99]
    NF = 16*14
    mf = []; gaps = []; pre = []; cq = []
    a.e(vm.wait({('gb', 0), ('gb', 1)} if CH else {('gb', 0)}))
    for n in range(NF):
        st, tt, b = dec(n); ks = 2*st + tt
        for x in range(2):
            if CH: qb, n2, k2 = tt, (n & ~1) + x, 2*st + x
            else: qb, n2, k2 = x, n, ks
            acc = V(ACC+8*b+4*qb, 4)
            mf.append(f'{MF} {acc}, {A(FA+4*(n2 % NR),4)}, {A(BD+8*k2+4*qb,4)}, {"0" if k2 == 0 else acc}')
            gaps.append([]); pre.append([])
        nn = n + D
        if nn < NF:
            if nn % 28 == 0:
                s2 = nn // 28
                assert ('ga', s2) in vm.seen and not any(x[2] == ('ga', s2) for x in q)
                w = vm.wait({('ga', s2)})
                if s2 >= n1 or s2 + GR - 2 < 8: gaps[2*n-1] += w + ['s_barrier']
                if n1 <= s2 + GR - 2 < 8 and s2 + GR - 2 >= GR: q += g_dma(s2 + GR - 2)
            r = rd(nn)
            gaps[2*n].append(r[0]); gaps[2*n+1].append(r[1])
        q.sort(key=need_at)
        urgent = any(need_at(x) - MARG - 2*i <= n for i, x in enumerate(q))
        if q and n % 2 == 0 and (urgent or n - last_iss[0] >= SP):
            last_iss[0] = n
            sal, ins, tag = q.pop(0)
            pre[2*n] += sal; gaps[2*n+1].append(ins); vm.add(tag)
        if CH: nk = [2*st+2+(n % 28 in (20, 27))] if (n % 28 in ((12, 20) if DP else (26, 27)) and st < 7) else []
        else: nk = [ks+1] if (b == (opt.get('g_chk', 5) if DP else 13) and ks < 15 and not (DP and ks == 0)) else []
        if nk:
            k1 = nk[0]
            assert not any(x[2] == ('gb', k1) for x in q) and not cq
            gaps[2*n+1] += vm.wait({('gb', k1)})
            if DP: cq = guard(L, f'g{k1}', [x.replace('s36', 's37') for x in flat(bl(k1))], gchk(k1), 'v13')
        elif cq:
            for g in (2*n, 2*n+1):
                k = 1 if len(cq) > 3 else 3
                gaps[g] += cq[:k]; cq = cq[k:]
    assert not q
    sc.run(mf, [pre[g] + gaps[g] for g in range(len(mf))])
    mark(a, 8)
    a.e('s_barrier')
    for b in range(7):
        t = ACC + 8*b
        for i in range(0, 8, 2): a.e(f'v_pk_mul_f32 {V(t+i,2)}, {V(t+i,2)}, {V(t+56+i,2)}')
        for i in range(4): a.e(f'v_cvt_pk_bf16_f32 {V(t+i)}, {V(t+2*i)}, {V(t+2*i+1)}')
        a.e(f's_mov_b32 s48, {(b*1024) & ~4095}', f'buffer_store_dwordx4 {V(t,4)}, v7, s[8:11], s48 offen offset:{(b*1024) & 4095}{SC}'); vm.add(('st', 2))
    return vm

DR = 9; DE = 128; DDA = 133; DRA = 137
def d_setup(a):
    E = DE
    a.e('s_lshl_b32 s54, s45, 1', 's_and_b32 s50, s44, 1', 's_add_u32 s54, s54, s50', 's_lshr_b32 s55, s44, 1', 's_lshl_b32 s55, s55, 2', 's_add_u32 s55, s55, s46')
    a.e('v_lshrrev_b32 v5, 3, v2', 'v_lshlrev_b32 v13, 1, v4', 'v_and_b32 v6, 7, v2', 'v_xor_b32 v13, v13, v6', 'v_lshlrev_b32 v13, 4, v13', 'v_lshl_add_u32 v13, v5, 10, v13')
    for i in range(4): a.e(f'v_add_u32 {V(DDA+i)}, {7*i*1024}, v13')
    a.e('s_lshl_b32 s50, s55, 7', f's_mul_i32 s51, s28, {14*32*1024}', 's_add_u32 s50, s50, s51')
    srd(a, 24, 76, 77, 0, add='s50'); a.e(f's_sub_u32 s26, {1792*1024}, s50', f's_mul_i32 s31, s28, {DR*4096}')
    a.e(f'v_and_b32 {V(E)}, 1, v6', f'v_lshlrev_b32 {V(E)}, 9, {V(E)}', f'v_lshl_add_u32 {V(E)}, v5, 4, {V(E)}', 'v_bfe_u32 v13, v6, 1, 1', f'v_lshl_add_u32 {V(E)}, v13, 3, {V(E)}', 'v_lshrrev_b32 v13, 2, v6', f'v_lshl_add_u32 {V(E)}, v13, 10, {V(E)}')
    a.e(f'v_lshlrev_b32 {V(E+1)}, 5, v6', f'v_lshlrev_b32 {V(E+2)}, 10, v5', f'v_lshl_add_u32 {V(E+2)}, v6, 4, {V(E+2)}')
    a.e(f'v_mul_u32_u24 {V(E+3)}, 272, v5', f'v_lshl_add_u32 {V(E+3)}, v6, 5, {V(E+3)}', 's_mul_i32 s47, s28, 4352', f'v_add_u32 {V(E+3)}, s47, {V(E+3)}')
    a.e(f'v_mul_u32_u24 {V(E+4)}, 272, v3', f'v_lshl_add_u32 {V(E+4)}, v4, 4, {V(E+4)}', 's_mul_i32 s47, s28, 17408', f'v_add_u32 {V(E+4)}, s47, {V(E+4)}')
    a.e('v_lshrrev_b32 v5, 2, v2', 'v_and_b32 v6, 3, v2', 'v_lshlrev_b32 v13, 7, v5', 'v_lshl_add_u32 v13, v6, 3, v13', 'v_add_u32 v13, s31, v13', 'v_bfe_u32 v5, v5, 1, 2')
    for nb in range(4): a.e(f'v_xor_b32 v6, {nb}, v5', f'v_lshl_add_u32 {V(DRA+nb)}, v6, 5, v13')
    a.e('s_lshl_b32 s47, s54, 2', 's_add_u32 s47, s47, s28', 's_lshl_b32 s49, s47, 14', 's_lshl_b32 s50, s55, 7', 's_add_u32 s56, s50, s49', 's_lshl_b32 s51, s55, 11', 's_add_u32 s57, s51, s49')
    a.e('s_lshl_b32 s58, s55, 8', f's_add_u32 s58, s58, {5*2048}')
    a.e(f's_mul_i32 s48, s54, {2*112*1024}', f's_mul_i32 s49, s28, {28*1024}', 's_add_u32 s48, s48, s49', f's_add_u32 s59, s48, {WS_HH}')
def d_dma(s):
    return [[([f's_add_u32 m0, s31, {(s % DR)*4096}', f's_mov_b32 s35, {s*32768}'] if i == 0 else []),
             f'buffer_load_dwordx4 {V(DDA+i)}, s[24:27], s35 offen offset:{1024*i} lds', ('da', s)] for i in range(4)]

def phase_d(a, L, opt, vm, Sched):
    NS = 14
    ACC = 0; FA = [64, 80]; XR = 96; GV = 104; RA = DRA; E = DE
    BR = lambda s: (16 + 16*s) if s < 7 else (144 + 16*(s-7))
    n0 = opt.get('d_pre0', 8); n0a = opt.get('d_pre0a', 3)
    for s in range(n0a):
        for sal, ins, tag in d_dma(s): a.e(sal, ins); vm.add(tag)
    srd(a, 12, 42, 43, 2*112*1024, add='s59')
    DP = 'd' in opt.get('dp', 'rg')
    if not DP: signal(a, L, 3, vm.wait({('st', 2)}))
    mark(a, 9)
    for s in range(n0a, n0):
        for sal, ins, tag in d_dma(s): a.e(sal, ins); vm.add(tag)
    srd(a, 16, 42, 43, 12288); srd(a, 8, 82, 83, 2097152)
    xl = [f'buffer_load_dwordx2 {A(XR+4*p+2*e,2)}, {V(E)}, s[20:23], s57 offen offset:{128*p+256*e}{SC}' for p in range(2) for e in range(2)]
    late_x = (not DP) and 'g' in opt.get('dp', 'rg')
    if not late_x:
        for x in xl: a.e(x); vm.add(('e', 0))
    for h in range(2): a.e(f'buffer_load_dwordx4 {A(GV+4*h,4)}, {V(E+1)}, s[16:19], s58 offen offset:{16*h}{SC}'); vm.add(('e', 0))
    if not DP: poll(a, L, 3, FLB, vm); mark(a, 10)
    dma2 = d_dma
    def bload(s):
        return [[[f's_mov_b32 s36, {qp*112*1024 + 2048*s}'] if u == 0 else [], f'buffer_load_dwordx4 {V(BR(s)+8*qp+4*u,4)}, v7, s[12:15], s36 offen offset:{1024*u}{SC}', ('db', s)] for qp in range(2) for u in range(2)]
    def reads(s): return [f'ds_read_b64_tr_b16 {A(FA[s & 1]+4*x+2*v,2)}, {V(RA+x)} offset:{(s % DR)*4096+2048*v}' for x in range(4) for v in range(2)]
    def swaps(s): return [f'v_swap_b32 {V(BR(s)+8*qp+2+i)}, {V(BR(s)+8*qp+4+i)}' for qp in range(2) for i in range(2)]
    sc = Sched(a, age=6)
    PRE = opt.get('d_pre', 4)
    def dchk(s): return chk_v(list(range(BR(s), BR(s)+16)), 'v13')
    if DP:
        spin(a, L, 'd', flat(bload(0)), dchk(0), 'v13'); vm.clear(); vm.seen.add(('db', 0)); mark(a, 10)
        for r in reads(0): sc.emit_filler(r)
    for s in range(1 if DP else 0, PRE):
        for sal, ins, tag in bload(s): a.e(sal, ins); vm.add(tag)
        if s == 0:
            a.e(vm.wait({('da', 0)}))
            for r in reads(0): sc.emit_filler(r)
    a.e(vm.wait({('db', 0)}), swaps(0))
    nb_ = PRE; na_ = n0
    for s in range(NS):
        mf = [f'{MF} {A(ACC+16*nb+4*qb,4)}, {A(FA[s & 1]+4*nb,4)}, {V(BR(s)+4*qb,4)}, {"0" if s == 0 else A(ACC+16*nb+4*qb,4)}' for nb in range(4) for qb in range(4)]
        gaps = [[] for _ in mf]
        a.e('s_waitcnt lgkmcnt(0)'); sc.pend = []
        iss = []
        if nb_ < NS: iss += bload(nb_); nb_ += 1
        if na_ < NS and na_ <= s + DR and na_ <= nb_ + 1: iss += dma2(na_); na_ += 1
        elif nb_ < NS: iss += bload(nb_); nb_ += 1
        if late_x and s == 10: iss += [[[], x, ('e', 99)] for x in xl]
        for g, (sal, ins, tag) in enumerate(iss[:7]):
            gaps[g] += sal + [ins]; vm.add(tag)
        if s + 1 < NS:
            assert ('da', s+1) in vm.seen and ('db', s+1) in vm.seen and not any(x[2][1] == s+1 for x in iss[7:])
            gaps[7] += vm.wait({('da', s+1), ('db', s+1)})
            for i, r in enumerate(reads(s+1)): gaps[7 + i//2].append(r)
            if DP:
                cq = guard(L, f'd{s+1}', [x.replace('s36', 's37') for x in flat(bload(s+1))], dchk(s+1), 'v13')
                for i, x in enumerate(cq[:8]): gaps[8 + i//2].append(x)
                gaps[12] += cq[8:]
                for i, x in enumerate(swaps(s+1)): gaps[13 + i//2].append(x)
            else:
                for i, x in enumerate(swaps(s+1)): gaps[11 + i//2].append(x)
        for i, (sal, ins, tag) in enumerate(iss[7:]):
            gaps[13] += sal + [ins]; vm.add(tag)
        sc.run(mf, gaps)
    assert nb_ == NS and na_ == NS, (nb_, na_)
    mark(a, 11)
    PT = 32
    a.e('s_nop 3', 's_barrier')
    for nb in range(4):
        for qb in range(4):
            a.e(f'ds_write_b128 {V(E+4)}, {A(ACC+16*nb+4*qb,4)} offset:{qb*16*272 + nb*64}')
    a.e(vm.wait({('e', 99)}))
    if DP: a.e(guard(L, 'x', xl, chk_a(list(range(XR, XR+8)), 'v13', 'v14', 'v15'), 'v13'))
    for i in range(8): a.e(f'v_accvgpr_read_b32 {V(112+i)}, {A(XR+i)}', f'v_accvgpr_read_b32 {V(120+i)}, {A(GV+i)}')
    for i in range(8): a.e(f'v_lshlrev_b32 {V(96+2*i)}, 16, {V(112+i)}', f'v_and_b32 {V(97+2*i)}, 0xffff0000, {V(112+i)}')
    a.e('s_waitcnt lgkmcnt(0)', 's_barrier')
    for p in range(2):
        for pw in range(4):
            for h in range(2): a.e(f'ds_read_b128 {V(PT+32*p+8*pw+4*h,4)}, {V(E+3)} offset:{pw*17408 + p*8*272 + h*16}')
    for p in range(2):
        b = PT + 32*p
        a.e(f's_waitcnt lgkmcnt({12-8*p})')
        for i in range(0, 8, 2): a.e(f'v_pk_add_f32 {V(b+i,2)}, {V(b+i,2)}, {V(b+8+i,2)}')
        a.e(f's_waitcnt lgkmcnt({8-8*p})')
        for i in range(0, 8, 2): a.e(f'v_pk_add_f32 {V(b+16+i,2)}, {V(b+16+i,2)}, {V(b+24+i,2)}')
        for i in range(0, 8, 2): a.e(f'v_pk_add_f32 {V(b+i,2)}, {V(b+i,2)}, {V(b+16+i,2)}')
        for i in range(0, 8, 2): a.e(f'v_pk_fma_f32 {V(96+8*p+i,2)}, {V(b+i,2)}, {V(120+i,2)}, {V(96+8*p+i,2)}')
        for i in range(4): a.e(f'v_cvt_pk_bf16_f32 {V(b+i)}, {V(96+8*p+2*i)}, {V(97+8*p+2*i)}')
        if p: a.e('s_add_u32 s56, s56, 8192')
        a.e(f'buffer_store_dwordx4 {V(b,4)}, {V(E+2)}, s[8:11], s56 offen{opt.get("wt_d", "")}')

def fused_post(a, L, opt, Sched):
    del RETRY[:]
    SYNC['mode'] = opt.get('sync', 'mix'); SYNC['one'] = opt.get('one', 1); SYNC['vec'] = opt.get('vec', [2]); SYNC['map'] = opt.get('map', 8); assert SYNC['map'] == 8 or 0 not in SYNC['vec']
    vm = phase_o(a, L, opt, Sched)
    vm = phase_r(a, L, opt, vm)
    vm = phase_g(a, L, opt, vm, Sched)
    phase_d(a, L, opt, vm, Sched)
    if TL['on']:
        a.e('s_waitcnt vmcnt(0)'); mark(a, 12)
        srd(a, 8, 42, 43, 1 << 20, add=(58 << 20))
        a.e('s_lshl_b32 s54, s2, 2', 's_add_u32 s54, s54, s28', 's_lshl_b32 s54, s54, 7', 'v_lshlrev_b32 v5, 2, v2', 's_mov_b32 exec_hi, 0')
        a.e(f'buffer_store_dword {V(DIAG)}, v5, s[8:11], s54 offen', 's_mov_b64 exec, -1')
    if TL.get('dm'):
        W, x, y, f = TL['dm']
        a.e('s_waitcnt vmcnt(0)'); mark(a, 12)
        a.e(f's_cmp_lg_u32 s2, {W}', f's_cbranch_scc1 {L}_dmx', 's_cmp_lg_u32 s28, 0', f's_cbranch_scc1 {L}_dmx')
        a.e('s_load_dwordx2 s[8:9], s[0:1], 96', 's_waitcnt lgkmcnt(0)', 's_mov_b32 s10, 256', 's_mov_b32 s11, 0x20000', f'v_subrev_u32 v6, s94, {V(DIAG)}', 'v_lshlrev_b32 v5, 2, v2', 'v_subrev_u32 v5, 16, v5',
            'buffer_store_dword v6, v5, s[8:11], 0 offen')
        if f:
            a.e(f'v_readlane_b32 s92, v6, {x}', f'v_readlane_b32 s93, v6, {y}', 's_nop 3', 's_sub_u32 s92, s93, s92', f's_mul_i32 s92, s92, {f}', 's_min_u32 s92, s92, 100000',
                'spinl:', 's_memrealtime s[96:97]', 's_waitcnt lgkmcnt(0)', 's_sub_u32 s96, s96, s98', 's_cmp_lt_u32 s96, s92', 's_cbranch_scc1 spinl')
        a.e(f'{L}_dmx:')

WS_TAG = 32768
def front_addr(a):
    pass

WS_MODP = 24576
def phase_front(a, L, opt, wq, emit_list, vm, setup, HV):
    import math
    WA_ = wq(0, 4) + (wq(4, 4) if opt.get('w_pre', 16) == 16 else [])
    wn = [0]
    def wdma(lo=0):
        def em(lst):
            for sal, ins, tag in lst: a.e([x.replace('s50', 's56') for x in sal], ins.replace('s50', 's56'))
        em(WA_[lo:8])
        wn[0] += 1
        if opt.get('ghost', 0): a.e('s_cmp_eq_u32 s28, 3', f's_cbranch_scc1 {L}_fw{wn[0]}')
        em(WA_[8:]); a.e(f'{L}_fw{wn[0]}:')
    a.e('s_mov_b32 s62, 256', 's_mov_b32 s63, 0x20000')
    a.e('s_cmp_lg_u32 s2, 255', f's_cbranch_scc1 {L}_f1', 's_cmp_lg_u32 s28, 0', f's_cbranch_scc1 {L}_f1', 's_or_b32 s50, s86, 0x80000000')
    a.e('s_mov_b64 exec, 1', 'v_mov_b32 v12, 0', 'v_mov_b32 v11, s50', f'buffer_store_dword v11, v12, s[60:63], 0 offen{SC}', 's_mov_b64 exec, -1', f'{L}_f1:')
    a.e('s_cmp_lt_u32 s2, 128', f's_cbranch_scc1 {L}_fm0')
    a.e('s_and_b32 s50, s2, 1', 's_lshl_b32 s50, s50, 6', 's_bfe_u32 s51, s2, 0x20001', 's_lshl_b32 s51, s51, 4', 's_add_u32 s50, s50, s51', 's_bfe_u32 s51, s2, 0x40003', 's_add_u32 s47, s50, s51')
    srd(a, 8, 80, 81, 2097152)
    a.e('s_lshl_b32 s50, s47, 14', 's_lshl_b32 s51, s28, 8', 's_add_u32 s50, s50, s51', 'v_lshlrev_b32 v5, 10, v3', 'v_lshl_add_u32 v5, v4, 4, v5')
    for i in range(4): a.e(f'buffer_load_dwordx4 {V(16+4*i,4)}, v5, s[8:11], s50 offen offset:{64*i}{opt.get("xnt", "")}')
    a.e(f's_branch {L}_fj0')
    a.e(f'{L}_fm0:')
    srd(a, 8, 56, 57, 1024); srd(a, 12, 58, 59, 512*6144)
    E0 = opt.get('e0', 0)
    if E0:
        a.e('s_cmp_lg_u32 s28, 0', f's_cbranch_scc1 {L}_fe0')
        for sal, ins, tag in WA_[:E0]: a.e(sal, ins)
        a.e(f'{L}_fe0:')
    a.e('v_lshrrev_b32 v5, 2, v2', 's_lshl_b32 s50, s28, 4', 'v_add_u32 v5, s50, v5', 's_mov_b32 s51, 6144', 'v_mul_lo_u32 v6, v5, s51', 'v_and_b32 v7, 3, v2', 'v_lshl_add_u32 v6, v7, 4, v6', 'v_lshlrev_b32 v5, 1, v5')
    a.e('s_and_b32 s50, s2, 31', 's_lshr_b32 s51, s2, 5', 's_cmp_lt_u32 s2, 64', f's_cbranch_scc1 {L}_fa0')
    a.e('s_sub_u32 s50, s2, 32', 's_lshl_b32 s52, s50, 6', f's_add_u32 s52, s52, {256*6144}')
    for i in range(4, 8): a.e(f'buffer_load_ushort {V(64+i)}, v5, s[8:11], 0 offen offset:{i*128}')
    for i in range(4, 8): a.e(f'buffer_load_dwordx4 {V(16+4*i,4)}, v6, s[12:15], s52 offen{opt.get("mnt", "")}', f's_add_u32 s52, s52, {64*6144}')
    a.e('s_mov_b32 s51, 0', f'{L}_fa0:')
    a.e('s_mov_b32 s47, s50', 's_lshl_b32 s52, s50, 6', f's_mul_i32 s53, s51, {256*6144}', 's_add_u32 s52, s52, s53', 's_lshl_b32 s53, s51, 9')
    for i in range(4): a.e(f'buffer_load_ushort {V(64+i)}, v5, s[8:11], s53 offen offset:{i*128}')
    for i in range(4): a.e(f'buffer_load_dwordx4 {V(16+4*i,4)}, v6, s[12:15], s52 offen{opt.get("mnt", "")}', f's_add_u32 s52, s52, {64*6144}' if i < 3 else [])
    a.e(f'{L}_fj0:')
    NC = 0
    if opt.get('cpf', 1):
        a.e('s_getpc_b64 s[50:51]', f'{L}_pc:', f's_sub_u32 s50, s50, {L}_pc - code_begin', 's_subb_u32 s51, s51, 0')
        a.e('s_lshr_b32 s52, s2, 3', 's_lshl_b32 s52, s52, 2', 's_add_u32 s52, s52, s28', 's_lshl_b32 s52, s52, 12', 'v_lshlrev_b32 v80, 6, v2', 'v_add_u32 v80, s52, v80',
            'v_min_u32 v80, code_end - code_begin - 4, v80', 'global_load_dword v80, v80, s[50:51]'); NC += 1
    setup()
    def tagload(): a.e('v_mov_b32 v82, 0', f'buffer_load_dword v81, v82, s[60:63], 0 offen{SC}')
    def gettag(n):
        a.e('s_mov_b32 s53, 0', f'{L}_ft{n}:', 's_waitcnt vmcnt(0)', 'v_readfirstlane_b32 s39, v81', 's_add_u32 s53, s53, 1', 's_cmp_gt_u32 s53, 200000', f's_cbranch_scc1 {L}_ftd{n}',
            's_nop 1', 's_cmp_lg_u32 s39, 0', f's_cbranch_scc1 {L}_ftd{n}', f'buffer_load_dword v81, v82, s[60:63], 0 offen{SC}', f's_branch {L}_ft{n}', f'{L}_ftd{n}:')
    def flag():
        srd(a, 52, 42, 43, 16384, add=WS_FLAG + 4*16384)
        a.e('s_lshl_b32 s50, s2, 6', 's_mov_b64 exec, 1', 'v_mov_b32 v5, s50', 'v_mov_b32 v9, s39', f'buffer_store_dword v9, v5, s[52:55], 0 offen{SC}', 's_mov_b64 exec, -1')
    a.e('s_cmp_lt_u32 s2, 128', f's_cbranch_scc1 {L}_fm1')
    a.e('v_lshlrev_b32 v5, 4, v3', 'v_lshrrev_b32 v8, 1, v4', 'v_lshl_add_u32 v5, v8, 10, v5', 'v_and_b32 v8, 1, v4', 'v_lshl_add_u32 v5, v8, 9, v5')
    a.e('s_lshr_b32 s50, s47, 1', 's_lshl_b32 s50, s50, 15', 's_and_b32 s51, s47, 1', 's_lshl_b32 s51, s51, 8', 's_add_u32 s50, s50, s51', 's_lshl_b32 s51, s28, 13', 's_add_u32 s47, s50, s51')
    srd(a, 52, 42, 43, 2097152, add=WS_H)
    a.e('v_lshlrev_b32 v12, 3, v3', 's_lshl_b32 s50, s28, 7', 'v_add_u32 v13, s50, v12')
    a.e(f's_waitcnt vmcnt({NC})'); mark2(a, 17)
    LNW = opt.get('ln_w', 4)
    for sal, ins, tag in WA_[:LNW]: a.e([x.replace('s50', 's56') for x in sal], ins.replace('s50', 's56'))
    for i in range(16): a.e(f'v_lshlrev_b32 {V(32+2*i)}, 16, {V(16+i)}', f'v_and_b32 {V(33+2*i)}, 0xffff0000, {V(16+i)}')
    a.e('v_add_f32 v8, v32, v33', 'v_mul_f32 v9, v32, v32', 'v_add_f32 v10, v34, v35', 'v_mul_f32 v11, v33, v33')
    for e in range(2, 32, 2):
        if e >= 4: a.e(f'v_add_f32 v8, v8, {V(32+e)}', f'v_add_f32 v10, v10, {V(33+e)}')
        a.e(f'v_fmac_f32 v9, {V(32+e)}, {V(32+e)}', f'v_fmac_f32 v11, {V(33+e)}, {V(33+e)}')
    a.e('v_add_f32 v8, v8, v10', 'v_add_f32 v9, v9, v11')
    for perm in ('32', '16'):
        a.e('v_mov_b32 v10, v8', 'v_mov_b32 v11, v9', 's_nop 0', f'v_permlane{perm}_swap_b32 v8, v10', f'v_permlane{perm}_swap_b32 v9, v11', 'v_add_f32 v8, v8, v10', 'v_add_f32 v9, v9, v11')
    tagload()
    a.e('ds_write_b64 v13, v[8:9]', 's_waitcnt lgkmcnt(0)', 's_barrier')
    for i in range(4): a.e(f'ds_read_b64 {V(16+2*i,2)}, v12 offset:{128*i}')
    a.e('s_waitcnt lgkmcnt(0)', 'v_pk_add_f32 v[16:17], v[16:17], v[18:19]', 'v_pk_add_f32 v[20:21], v[20:21], v[22:23]', 'v_pk_add_f32 v[16:17], v[16:17], v[20:21]')
    a.e(f'v_mul_f32 v8, {f32hex(1/512)}, v16', f'v_mov_b32 v9, {f32hex(1e-5)}', f'v_fmac_f32 v9, {f32hex(1/512)}, v17', 'v_fma_f32 v9, -v8, v8, v9', f'v_max_f32 v9, {f32hex(1e-5)}, v9', 'v_rsq_f32 v9, v9', 's_add_u32 s50, s47, 4096')
    a.e('v_mul_f32 v8, v8, v9')
    for e in range(32): a.e(f'v_fma_f32 {V(32+e)}, {V(32+e)}, v9, -v8')
    for i in range(16): a.e(f'v_cvt_pk_f16_f32 {V(16+i)}, {V(32+2*i)}, {V(33+2*i)}')
    for i in range(4): a.e(f'buffer_store_dwordx4 {V(16+4*i,4)}, v5, s[52:55], {"s47" if i < 2 else "s50"} offen offset:{2048*(i & 1)}{SC}')
    mark2(a, 18)
    gettag(0)
    a.e('s_barrier', 's_cmp_lg_u32 s28, 0', f's_cbranch_scc1 {L}_fl1'); flag(); a.e(f'{L}_fl1:')
    wdma(LNW)
    a.e(f's_branch {L}_fj1')
    a.e(f'{L}_fm1:')
    a.e('v_and_b32 v5, 3, v2', 'v_lshlrev_b32 v12, 5, v5', 'v_and_b32 v5, 1, v4', 'v_lshl_add_u32 v12, v5, 3, v12', 'v_lshrrev_b32 v5, 5, v2', 'v_lshl_add_u32 v12, v5, 4, v12', 's_lshl_b32 s50, s28, 7', 'v_add_u32 v12, s50, v12')
    a.e(f's_mov_b32 s50, {f32hex(-math.log2(math.e))}')
    for d in range(8): a.e(f'v_mov_b32 {V(48+d)}, 0')
    def silu(rng):
        for i in rng: a.e(f'v_lshlrev_b32 {V(64+i)}, 16, {V(64+i)}')
        for i in rng: a.e(f'v_mul_f32 {V(72+i)}, s50, {V(64+i)}')
        for i in rng: a.e(f'v_exp_f32 {V(72+i)}, {V(72+i)}')
        a.e('s_nop 0')
        for i in rng: a.e(f'v_add_f32 {V(72+i)}, 1.0, {V(72+i)}')
        for i in rng: a.e(f'v_rcp_f32 {V(72+i)}, {V(72+i)}')
        a.e('s_nop 0')
        for i in rng: a.e(f'v_mul_f32 {V(64+i)}, {V(64+i)}, {V(72+i)}')
        for i in rng: round_bf16(a, V(64+i), V(64+i))
    def fma(i):
        for d in range(4):
            w = 16+4*i+d
            a.e(f'v_lshlrev_b32 v8, 16, {V(w)}', f'v_and_b32 v9, 0xffff0000, {V(w)}', f'v_fmac_f32 {V(48+2*d)}, v8, {V(64+i)}', f'v_fmac_f32 {V(49+2*d)}, v9, {V(64+i)}')
    a.e('s_cmp_lt_u32 s2, 64', f's_cbranch_scc1 {L}_fa1')
    a.e(f's_waitcnt vmcnt({NC+12})'); silu(range(4, 8))
    for i in range(4, 8): a.e(f's_waitcnt vmcnt({NC+8+7-i})'); fma(i)
    a.e(f'{L}_fa1:', f's_waitcnt vmcnt({NC+4})'); silu(range(4))
    for i in range(4):
        a.e(f's_waitcnt vmcnt({NC+3-i})')
        if i == 3: mark2(a, 17); tagload()
        fma(i)
    a.e('s_nop 1')
    for i in range(4): a.e(f'v_permlane32_swap_b32 v{48+i}, v{52+i}')
    for i in range(4): a.e(f'v_add_f32 v{48+i}, v{48+i}, v{52+i}')
    a.e('s_nop 0')
    for i in range(2): a.e(f'v_permlane16_swap_b32 v{48+i}, v{50+i}')
    for i in range(2): a.e(f'v_add_f32 v{48+i}, v{48+i}, v{50+i}')
    for r in (4, 8):
        a.e('s_nop 1')
        for i in range(2): a.e(f'v_add_f32_dpp v{48+i}, v{48+i}, v{48+i} row_ror:{r} row_mask:0xf bank_mask:0xf')
    a.e('ds_write_b64 v12, v[48:49]', 'v_and_b32 v5, 31, v2', 'v_lshlrev_b32 v5, 2, v5', 's_waitcnt lgkmcnt(0)', 's_barrier')
    a.e('s_cmp_eq_u32 s28, 0', f's_cbranch_scc1 {L}_fm2')
    gettag(1); wdma(); a.e(f's_branch {L}_fj1')
    a.e(f'{L}_fm2:')
    for i in range(4): a.e(f'ds_read_b32 {V(16+i)}, v5 offset:{128*i}')
    srd(a, 52, 42, 43, 65536)
    a.e('s_lshl_b32 s50, s47, 7', 'v_add_u32 v5, s50, v5', 's_lshr_b32 s51, s2, 5', 's_lshl_b32 s51, s51, 12', f's_add_u32 s51, s51, {WS_MODP}')
    a.e('s_waitcnt lgkmcnt(0)', 'v_add_f32 v16, v16, v17', 'v_add_f32 v18, v18, v19', 'v_add_f32 v16, v16, v18')
    a.e('s_cmp_lt_u32 s2, 64', f's_cbranch_scc1 {L}_fa2')
    a.e('s_lshr_b32 s50, s47, 4', 's_cmp_eq_u32 s50, 4', 's_cselect_b32 s50, 1.0, 0', 's_mov_b32 s51, 0')
    round_bf16(a, 'v16', 'v16'); a.e('v_add_f32 v16, s50, v16'); round_bf16(a, 'v16', 'v16')
    a.e(f'{L}_fa2:', 's_mov_b32 exec_hi, 0', f'buffer_store_dword v16, v5, s[52:55], s51 offen{SC}', 's_mov_b64 exec, -1')
    mark2(a, 18)
    gettag(2); flag(); wdma(opt.get('e0', 0))
    a.e(f'{L}_fj1:'); mark2(a, 16)
    a.e('s_lshr_b32 s50, s45, 2', 's_and_b32 s51, s50, 3', 's_lshl_b32 s51, s51, 1', 's_lshr_b32 s50, s50, 2', 's_add_u32 s50, s50, s51', 's_add_u32 s50, s50, 128')
    a.e('v_lshlrev_b32 v8, 3, v3', 'v_add_u32 v8, s50, v8', 'v_lshlrev_b32 v8, 6, v8', 'v_lshlrev_b32 v10, 6, v2')
    srd(a, 52, 42, 43, 16384, add=WS_FLAG + 4*16384); srd(a, 24, 42, 43, 8192, add=WS_MODP)
    a.e('s_cmp_lg_u32 s28, 3', f's_cbranch_scc1 {L}_pd4', 's_mov_b32 s50, 0', f'{L}_pl4:', f'buffer_load_dword v5, v8, s[52:55], 0 offen{SC}', f'buffer_load_dword v9, v10, s[52:55], 0 offen{SC}',
        's_add_u32 s50, s50, 1', 's_waitcnt vmcnt(0)', 'v_cmp_eq_u32 vcc, s39, v5', 'v_cmp_eq_u32 s[56:57], s39, v9', 's_cmp_gt_u32 s50, 200000', f's_cbranch_scc1 {L}_pd4',
        's_and_b64 vcc, vcc, s[56:57]', 's_cmp_eq_u64 vcc, -1', f's_cbranch_scc1 {L}_pd4', f's_sleep {opt.get("psleep", 0)}' if opt.get('psleep', 0) else [], f's_branch {L}_pl4', f'{L}_pd4:')
    a.e('s_waitcnt vmcnt(8)', 's_barrier'); mark2(a, 19); unpark0(a)
    del vm[:]
    for h in range(2): a.e(f's_add_u32 s50, s49, {4096*h}' , f'buffer_load_dwordx4 {V(16+4*h,4)}, {V(HV)}, s[24:27], s50 offen{SC}'); vm.append(('m', 0))

def front_late(a, L, wq, vm, opt):
    if not opt.get('ghost', 0): return
    a.e('s_cmp_lg_u32 s28, 3', f's_cbranch_scc1 {L}_fwl')
    for sal, ins, tag in wq(4, 4): a.e(sal, ins)
    a.e(f'{L}_fwl:')
    vm.append(('w', 4, 'ghost'))

def front_table(a, HV):
    a.e('s_cmp_ge_u32 s28, 2', 's_cselect_b32 s50, 1.0, 0', 's_xor_b32 s51, s49, 2048', 's_add_u32 s51, s51, 147456', f'v_add_u32 v5, s51, {V(HV)}')
    for i in range(4): a.e(f'v_add_f32 {V(16+i)}, {V(16+i)}, {V(20+i)}')
    for i in range(4): round_bf16(a, V(16+i), V(16+i))
    for i in range(4): a.e(f'v_add_f32 {V(16+i)}, s50, {V(16+i)}')
    for i in range(4): round_bf16(a, V(16+i), V(16+i))
    for i in range(4): a.e(f'v_mul_f32 {V(16+i)}, {f32hex(QSCALE)}, {V(16+i)}')
    a.e('ds_write_b128 v5, v[16:19]', 's_waitcnt lgkmcnt(0)')
```
